```python
import torch

def _softmax(x, axis=-1):
    return torch.softmax(x, dim=axis)
def _gelu(x):
    return torch.nn.functional.gelu(x, approximate="tanh")
def _silu(x):
    return torch.nn.functional.silu(x)
def _sigmoid(x):
    return torch.sigmoid(x)
def _layernorm(x, axis=-1, eps=1e-5):
    m = x.mean(dim=axis, keepdim=True)
    v = x.var(dim=axis, keepdim=True, unbiased=False)
    return (x - m) / torch.sqrt(v + eps)
def _scatter_add(tgt, idx, src, axis=0):
    return tgt.clone().index_add_(axis, idx, src)
def _segment_sum(src, seg, n):
    out = torch.zeros((n,) + src.shape[1:], dtype=src.dtype)
    return out.index_add_(0, seg, src)
def _pad(x, pw):
    flat = tuple(v for pair in reversed(pw) for v in pair)
    return torch.nn.functional.pad(x, flat)

kernel_name = 'gated_mix__spectral_gfnet__dense_activation_mish__prompt'

def setup_inputs():

    _w = (lambda a: (lambda t: t.to(torch.bfloat16) if t.is_floating_point() else t)(torch.as_tensor(a)))
    def _A_setup():
        B, S, D = 1, 2048, 448
        Df = D // 2 + 1
        return {
            "x": _w((lambda *s: torch.randn(*s, dtype=torch.bfloat16) * 0.05)(B, S, D)),
            "w_r": _w((lambda *s: torch.randn(*s, dtype=torch.bfloat16) * 1.6)(S, Df) * 0.02),
            "w_i": _w((lambda *s: torch.randn(*s, dtype=torch.bfloat16) * 1.6)(S, Df) * 0.02),
        }
    _A_in = _A_setup()

    def _B_setup():
        B, S, D, F = 1, 2048, 448, 1792
        return {
            "x": _w((lambda *s: torch.randn(*s, dtype=torch.bfloat16) * 0.05)(B, S, D)),
            "w1": _w((lambda *s: torch.randn(*s, dtype=torch.bfloat16) * 6.4)(D, F) * (D ** -0.5)),
            "b1": _w((lambda *s: torch.randn(*s, dtype=torch.bfloat16) * 0.05)(F)),
            "w2": _w((lambda *s: torch.randn(*s, dtype=torch.bfloat16) * 0.05)(F, D) * (F ** -0.5)),
        }
    _B_in = _B_setup()

    return {
        "A_x": _A_in["x"],
        "A_w_r": _A_in["w_r"],
        "A_w_i": _A_in["w_i"],
        "B_x": _B_in["x"],
        "B_w1": _B_in["w1"],
        "B_b1": _B_in["b1"],
        "B_w2": _B_in["w2"],
        "gate_w": _w((lambda *s: torch.randn(*s, dtype=torch.bfloat16) * 0.05)(448) * 16.0),
    }

def reference(A_x, A_w_r, A_w_i, B_x, B_w1, B_b1, B_w2, gate_w):
    def _A_ref(x, w_r, w_i):
        B, S, D = x.shape
        X = (lambda x, axes=(-2,-1): torch.fft.rfft2(x.float(), dim=axes))(x, axes=(-2, -1))
        W = w_r + 1j * w_i
        X = X * W
        y = (lambda x, s, axes=(-2,-1): torch.fft.irfft2(x, s=s, dim=axes).to(torch.bfloat16))(X, (S, D), axes=(-2, -1))
        return y

    def _B_ref(x, w1, b1, w2):
        h = torch.einsum("bsd,df->bsf", x, w1) + b1
        sp = torch.log1p(torch.exp(-torch.abs(h))) + torch.where(h > 0, h, torch.zeros_like(h))
        act = h * torch.tanh(sp)
        return torch.einsum("bsf,fd->bsd", act, w2)

    x = A_x
    g = _sigmoid((x * gate_w).sum(-1, keepdims=True))
    a = _A_ref(x, A_w_r, A_w_i)
    b = _B_ref(x, B_w1, B_b1, B_w2)
    return g * a + (1 - g) * b
```

```python
import re

REG_RE = re.compile(r'(?<![\w.])(-?\|?)([vas])(?:(\d+)|\[(\d+):(\d+)\])(?![\w])')

def regs_of(tok):
    tok = tok.strip()
    out = set()
    for m in REG_RE.finditer(tok):
        k = m.group(2)
        if m.group(3) is not None:
            out.add((k, int(m.group(3))))
        else:
            for n in range(int(m.group(4)), int(m.group(5)) + 1):
                out.add((k, n))
    for sp in ('vcc', 'exec', 'm0'):
        if re.search(r'(?<![\w])' + sp + r'(_lo|_hi)?(?![\w])', tok):
            out.add((sp, 0))
    return out

TRANS = ('v_exp_f32', 'v_log_f32', 'v_rcp_f32', 'v_rsq_f32', 'v_sqrt_f32', 'v_sin_f32', 'v_cos_f32', 'v_rcp_iflag_f32')

def split_ops(s):
    ops, depth, cur = [], 0, ''
    for ch in s:
        if ch == '[': depth += 1
        if ch == ']': depth -= 1
        if ch == ',' and depth == 0:
            ops.append(cur); cur = ''
        else:
            cur += ch
    if cur.strip(): ops.append(cur)
    return [o.strip() for o in ops]

class Ins:
    def __init__(self, text):
        self.text = text
        t = text.split(';')[0].strip()
        self.label = t.endswith(':')
        self.directive = t.startswith('.') and not self.label
        self.op = '' if (self.label or self.directive or not t) else t.split()[0]
        rest = t[len(self.op):] if self.op else ''
        ops = split_ops(rest)
        op = self.op
        base = re.sub(r'_(e32|e64|sdwa|dpp)$', '', op)
        self.base = base
        self.W = set(); self.R = set(); self.C = set(); self.AB = set()
        self.kind = 'other'
        self.passes = 0
        if not op: return
        if op.startswith('v_mfma'):
            self.kind = 'mfma'
            self.W = regs_of(ops[0]); self.AB = regs_of(ops[1]) | regs_of(ops[2]); self.C = regs_of(ops[3])
            self.R = self.AB | self.C
            self.passes = 8 if '32x32' in op else 4
        elif op.startswith('v_'):
            self.kind = 'valu'
            self.W = regs_of(ops[0])
            srcs = ops[1:]
            if base in ('v_add_co_u32', 'v_sub_co_u32', 'v_addc_co_u32', 'v_subb_co_u32', 'v_subrev_co_u32', 'v_mad_u64_u32', 'v_div_scale_f32'):
                self.W |= regs_of(ops[1]); srcs = ops[2:]
            for o in srcs: self.R |= regs_of(o)
            if base in ('v_fmac_f32', 'v_swap_b32', 'v_pk_fmac_f16', 'v_permlane32_swap_b32', 'v_permlane16_swap_b32', 'v_dot2c_f32_bf16', 'v_writelane_b32'):
                self.R |= regs_of(ops[0])
            if base in ('v_swap_b32', 'v_permlane32_swap_b32', 'v_permlane16_swap_b32'):
                self.W |= regs_of(ops[1])
            if base.startswith('v_cmpx'): self.W.add(('exec', 0))
            self.trans = base in TRANS
        elif op.startswith('buffer_') or op.startswith('global_'):
            self.kind = 'vmem'
            is_lds = bool(re.search(r'\blds\b', t)) or 'load_lds' in op
            self.is_lds = is_lds
            if 'load' in op and not is_lds:
                self.W = regs_of(ops[0])
                if 'd16' in op: self.R |= regs_of(ops[0])
                for o in ops[1:]: self.R |= regs_of(o)
            else:
                for o in ops: self.R |= regs_of(o)
                if is_lds: self.R.add(('m0', 0))
                if 'atomic' in op and re.search(r'\bsc0\b', t):
                    self.W = regs_of(ops[0])
            self.wide_store = ('store' in op and ('x3' in op or 'x4' in op))
            if self.wide_store:
                self.SD = regs_of(ops[0]) if op.startswith('buffer_') else regs_of(ops[1])
        elif op.startswith('ds_'):
            self.kind = 'ds'
            if 'read' in op or 'permute' in op or 'swizzle' in op:
                self.W = regs_of(ops[0])
                for o in ops[1:]: self.R |= regs_of(o)
            else:
                for o in ops: self.R |= regs_of(o)
        elif op.startswith('s_'):
            self.kind = 'salu'
            if op.startswith(('s_cmp', 's_cbranch', 's_branch', 's_waitcnt', 's_barrier', 's_nop', 's_endpgm', 's_setprio', 's_sleep', 's_bitcmp')):
                for o in ops: self.R |= regs_of(o)
            else:
                self.W = regs_of(ops[0])
                for o in ops[1:]: self.R |= regs_of(o)
                if 'saveexec' in op: self.W.add(('exec', 0))
    def states(self):
        if self.label or self.directive or not self.op: return 0
        if self.op == 's_nop':
            return int(self.text.split(';')[0].split()[1], 0) + 1
        return 1

def isv(r): return r[0] in ('v', 'a')
def iss(r): return r[0] in ('s', 'vcc')

def need(p, c):
    n = 0
    if p.kind == 'valu':
        vw = {r for r in p.W if isv(r)}
        sw = {r for r in p.W if iss(r)}
        if c.kind == 'mfma' and (vw & c.R): n = max(n, 2)
        if c.kind == 'valu':
            if p.trans and not c.trans and (vw & (c.R | c.W)): n = max(n, 1)
            if p.trans and (vw & c.R): n = max(n, 1)
            if sw & c.R: n = max(n, 2)
            if c.base in ('v_readlane_b32', 'v_writelane_b32') and (sw & c.R): n = max(n, 4)
            if c.base in ('v_readlane_b32', 'v_readfirstlane_b32') and (vw & c.R): n = max(n, 1)
            if c.base.startswith('v_permlane') and (vw & c.R): n = max(n, 2)
            if ('dpp' in c.text or 'row_' in c.text or 'quad_perm' in c.text) and (vw & c.R): n = max(n, 2)
            if ('op_sel' in p.text or 'sdwa' in p.text or 'dst_sel' in p.text) and (vw & (c.R | c.W)): n = max(n, 1)
            if ('exec', 0) in p.W: n = max(n, 5)
        if c.kind == 'mfma' and ('exec', 0) in p.W: n = max(n, 4)
        if c.kind == 'vmem' and (sw & c.R): n = max(n, 5)
        if c.kind == 'salu' and (sw & c.R): n = max(n, 1)
        if p.trans and c.kind in ('vmem', 'ds') and (vw & c.R): n = max(n, 1)
    if p.kind == 'mfma':
        P = p.passes
        rw = {4: 8, 8: 12}[P]
        if c.kind == 'mfma':
            if p.W & c.AB: n = max(n, rw)
            if p.W & c.C:
                if not (p.W == c.C and c.passes == P): n = max(n, {4: 6, 8: 10}[P])
            if (p.W & c.W) and not (p.W == c.C): n = max(n, rw)
        elif c.kind in ('valu', 'vmem', 'ds'):
            if p.W & (c.R | c.W): n = max(n, rw)
            if c.kind == 'valu' and (p.C & c.W): n = max(n, {4: 3, 8: 7}[P])
            if c.kind in ('vmem', 'ds') and (p.C & c.W): n = max(n, {4: 3, 8: 7}[P])
    if p.kind == 'salu':
        if ('m0', 0) in p.W and c.kind == 'vmem' and getattr(c, 'is_lds', False): n = max(n, 1)
    if p.kind == 'vmem' and getattr(p, 'wide_store', False):
        if c.kind in ('valu', 'mfma') and (p.SD & c.W): n = max(n, 2)
        elif (p.SD & c.W): n = max(n, 1)
    return n

def pad_hazards(lines, window=24):
    out = []
    nnop = 0
    for text in lines:
        c = Ins(text)
        if c.op:
            dist = 0; req = 0
            for p in reversed(out[-3 * window:]):
                if dist >= 20: break
                if p.op:
                    k = need(p, c)
                    if k - dist > req: req = k - dist
                dist += p.states()
            while req > 0:
                k = min(req, 16)
                out.append(Ins('s_nop %d' % (k - 1))); nnop += 1
                req -= k
        out.append(c)
    return [i.text for i in out], nnop

class Alloc:
    def __init__(self, kind, start, limit):
        self.kind = kind; self.next = start; self.limit = limit; self.hi = start
    def __call__(self, n=1, align=None):
        if align is None: align = 1 if n == 1 else (2 if n == 2 else 4)
        b = (self.next + align - 1) // align * align
        self.next = b + n
        assert self.next <= self.limit, 'out of %s regs' % self.kind
        self.hi = max(self.hi, self.next)
        return b
    def mark(self): return self.next
    def release(self, m): self.next = m

def V(b, n=1): return 'v%d' % b if n == 1 else 'v[%d:%d]' % (b, b + n - 1)
def A(b, n=1): return 'a%d' % b if n == 1 else 'a[%d:%d]' % (b, b + n - 1)
def S(b, n=1): return 's%d' % b if n == 1 else 's[%d:%d]' % (b, b + n - 1)

import struct
def f2u(x): return '0x%08x' % struct.unpack('<I', struct.pack('<f', x))[0]

def interleave(main, fill, every):
    out = []; fi = 0
    for g in main:
        out += g
        out += fill[fi:fi + every]; fi += every
    out += fill[fi:]
    return out
```

```python
import sys, math
from dsl import *

NAME = 'gated_mix__spectral_gfnet__dense_activation_mish__prompt'
ACT_OFF, ACT_SZ = 0x0, 64 * 56 * 2048
PART_OFF, PART_SZ = 0x700000, 4 * 64 * 28 * 1024
A1_OFF, A1_SZ = 0xE00000, 16 * 16 * 8192
B1_OFF, B1_SZ = 0x1000000, 64 * 16 * 2048
GATE_OFF, GATE_SZ = 0x1200000, 8192
X_SZ = 2048 * 896
W_SZ = 2048 * 450
W1_SZ = 448 * 3584
W2_SZ = 1792 * 896
LOG2E = math.log2(math.e)
WIMG = 102400
MFMA = 'v_mfma_f32_16x16x32_bf16'

sX, sWR, sWI, sW1, sB1, sW2, sGW, sOUT, sWS = 16, 18, 20, 24, 26, 28, 30, 32, 34

def srd(L, d, base, off, size):
    if off:
        L += ['s_add_u32 %s, %s, 0x%x' % (S(d), S(base), off), 's_addc_u32 %s, %s, 0' % (S(d + 1), S(base + 1))]
    else:
        L += ['s_mov_b32 %s, %s' % (S(d), S(base)), 's_mov_b32 %s, %s' % (S(d + 1), S(base + 1))]
    L += ['s_mov_b32 %s, 0x%x' % (S(d + 2), size), 's_mov_b32 %s, 0x20000' % S(d + 3)]

def head(L, label, nwg):
    L += ['.p2align 8', '.type %s,@function' % label, '%s:' % label,
          's_cmp_ge_u32 s2, %d' % nwg, 's_cbranch_scc1 %s_end' % label,
          's_load_dwordx16 s[16:31], s[0:1], 0', 's_load_dwordx2 s[32:33], s[0:1], 64', 's_load_dwordx2 s[34:35], s[0:1], 80']

def tail(L, label):
    L += ['%s_end:' % label, 's_endpgm']

def desc(label, nv, na, ns):
    acc = (nv + 3) // 4 * 4
    tot = acc + na if na else nv
    return ['.p2align 6', '.amdhsa_kernel %s' % label,
            '  .amdhsa_next_free_vgpr %d' % tot, '  .amdhsa_next_free_sgpr %d' % ns,
            '  .amdhsa_accum_offset %d' % acc, '  .amdhsa_group_segment_fixed_size 0',
            '  .amdhsa_kernarg_size 88', '  .amdhsa_user_sgpr_count 2',
            '  .amdhsa_user_sgpr_kernarg_segment_ptr 1', '  .amdhsa_system_sgpr_workgroup_id_x 1',
            '.end_amdhsa_kernel']

STAGE_M = [3, 6, 10, 13, 17, 20, 24]

def dma_offsets(L, va, vD, vt0, vt1, vt2, stride, perm, sPar):
    for t in range(7):
        L += ['v_add_u32 %s, %d, v0' % (V(vt0), 256 * t),
              'v_mul_u32_u24 %s, 4682, %s' % (V(vt1), V(vt0)),
              'v_lshrrev_b32 %s, 16, %s' % (V(vt1), V(vt1)),
              'v_mul_u32_u24 %s, 14, %s' % (V(vt2), V(vt1)),
              'v_sub_u32 %s, %s, %s' % (V(vt0), V(vt0), V(vt2))]
        if perm:
            L += ['v_add_u32 %s, %s, %s' % (V(vt0), S(sPar), V(vt0)),
                  'v_subrev_u32 %s, 14, %s' % (V(vt2), V(vt0)),
                  'v_min_u32 %s, %s, %s' % (V(vt0), V(vt0), V(vt2)),
                  'v_and_b32 %s, 12, %s' % (V(vt2), V(vt1)),
                  'v_lshlrev_b32 %s, 1, %s' % (V(vt2), V(vt2)),
                  'v_and_b32 %s, 0xffffffe3, %s' % (V(vD + t), V(vt1)),
                  'v_or_b32 %s, %s, %s' % (V(vD + t), V(vD + t), V(vt2)),
                  'v_lshrrev_b32 %s, 2, %s' % (V(vt2), V(vt1)),
                  'v_and_b32 %s, 4, %s' % (V(vt2), V(vt2)),
                  'v_or_b32 %s, %s, %s' % (V(vt1), V(vD + t), V(vt2))]
        L += ['v_mul_u32_u24 %s, %d, %s' % (V(vt1), stride, V(vt1)),
              'v_lshl_add_u32 %s, %s, 4, %s' % (V(vD + t), V(vt0), V(vt1))]

def gemm_loads(vD, srdW, sWoff, sM0, sTmp, stride, xload):
    groups = []
    m = 0
    for g in range(7):
        b = []
        for ks in (2 * g, 2 * g + 1):
            for rt in range(2):
                b.append(xload(rt, ks))
        while m <= STAGE_M[g]:
            b.append(['s_add_u32 m0, %s, %d' % (S(sM0), m * 4096),
                      'buffer_load_dwordx4 %s, %s, %s offen lds' % (V(vD + m % 7), S(srdW, 4), S(sWoff + m // 7))])
            m += 1
        groups.append(b)
    return groups

def gemm_main(L, ntile, reads, mfmas, vm_after):
    L += ['s_waitcnt vmcnt(%d) lgkmcnt(0)' % vm_after[0], 's_barrier']
    L += reads(0)
    for ks in range(14):
        if ks + 1 < 14 and (ks + 1) % 2 == 0:
            L += ['s_waitcnt vmcnt(%d)' % vm_after[(ks + 1) // 2], 's_barrier']
        L += ['s_waitcnt lgkmcnt(0)']
        rd = reads(ks + 1) if ks + 1 < 14 else []
        mm = mfmas(ks)
        L += interleave([[x] for x in mm], rd, 2)

def k1():
    label = 'k1_kernel'
    L = []
    va = Alloc('v', 1, 256); aa = Alloc('a', 0, 256); sa = Alloc('s', 36, 100)
    head(L, label, 256)
    rX = sa(4); rW1 = sa(4); rB1 = sa(4); rGW = sa(4); rACT = sa(4); rA1 = sa(4); rGT = sa(4)
    sW = sa(); sI = sa(); sC = sa(); sN2 = sa(); sPar2 = sa(); sT = sa(); sT2 = sa(); sM0 = sa()
    sXo = sa(2); sWo = sa(4); sBo = sa(2); sInv448 = sa(); sM448 = sa(); sL2E = sa(); sAo = sa(2)
    vL = va(); vQ = va(); vJ = va(); t0 = va(); t1 = va(); t2 = va(); t3 = va()
    L += ['v_and_b32 %s, 63, v0' % V(vL), 'v_lshrrev_b32 %s, 6, v0' % V(t0),
          'v_lshrrev_b32 %s, 4, %s' % (V(vQ), V(vL)), 'v_and_b32 %s, 15, v0' % V(vJ),
          'v_readfirstlane_b32 %s, %s' % (S(sW), V(t0)),
          's_and_b32 %s, s2, 7' % S(sT), 's_lshr_b32 %s, s2, 3' % S(sT2),
          's_lshr_b32 %s, %s, 2' % (S(sI), S(sT)), 's_lshl_b32 %s, %s, 3' % (S(sI), S(sI)),
          's_lshr_b32 %s, %s, 2' % (S(sC), S(sT2)), 's_add_u32 %s, %s, %s' % (S(sI), S(sI), S(sC)),
          's_and_b32 %s, %s, 3' % (S(sT), S(sT)), 's_lshl_b32 %s, %s, 2' % (S(sT), S(sT)),
          's_and_b32 %s, %s, 3' % (S(sC), S(sT2)), 's_add_u32 %s, %s, %s' % (S(sC), S(sC), S(sT)),
          's_lshl_b32 %s, %s, 2' % (S(sN2), S(sI)), 's_add_u32 %s, %s, %s' % (S(sN2), S(sN2), S(sW)),
          's_and_b32 %s, %s, 1' % (S(sPar2), S(sC)), 's_lshl_b32 %s, %s, 1' % (S(sPar2), S(sPar2)),
          's_lshl_b32 %s, %s, 10' % (S(sM0), S(sW)),
          's_mul_i32 %s, %s, 896' % (S(sXo), S(sN2)), 's_add_u32 %s, %s, 917504' % (S(sXo + 1), S(sXo)),
          's_mul_i32 %s, %s, 224' % (S(sWo), S(sC))]
    for p in range(1, 4):
        L += ['s_add_u32 %s, %s, %d' % (S(sWo + p), S(sWo), p * 128 * 3584)]
    L += ['s_lshl_b32 %s, %s, 4' % (S(sT), S(sPar2)), 's_add_u32 %s, %s, %s' % (S(sBo), S(sWo), S(sT)),
          's_mul_i32 %s, %s, 96' % (S(sT), S(sPar2)), 's_add_u32 %s, %s, 192' % (S(sBo + 1), S(sWo)),
          's_sub_u32 %s, %s, %s' % (S(sBo + 1), S(sBo + 1), S(sT)),
          's_mov_b32 %s, %s' % (S(sInv448), f2u(1.0 / 448)), 's_mov_b32 %s, %s' % (S(sM448), f2u(-448.0)),
          's_mov_b32 %s, %s' % (S(sL2E), f2u(LOG2E))]
    vXo = va(); vQ16 = va(); vQ8 = va(); vD = va(7, 1); vTr = va(2, 1); vL16 = va()
    L += ['v_lshlrev_b32 %s, 4, %s' % (V(vQ16), V(vQ)), 'v_lshlrev_b32 %s, 3, %s' % (V(vQ8), V(vQ)),
          'v_mul_u32_u24 %s, 57344, %s' % (V(vXo), V(vJ)), 'v_add_u32 %s, %s, %s' % (V(vXo), V(vXo), V(vQ16)),
          'v_lshlrev_b32 %s, 4, %s' % (V(vL16), V(vL))]
    dma_offsets(L, va, vD, t0, t1, t2, 3584, True, sPar2)
    L += ['s_waitcnt lgkmcnt(0)']
    srd(L, rX, sX, 0, X_SZ); srd(L, rW1, sW1, 0, W1_SZ); srd(L, rB1, sB1, 0, 3584); srd(L, rGW, sGW, 0, 896)
    XF = [[aa(4) for ks in range(14)] for rt in range(2)]
    accb = va(72, 4)
    ACC = [[accb + 36 * rt + 4 * T for T in range(9)] for rt in range(2)]
    ta = Alloc('v', accb, accb + 72)
    vGW = [ta(4) for a in range(4)]
    vBraw = [ta(2) for T in range(7)]
    pre = []
    L += ['s_lshl_b32 %s, %s, 6' % (S(sT), S(sW))]
    for a in range(4):
        pre.append(['buffer_load_dwordx4 %s, %s, %s, %s offen offset:%d' % (V(vGW[a], 4), V(vQ16), S(rGW, 4), S(sT), a * 256)])
    for T in range(7):
        pre.append(['buffer_load_dwordx2 %s, %s, %s, %s offen offset:%d' % (V(vBraw[T], 2), V(vQ8), S(rB1, 4), S(sBo + (T == 6)), 32 * T if T < 6 else 0)])
    xload = lambda rt, ks: ['buffer_load_dwordx4 %s, %s, %s, %s offen offset:%d' % (A(XF[rt][ks], 4), V(vXo), S(rX, 4), S(sXo + rt), ks * 64)]
    groups = gemm_loads(vD, rW1, sWo, sM0, sT, 3584, xload)
    vm_after = [sum(len(g) for g in groups[i + 1:]) for i in range(7)]
    allg = pre + [b for g in groups for b in g]
    G = []
    srd(G, rACT, sWS, ACT_OFF, ACT_SZ); srd(G, rA1, sWS, A1_OFF, A1_SZ); srd(G, rGT, sWS, GATE_OFF, GATE_SZ)
    vKdf = va(); vU = va(); vD0 = va(); vFw = va(); vAmp = va()
    cs = ta(8); sn = ta(8); th = ta(8); pk0 = ta(4); pk1 = ta(4)
    G += ['s_lshl_b32 %s, %s, 4' % (S(sT2), S(sC)),
          'v_add_u32 %s, %s, %s' % (V(t3), S(sT2), V(vJ)),
          'v_cvt_f32_u32 %s, %s' % (V(vKdf), V(t3)),
          'v_mul_f32 %s, %s, %s' % (V(vU), S(sInv448), V(vKdf)),
          'v_mov_b32 %s, 1.0' % V(vAmp),
          'v_cmp_eq_u32 vcc, 0, %s' % V(t3), 'v_cndmask_b32 %s, %s, 0.5, vcc' % (V(vAmp), V(vAmp)),
          'v_cmp_eq_u32 vcc, 224, %s' % V(t3), 'v_cndmask_b32 %s, %s, 0.5, vcc' % (V(vAmp), V(vAmp)),
          'v_cmp_lt_u32 vcc, 224, %s' % V(t3), 'v_cndmask_b32 %s, %s, 0, vcc' % (V(vAmp), V(vAmp)),
          's_lshl_b32 %s, %s, 5' % (S(sT2), S(sW)),
          'v_add_u32 %s, %s, %s' % (V(t3), S(sT2), V(vQ8)),
          'v_cvt_f32_u32 %s, %s' % (V(vD0), V(t3)),
          's_lshl_b32 %s, %s, 11' % (S(sT2), S(sW)),
          's_add_u32 %s, %s, %d' % (S(sT2), S(sT2), WIMG),
          'v_add_u32 %s, %s, %s' % (V(vFw), S(sT2), V(vL16))]
    for a in range(4):
        if a: G += ['v_add_f32 %s, %s, %s' % (V(vD0), f2u(128.0), V(vD0))]
        G += ['v_mul_f32 %s, %s, %s' % (V(t3), V(vKdf), V(vD0)),
              'v_mul_f32 %s, %s, %s' % (V(th), S(sInv448), V(t3)),
              'v_floor_f32 %s, %s' % (V(th), V(th)),
              'v_fma_f32 %s, %s, %s, %s' % (V(t3), V(th), S(sM448), V(t3)),
              'v_mul_f32 %s, %s, %s' % (V(th), S(sInv448), V(t3))]
        for e in range(1, 8): G += ['v_add_f32 %s, %s, %s' % (V(th + e), V(th + e - 1), V(vU))]
        for e in range(8): G += ['v_cos_f32 %s, %s' % (V(cs + e), V(th + e)), 'v_sin_f32 %s, %s' % (V(sn + e), V(th + e))]
        for e in range(4):
            G += ['v_cvt_pk_bf16_f32 %s, %s, %s' % (V(pk0 + e), V(cs + 2 * e), V(cs + 2 * e + 1)),
                  'v_cvt_pk_bf16_f32 %s, -%s, -%s' % (V(pk1 + e), V(sn + 2 * e), V(sn + 2 * e + 1))]
        G += ['ds_write_b128 %s, %s offset:%d' % (V(vFw), V(pk0, 4), a * 8192),
              'ds_write_b128 %s, %s offset:%d' % (V(vFw), V(pk1, 4), a * 8192 + 1024)]
    MR = [[va(4) for t in range(2)] for kt in range(2)]; MI = [[va(4) for t in range(2)] for kt in range(2)]
    vK = [th, th + 1]; vS0 = th + 2; vS = th + 3; vA = [th + 4, th + 5]
    G += ['v_cvt_f32_u32 %s, %s' % (V(vK[0]), V(vJ)),
          'v_mul_f32 %s, %s, %s' % (V(vK[0]), f2u(1.0 / 2048), V(vK[0])),
          'v_add_f32 %s, %s, %s' % (V(vK[1]), f2u(16.0 / 2048), V(vK[0])),
          'v_lshlrev_b32 %s, 8, %s' % (V(vS0), V(vQ)),
          'v_add_u32 %s, %s, %s' % (V(vS0), S(sN2), V(vS0)),
          'v_cvt_f32_u32 %s, %s' % (V(vS0), V(vS0))]
    for t in range(2):
        for r in range(4):
            G += ['v_add_f32 %s, %s, %s' % (V(vS), f2u(64.0 * (16 * t + r)), V(vS0))]
            for kt in range(2): G += ['v_mul_f32 %s, %s, %s' % (V(vA[kt]), V(vK[kt]), V(vS))]
            for kt in range(2): G += ['v_cos_f32 %s, %s' % (V(cs + kt), V(vA[kt])), 'v_sin_f32 %s, %s' % (V(sn + kt), V(vA[kt]))]
            for kt in range(2):
                G += ['v_cvt_pk_bf16_f32 %s, %s, %s' % (V(MR[kt][t] + r), V(cs + kt), V(sn + kt)),
                      'v_cvt_pk_bf16_f32 %s, -%s, %s' % (V(MI[kt][t] + r), V(sn + kt), V(cs + kt))]
    G += ['v_lshrrev_b32 %s, 2, %s' % (V(t3), V(vL)), 'v_mul_u32_u24 %s, 224, %s' % (V(vTr), V(t3)),
          'v_and_b32 %s, 3, %s' % (V(t3), V(vL)), 'v_lshl_add_u32 %s, %s, 3, %s' % (V(vTr), V(t3), V(vTr)),
          'v_add_u32 %s, %d, %s' % (V(vTr + 1), 7 * 7168, V(vTr))]
    vFr = va()
    G += ['v_add_u32 %s, %d, %s' % (V(vFr), WIMG, V(vL16))]
    L += interleave(allg, G, 5)
    nall = len(allg)
    vB = [va(4) for T in range(7)]
    L += ['s_waitcnt vmcnt(%d)' % (nall - len(pre))]
    for T in range(7):
        for h in range(2):
            L += ['v_lshlrev_b32 %s, 16, %s' % (V(vB[T] + 2 * h), V(vBraw[T] + h)),
                  'v_and_b32 %s, 0xffff0000, %s' % (V(vB[T] + 2 * h + 1), V(vBraw[T] + h))]
    L += ['s_cmp_lg_u32 %s, 15' % S(sC), 's_cbranch_scc1 k1_nogate0']
    for a in range(4): L += ['ds_write_b128 %s, %s offset:%d' % (V(vFw), V(vGW[a], 4), a * 8192)]
    L += ['k1_nogate0:']
    WF = [[va(4) for T in range(9)] for b in range(2)]
    def reads(ks):
        o = []
        base = vTr + (ks >= 7); off = (ks % 7) * 7168
        for T in range(7):
            for b in range(2):
                o.append('ds_read_b64_tr_b16 %s, %s offset:%d' % (V(WF[ks & 1][T] + 2 * b, 2), V(base), off + b * 3584 + T * 32))
        for T in range(2):
            o.append('ds_read_b128 %s, %s offset:%d' % (V(WF[ks & 1][7 + T], 4), V(vFr), ks * 2048 + T * 1024))
        return o
    def mfmas(ks):
        o = []
        for T in range(9):
            for rt in range(2):
                c = V(ACC[rt][T], 4) if ks else (V(vB[T], 4) if T < 7 else '0')
                w = V(WF[ks & 1][T], 4); x = A(XF[rt][ks], 4)
                if T < 7: o.append('%s %s, %s, %s, %s' % (MFMA, V(ACC[rt][T], 4), w, x, c))
                else: o.append('%s %s, %s, %s, %s' % (MFMA, V(ACC[rt][T], 4), x, w, c))
        return o
    gemm_main(L, 9, reads, mfmas, vm_after)
    L += ['s_nop 7', 's_cmp_eq_u32 %s, 15' % S(sC), 's_cbranch_scc1 k1_gate']
    PX = [WF[0][0], WF[0][1]]
    for t in range(2):
        for r in range(4):
            L += ['v_cvt_pk_bf16_f32 %s, %s, %s' % (V(PX[t] + r), V(ACC[t][7] + r), V(ACC[t][8] + r))]
    DR = [WF[0][2], WF[0][3]]; DI = [WF[0][4], WF[0][5]]
    for t in range(2):
        for kt in range(2):
            L += ['%s %s, %s, %s, %s' % (MFMA, V(DR[kt], 4), V(MR[kt][t], 4), V(PX[t], 4), V(DR[kt], 4) if t else '0'),
                  '%s %s, %s, %s, %s' % (MFMA, V(DI[kt], 4), V(MI[kt][t], 4), V(PX[t], 4), V(DI[kt], 4) if t else '0')]
    L += ['s_lshl_b32 %s, %s, 4' % (S(sT), S(sI)), 's_add_u32 %s, %s, %s' % (S(sT), S(sT), S(sC)),
          's_lshl_b32 %s, %s, 13' % (S(sT), S(sT)), 's_lshl_b32 %s, %s, 2' % (S(sT2), S(sW)),
          's_add_u32 %s, %s, %s' % (S(sAo), S(sT), S(sT2)), 's_add_u32 %s, %s, 4096' % (S(sAo + 1), S(sAo)),
          'v_lshlrev_b32 %s, 10, %s' % (V(t0), V(vQ)), 'v_lshl_add_u32 %s, %s, 4, %s' % (V(t0), V(vJ), V(t0))]
    for kt in range(2):
        for r in range(4):
            L += ['v_mul_f32 %s, %s, %s' % (V(DR[kt] + r), V(vAmp), V(DR[kt] + r)),
                  'v_mul_f32 %s, %s, %s' % (V(DI[kt] + r), V(vAmp), V(DI[kt] + r)),
                  'v_cvt_pk_bf16_f32 %s, %s, %s' % (V(DR[kt] + r), V(DR[kt] + r), V(DI[kt] + r)),
                  'buffer_store_dword %s, %s, %s, %s offen offset:%d' % (V(DR[kt] + r), V(t0), S(rA1, 4), S(sAo + kt), r * 256)]
    L += ['s_branch k1_mish', 'k1_gate:']
    for rt in range(2):
        a = ACC[rt][7]
        for r in range(4): L += ['v_mul_f32 %s, %s, %s' % (V(a + r), S(sL2E), V(a + r))]
        for r in range(4): L += ['v_exp_f32 %s, -%s' % (V(a + r), V(a + r))]
        for r in range(4): L += ['v_add_f32 %s, 1.0, %s' % (V(a + r), V(a + r))]
        for r in range(4): L += ['v_rcp_f32 %s, %s' % (V(a + r), V(a + r))]
    L += ['s_lshl_b32 %s, %s, 7' % (S(sT), S(sN2)), 's_nop 0']
    for rt in range(2):
        L += ['buffer_store_dwordx4 %s, %s, %s, %s offen offset:%d' % (V(ACC[rt][7], 4), V(vQ16), S(rGT, 4), S(sT), rt * 64)]
    L += ['k1_mish:']
    L += ['s_mul_i32 %s, %s, 7' % (S(sT), S(sC)), 's_lshr_b32 %s, %s, 1' % (S(sT2), S(sPar2)),
          's_add_u32 %s, %s, %s' % (S(sAo), S(sT), S(sT2)), 's_lshr_b32 %s, %s, 1' % (S(sAo), S(sAo)),
          's_mul_i32 %s, %s, 7' % (S(sT2), S(sT2)), 's_add_u32 %s, %s, 6' % (S(sT), S(sT)),
          's_sub_u32 %s, %s, %s' % (S(sT), S(sT), S(sT2)), 's_lshr_b32 %s, %s, 1' % (S(sAo + 1), S(sT)),
          's_mul_i32 %s, %s, 56' % (S(sT), S(sN2)),
          's_add_u32 %s, %s, %s' % (S(sAo), S(sAo), S(sT)), 's_add_u32 %s, %s, %s' % (S(sAo + 1), S(sAo + 1), S(sT)),
          's_lshl_b32 %s, %s, 11' % (S(sAo), S(sAo)), 's_lshl_b32 %s, %s, 11' % (S(sAo + 1), S(sAo + 1)),
          's_lshl_b32 %s, %s, 2' % (S(sT), S(sPar2)), 's_add_u32 %s, %s, %s' % (S(sAo + 1), S(sAo + 1), S(sT)),
          'v_add_u32 %s, 4096, %s' % (V(t1), V(vL16))]
    E = WF[1][0]; Aa = WF[1][1]
    OUTP = [WF[1][2], WF[1][3], WF[1][4], WF[1][5]]
    n = 0
    for P in range(4):
        for rt in range(2):
            o = OUTP[n % 4]; n += 1
            for hT, T in enumerate([2 * P, 2 * P + 1] if P < 3 else [6]):
                a = ACC[rt][T]
                for r in range(4): L += ['v_mul_f32 %s, %s, %s' % (V(E + r), S(sL2E), V(a + r))]
                for r in range(4): L += ['v_exp_f32 %s, %s' % (V(E + r), V(E + r))]
                for r in range(4): L += ['v_add_f32 %s, 2.0, %s' % (V(Aa + r), V(E + r))]
                for r in range(4): L += ['v_fma_f32 %s, %s, %s, 2.0' % (V(E + r), V(E + r), V(Aa + r))]
                for r in range(4): L += ['v_rcp_f32 %s, %s' % (V(E + r), V(E + r))]
                for r in range(4): L += ['v_fma_f32 %s, %s, -2.0, 1.0' % (V(E + r), V(E + r))]
                for r in range(4): L += ['v_mul_f32 %s, %s, %s' % (V(E + r), V(a + r), V(E + r))]
                for h in range(2): L += ['v_cvt_pk_bf16_f32 %s, %s, %s' % (V(o + 2 * hT + h), V(E + 2 * h), V(E + 2 * h + 1))]
            if P < 2: L += ['buffer_store_dwordx4 %s, %s, %s, %s offen offset:%d' % (V(o, 4), V(vL16), S(rACT, 4), S(sAo), P * 2048 + rt * 1024)]
            elif P == 2: L += ['buffer_store_dwordx4 %s, %s, %s, %s offen offset:%d' % (V(o, 4), V(t1), S(rACT, 4), S(sAo), rt * 1024)]
            else: L += ['buffer_store_dwordx2 %s, %s, %s, %s offen offset:%d' % (V(o, 2), V(vL16), S(rACT, 4), S(sAo + 1), rt * 1024)]
    tail(L, label)
    return label, L, va.hi, aa.hi, sa.hi, WIMG + 32768, 256, 256

def k2():
    label = 'k2_kernel'
    L = []
    va = Alloc('v', 1, 256); aa = Alloc('a', 0, 256); sa = Alloc('s', 36, 100)
    head(L, label, 256)
    rACT = sa(4); rW2 = sa(4); rPT = sa(4); rA1 = sa(4); rB1 = sa(4); rWR = sa(4); rWI = sa(4)
    sW = sa(); sI = sa(); sNB = sa(); sKS = sa(); sN2 = sa(); sT = sa(); sT2 = sa(); sM0 = sa()
    sXo = sa(7, 1); sWo = sa(4); sK1 = sa(); sC = sa(); sU = sa(4)
    vL = va(); vQ = va(); vJ = va(); t0 = va(); t1 = va(); t2 = va(); t3 = va()
    L += ['v_and_b32 %s, 63, v0' % V(vL), 'v_lshrrev_b32 %s, 6, v0' % V(t0),
          'v_lshrrev_b32 %s, 4, %s' % (V(vQ), V(vL)), 'v_and_b32 %s, 15, v0' % V(vJ),
          'v_readfirstlane_b32 %s, %s' % (S(sW), V(t0)),
          's_and_b32 %s, s2, 7' % S(sT), 's_lshr_b32 %s, s2, 3' % S(sC),
          's_lshr_b32 %s, %s, 2' % (S(sI), S(sT)), 's_lshl_b32 %s, %s, 3' % (S(sI), S(sI)),
          's_lshr_b32 %s, %s, 2' % (S(sT2), S(sC)), 's_add_u32 %s, %s, %s' % (S(sI), S(sI), S(sT2)),
          's_and_b32 %s, %s, 3' % (S(sKS), S(sT)), 's_and_b32 %s, %s, 3' % (S(sNB), S(sC)),
          's_lshl_b32 %s, %s, 2' % (S(sN2), S(sI)), 's_add_u32 %s, %s, %s' % (S(sN2), S(sN2), S(sW)),
          's_lshl_b32 %s, %s, 2' % (S(sK1), S(sT)), 's_add_u32 %s, %s, %s' % (S(sK1), S(sK1), S(sW)),
          's_lshl_b32 %s, %s, 10' % (S(sM0), S(sW)),
          's_mul_i32 %s, %s, 56' % (S(sT), S(sN2)), 's_mul_i32 %s, %s, 14' % (S(sT2), S(sKS)),
          's_add_u32 %s, %s, %s' % (S(sT), S(sT), S(sT2)), 's_lshl_b32 %s, %s, 11' % (S(sXo), S(sT)),
          's_mul_i32 %s, %s, %d' % (S(sT), S(sKS), 448 * 896), 's_mul_i32 %s, %s, 224' % (S(sT2), S(sNB)),
          's_add_u32 %s, %s, %s' % (S(sWo), S(sT), S(sT2))]
    for g in range(1, 7): L += ['s_add_u32 %s, %s, %d' % (S(sXo + g), S(sXo), g * 4096)]
    for p in range(1, 4): L += ['s_add_u32 %s, %s, %d' % (S(sWo + p), S(sWo), p * 128 * 896)]
    vD = va(7, 1); vTr = va(2, 1); vL16 = va()
    L += ['v_lshlrev_b32 %s, 4, %s' % (V(vL16), V(vL))]
    dma_offsets(L, va, vD, t0, t1, t2, 896, False, None)
    L += ['v_lshrrev_b32 %s, 2, %s' % (V(t3), V(vL)), 'v_mul_u32_u24 %s, 224, %s' % (V(vTr), V(t3)),
          'v_and_b32 %s, 3, %s' % (V(t3), V(vL)), 'v_lshl_add_u32 %s, %s, 3, %s' % (V(vTr), V(t3), V(vTr)),
          'v_add_u32 %s, %d, %s' % (V(vTr + 1), 7 * 7168, V(vTr))]
    L += ['s_waitcnt lgkmcnt(0)']
    srd(L, rACT, sWS, ACT_OFF, ACT_SZ); srd(L, rW2, sW2, 0, W2_SZ); srd(L, rPT, sWS, PART_OFF, PART_SZ)
    srd(L, rA1, sWS, A1_OFF, A1_SZ); srd(L, rB1, sWS, B1_OFF, B1_SZ); srd(L, rWR, sWR, 0, W_SZ); srd(L, rWI, sWI, 0, W_SZ)
    XF = [[aa(4) for ks in range(14)] for rt in range(2)]
    xload = lambda rt, ks: ['buffer_load_dwordx4 %s, %s, %s, %s offen offset:%d' % (A(XF[rt][ks], 4), V(vL16), S(rACT, 4), S(sXo + ks // 2), (ks & 1) * 2048 + rt * 1024)]
    groups = gemm_loads(vD, rW2, sWo, sM0, sT, 896, xload)
    vm_after = [sum(len(g) for g in groups[i + 1:]) for i in range(7)]
    flat = lambda gs: [i for g in gs for b in g for i in b]
    DF = [va(4) for u in range(4)]
    WRr = [va(4) for t in range(4)]; WIr = [va(4) for t in range(4)]
    OUTB = [va(4) for t in range(4)]
    MM = [[[aa(4) for u in range(4)] for t in range(4)] for e in range(2)]
    mk = va.mark()
    L += ['s_cmp_ge_u32 s2, 120', 's_cbranch_scc1 k2_nofft0']
    L += ['s_lshl_b32 %s, %s, 13' % (S(sT), S(sC)), 's_lshl_b32 %s, %s, 8' % (S(sT2), S(sK1)),
          's_add_u32 %s, %s, %s' % (S(sU), S(sT), S(sT2)),
          'v_lshlrev_b32 %s, 17, %s' % (V(t0), V(vQ)), 'v_lshl_add_u32 %s, %s, 4, %s' % (V(t0), V(vJ), V(t0))]
    for u in range(1, 4): L += ['s_add_u32 %s, %s, %d' % (S(sU + u), S(sU), u * 4 * 16 * 8192)]
    for u in range(4): L += ['buffer_load_dwordx4 %s, %s, %s, %s offen' % (V(DF[u], 4), V(t0), S(rA1, 4), S(sU + u))]
    L += ['s_mul_i32 %s, %s, 450' % (S(sT), S(sK1)), 's_lshl_b32 %s, %s, 5' % (S(sT2), S(sC)),
          's_add_u32 %s, %s, %s' % (S(sT), S(sT), S(sT2)),
          'v_mul_u32_u24 %s, %d, %s' % (V(t1), 4 * 14400, V(vQ)), 'v_lshl_add_u32 %s, %s, 1, %s' % (V(t1), V(vJ), V(t1))]
    for t in range(4):
        for r in range(4): L += ['v_mov_b32 %s, 0' % V(WRr[t] + r), 'v_mov_b32 %s, 0' % V(WIr[t] + r)]
    for t in range(4):
        for r in range(4):
            L += ['s_add_u32 %s, %s, %d' % (S(sT2), S(sT), (16 * t + r) * 14400),
                  'buffer_load_short_d16_hi %s, %s, %s, %s offen' % (V(WRr[t] + r), V(t1), S(rWR, 4), S(sT2)),
                  'buffer_load_short_d16_hi %s, %s, %s, %s offen' % (V(WIr[t] + r), V(t1), S(rWI, 4), S(sT2))]
    L += ['k2_nofft0:']
    L += flat(groups[:3])
    L += ['s_cmp_ge_u32 s2, 120', 's_cbranch_scc1 k2_nofft1']
    vI = va(); vN0 = va(); vA = va(); vc = va(); vs = va(); pk = va(4)
    L += ['v_cvt_f32_u32 %s, %s' % (V(vI), V(vJ)), 'v_mul_f32 %s, %s, %s' % (V(vI), f2u(1.0 / 64), V(vI)),
          'v_lshlrev_b32 %s, 2, %s' % (V(vN0), V(vQ)), 'v_cvt_f32_u32 %s, %s' % (V(vN0), V(vN0))]
    for u in range(4):
        for r in range(4):
            L += ['v_add_f32 %s, %s, %s' % (V(vA), f2u(16.0 * u + r), V(vN0)),
                  'v_mul_f32 %s, %s, %s' % (V(vA), V(vA), V(vI)),
                  'v_cos_f32 %s, %s' % (V(vc), V(vA)), 'v_sin_f32 %s, %s' % (V(vs), V(vA))]
            rot = [(V(vc), V(vs)), ('-' + V(vs), V(vc)), ('-' + V(vc), '-' + V(vs)), (V(vs), '-' + V(vc))]
            used = sorted({(t * r + e) % 4 for t in range(4) for e in range(2)})
            for m in used: L += ['v_cvt_pk_bf16_f32 %s, %s, %s' % (V(pk + m), rot[m][0], rot[m][1])]
            for e in range(2):
                for t in range(4):
                    L += ['v_accvgpr_write_b32 %s, %s' % (A(MM[e][t][u] + r), V(pk + (t * r + e) % 4))]
    L += ['k2_nofft1:']
    L += flat(groups[3:])
    L += ['s_cmp_ge_u32 s2, 120', 's_cbranch_scc1 k2_nofft2']
    ngl = sum(len(g) for g in groups)
    XR = [va(4) for t in range(4)]; XI = [va(4) for t in range(4)]; PF = [va(4) for t in range(4)]
    L += ['s_waitcnt vmcnt(%d)' % ngl]
    for u in range(4):
        for t in range(4):
            L += ['%s %s, %s, %s, %s' % (MFMA, V(XR[t], 4), A(MM[0][t][u], 4), V(DF[u], 4), V(XR[t], 4) if u else '0'),
                  '%s %s, %s, %s, %s' % (MFMA, V(XI[t], 4), A(MM[1][t][u], 4), V(DF[u], 4), V(XI[t], 4) if u else '0')]
    for t in range(4):
        for r in range(4):
            xr, xi, wr, wi = V(XR[t] + r), V(XI[t] + r), V(WRr[t] + r), V(WIr[t] + r)
            L += ['v_mul_f32 %s, %s, %s' % (V(t0), xr, wr), 'v_mul_f32 %s, %s, %s' % (V(t1), xr, wi),
                  'v_fma_f32 %s, -%s, %s, %s' % (V(t0), xi, wi, V(t0)), 'v_fma_f32 %s, %s, %s, %s' % (V(t1), xi, wr, V(t1)),
                  'v_cvt_pk_bf16_f32 %s, %s, %s' % (V(PF[t] + r), V(t1), V(t0))]
    for u in range(4):
        for t in range(4):
            L += ['%s %s, %s, %s, %s' % (MFMA, V(XR[t], 4), A(MM[1][t][u], 4), V(PF[u], 4), V(XR[t], 4) if u else '0'),
                  '%s %s, %s, %s, %s' % (MFMA, V(XI[t], 4), A(MM[0][t][u], 4), V(PF[u], 4), V(XI[t], 4) if u else '0')]
    for t in range(4):
        for r in range(4):
            L += ['v_cvt_pk_bf16_f32 %s, %s, %s' % (V(OUTB[t] + r), V(XR[t] + r), V(XI[t] + r))]
    L += ['s_nop 1', 'k2_nofft2:']
    va.release(mk)
    WF = [[va(4) for T in range(7)] for b in range(2)]
    ACC = [[va(4) for T in range(7)] for rt in range(2)]
    def reads(ks):
        o = []
        base = vTr + (ks >= 7); off = (ks % 7) * 7168
        for T in range(7):
            for b in range(2):
                o.append('ds_read_b64_tr_b16 %s, %s offset:%d' % (V(WF[ks & 1][T] + 2 * b, 2), V(base), off + b * 3584 + T * 32))
        return o
    def mfmas(ks):
        return ['%s %s, %s, %s, %s' % (MFMA, V(ACC[rt][T], 4), V(WF[ks & 1][T], 4), A(XF[rt][ks], 4), V(ACC[rt][T], 4) if ks else '0')
                for T in range(7) for rt in range(2)]
    gemm_main(L, 7, reads, mfmas, vm_after)
    L += ['s_lshl_b32 %s, %s, 6' % (S(sT), S(sKS)), 's_add_u32 %s, %s, %s' % (S(sT), S(sT), S(sN2)),
          's_mul_i32 %s, %s, 28' % (S(sT), S(sT)), 's_mul_i32 %s, %s, 7' % (S(sT2), S(sNB)),
          's_add_u32 %s, %s, %s' % (S(sT), S(sT), S(sT2)), 's_lshl_b32 %s, %s, 10' % (S(sT), S(sT)),
          's_add_u32 %s, %s, 4096' % (S(sT2), S(sT))]
    for T in range(7):
        o = WF[0][T]
        for rt in range(2):
            for h in range(2):
                L += ['v_cvt_pk_bf16_f32 %s, %s, %s' % (V(o + 2 * rt + h), V(ACC[rt][T] + 2 * h), V(ACC[rt][T] + 2 * h + 1))]
        L += ['buffer_store_dwordx4 %s, %s, %s, %s offen offset:%d' % (V(o, 4), V(vL16), S(rPT, 4), S(sT if T < 4 else sT2), (T % 4) * 1024)]
    L += ['s_cmp_ge_u32 s2, 120', 's_cbranch_scc1 %s_end' % label]
    L += ['s_lshl_b32 %s, %s, 11' % (S(sT), S(sC)), 's_and_b32 %s, s2, 7' % S(sT2), 's_lshl_b32 %s, %s, 8' % (S(sT2), S(sT2)),
          's_add_u32 %s, %s, %s' % (S(sT), S(sT), S(sT2)), 's_lshl_b32 %s, %s, 2' % (S(sT2), S(sW)),
          's_add_u32 %s, %s, %s' % (S(sT), S(sT), S(sT2)),
          'v_lshlrev_b32 %s, 17, %s' % (V(t0), V(vQ)), 'v_lshl_add_u32 %s, %s, 4, %s' % (V(t0), V(vJ), V(t0))]
    for t in range(4):
        for r in range(4):
            L += ['s_add_u32 %s, %s, %d' % (S(sT2), S(sT), (16 * t + r) * 32768),
                  'buffer_store_dword %s, %s, %s, %s offen' % (V(OUTB[t] + r), V(t0), S(rB1, 4), S(sT2))]
    tail(L, label)
    return label, L, va.hi, aa.hi, sa.hi, WIMG, 256, 256

def k3():
    label = 'k3_kernel'
    L = []
    va = Alloc('v', 1, 256); sa = Alloc('s', 36, 100)
    head(L, label, 256)
    rB1 = sa(4); rPT = sa(4); rGT = sa(4); rOUT = sa(4)
    sW = sa(); sN2 = sa(); sCB = sa(); sT = sa(); sT2 = sa(); sInv448 = sa(); sM448 = sa(); sP = sa(4); sSc = sa(); sWc = sa()
    vL = va(); vQ = va(); vJ = va(); t0 = va(); t1 = va(); t2 = va(); t3 = va(); vL16 = va()
    L += ['v_and_b32 %s, 63, v0' % V(vL), 'v_lshrrev_b32 %s, 6, v0' % V(t0),
          'v_lshrrev_b32 %s, 4, %s' % (V(vQ), V(vL)), 'v_and_b32 %s, 15, v0' % V(vJ),
          'v_readfirstlane_b32 %s, %s' % (S(sW), V(t0)),
          's_and_b32 %s, s2, 7' % S(sT), 's_lshr_b32 %s, s2, 3' % S(sT2),
          's_lshl_b32 %s, %s, 3' % (S(sN2), S(sT)), 's_lshr_b32 %s, %s, 2' % (S(sT), S(sT2)),
          's_add_u32 %s, %s, %s' % (S(sN2), S(sN2), S(sT)), 's_and_b32 %s, %s, 3' % (S(sCB), S(sT2)),
          's_min_u32 %s, %s, 6' % (S(sWc), S(sW)),
          's_mov_b32 %s, %s' % (S(sInv448), f2u(1.0 / 448)), 's_mov_b32 %s, %s' % (S(sM448), f2u(-448.0)),
          's_mov_b32 %s, %s' % (S(sSc), f2u(2.0 / (2048 * 448))),
          'v_lshlrev_b32 %s, 4, %s' % (V(vL16), V(vL)),
          's_waitcnt lgkmcnt(0)']
    srd(L, rB1, sWS, B1_OFF, B1_SZ); srd(L, rPT, sWS, PART_OFF, PART_SZ); srd(L, rGT, sWS, GATE_OFF, GATE_SZ); srd(L, rOUT, sOUT, 0, X_SZ)
    BF = [[va(4) for u in range(2)] for a in range(2)]
    L += ['s_lshl_b32 %s, %s, 4' % (S(sT), S(sN2)), 's_lshl_b32 %s, %s, 1' % (S(sT2), S(sW)),
          's_add_u32 %s, %s, %s' % (S(sT), S(sT), S(sT2)), 's_lshl_b32 %s, %s, 11' % (S(sT), S(sT))]
    for a in range(2):
        for u in range(2):
            L += ['buffer_load_dwordx4 %s, %s, %s, %s offen offset:%d' % (V(BF[a][u], 4), V(vL16), S(rB1, 4), S(sT), a * 2048 + u * 1024)]
    PT = [va(4) for k in range(4)]; vG = va(2)
    L += ['s_mul_i32 %s, %s, 28' % (S(sT), S(sN2)), 's_mul_i32 %s, %s, 7' % (S(sT2), S(sCB)),
          's_add_u32 %s, %s, %s' % (S(sT), S(sT), S(sT2)), 's_add_u32 %s, %s, %s' % (S(sT), S(sT), S(sWc)),
          's_lshl_b32 %s, %s, 10' % (S(sP), S(sT))]
    for k in range(1, 4): L += ['s_add_u32 %s, %s, %d' % (S(sP + k), S(sP), k * 64 * 28 * 1024)]
    for k in range(4): L += ['buffer_load_dwordx4 %s, %s, %s, %s offen' % (V(PT[k], 4), V(vL16), S(rPT, 4), S(sP + k))]
    L += ['s_lshl_b32 %s, %s, 7' % (S(sT), S(sN2)), 'v_lshlrev_b32 %s, 2, %s' % (V(t0), V(vJ))]
    for rt in range(2): L += ['buffer_load_dword %s, %s, %s, %s offen offset:%d' % (V(vG + rt), V(t0), S(rGT, 4), S(sT), rt * 64)]
    NR = [[va(4) for u in range(2)] for tn in range(2)]; NI = [[va(4) for u in range(2)] for tn in range(2)]
    vS = va(2, 1); vK0 = va(); vK = va(); vA = va(2, 1); cs = va(2, 1); sn = va(2, 1)
    L += ['v_lshlrev_b32 %s, 6, %s' % (V(t0), V(vJ)), 'v_add_u32 %s, %s, %s' % (V(t0), S(sN2), V(t0)),
          'v_cvt_f32_u32 %s, %s' % (V(vS), V(t0)), 'v_mul_f32 %s, %s, %s' % (V(vS), f2u(1.0 / 2048), V(vS)),
          'v_add_f32 %s, 0.5, %s' % (V(vS + 1), V(vS)),
          'v_lshlrev_b32 %s, 2, %s' % (V(t0), V(vQ)), 'v_cvt_f32_u32 %s, %s' % (V(vK0), V(t0))]
    for u in range(2):
        for r in range(4):
            L += ['v_add_f32 %s, %s, %s' % (V(vK), f2u(16.0 * u + r), V(vK0))]
            for tn in range(2): L += ['v_mul_f32 %s, %s, %s' % (V(vA + tn), V(vK), V(vS + tn))]
            for tn in range(2): L += ['v_cos_f32 %s, %s' % (V(cs + tn), V(vA + tn)), 'v_sin_f32 %s, %s' % (V(sn + tn), V(vA + tn))]
            for tn in range(2):
                L += ['v_cvt_pk_bf16_f32 %s, %s, -%s' % (V(NR[tn][u] + r), V(cs + tn), V(sn + tn)),
                      'v_cvt_pk_bf16_f32 %s, %s, %s' % (V(NI[tn][u] + r), V(sn + tn), V(cs + tn))]
    GF = [va(4) for T in range(15)]
    vU = va(); v2c = va(); C = [va(4), va(4)]; Sn = [va(4), va(4)]; vTh = va(4)
    L += ['s_mul_i32 %s, %s, 112' % (S(sT), S(sCB)), 's_lshl_b32 %s, %s, 4' % (S(sT2), S(sWc)),
          's_add_u32 %s, %s, %s' % (S(sT), S(sT), S(sT2)),
          'v_add_u32 %s, %s, %s' % (V(t0), S(sT), V(vJ)), 'v_cvt_f32_u32 %s, %s' % (V(t0), V(t0)),
          'v_mul_f32 %s, %s, %s' % (V(vU), S(sInv448), V(t0)),
          'v_mul_f32 %s, %s, %s' % (V(t1), f2u(16.0), V(vU)),
          'v_cos_f32 %s, %s' % (V(v2c), V(t1)),
          'v_mul_f32 %s, %s, %s' % (V(vTh), V(vK0), V(vU)),
          'v_add_f32 %s, %s, %s' % (V(v2c), V(v2c), V(v2c))]
    for r in range(1, 4): L += ['v_add_f32 %s, %s, %s' % (V(vTh + r), V(vTh + r - 1), V(vU))]
    for T in range(2):
        for r in range(4): L += ['v_cos_f32 %s, %s' % (V(C[T] + r), V(vTh + r)), 'v_sin_f32 %s, -%s' % (V(Sn[T] + r), V(vTh + r))]
        if T == 0:
            for r in range(4): L += ['v_add_f32 %s, %s, %s' % (V(vTh + r), V(vTh + r), V(t1))]
        for r in range(4): L += ['v_cvt_pk_bf16_f32 %s, %s, %s' % (V(GF[T] + r), V(C[T] + r), V(Sn[T] + r))]
    for T in range(2, 15):
        a, b = T & 1, (T - 1) & 1
        for r in range(4):
            L += ['v_fma_f32 %s, %s, %s, -%s' % (V(C[a] + r), V(v2c), V(C[b] + r), V(C[a] + r)),
                  'v_fma_f32 %s, %s, %s, -%s' % (V(Sn[a] + r), V(v2c), V(Sn[b] + r), V(Sn[a] + r))]
        for r in range(4): L += ['v_cvt_pk_bf16_f32 %s, %s, %s' % (V(GF[T] + r), V(C[a] + r), V(Sn[a] + r))]
    YR = [[va(4) for tn in range(2)] for a in range(2)]; YI = [[va(4) for tn in range(2)] for a in range(2)]
    L += ['s_lshl_b32 %s, %s, 12' % (S(sT), S(sW)), 'v_add_u32 %s, %s, %s' % (V(t2), S(sT), V(vL16)),
          's_waitcnt vmcnt(6)']
    for u in range(2):
        for a in range(2):
            for tn in range(2):
                L += ['%s %s, %s, %s, %s' % (MFMA, V(YR[a][tn], 4), V(BF[a][u], 4), V(NR[tn][u], 4), V(YR[a][tn], 4) if u else '0'),
                      '%s %s, %s, %s, %s' % (MFMA, V(YI[a][tn], 4), V(BF[a][u], 4), V(NI[tn][u], 4), V(YI[a][tn], 4) if u else '0')]
    for a in range(2):
        for tn in range(2):
            for r in range(4): L += ['v_cvt_pk_bf16_f32 %s, %s, %s' % (V(YR[a][tn] + r), V(YR[a][tn] + r), V(YI[a][tn] + r))]
            L += ['ds_write_b128 %s, %s offset:%d' % (V(t2), V(YR[a][tn], 4), a * 2048 + tn * 1024)]
    L += ['s_waitcnt lgkmcnt(0)', 's_barrier']
    NB = 6
    YF = [va(4) for n in range(NB)]
    ACC = [va(4), va(4)]
    seq = [(T, rt) for T in range(15) for rt in range(2)]
    rd = lambda n: 'ds_read_b128 %s, %s offset:%d' % (V(YF[n % NB], 4), V(vL16), seq[n][0] * 2048 + seq[n][1] * 1024)
    for n in range(NB - 1): L += [rd(n)]
    for n, (T, rt) in enumerate(seq):
        left = min(len(seq), n + NB - 1) - n - 1
        L += ['s_waitcnt lgkmcnt(%d)' % left,
              '%s %s, %s, %s, %s' % (MFMA, V(ACC[rt], 4), V(GF[T], 4), V(YF[n % NB], 4), V(ACC[rt], 4) if T else '0')]
        if n + NB - 1 < len(seq): L += [rd(n + NB - 1)]
    L += ['s_waitcnt vmcnt(0)']
    SUM = [C[0], C[1]]
    for rt in range(2):
        for h in range(2):
            for k in range(4):
                src = V(PT[k] + 2 * rt + h)
                lo, hi = SUM[rt] + 2 * h, SUM[rt] + 2 * h + 1
                if k == 0:
                    L += ['v_lshlrev_b32 %s, 16, %s' % (V(lo), src), 'v_and_b32 %s, 0xffff0000, %s' % (V(hi), src)]
                else:
                    L += ['v_lshlrev_b32 %s, 16, %s' % (V(t0), src), 'v_and_b32 %s, 0xffff0000, %s' % (V(t1), src),
                          'v_add_f32 %s, %s, %s' % (V(lo), V(lo), V(t0)), 'v_add_f32 %s, %s, %s' % (V(hi), V(hi), V(t1))]
    L += ['s_mul_i32 %s, %s, 896' % (S(sT), S(sN2)), 's_mul_i32 %s, %s, 224' % (S(sT2), S(sCB)),
          's_add_u32 %s, %s, %s' % (S(sT), S(sT), S(sT2)), 's_lshl_b32 %s, %s, 5' % (S(sT2), S(sWc)),
          's_add_u32 %s, %s, %s' % (S(sT), S(sT), S(sT2)), 's_add_u32 %s, %s, 917504' % (S(sT2), S(sT)),
          'v_mul_u32_u24 %s, 57344, %s' % (V(t2), V(vJ)), 'v_lshl_add_u32 %s, %s, 3, %s' % (V(t2), V(vQ), V(t2))]
    for rt in range(2):
        L += ['v_mul_f32 %s, %s, %s' % (V(t0), S(sSc), V(vG + rt)), 'v_sub_f32 %s, 1.0, %s' % (V(t1), V(vG + rt))]
        for r in range(4):
            L += ['v_mul_f32 %s, %s, %s' % (V(SUM[rt] + r), V(t1), V(SUM[rt] + r)),
                  'v_fma_f32 %s, %s, %s, %s' % (V(SUM[rt] + r), V(t0), V(ACC[rt] + r), V(SUM[rt] + r))]
        for h in range(2): L += ['v_cvt_pk_bf16_f32 %s, %s, %s' % (V(SUM[rt] + h), V(SUM[rt] + 2 * h), V(SUM[rt] + 2 * h + 1))]
    L += ['s_cmp_eq_u32 %s, 7' % S(sW), 's_cbranch_scc1 %s_end' % label]
    for rt in range(2):
        L += ['buffer_store_dwordx2 %s, %s, %s, %s offen' % (V(SUM[rt], 2), V(t2), S(rOUT, 4), S(sT2 if rt else sT))]
    tail(L, label)
    return label, L, va.hi, 0, sa.hi, 32768, 256, 512

def build(kernels, path):
    hdr = open('cdna_kernels/%s.s.ref' % NAME).read().split('\n')
    top = [l for l in hdr if l.startswith(';') and '@launch' not in l and 'Override' not in l and 'grid=ceil' not in l]
    out = list(top)
    for (label, L, nv, na, ns, lds, nwg, blk) in kernels:
        out.append('; @launch kernel=%s grid=(%d,1,1) block=(%d,1,1) lds=%d' % (label, nwg, blk, lds))
    out += ['.amdgcn_target "amdgcn-amd-amdhsa--gfx950"', '.text']
    for (label, L, nv, na, ns, lds, nwg, blk) in kernels:
        P, nn = pad_hazards(L)
        print(label, 'lines', len(P), 'nops', nn, 'vgpr', nv, 'agpr', na, 'sgpr', ns, 'lds', lds, file=sys.stderr)
        out += ['.globl %s' % label] + [('    ' + l if not (l.endswith(':') or l.startswith('.')) else l) for l in P]
    out += ['.section .rodata,"a"']
    for (label, L, nv, na, ns, lds, nwg, blk) in kernels:
        out += desc(label, nv, na, ns)
    open(path, 'w').write('\n'.join(out) + '\n')

if __name__ == '__main__':
    path = sys.argv[1] if len(sys.argv) > 1 else 'cdna_kernels/%s.s' % NAME
    build([k1(), k2(), k3()], path)
```

```python
import sys, math, os
from dsl import *

NAME = 'gated_mix__spectral_gfnet__dense_activation_mish__prompt'
LABEL = NAME + '_kernel'
ACT_OFF = 0x0
PART_OFF = 0x700000
A1_OFF = 0xE00000
GATE_OFF = 0x1000000
FLAG_OFF = 0x1010000
FS = 64
FA_OFF = FLAG_OFF
FG_OFF = FA_OFF + 1024 * FS
FB_OFF = FG_OFF + 1024 * FS
FP_OFF = FB_OFF + 512 * FS
EP_OFF = FP_OFF + 1024 * FS
B1_OFF = 0x1100000
WS_END = B1_OFF + 15 * 64 * 2048
X_SZ = 2048 * 896; W_SZ = 2048 * 450; W1_SZ = 448 * 3584; W2_SZ = 1792 * 896
LOG2E = math.log2(math.e)
MFMA = 'v_mfma_f32_16x16x32_bf16'
SC = 'sc1'
XR = 0; W1R = 65536; FL = 122880; XCH = 49152; RED = 65536; LDS_SZ = 155648
W2B = [W1R + 3 * 14336, W1R, W1R + 14336, W1R + 2 * 14336, 0, 14336, 28672]
sX, sWR, sWI, sW1, sB1, sW2, sGW, sOUT, sWS = 16, 18, 20, 24, 26, 28, 30, 32, 34
STAMP = os.environ.get('STAMP', '0') == '1'
TS_OFF = 0x2000000
SPIN_MAX = 200000

def srd(L, d, base, size):
    L += ['s_mov_b32 %s, %s' % (S(d), S(base)), 's_mov_b32 %s, %s' % (S(d + 1), S(base + 1)),
          's_mov_b32 %s, 0x%x' % (S(d + 2), size), 's_mov_b32 %s, 0x20000' % S(d + 3)]

class Prog:
    @staticmethod
    def resolve(L):
        out = []; ops = []
        cur = None; nopt = 0
        for l in L:
            if l == 'OPT_BEGIN': nopt += 1; cur = nopt; continue
            if l == 'OPT_END': cur = None; continue
            if l == 'VM_DRAINED': ops.append(('__drain', cur)); continue
            if l.startswith('VM '):
                _, tag, ins = l.split(' ', 2); ops.append((tag, cur)); out.append(ins); continue
            if l.startswith('WAITVM '):
                parts = l.split(' ', 2); tag = parts[1]; extra = (' ' + parts[2]) if len(parts) > 2 else ''
                idx = max(k for k, o in enumerate(ops) if o[0] == tag)
                n = sum(1 for o in ops[idx + 1:] if o[0] != '__drain' and (o[1] is None or o[1] == cur))
                out.append('s_waitcnt vmcnt(%d)%s' % (min(n, 63), extra)); continue
            assert not (l.startswith('buffer_') or l.startswith('global_')), l
            out.append(l)
        return out

def build_kernel():
    L = []
    va = Alloc('v', 1, 256); aa = Alloc('a', 0, 256); sa = Alloc('s', 36, 102)
    stamps = []
    vST = va() if STAMP else None
    def st(name, real=False):
        if not STAMP: return
        stamps.append(name)
        L.extend(['%s s[10:11]' % ('s_memrealtime' if real else 's_memtime'), 's_waitcnt lgkmcnt(0)',
                  'v_writelane_b32 %s, s10, %d' % (V(vST), len(stamps) - 1)])
    npoll = [0]
    def poll(vOff, vTmp):
        n = npoll[0]; npoll[0] += 1
        L.extend(['s_mov_b32 %s, 0' % S(sSpin), 'poll%d:' % n,
                  'VM poll buffer_load_dword %s, %s, %s, 0 offen %s' % (V(vTmp), V(vOff), S(rWS, 4), SC),
                  's_waitcnt vmcnt(0)', 'v_cmp_ne_u32 vcc, %s, %s' % (S(sTag), V(vTmp)), 's_add_u32 %s, %s, 1' % (S(sSpin), S(sSpin)),
                  's_nop 0', 's_cbranch_vccz polld%d' % n, 's_sleep 1', 's_cmp_lt_u32 %s, %d' % (S(sSpin), SPIN_MAX),
                  's_cbranch_scc1 poll%d' % n, 'polld%d:' % n])
    def setflag(sOff, out):
        out.append('VM flag buffer_store_dword %s, %s, %s, %s offen %s' % (V(vTag), V(vZero), S(rWS, 4), S(sOff), SC))

    L += ['.p2align 8', '.type %s,@function' % LABEL, '%s:' % LABEL,
          's_cmp_ge_u32 s2, 256', 's_cbranch_scc1 L_end',
          's_load_dwordx16 s[16:31], s[0:1], 0', 's_load_dwordx2 s[32:33], s[0:1], 64', 's_load_dwordx2 s[34:35], s[0:1], 80']
    rX = sa(4); rW1 = sa(4); rBI = sa(4); rGW = sa(4); rW2 = sa(4); rWR = sa(4); rWI = sa(4); rOUT = sa(4); rWS = sa(4)
    lo = Alloc('s', 3, 10)
    sT = lo(); sT2 = lo(); sT3 = lo(); sSpin = lo(); sTag = lo(); sW = lo(); sRole = lo()
    sPC = 12; sEp = 14; sCF = 15
    sI = sa(); sC = sa(); sN2 = sa(); sPar2 = sa(); sKS = sa(); sNB = sa(); sXc = sa()
    sSig = sa(); sXb = sa(); sWb = sa(); sXs = sa(); sWs = sa(); sM0x = sa(); sM0w = sa(); sKap = sa(); sW2b = sa(); sRot2 = sa()
    sInv448 = sa(); sM448 = sa(); sL2E = sa(2); sAo = sa(2); sN2f = sa(); sK0 = sa(); sFo = sa()
    vL = va(); vQ = va(); vJ = va(); t0 = va(); t1 = va(); t2 = va(); t3 = va(); vL16 = va(); vZero = va(); vTag = va(); vDump = va()
    vCP = va(2)
    L += ['s_getpc_b64 %s' % S(sPC, 2), 'L_pc:',
          'v_and_b32 %s, 63, v0' % V(vL), 'v_lshrrev_b32 %s, 6, v0' % V(t0),
          's_lshr_b32 %s, s2, 3' % S(sT2), 's_and_b32 %s, %s, 15' % (S(sT), S(sT2)), 's_lshl_b32 %s, %s, 11' % (S(sT), S(sT)),
          'v_lshrrev_b32 %s, 4, v0' % V(t1), 'v_lshl_add_u32 %s, %s, 7, %s' % (V(t1), V(t1), S(sT)),
          'v_min_u32 %s, L_end-L_pc, %s' % (V(t1), V(t1)),
          'v_mov_b32 %s, %s' % (V(vCP + 1), S(sPC + 1)),
          'v_add_co_u32 %s, vcc, %s, %s' % (V(vCP), S(sPC), V(t1)),
          'v_addc_co_u32 %s, vcc, 0, %s, vcc' % (V(vCP + 1), V(vCP + 1)),
          'VM pf global_load_dword %s, %s, off' % (V(vDump), V(vCP, 2))]
    if STAMP: L += ['v_mov_b32 %s, 0' % V(vST)]
    st('r0', True); st('start')
    L += ['v_lshrrev_b32 %s, 4, %s' % (V(vQ), V(vL)), 'v_and_b32 %s, 15, v0' % V(vJ),
          'v_readfirstlane_b32 %s, %s' % (S(sW), V(t0)),
          'v_lshlrev_b32 %s, 4, %s' % (V(vL16), V(vL)), 'v_mov_b32 %s, 0' % V(vZero),
          's_and_b32 %s, s2, 7' % S(sXc),
          's_lshr_b32 %s, %s, 2' % (S(sI), S(sXc)), 's_lshl_b32 %s, %s, 3' % (S(sI), S(sI)),
          's_lshr_b32 %s, %s, 2' % (S(sT3), S(sT2)), 's_add_u32 %s, %s, %s' % (S(sI), S(sI), S(sT3)),
          's_and_b32 %s, %s, 3' % (S(sKS), S(sXc)), 's_and_b32 %s, %s, 3' % (S(sNB), S(sT2)),
          's_lshl_b32 %s, %s, 2' % (S(sC), S(sKS)), 's_add_u32 %s, %s, %s' % (S(sC), S(sC), S(sNB)),
          's_lshl_b32 %s, %s, 2' % (S(sN2f), S(sI)), 's_add_u32 %s, %s, %s' % (S(sN2), S(sN2f), S(sW)),
          's_add_u32 %s, %s, %s' % (S(sN2f), S(sN2f), S(sKS)),
          's_and_b32 %s, %s, 1' % (S(sPar2), S(sC)), 's_lshl_b32 %s, %s, 1' % (S(sPar2), S(sPar2)),
          's_lshl_b32 %s, %s, 1' % (S(sSig), S(sNB)), 's_add_u32 %s, %s, %s' % (S(sSig), S(sSig), S(sT3)),
          's_sub_u32 %s, %s, 7' % (S(sT), S(sSig)), 's_min_u32 %s, %s, %s' % (S(sSig), S(sSig), S(sT)),
          's_lshl_b32 %s, %s, 1' % (S(sRot2), S(sSig)),
          's_lshl_b32 %s, %s, 1' % (S(sCF), S(sT3)), 's_and_b32 %s, %s, 1' % (S(sT), S(sT2)), 's_add_u32 %s, %s, %s' % (S(sCF), S(sCF), S(sT)),
          's_add_u32 %s, %s, 1' % (S(sT), S(sNB)), 's_and_b32 %s, %s, 2' % (S(sT), S(sT)),
          's_lshl_b32 %s, %s, 3' % (S(sT), S(sT)), 's_add_u32 %s, %s, %s' % (S(sRole), S(sT), S(sCF)),
          's_mul_i32 %s, %s, 896' % (S(sXb), S(sN2)),
          's_mul_i32 %s, %s, 224' % (S(sWb), S(sC)), 's_mul_i32 %s, %s, %d' % (S(sT), S(sW), 8 * 3584), 's_add_u32 %s, %s, %s' % (S(sWb), S(sWb), S(sT)),
          's_lshl_b32 %s, %s, 12' % (S(sM0x), S(sW)), 's_mul_i32 %s, %s, 896' % (S(sM0w), S(sW)),
          's_mul_i32 %s, %s, 7' % (S(sK0), S(sNB)), 's_add_u32 %s, %s, 1' % (S(sK0), S(sK0)), 's_lshr_b32 %s, %s, 1' % (S(sK0), S(sK0)),
          's_mov_b32 %s, %s' % (S(sKap), S(sK0)),
          's_mul_i32 %s, %s, 448' % (S(sT), S(sKS)), 's_lshl_b32 %s, %s, 2' % (S(sT3), S(sW)), 's_add_u32 %s, %s, %s' % (S(sT), S(sT), S(sT3)),
          's_mul_i32 %s, %s, 896' % (S(sT), S(sT)), 's_mul_i32 %s, %s, 224' % (S(sW2b), S(sNB)), 's_add_u32 %s, %s, %s' % (S(sW2b), S(sW2b), S(sT)),
          's_mov_b32 %s, %s' % (S(sInv448), f2u(1.0 / 448)), 's_mov_b32 %s, %s' % (S(sM448), f2u(-448.0)),
          's_mov_b32 %s, %s' % (S(sL2E), f2u(LOG2E)), 's_mov_b32 %s, %s' % (S(sL2E + 1), f2u(LOG2E))]
    vXs = va(2, 1); vW1s = va(); vW2s = va(); vQ16 = va(); vQ8 = va(); vTr = va(2, 1); vXr = va(2, 1)
    L += ['v_lshrrev_b32 %s, 3, %s' % (V(t0), V(vL)), 'v_mul_u32_u24 %s, 57344, %s' % (V(t0), V(t0)),
          'v_and_b32 %s, 7, %s' % (V(t1), V(vL)), 'v_xor_b32 %s, %s, %s' % (V(t1), V(t1), V(vQ)),
          'v_lshl_add_u32 %s, %s, 4, %s' % (V(vXs), V(t1), V(t0)),
          'v_xor_b32 %s, 64, %s' % (V(vXs + 1), V(vXs)), 'v_add_u32 %s, %d, %s' % (V(vXs + 1), 8 * 57344, V(vXs + 1)),
          'v_mul_u32_u24 %s, 4682, %s' % (V(t0), V(vL)), 'v_lshrrev_b32 %s, 16, %s' % (V(t0), V(t0)),
          'v_mul_u32_u24 %s, 14, %s' % (V(t1), V(t0)), 'v_sub_u32 %s, %s, %s' % (V(t1), V(vL), V(t1)),
          'v_mul_u32_u24 %s, 896, %s' % (V(t2), V(t0)), 'v_lshl_add_u32 %s, %s, 4, %s' % (V(vW2s), V(t1), V(t2)),
          'v_add_u32 %s, %s, %s' % (V(t1), S(sPar2), V(t1)), 'v_subrev_u32 %s, 14, %s' % (V(t2), V(t1)), 'v_min_u32 %s, %s, %s' % (V(t1), V(t1), V(t2)),
          'v_mul_u32_u24 %s, 3584, %s' % (V(t2), V(t0)), 'v_lshl_add_u32 %s, %s, 4, %s' % (V(vW1s), V(t1), V(t2)),
          'v_lshlrev_b32 %s, 4, %s' % (V(vQ16), V(vQ)), 'v_lshlrev_b32 %s, 3, %s' % (V(vQ8), V(vQ)),
          's_waitcnt lgkmcnt(0)']
    srd(L, rX, sX, X_SZ); srd(L, rW1, sW1, W1_SZ)
    L += ['s_add_u32 %s, %s, 0x%x' % (S(sPC), S(sWS), EP_OFF), 's_addc_u32 %s, %s, 0' % (S(sPC + 1), S(sWS + 1)),
          's_load_dword %s, %s, 0' % (S(sEp), S(sPC, 2))]

    def stage_loads(s):
        slot = s % 4
        B = []
        first = ['s_lshl_b32 %s, %s, 7' % (S(sXs), S(sSig)), 's_add_u32 %s, %s, %s' % (S(sXs), S(sXs), S(sXb)),
                 's_mul_i32 %s, %s, %d' % (S(sWs), S(sSig), 64 * 3584), 's_add_u32 %s, %s, %s' % (S(sWs), S(sWs), S(sWb)),
                 's_add_u32 %s, %s, 1' % (S(sSig), S(sSig)), 's_cmp_eq_u32 %s, 7' % S(sSig), 's_cselect_b32 %s, 0, %s' % (S(sSig), S(sSig))]
        for kk in range(2):
            b = first if kk == 0 else []
            for e in (2 * kk, 2 * kk + 1):
                bb = list(b); b = []
                if e == 2: bb += ['s_add_u32 %s, %s, 917504' % (S(sXs), S(sXs))]
                bb += ['s_add_u32 m0, %s, %d' % (S(sM0x), XR + slot * 16384 + e * 1024),
                       'VM st%d buffer_load_dwordx4 %s, %s, %s offen lds' % (s, V(vXs + (e & 1)), S(rX, 4), S(sXs))]
                B.append(bb)
            bb = ['s_mov_b32 exec_hi, 0xffffff']
            for b2 in range(2):
                bb += ['s_add_u32 %s, %s, %d' % (S(sT), S(sWs), (32 * kk + 4 * b2) * 3584),
                       's_add_u32 m0, %s, %d' % (S(sM0w), W1R + slot * 14336 + (32 * kk + 16 * b2) * 224),
                       'VM st%d buffer_load_dwordx4 %s, %s, %s offen lds' % (s, V(vW1s), S(rW1, 4), S(sT))]
            bb += ['s_mov_b32 exec_hi, -1']
            B.append(bb)
        return B
    def w2_loads(t):
        B = []
        for kk in range(2):
            bb = ['s_mul_i32 %s, %s, %d' % (S(sWs), S(sKap), 32 * 896), 's_add_u32 %s, %s, %s' % (S(sWs), S(sWs), S(sW2b)),
                  's_add_u32 %s, %s, 1' % (S(sKap), S(sKap)), 's_cmp_eq_u32 %s, 14' % S(sKap), 's_cselect_b32 %s, 0, %s' % (S(sKap), S(sKap)),
                  's_mov_b32 exec_hi, 0xffffff']
            for b2 in range(2):
                if b2: bb += ['s_add_u32 %s, %s, %d' % (S(sWs), S(sWs), 16 * 896)]
                bb += ['s_add_u32 m0, %s, %d' % (S(sM0w), W2B[t] + (32 * kk + 16 * b2) * 224),
                       'VM w2_%d buffer_load_dwordx4 %s, %s, %s offen lds' % (t, V(vW2s), S(rW2, 4), S(sWs))]
            bb += ['s_mov_b32 exec_hi, -1']
            B.append(bb)
        return B

    big = va(196, 4)
    pa = Alloc('v', big, big + 196)
    accb = pa(72, 4)
    ACC = [[accb + 36 * rt + 4 * T for T in range(9)] for rt in range(2)]
    vB = [pa(4) for T in range(7)]
    MR = [[pa(4) for t in range(2)] for kt in range(2)]; MI = [[pa(4) for t in range(2)] for kt in range(2)]
    tmpA = pa(32, 4)
    WRr = [pa(4) for t in range(4)]; WIr = [pa(4) for t in range(4)]
    OWN = [[va(4) for rt in range(2)] for P in range(3)]
    vAmp = va(); vFw = va(); vFr = va()
    ta = Alloc('v', accb, accb + 72)
    vGW = [tmpA + 4 * a for a in range(4)]; vBraw = [ta(2) for T in range(7)]
    cs = ta(8); sn = ta(8); th = ta(8); pk0 = ta(4); pk1 = ta(4); vKdf = ta(); vU = ta(); vD0 = ta()
    WF = [[aa(4) for T in range(9)] for b in range(2)]
    XF = [[aa(4) for rt in range(2)] for b in range(2)]
    AF = [[aa(4) for rt in range(2)] for s in range(11)]

    main = stage_loads(0)
    G = []
    srd(G, rBI, sB1, 3584); srd(G, rGW, sGW, 896); srd(G, rWS, sWS, WS_END); srd(G, rW2, sW2, W2_SZ)
    srd(G, rWR, sWR, W_SZ); srd(G, rWI, sWI, W_SZ); srd(G, rOUT, sOUT, X_SZ)
    L += [i for b in main for i in b] + G
    L += ['s_mul_i32 %s, %s, 224' % (S(sT2), S(sC)), 's_lshl_b32 %s, %s, 4' % (S(sT), S(sPar2)), 's_add_u32 %s, %s, %s' % (S(sAo), S(sT2), S(sT)),
          's_mul_i32 %s, %s, 96' % (S(sT), S(sPar2)), 's_add_u32 %s, %s, 192' % (S(sAo + 1), S(sT2)), 's_sub_u32 %s, %s, %s' % (S(sAo + 1), S(sAo + 1), S(sT))]
    for T in range(7):
        L += ['VM bias buffer_load_dwordx2 %s, %s, %s, %s offen offset:%d' % (V(vBraw[T], 2), V(vQ8), S(rBI, 4), S(sAo + (T == 6)), 32 * T if T < 6 else 0)]
    for a in range(4):
        L += ['s_add_u32 %s, %s, %s' % (S(sFo), S(sW), S(sRot2)), 's_add_u32 %s, %s, %d' % (S(sFo), S(sFo), 4 * a),
              's_sub_u32 %s, %s, 14' % (S(sSpin), S(sFo)), 's_min_u32 %s, %s, %s' % (S(sFo), S(sFo), S(sSpin)), 's_lshl_b32 %s, %s, 6' % (S(sFo), S(sFo)),
              'VM gw buffer_load_dwordx4 %s, %s, %s, %s offen' % (V(vGW[a], 4), V(vQ16), S(rGW, 4), S(sFo))]
    main = stage_loads(1) + stage_loads(2) + stage_loads(3)
    main.append(['s_lshr_b32 %s, s2, 3' % S(sT2), 's_mul_i32 %s, %s, 12544' % (S(sT), S(sT2)), 's_mul_i32 %s, %s, %d' % (S(sT3), S(sKS), 448 * 896),
                 's_add_u32 %s, %s, %s' % (S(sT), S(sT), S(sT3)), 's_mul_i32 %s, %s, %d' % (S(sT3), S(sW), 25 * 128), 's_add_u32 %s, %s, %s' % (S(sT), S(sT), S(sT3)),
                 'v_lshrrev_b32 %s, 1, %s' % (V(vCP), V(vL)), 'v_min_u32 %s, 24, %s' % (V(vCP), V(vCP)), 'v_lshlrev_b32 %s, 7, %s' % (V(vCP), V(vCP)),
                 'VM pf buffer_load_dword %s, %s, %s, %s offen' % (V(vDump), V(vCP), S(rW2, 4), S(sT))])
    main.append(['s_lshr_b32 %s, s2, 3' % S(sT2), 's_lshl_b32 %s, %s, 1' % (S(sT2), S(sT2)), 's_lshr_b32 %s, %s, 1' % (S(sT), S(sW)),
                 's_add_u32 %s, %s, %s' % (S(sT2), S(sT2), S(sT)), 's_mul_i32 %s, %s, 14400' % (S(sT2), S(sT2)),
                 's_mul_i32 %s, %s, 1800' % (S(sT), S(sXc)), 's_add_u32 %s, %s, %s' % (S(sT2), S(sT2), S(sT)),
                 'v_lshrrev_b32 %s, 2, %s' % (V(vCP + 1), V(vL)), 'v_lshlrev_b32 %s, 7, %s' % (V(vCP + 1), V(vCP + 1)), 'v_min_u32 %s, 1796, %s' % (V(vCP + 1), V(vCP + 1)),
                 's_bitcmp1_b32 %s, 0' % S(sW), 's_cbranch_scc1 L_pfwi',
                 'VM pf buffer_load_dword %s, %s, %s, %s offen' % (V(vDump), V(vCP + 1), S(rWR, 4), S(sT2)), 's_branch L_pfd', 'L_pfwi:',
                 'RAW buffer_load_dword %s, %s, %s, %s offen' % (V(vDump), V(vCP + 1), S(rWI, 4), S(sT2)), 'L_pfd:'])
    G = ['s_lshl_b32 %s, %s, 4' % (S(sFo), S(sC)),
         'v_add_u32 %s, %s, %s' % (V(t3), S(sFo), V(vJ)), 'v_cvt_f32_u32 %s, %s' % (V(vKdf), V(t3)),
         'v_mul_f32 %s, %s, %s' % (V(vU), S(sInv448), V(vKdf)),
         'v_mov_b32 %s, 1.0' % V(vAmp),
         'v_cmp_eq_u32 vcc, 0, %s' % V(t3), 'v_cndmask_b32 %s, %s, 0.5, vcc' % (V(vAmp), V(vAmp)),
         'v_cmp_eq_u32 vcc, 224, %s' % V(t3), 'v_cndmask_b32 %s, %s, 0.5, vcc' % (V(vAmp), V(vAmp)),
         'v_cmp_lt_u32 vcc, 224, %s' % V(t3), 'v_cndmask_b32 %s, %s, 0, vcc' % (V(vAmp), V(vAmp)),
         's_lshl_b32 %s, %s, 11' % (S(sFo), S(sW)), 's_add_u32 %s, %s, %d' % (S(sFo), S(sFo), FL),
         'v_add_u32 %s, %s, %s' % (V(vFw), S(sFo), V(vL16)), 'v_add_u32 %s, %d, %s' % (V(vFr), FL, V(vL16))]
    GWL = []
    for a in range(4):
        G += ['s_add_u32 %s, %s, %s' % (S(sFo), S(sW), S(sRot2)), 's_add_u32 %s, %s, %d' % (S(sFo), S(sFo), 4 * a),
              's_sub_u32 %s, %s, 14' % (S(sSpin), S(sFo)), 's_min_u32 %s, %s, %s' % (S(sFo), S(sFo), S(sSpin)),
              's_lshl_b32 %s, %s, 5' % (S(sFo), S(sFo)),
              'v_add_u32 %s, %s, %s' % (V(vD0), S(sFo), V(vQ8)),
              'v_cvt_f32_u32 %s, %s' % (V(vD0), V(vD0)),
              'v_mul_f32 %s, %s, %s' % (V(t3), V(vKdf), V(vD0)),
              'v_mul_f32 %s, %s, %s' % (V(th), S(sInv448), V(t3)),
              'v_floor_f32 %s, %s' % (V(th), V(th)),
              'v_fma_f32 %s, %s, %s, %s' % (V(t3), V(th), S(sM448), V(t3)),
              'v_mul_f32 %s, %s, %s' % (V(th), S(sInv448), V(t3))]
        for e in range(1, 8): G += ['v_add_f32 %s, %s, %s' % (V(th + e), V(th + e - 1), V(vU))]
        for e in range(8): G += ['v_cos_f32 %s, %s' % (V(cs + e), V(th + e)), 'v_sin_f32 %s, %s' % (V(sn + e), V(th + e))]
        for e in range(4):
            G += ['v_cvt_pk_bf16_f32 %s, %s, %s' % (V(pk0 + e), V(cs + 2 * e), V(cs + 2 * e + 1)),
                  'v_cvt_pk_bf16_f32 %s, -%s, -%s' % (V(pk1 + e), V(sn + 2 * e), V(sn + 2 * e + 1))]
        G += ['ds_write_b128 %s, %s offset:%d' % (V(vFw), V(pk0, 4), a * 8192),
              'ds_write_b128 %s, %s offset:%d' % (V(vFw), V(pk1, 4), a * 8192 + 1024)]
    vK = [th, th + 1]; vS0 = th + 2; vS = th + 3; vA = [th + 4, th + 5]
    G += ['v_cvt_f32_u32 %s, %s' % (V(vK[0]), V(vJ)), 'v_mul_f32 %s, %s, %s' % (V(vK[0]), f2u(1.0 / 2048), V(vK[0])),
          'v_add_f32 %s, %s, %s' % (V(vK[1]), f2u(16.0 / 2048), V(vK[0])),
          'v_lshlrev_b32 %s, 8, %s' % (V(vS0), V(vQ)), 'v_add_u32 %s, %s, %s' % (V(vS0), S(sN2), V(vS0)), 'v_cvt_f32_u32 %s, %s' % (V(vS0), V(vS0))]
    for t in range(2):
        for r in range(4):
            G += ['v_add_f32 %s, %s, %s' % (V(vS), f2u(64.0 * (16 * t + r)), V(vS0))]
            for kt in range(2): G += ['v_mul_f32 %s, %s, %s' % (V(vA[kt]), V(vK[kt]), V(vS))]
            for kt in range(2): G += ['v_cos_f32 %s, %s' % (V(cs + kt), V(vA[kt])), 'v_sin_f32 %s, %s' % (V(sn + kt), V(vA[kt]))]
            for kt in range(2):
                G += ['v_cvt_pk_bf16_f32 %s, %s, %s' % (V(MR[kt][t] + r), V(cs + kt), V(sn + kt)),
                      'v_cvt_pk_bf16_f32 %s, -%s, %s' % (V(MI[kt][t] + r), V(sn + kt), V(cs + kt))]
    G += ['v_lshrrev_b32 %s, 2, %s' % (V(t3), V(vL)), 'v_mul_u32_u24 %s, 224, %s' % (V(vTr), V(t3)),
          'v_and_b32 %s, 3, %s' % (V(t3), V(vL)), 'v_lshl_add_u32 %s, %s, 3, %s' % (V(vTr), V(t3), V(vTr)),
          'v_add_u32 %s, 65536, %s' % (V(vTr + 1), V(vTr)),
          'v_lshrrev_b32 %s, 1, %s' % (V(t3), V(vJ)), 'v_xor_b32 %s, %s, %s' % (V(t3), V(t3), V(vQ)),
          'v_lshlrev_b32 %s, 4, %s' % (V(t3), V(t3)), 'v_lshl_add_u32 %s, %s, 7, %s' % (V(t3), V(vJ), V(t3)),
          'v_add_u32 %s, %s, %s' % (V(vXr), S(sM0x), V(t3)), 'v_xor_b32 %s, 64, %s' % (V(vXr + 1), V(vXr))]
    for t in range(4):
        for r in range(4): G += ['v_mov_b32 %s, 0' % V(WRr[t] + r), 'v_mov_b32 %s, 0' % V(WIr[t] + r)]
    L += interleave(main, G, (len(G) + len(main) - 1) // len(main))
    st('issued')
    L += ['WAITVM bias']
    for T in range(7):
        for h in range(2):
            L += ['v_lshlrev_b32 %s, 16, %s' % (V(vB[T] + 2 * h), V(vBraw[T] + h)),
                  'v_and_b32 %s, 0xffff0000, %s' % (V(vB[T] + 2 * h + 1), V(vBraw[T] + h))]
    L += ['s_cmp_lg_u32 %s, 15' % S(sC), 's_cbranch_scc1 L_nogate0', 'WAITVM gw']
    for a in range(4): L += ['ds_write_b128 %s, %s offset:%d' % (V(vFw), V(vGW[a], 4), a * 8192)]
    L += ['L_nogate0:']

    def tr_reads(dst, base, nt=7):
        o = []
        reg = vTr + (base >= 65536); off = base - (65536 if base >= 65536 else 0)
        for T in range(nt):
            for b in range(2):
                o.append('ds_read_b64_tr_b16 %s, %s offset:%d' % (A(dst[T] + 2 * b, 2), V(reg), off + b * 3584 + T * 32))
        return o
    def readsA(ks):
        s = ks // 2; kk = ks & 1
        o = ['ds_read_b128 %s, %s offset:%d' % (A(XF[kk][rt], 4), V(vXr + kk), XR + (s % 4) * 16384 + rt * 2048) for rt in range(2)]
        o += tr_reads(WF[kk], W1R + (s % 4) * 14336 + kk * 7168)
        o += ['ds_read_b128 %s, %s offset:%d' % (A(WF[kk][7 + T], 4), V(vFr), ks * 2048 + T * 1024) for T in range(2)]
        return o
    def mfmasA(ks):
        o = []
        for T in range(9):
            for rt in range(2):
                c = V(ACC[rt][T], 4) if ks else (V(vB[T], 4) if T < 7 else '0')
                w = A(WF[ks & 1][T], 4); x = A(XF[ks & 1][rt], 4)
                o.append('%s %s, %s, %s, %s' % ((MFMA, V(ACC[rt][T], 4)) + ((w, x) if T < 7 else (x, w)) + (c,)))
        return o
    def weave(mm, rd, bundles, per=2):
        out = []; ri = 0; bi = 0
        for k, m in enumerate(mm):
            out.append(m)
            if ri < len(rd): out += rd[ri:ri + per]; ri += per
            elif bi < len(bundles): out += bundles[bi]; bi += 1
        out += rd[ri:]
        for b in bundles[bi:]: out += b
        return out
    L += ['WAITVM st0 lgkmcnt(0)', 's_barrier',
          's_mul_i32 %s, %s, 0x9e3779b1' % (S(sTag), S(sEp)), 's_add_u32 %s, %s, 0x7f4a7c15' % (S(sTag), S(sTag)), 'v_mov_b32 %s, %s' % (V(vTag), S(sTag))]
    st('b0')
    L += readsA(0)
    pend = []
    for ks in range(14):
        if ks & 1 and ks < 13:
            s = (ks + 1) // 2
            L += ['WAITVM st%d lgkmcnt(0)' % s, 's_barrier']
            pend = stage_loads(s + 3) if s + 3 <= 6 else w2_loads(s - 4)
            if s == 3: st('b3')
            if s == 6:
                L += ['s_cmp_ge_u32 %s, 15' % S(sRole), 's_cbranch_scc1 L_now', 'OPT_BEGIN',
                      's_lshl_b32 %s, %s, 2' % (S(sT), S(sXc)), 's_add_u32 %s, %s, %s' % (S(sT), S(sT), S(sW)), 's_mul_i32 %s, %s, 450' % (S(sT), S(sT)),
                      's_lshl_b32 %s, %s, 5' % (S(sT2), S(sCF)), 's_add_u32 %s, %s, %s' % (S(sT), S(sT), S(sT2)),
                      'v_mul_u32_u24 %s, %d, %s' % (V(t1), 4 * 14400, V(vQ)), 'v_lshl_add_u32 %s, %s, 1, %s' % (V(t1), V(vJ), V(t1))]
                for t in range(4):
                    for r in range(4):
                        L += ['s_add_u32 %s, %s, %d' % (S(sT2), S(sT), (16 * t + r) * 14400),
                              'VM W buffer_load_short_d16_hi %s, %s, %s, %s offen' % (V(WRr[t] + r), V(t1), S(rWR, 4), S(sT2)),
                              'VM W buffer_load_short_d16_hi %s, %s, %s, %s offen' % (V(WIr[t] + r), V(t1), S(rWI, 4), S(sT2))]
                L += ['OPT_END', 'L_now:']
        else:
            L += ['s_waitcnt lgkmcnt(0)']
        h = (len(pend) + 1) // 2 if ks & 1 else len(pend)
        L += weave(mfmasA(ks), readsA(ks + 1) if ks < 13 else [], pend[:h]); pend = pend[h:]
    st('mainA')
    PX = [tmpA, tmpA + 4]; DR = [tmpA + 8, tmpA + 12]; DI = [tmpA + 16, tmpA + 20]; XO = [tmpA + 24, tmpA + 28]
    L += ['s_lshl_b32 %s, %s, 2' % (S(sT), S(sW)), 's_add_u32 %s, %s, %d' % (S(sT), S(sT), XCH),
          'v_lshlrev_b32 %s, 10, %s' % (V(t0), V(vQ)), 'v_lshl_add_u32 %s, %s, 4, %s' % (V(t0), V(vJ), V(t0)), 'v_add_u32 %s, %s, %s' % (V(t0), S(sT), V(t0)),
          'v_lshlrev_b32 %s, 4, v0' % V(t2), 'v_add_u32 %s, %d, %s' % (V(t1), XCH, V(t2)),
          's_nop 3', 's_cmp_eq_u32 %s, 15' % S(sC), 's_cbranch_scc1 L_gate']
    for t in range(2):
        for r in range(4): L += ['v_cvt_pk_bf16_f32 %s, %s, %s' % (V(PX[t] + r), V(ACC[t][7] + r), V(ACC[t][8] + r))]
    for t in range(2):
        for kt in range(2):
            L += ['%s %s, %s, %s, %s' % (MFMA, V(DR[kt], 4), V(MR[kt][t], 4), V(PX[t], 4), V(DR[kt], 4) if t else '0'),
                  '%s %s, %s, %s, %s' % (MFMA, V(DI[kt], 4), V(MI[kt][t], 4), V(PX[t], 4), V(DI[kt], 4) if t else '0')]
    L += ['s_lshl_b32 %s, %s, 4' % (S(sT), S(sI)), 's_add_u32 %s, %s, %s' % (S(sT), S(sT), S(sC)),
          's_lshl_b32 %s, %s, 13' % (S(sT), S(sT)), 's_add_u32 %s, %s, 0x%x' % (S(sAo), S(sT), A1_OFF), 's_add_u32 %s, %s, 4096' % (S(sAo + 1), S(sAo))]
    for kt in range(2):
        for r in range(4):
            L += ['v_mul_f32 %s, %s, %s' % (V(DR[kt] + r), V(vAmp), V(DR[kt] + r)), 'v_mul_f32 %s, %s, %s' % (V(DI[kt] + r), V(vAmp), V(DI[kt] + r)),
                  'v_cvt_pk_bf16_f32 %s, %s, %s' % (V(DR[kt] + r), V(DR[kt] + r), V(DI[kt] + r)),
                  'ds_write_b32 %s, %s offset:%d' % (V(t0), V(DR[kt] + r), kt * 4096 + r * 256)]
    L += ['WAITVM w2_1 lgkmcnt(0)', 's_barrier']
    L += ['ds_read_b128 %s, %s offset:%d' % (V(XO[k], 4), V(t1), k * 4096) for k in range(2)]
    L += ['s_waitcnt lgkmcnt(0)', 's_branch L_a1st', 'L_gate:']
    for rt in range(2):
        a = ACC[rt][7]; o = XO[rt]
        for r in range(4): L += ['v_mul_f32 %s, %s, %s' % (V(o + r), S(sL2E), V(a + r))]
        for r in range(4): L += ['v_exp_f32 %s, -%s' % (V(o + r), V(o + r))]
        for r in range(4): L += ['v_add_f32 %s, 1.0, %s' % (V(o + r), V(o + r))]
        for r in range(4): L += ['v_rcp_f32 %s, %s' % (V(o + r), V(o + r))]
    L += ['s_lshl_b32 %s, %s, 7' % (S(sT), S(sN2)), 's_add_u32 %s, %s, 0x%x' % (S(sAo), S(sT), GATE_OFF), 's_add_u32 %s, %s, 64' % (S(sAo + 1), S(sAo)),
          'v_mov_b32 %s, %s' % (V(t2), V(vQ16)), 'WAITVM w2_1', 's_barrier', 'L_a1st:']
    for k in range(2): L += ['VM a1 buffer_store_dwordx4 %s, %s, %s, %s offen %s' % (V(XO[k], 4), V(t2), S(rWS, 4), S(sAo + k), SC)]
    st('a1st')
    L += ['s_mul_i32 %s, %s, 7' % (S(sT), S(sC)), 's_lshr_b32 %s, %s, 1' % (S(sT2), S(sPar2)),
          's_add_u32 %s, %s, %s' % (S(sAo), S(sT), S(sT2)), 's_lshr_b32 %s, %s, 1' % (S(sAo), S(sAo)),
          's_mul_i32 %s, %s, 7' % (S(sT2), S(sT2)), 's_add_u32 %s, %s, 6' % (S(sT), S(sT)),
          's_sub_u32 %s, %s, %s' % (S(sT), S(sT), S(sT2)), 's_lshr_b32 %s, %s, 1' % (S(sAo + 1), S(sT)),
          's_mul_i32 %s, %s, 56' % (S(sT), S(sN2)),
          's_add_u32 %s, %s, %s' % (S(sAo), S(sAo), S(sT)), 's_add_u32 %s, %s, %s' % (S(sAo + 1), S(sAo + 1), S(sT)),
          's_lshl_b32 %s, %s, 11' % (S(sAo), S(sAo)), 's_lshl_b32 %s, %s, 11' % (S(sAo + 1), S(sAo + 1)),
          's_lshl_b32 %s, %s, 2' % (S(sT), S(sPar2)), 's_add_u32 %s, %s, %s' % (S(sAo + 1), S(sAo + 1), S(sT)),
          'v_add_u32 %s, 4096, %s' % (V(t1), V(vL16)),
          's_lshl_b32 %s, %s, 2' % (S(sFo), S(sC)), 's_add_u32 %s, %s, %s' % (S(sFo), S(sFo), S(sW)), 's_lshl_b32 %s, %s, 4' % (S(sFo), S(sFo)),
          's_add_u32 %s, %s, %s' % (S(sFo), S(sFo), S(sI)), 's_mul_i32 %s, %s, %d' % (S(sFo), S(sFo), FS), 's_add_u32 %s, %s, 0x%x' % (S(sFo), S(sFo), FA_OFF)]
    c2 = MR[0][0]; cm2 = c2 + 2; c1 = MR[0][1]
    L += ['v_mov_b32 %s, 2.0' % V(c2), 'v_mov_b32 %s, 2.0' % V(c2 + 1), 'v_mov_b32 %s, -2.0' % V(cm2), 'v_mov_b32 %s, -2.0' % V(cm2 + 1),
          'v_mov_b32 %s, 1.0' % V(c1), 'v_mov_b32 %s, 1.0' % V(c1 + 1)]
    E = tmpA; Aa = tmpA + 8; SING = [tmpA + 16, tmpA + 20]
    w2b = w2_loads(3) + w2_loads(4) + w2_loads(5) + w2_loads(6)
    n = 0
    for P in (3, 0, 1, 2):
        for rt in range(2):
            tiles = [2 * P, 2 * P + 1] if P < 3 else [6]
            o = OWN[P][rt] if P < 3 else SING[rt]
            nv = 4 * len(tiles)
            h = lambda k: ACC[rt][tiles[k // 4]] + (k % 4)
            for k in range(0, nv, 2): L += ['v_pk_mul_f32 %s, %s, %s' % (V(E + k, 2), V(h(k), 2), S(sL2E, 2))]
            for k in range(nv): L += ['v_exp_f32 %s, %s' % (V(E + k), V(E + k))]
            for k in range(0, nv, 2): L += ['v_pk_add_f32 %s, %s, %s' % (V(Aa + k, 2), V(E + k, 2), V(c2, 2))]
            for k in range(0, nv, 2): L += ['v_pk_fma_f32 %s, %s, %s, %s' % (V(E + k, 2), V(E + k, 2), V(Aa + k, 2), V(c2, 2))]
            for k in range(nv): L += ['v_rcp_f32 %s, %s' % (V(E + k), V(E + k))]
            for k in range(0, nv, 2): L += ['v_pk_fma_f32 %s, %s, %s, %s' % (V(E + k, 2), V(E + k, 2), V(cm2, 2), V(c1, 2))]
            for k in range(0, nv, 2): L += ['v_pk_mul_f32 %s, %s, %s' % (V(E + k, 2), V(E + k, 2), V(h(k), 2))]
            for k in range(0, nv, 2): L += ['v_cvt_pk_bf16_f32 %s, %s, %s' % (V(o + k // 2), V(E + k), V(E + k + 1))]
            if P < 2: L += ['VM act buffer_store_dwordx4 %s, %s, %s, %s offen offset:%d %s' % (V(o, 4), V(vL16), S(rWS, 4), S(sAo), P * 2048 + rt * 1024, SC)]
            elif P == 2: L += ['VM act buffer_store_dwordx4 %s, %s, %s, %s offen offset:%d %s' % (V(o, 4), V(t1), S(rWS, 4), S(sAo), rt * 1024, SC)]
            else: L += ['VM act buffer_store_dwordx2 %s, %s, %s, %s offen offset:%d %s' % (V(o, 2), V(vL16), S(rWS, 4), S(sAo + 1), rt * 1024, SC)]
            L += w2b[n]; n += 1
            if n == 6: L += ['WAITVM a1']; setflag(sFo, L)
    st('mish')
    pc = Alloc('v', big, big + 196)
    ACB = [[pc(4) for T in range(7)] for rt in range(2)]
    WF2 = [WF[0][:7], WF[1][:7]]
    def readsC(sl): return tr_reads(WF2[sl & 1], W2B[sl // 2] + (sl & 1) * 7168)
    def mfmasC(sl):
        o = []
        for T in range(7):
            for rt in range(2):
                b = V(OWN[sl][rt], 4) if sl < 3 else A(AF[sl - 3][rt], 4)
                o.append('%s %s, %s, %s, %s' % (MFMA, V(ACB[rt][T], 4), A(WF2[sl & 1][T], 4), b, V(ACB[rt][T], 4) if sl else '0'))
        return o
    L += readsC(0)
    L += ['s_lshl_b32 %s, %s, 4' % (S(sFo), S(sN2)), 's_add_u32 %s, %s, %s' % (S(sFo), S(sFo), S(sC)),
          's_mul_i32 %s, %s, %d' % (S(sFo), S(sFo), FS), 's_add_u32 %s, %s, 0x%x' % (S(sFo), S(sFo), FG_OFF)]
    for sl in range(3):
        L += ['s_waitcnt lgkmcnt(0)'] + weave(mfmasC(sl), readsC(sl + 1), [])
    L += ['WAITVM act']; setflag(sFo, L)
    st('actflag')
    pb = Alloc('v', big + 56, big + 164)
    assert WRr[0] == big + 164
    DF = [pb(4) for u in range(4)]; XRr = [pb(4) for t in range(4)]; XIr = [pb(4) for t in range(4)]; PF = [pb(4) for t in range(4)]
    pkm = pb(4); vI = pb(); vN0 = pb(); vAn = pb(); vc = pb(); vs = pb()
    ma = Alloc('a', AF[0][0], 256)
    MM = [[[ma(4) for u in range(4)] for t in range(4)] for e in range(2)]
    aa.hi = max(aa.hi, ma.hi)
    L += ['s_cmp_ge_u32 %s, 15' % S(sRole), 's_cbranch_scc1 L_nofft', 'OPT_BEGIN']
    L += ['s_lshl_b32 %s, %s, 2' % (S(sT), S(sCF)), 's_add_u32 %s, %s, %s' % (S(sT), S(sT), S(sKS)), 's_mul_i32 %s, %s, %d' % (S(sT), S(sT), 16 * FS),
          's_add_u32 %s, %s, 0x%x' % (S(sT), S(sT), FA_OFF),
          'v_lshrrev_b32 %s, 2, %s' % (V(t0), V(vL)), 'v_mul_u32_u24 %s, %d, %s' % (V(t0), FS, V(t0)), 'v_add_u32 %s, %s, %s' % (V(t0), S(sT), V(t0))]
    poll(t0, t1)
    st('fa')
    L += ['s_lshl_b32 %s, %s, 13' % (S(sT), S(sCF)), 's_lshl_b32 %s, %s, 2' % (S(sT2), S(sXc)), 's_add_u32 %s, %s, %s' % (S(sT2), S(sT2), S(sW)),
          's_lshl_b32 %s, %s, 8' % (S(sT2), S(sT2)), 's_add_u32 %s, %s, %s' % (S(sT), S(sT), S(sT2)),
          'v_lshlrev_b32 %s, 17, %s' % (V(t0), V(vQ)), 'v_lshl_add_u32 %s, %s, 4, %s' % (V(t0), V(vJ), V(t0))]
    for u in range(4):
        L += ['s_add_u32 %s, %s, 0x%x' % (S(sT2), S(sT), A1_OFF + u * 4 * 16 * 8192),
              'VM df buffer_load_dwordx4 %s, %s, %s, %s offen %s' % (V(DF[u], 4), V(t0), S(rWS, 4), S(sT2), SC)]
    L += ['v_cvt_f32_u32 %s, %s' % (V(vI), V(vJ)), 'v_mul_f32 %s, %s, %s' % (V(vI), f2u(1.0 / 64), V(vI)),
          'v_lshlrev_b32 %s, 2, %s' % (V(vN0), V(vQ)), 'v_cvt_f32_u32 %s, %s' % (V(vN0), V(vN0))]
    for u in range(4):
        for r in range(4):
            L += ['v_add_f32 %s, %s, %s' % (V(vAn), f2u(16.0 * u + r), V(vN0)), 'v_mul_f32 %s, %s, %s' % (V(vAn), V(vAn), V(vI)),
                  'v_cos_f32 %s, %s' % (V(vc), V(vAn)), 'v_sin_f32 %s, %s' % (V(vs), V(vAn))]
            rot = [(V(vc), V(vs)), ('-' + V(vs), V(vc)), ('-' + V(vc), '-' + V(vs)), (V(vs), '-' + V(vc))]
            for m in sorted({(t * r + e) % 4 for t in range(4) for e in range(2)}):
                L += ['v_cvt_pk_bf16_f32 %s, %s, %s' % (V(pkm + m), rot[m][0], rot[m][1])]
            for e in range(2):
                for t in range(4): L += ['v_accvgpr_write_b32 %s, %s' % (A(MM[e][t][u] + r), V(pkm + (t * r + e) % 4))]
    L += ['WAITVM df']
    st('df')
    for u in range(4):
        for t in range(4):
            L += ['%s %s, %s, %s, %s' % (MFMA, V(XRr[t], 4), A(MM[0][t][u], 4), V(DF[u], 4), V(XRr[t], 4) if u else '0'),
                  '%s %s, %s, %s, %s' % (MFMA, V(XIr[t], 4), A(MM[1][t][u], 4), V(DF[u], 4), V(XIr[t], 4) if u else '0')]
    for t in range(4):
        for r in range(4):
            xr, xi, wr, wi = V(XRr[t] + r), V(XIr[t] + r), V(WRr[t] + r), V(WIr[t] + r)
            L += ['v_mul_f32 %s, %s, %s' % (V(t0), xr, wr), 'v_mul_f32 %s, %s, %s' % (V(t1), xr, wi),
                  'v_fma_f32 %s, -%s, %s, %s' % (V(t0), xi, wi, V(t0)), 'v_fma_f32 %s, %s, %s, %s' % (V(t1), xi, wr, V(t1)),
                  'v_cvt_pk_bf16_f32 %s, %s, %s' % (V(PF[t] + r), V(t1), V(t0))]
    for u in range(4):
        for t in range(4):
            L += ['%s %s, %s, %s, %s' % (MFMA, V(XRr[t], 4), A(MM[1][t][u], 4), V(PF[u], 4), V(XRr[t], 4) if u else '0'),
                  '%s %s, %s, %s, %s' % (MFMA, V(XIr[t], 4), A(MM[0][t][u], 4), V(PF[u], 4), V(XIr[t], 4) if u else '0')]
    L += ['s_lshl_b32 %s, %s, 2' % (S(sT), S(sW)), 's_add_u32 %s, %s, %d' % (S(sT), S(sT), FL),
          'v_lshlrev_b32 %s, 10, %s' % (V(t0), V(vQ)), 'v_lshl_add_u32 %s, %s, 4, %s' % (V(t0), V(vJ), V(t0)), 'v_add_u32 %s, %s, %s' % (V(t0), S(sT), V(t0)),
          's_add_u32 %s, %s, %d' % (S(sT), S(sM0x), FL), 'v_add_u32 %s, %s, %s' % (V(t1), S(sT), V(vL16)),
          'v_lshlrev_b32 %s, 11, %s' % (V(t2), V(vQ)), 'v_lshl_add_u32 %s, %s, 4, %s' % (V(t2), V(vJ), V(t2)),
          's_lshl_b32 %s, %s, 2' % (S(sT), S(sCF)), 's_add_u32 %s, %s, %s' % (S(sT), S(sT), S(sW)), 's_lshl_b32 %s, %s, 15' % (S(sT), S(sT)),
          's_lshl_b32 %s, %s, 8' % (S(sT2), S(sXc)), 's_add_u32 %s, %s, %s' % (S(sT), S(sT), S(sT2))]
    for t in range(4):
        for r in range(4):
            L += ['v_cvt_pk_bf16_f32 %s, %s, %s' % (V(PF[t] + r), V(XRr[t] + r), V(XIr[t] + r)),
                  'ds_write_b32 %s, %s offset:%d' % (V(t0), V(PF[t] + r), t * 4096 + r * 256)]
    L += ['s_waitcnt lgkmcnt(0)', 's_barrier']
    L += ['ds_read_b128 %s, %s offset:%d' % (V(DF[k], 4), V(t1), k * 1024) for k in range(4)]
    for k in range(4):
        L += ['s_add_u32 %s, %s, 0x%x' % (S(sT2), S(sT), B1_OFF + k * 8192), 's_waitcnt lgkmcnt(%d)' % (3 - k),
              'VM b1 buffer_store_dwordx4 %s, %s, %s, %s offen %s' % (V(DF[k], 4), V(t2), S(rWS, 4), S(sT2), SC)]
    L += ['OPT_END', 'L_nofft:']
    st('fft')
    L += ['s_lshl_b32 %s, %s, 2' % (S(sT), S(sN2)), 's_add_u32 %s, %s, %s' % (S(sT), S(sT), S(sKS)), 's_mul_i32 %s, %s, %d' % (S(sT), S(sT), 4 * FS),
          's_add_u32 %s, %s, 0x%x' % (S(sT), S(sT), FG_OFF),
          'v_mul_u32_u24 %s, %d, %s' % (V(t0), FS, V(vQ)), 'v_add_u32 %s, %s, %s' % (V(t0), S(sT), V(t0))]
    poll(t0, t1)
    st('fg')
    L += ['s_cmp_ge_u32 %s, 15' % S(sRole), 's_cbranch_scc1 L_nofb', 'OPT_BEGIN',
          's_lshl_b32 %s, %s, 4' % (S(sFo), S(sW)), 's_add_u32 %s, %s, %s' % (S(sFo), S(sFo), S(sCF)), 's_lshl_b32 %s, %s, 3' % (S(sFo), S(sFo)),
          's_add_u32 %s, %s, %s' % (S(sFo), S(sFo), S(sXc)), 's_mul_i32 %s, %s, %d' % (S(sFo), S(sFo), FS), 's_add_u32 %s, %s, 0x%x' % (S(sFo), S(sFo), FB_OFF)]
    setflag(sFo, L)
    L += ['OPT_END', 'L_nofb:']
    L += ['s_mul_i32 %s, %s, 56' % (S(sT), S(sN2)), 's_mul_i32 %s, %s, 14' % (S(sT2), S(sKS)), 's_add_u32 %s, %s, %s' % (S(sT), S(sT), S(sT2)),
          's_lshl_b32 %s, %s, 11' % (S(sAo), S(sT)), 's_add_u32 %s, %s, 3' % (S(sKap), S(sK0))]
    for s in range(11):
        L += ['s_cmp_eq_u32 %s, 14' % S(sKap), 's_cselect_b32 %s, 0, %s' % (S(sKap), S(sKap)),
              's_lshl_b32 %s, %s, 11' % (S(sT), S(sKap)), 's_add_u32 %s, %s, %s' % (S(sT), S(sT), S(sAo)), 's_add_u32 %s, %s, 1' % (S(sKap), S(sKap))]
        for rt in range(2):
            L += ['VM af%d buffer_load_dwordx4 %s, %s, %s, %s offen offset:%d %s' % (s, A(AF[s][rt], 4), V(vL16), S(rWS, 4), S(sT), rt * 1024, SC)]
    L += ['s_barrier']
    for sl in range(3, 14):
        L += ['WAITVM af%d lgkmcnt(0)' % (sl - 3)] + weave(mfmasC(sl), readsC(sl + 1) if sl < 13 else [], [])
    st('mainC')
    pd = Alloc('v', big + 56, big + 196)
    PO = [pd(4) for T in range(7)]
    L += ['s_cmp_eq_u32 %s, %s' % (S(sW), S(sKS)), 's_cbranch_scc1 L_nopart', 'OPT_BEGIN',
          's_lshl_b32 %s, %s, 6' % (S(sT), S(sKS)), 's_add_u32 %s, %s, %s' % (S(sT), S(sT), S(sN2)),
          's_mul_i32 %s, %s, 28' % (S(sT), S(sT)), 's_mul_i32 %s, %s, 7' % (S(sT2), S(sNB)),
          's_add_u32 %s, %s, %s' % (S(sT), S(sT), S(sT2)), 's_lshl_b32 %s, %s, 10' % (S(sT), S(sT)), 's_add_u32 %s, %s, 0x%x' % (S(sT), S(sT), PART_OFF),
          's_add_u32 %s, %s, 4096' % (S(sT2), S(sT)), 's_nop 1']
    for T in range(7):
        for rt in range(2):
            for h in range(2):
                L += ['v_cvt_pk_bf16_f32 %s, %s, %s' % (V(PO[T] + 2 * rt + h), V(ACB[rt][T] + 2 * h), V(ACB[rt][T] + 2 * h + 1))]
        L += ['VM part buffer_store_dwordx4 %s, %s, %s, %s offen offset:%d %s' % (V(PO[T], 4), V(vL16), S(rWS, 4), S(sT if T < 4 else sT2), (T % 4) * 1024, SC)]
    L += ['OPT_END', 'L_nopart:']
    ga = Alloc('a', 0, 256)
    GF = [[ga(4) for T in range(7)] for a in range(4)]
    BF = [[ga(4) for u in range(2)] for a in range(4)]
    aa.hi = max(aa.hi, ga.hi)
    CS = [[pd(2) for r in range(4)] for a in range(4)]
    vDf = pd(); vUu = pd(); vK0 = pd(); kR = pd(2); kA = pd(2); an = pd(4, 1); pkg = pd(4, 1)
    L += ['s_mul_i32 %s, %s, 112' % (S(sT), S(sNB)), 'v_add_u32 %s, %s, %s' % (V(t0), S(sT), V(vJ)), 'v_cvt_f32_u32 %s, %s' % (V(vDf), V(t0)),
          's_lshl_b32 %s, %s, 6' % (S(sT), S(sW)), 'v_lshl_add_u32 %s, %s, 2, %s' % (V(t0), V(vQ), S(sT)), 'v_cvt_f32_u32 %s, %s' % (V(vK0), V(t0))]
    def gen_G(T):
        o = []
        if T: o += ['v_add_f32 %s, %s, %s' % (V(vDf), f2u(16.0), V(vDf))]
        o += ['v_mul_f32 %s, %s, %s' % (V(vUu), S(sInv448), V(vDf)),
              'v_mul_f32 %s, %s, %s' % (V(t3), V(vK0), V(vDf)), 'v_mul_f32 %s, %s, %s' % (V(an), S(sInv448), V(t3)), 'v_floor_f32 %s, %s' % (V(an), V(an)),
              'v_fma_f32 %s, %s, %s, %s' % (V(t3), V(an), S(sM448), V(t3)), 'v_mul_f32 %s, %s, %s' % (V(an), S(sInv448), V(t3)),
              'v_mul_f32 %s, %s, %s' % (V(t3), f2u(16.0), V(vUu)),
              'v_cos_f32 %s, %s' % (V(kR), V(vUu)), 'v_cos_f32 %s, %s' % (V(kA), V(t3)),
              'v_add_f32 %s, %s, %s' % (V(an + 1), V(an), V(vUu)), 'v_add_f32 %s, %s, %s' % (V(an + 2), V(an), V(t3)), 'v_add_f32 %s, %s, %s' % (V(an + 3), V(an + 1), V(t3)),
              'v_add_f32 %s, %s, %s' % (V(kR), V(kR), V(kR)), 'v_add_f32 %s, %s, %s' % (V(kA), V(kA), V(kA))]
        for a in range(2):
            for r in range(2):
                o += ['v_cos_f32 %s, %s' % (V(CS[a][r]), V(an + 2 * a + r)), 'v_sin_f32 %s, -%s' % (V(CS[a][r] + 1), V(an + 2 * a + r))]
        cheb = lambda d, k, x1, x0: 'v_pk_fma_f32 %s, %s, %s, %s op_sel_hi:[0,1,1] neg_lo:[0,0,1] neg_hi:[0,0,1]' % (V(d, 2), V(k, 2), V(x1, 2), V(x0, 2))
        for r in (2, 3):
            for a in range(2): o += [cheb(CS[a][r], kR, CS[a][r - 1], CS[a][r - 2])]
        for a in (2, 3):
            for r in range(4): o += [cheb(CS[a][r], kA, CS[a - 1][r], CS[a - 2][r])]
        for a in range(4):
            for r in range(4): o += ['v_cvt_pk_bf16_f32 %s, %s, %s' % (V(pkg + r), V(CS[a][r]), V(CS[a][r] + 1))]
            for r in range(4): o += ['v_accvgpr_write_b32 %s, %s' % (A(GF[a][T] + r), V(pkg + r))]
        return o
    for T in range(3): L += gen_G(T)
    L += ['s_lshr_b32 %s, %s, 4' % (S(sT), S(sN2f)), 's_mul_i32 %s, %s, %d' % (S(sT), S(sT), 128 * FS), 's_add_u32 %s, %s, 0x%x' % (S(sT), S(sT), FB_OFF),
          's_lshl_b32 %s, %s, 2' % (S(sT2), S(sW)),
          'v_lshrrev_b32 %s, 3, %s' % (V(t0), V(vL)), 'v_add_u32 %s, %s, %s' % (V(t0), S(sT2), V(t0)), 'v_min_u32 %s, 14, %s' % (V(t0), V(t0)),
          'v_and_b32 %s, 7, %s' % (V(t1), V(vL)), 'v_lshl_add_u32 %s, %s, 3, %s' % (V(t0), V(t0), V(t1)),
          'v_mul_u32_u24 %s, %d, %s' % (V(t0), FS, V(t0)), 'v_add_u32 %s, %s, %s' % (V(t0), S(sT), V(t0)),
          's_add_u32 %s, %s, 60' % (S(sT), S(sKS)), 's_lshl_b32 %s, %s, 4' % (S(sT), S(sT)), 's_add_u32 %s, %s, %s' % (S(sT), S(sT), S(sI)),
          's_mul_i32 %s, %s, %d' % (S(sT), S(sT), FS), 's_add_u32 %s, %s, 0x%x' % (S(sT), S(sT), FA_OFF),
          'v_mov_b32 %s, %s' % (V(t1), S(sT)), 'v_cmp_lt_u32 vcc, 31, %s' % V(vL), 'v_cndmask_b32 %s, %s, %s, vcc' % (V(t0), V(t0), V(t1))]
    poll(t0, t1)
    st('fb')
    L += ['s_cmp_eq_u32 %s, %s' % (S(sW), S(sKS)), 's_cbranch_scc1 L_nofp', 'OPT_BEGIN',
          's_lshl_b32 %s, %s, 2' % (S(sFo), S(sN2)), 's_add_u32 %s, %s, %s' % (S(sFo), S(sFo), S(sNB)), 's_lshl_b32 %s, %s, 2' % (S(sFo), S(sFo)),
          's_add_u32 %s, %s, %s' % (S(sFo), S(sFo), S(sKS)), 's_mul_i32 %s, %s, %d' % (S(sFo), S(sFo), FS), 's_add_u32 %s, %s, 0x%x' % (S(sFo), S(sFo), FP_OFF)]
    setflag(sFo, L)
    L += ['OPT_END', 'L_nofp:']
    vG = pd(2); vG1 = pd(2)
    L += ['s_lshl_b32 %s, %s, 7' % (S(sT), S(sN2f)), 's_add_u32 %s, %s, 0x%x' % (S(sT), S(sT), GATE_OFF), 'v_lshlrev_b32 %s, 2, %s' % (V(t0), V(vJ))]
    for rt in range(2): L += ['VM g buffer_load_dword %s, %s, %s, %s offen offset:%d %s' % (V(vG + rt), V(t0), S(rWS, 4), S(sT), rt * 64, SC)]
    L += ['s_lshl_b32 %s, %s, 8' % (S(sT), S(sW)), 's_add_u32 %s, %s, %s' % (S(sT), S(sT), S(sN2f)), 's_lshl_b32 %s, %s, 11' % (S(sT), S(sT))]
    for a in range(4):
        L += ['s_add_u32 %s, %s, 0x%x' % (S(sT2), S(sT), B1_OFF + a * 64 * 2048)]
        for u in range(2):
            L += ['VM bf buffer_load_dwordx4 %s, %s, %s, %s offen offset:%d %s' % (A(BF[a][u], 4), V(vL16), S(rWS, 4), S(sT2), u * 1024, SC)]
    for T in range(3, 7): L += gen_G(T)
    NR = [[pd(4) for u in range(2)] for tn in range(2)]; NI = [[pd(4) for u in range(2)] for tn in range(2)]
    vSs = vDf; vKk = vUu; gs = kR; cp = CS[0][0]; sp = [CS[0][1], CS[0][2]]
    L += ['v_lshlrev_b32 %s, 6, %s' % (V(t0), V(vJ)), 'v_add_u32 %s, %s, %s' % (V(t0), S(sN2f), V(t0)),
          'v_cvt_f32_u32 %s, %s' % (V(vSs), V(t0)), 'v_mul_f32 %s, %s, %s' % (V(vSs), f2u(1.0 / 2048), V(vSs)),
          'v_lshlrev_b32 %s, 2, %s' % (V(t0), V(vQ)), 'v_cvt_f32_u32 %s, %s' % (V(vK0), V(t0)), 'WAITVM g']
    for rt in range(2):
        L += ['v_mul_f32 %s, %s, %s' % (V(gs + rt), f2u(2.0 / (2048 * 448)), V(vG + rt)), 'v_sub_f32 %s, 1.0, %s' % (V(vG1 + rt), V(vG + rt))]
    for u in range(2):
        for r in range(4):
            L += ['v_add_f32 %s, %s, %s' % (V(vKk), f2u(16.0 * u + r), V(vK0)), 'v_mul_f32 %s, %s, %s' % (V(vKk), V(vKk), V(vSs)),
                  'v_cos_f32 %s, %s' % (V(cp), V(vKk)), 'v_sin_f32 %s, %s' % (V(cp + 1), V(vKk)),
                  'v_pk_mul_f32 %s, %s, %s op_sel_hi:[1,0]' % (V(sp[0], 2), V(cp, 2), V(gs, 2)),
                  'v_pk_mul_f32 %s, %s, %s op_sel:[0,1]' % (V(sp[1], 2), V(cp, 2), V(gs, 2))]
            for tn in range(2):
                ng = '-' if (tn and r & 1) else ''; ps = '' if (tn and r & 1) else '-'
                L += ['v_cvt_pk_bf16_f32 %s, %s%s, %s%s' % (V(NR[tn][u] + r), ng, V(sp[tn]), ps, V(sp[tn] + 1)),
                      'v_cvt_pk_bf16_f32 %s, %s%s, %s%s' % (V(NI[tn][u] + r), ng, V(sp[tn] + 1), ng, V(sp[tn]))]
    L += ['s_cmp_eq_u32 %s, %s' % (S(sW), S(sKS)), 's_cbranch_scc1 L_own']
    for rt in range(2):
        for T in range(7):
            for r in range(4): L += ['v_mov_b32 %s, 0' % V(ACB[rt][T] + r)]
    L += ['s_branch L_ownd', 'L_own:']
    for rt in range(2):
        for T in range(7):
            for h in range(2):
                L += ['v_pk_mul_f32 %s, %s, %s %s' % (V(ACB[rt][T] + 2 * h, 2), V(ACB[rt][T] + 2 * h, 2), V(vG1, 2), 'op_sel:[0,1]' if rt else 'op_sel_hi:[1,0]')]
    L += ['L_ownd:', 'WAITVM bf']
    st('gen')
    yb = Alloc('v', PO[0], PO[0] + 60)
    YR = [[yb(4) for tn in range(2)] for a in range(2)]; YI = [[yb(4) for tn in range(2)] for a in range(2)]
    YP = [[yb(4) for tn in range(2)] for a in range(2)]
    def step6(a):
        return ['%s %s, %s, %s, %s' % (MFMA, V(Y[a & 1][tn], 4), A(BF[a][u], 4), V(N[tn][u], 4), V(Y[a & 1][tn], 4) if u else '0')
                for u in range(2) for tn in range(2) for (Y, N) in ((YR, NR), (YI, NI))]
    def packY(a):
        return ['v_cvt_pk_bf16_f32 %s, %s, %s' % (V(YP[a & 1][tn] + r), V(YR[a & 1][tn] + r), V(YI[a & 1][tn] + r)) for tn in range(2) for r in range(4)]
    def mainD(a):
        return ['%s %s, %s, %s, %s' % (MFMA, V(ACB[rt][T], 4), A(GF[a][T], 4), V(YP[a & 1][rt], 4), V(ACB[rt][T], 4)) for T in range(7) for rt in range(2)]
    L += step6(0) + step6(1) + packY(0)
    for a in range(4):
        md = mainD(a)
        nxt = (packY(a + 1) if a + 1 < 4 else [])
        L += weave(md[:8], nxt, [], per=1) + (step6(a + 2) if a + 2 < 4 else []) + md[8:]
    st('mainD')
    L += ['s_mul_i32 %s, %s, 14336' % (S(sT), S(sW)), 's_add_u32 %s, %s, %d' % (S(sT), S(sT), RED), 'v_add_u32 %s, %s, %s' % (V(t0), S(sT), V(vL16)),
          's_barrier']
    for T in range(7):
        for rt in range(2): L += ['ds_write_b128 %s, %s offset:%d' % (V(t0), V(ACB[rt][T], 4), (T * 2 + rt) * 1024)]
    L += ['s_lshl_b32 %s, %s, 12' % (S(sT), S(sW)), 's_add_u32 %s, %s, %d' % (S(sT), S(sT), RED), 'v_add_u32 %s, %s, %s' % (V(t0), S(sT), V(vL16)),
          's_lshl_b32 %s, %s, 2' % (S(sT), S(sN2f)), 's_add_u32 %s, %s, %s' % (S(sT), S(sT), S(sNB)), 's_mul_i32 %s, %s, %d' % (S(sT), S(sT), 4 * FS),
          's_add_u32 %s, %s, 0x%x' % (S(sT), S(sT), FP_OFF), 's_add_u32 %s, %s, 1' % (S(sT2), S(sKS)),
          'v_min_u32 %s, 2, %s' % (V(t2), V(vQ)), 'v_add_u32 %s, %s, %s' % (V(t2), S(sT2), V(t2)), 'v_and_b32 %s, 3, %s' % (V(t2), V(t2)),
          'v_mul_u32_u24 %s, %d, %s' % (V(t2), FS, V(t2)), 'v_add_u32 %s, %s, %s' % (V(t2), S(sT), V(t2)),
          's_waitcnt lgkmcnt(0)', 's_barrier']
    rb = Alloc('v', big, big + 190)
    RD = [[rb(4) for k in range(4)] for w in range(4)]
    PT = [[rb(4) for a in range(2)] for k in range(3)]
    assert rb.next <= vG
    for w in range(4):
        for k in range(4): L += ['ds_read_b128 %s, %s offset:%d' % (V(RD[w][k], 4), V(t0), w * 14336 + k * 1024)]
    poll(t2, t1)
    st('fp')
    L += ['s_mul_i32 %s, %s, 28' % (S(sT), S(sN2f)), 's_mul_i32 %s, %s, 7' % (S(sT2), S(sNB)), 's_add_u32 %s, %s, %s' % (S(sT), S(sT), S(sT2)),
          's_lshl_b32 %s, %s, 1' % (S(sT2), S(sW)), 's_add_u32 %s, %s, %s' % (S(sT), S(sT), S(sT2)), 's_lshl_b32 %s, %s, 10' % (S(sT), S(sT)),
          's_add_u32 %s, %s, 0x%x' % (S(sT), S(sT), PART_OFF)]
    for k in range(3):
        L += ['s_add_u32 %s, %s, %d' % (S(sT2), S(sKS), k + 1), 's_and_b32 %s, %s, 3' % (S(sT2), S(sT2)),
              's_mul_i32 %s, %s, %d' % (S(sT2), S(sT2), 64 * 28 * 1024), 's_add_u32 %s, %s, %s' % (S(sT2), S(sT2), S(sT))]
        for a in range(2): L += ['VM pt buffer_load_dwordx4 %s, %s, %s, %s offen offset:%d %s' % (V(PT[k][a], 4), V(vL16), S(rWS, 4), S(sT2), a * 1024, SC)]
    L += ['s_waitcnt lgkmcnt(0)']
    for k in range(4):
        for w in range(1, 4):
            for h in range(2): L += ['v_pk_add_f32 %s, %s, %s' % (V(RD[0][k] + 2 * h, 2), V(RD[0][k] + 2 * h, 2), V(RD[w][k] + 2 * h, 2))]
    L += ['s_mul_i32 %s, %s, 896' % (S(sT), S(sN2f)), 's_mul_i32 %s, %s, 224' % (S(sT2), S(sNB)), 's_add_u32 %s, %s, %s' % (S(sT), S(sT), S(sT2)),
          's_lshl_b32 %s, %s, 6' % (S(sT2), S(sW)), 's_add_u32 %s, %s, %s' % (S(sT), S(sT), S(sT2)), 's_add_u32 %s, %s, 917504' % (S(sT2), S(sT)),
          'v_mul_u32_u24 %s, 57344, %s' % (V(t2), V(vJ)), 'v_add_u32 %s, %s, %s' % (V(t2), V(t2), V(vQ8)), 'WAITVM pt']
    U = RD[1]
    for a in range(2):
        for rt in range(2):
            k4 = 2 * a + rt
            for h in range(2):
                for k in range(3):
                    src = V(PT[k][a] + 2 * rt + h); d = RD[1 + k][k4] + 2 * h
                    L += ['v_lshlrev_b32 %s, 16, %s' % (V(d), src), 'v_and_b32 %s, 0xffff0000, %s' % (V(d + 1), src)]
                d = RD[1][k4] + 2 * h
                L += ['v_pk_add_f32 %s, %s, %s' % (V(d, 2), V(d, 2), V(RD[2][k4] + 2 * h, 2)),
                      'v_pk_add_f32 %s, %s, %s' % (V(d, 2), V(d, 2), V(RD[3][k4] + 2 * h, 2)),
                      'v_pk_fma_f32 %s, %s, %s, %s %s' % (V(d, 2), V(d, 2), V(vG1, 2), V(RD[0][k4] + 2 * h, 2), 'op_sel:[0,1,0]' if rt else 'op_sel_hi:[1,0,1]'),
                      'v_cvt_pk_bf16_f32 %s, %s, %s' % (V(RD[0][k4] + h), V(d), V(d + 1))]
        if a == 1: L += ['s_cmp_eq_u32 %s, 3' % S(sW), 's_cbranch_scc1 L_w3']
        for rt in range(2):
            L += ['VM out buffer_store_dwordx2 %s, %s, %s, %s offen offset:%d' % (V(RD[0][2 * a + rt], 2), V(t2), S(rOUT, 4), S(sT2 if rt else sT), a * 32)]
    L += ['s_branch L_fin', 'L_w3:']
    L += ['s_cmp_lg_u32 s2, 8', 's_cbranch_scc1 L_fin',
          'v_mul_u32_u24 %s, %d, %s' % (V(t0), FS, V(vL)), 'v_add_u32 %s, 0x%x, %s' % (V(t0), FA_OFF + 60 * 16 * FS, V(t0))]
    poll(t0, t1)
    L += ['s_mov_b32 %s, 0x%x' % (S(sFo), EP_OFF)]; setflag(sFo, L)
    L += ['L_fin:']
    if STAMP:
        st('end'); st('r1', True)
        L += ['s_add_u32 s4, %s, 0x%x' % (S(sWS), TS_OFF), 's_addc_u32 s5, %s, 0' % S(sWS + 1), 's_mov_b32 s6, 0x100000', 's_mov_b32 s12, %s' % S(sW), 's_mov_b32 s7, 0x20000',
              's_lshl_b32 s13, s2, 3', 's_add_u32 s13, s13, s12', 's_lshl_b32 s13, s13, 8', 'v_lshlrev_b32 %s, 2, %s' % (V(t0), V(vL)),
              'VM x buffer_store_dword %s, %s, s[4:7], s13 offen' % (V(vST), V(t0))]
        open('stamps.txt', 'w').write(' '.join(stamps))
    L += ['L_end:', 's_endpgm']
    L = Prog.resolve(L)
    L = [l[4:] if l.startswith('RAW ') else l for l in L]
    return L, va.hi, aa.hi

def build(path):
    hdr = open('cdna_kernels/%s.s.ref' % NAME).read().split('\n')
    top = [l for l in hdr if l.startswith(';') and '@launch' not in l]
    L, nv, na = build_kernel()
    P, nn = pad_hazards(L)
    print('lines', len(P), 'nops', nn, 'vgpr', nv, 'agpr', na, file=sys.stderr)
    acc = (nv + 3) // 4 * 4
    out = top + ['; @launch grid=(256,1,1) block=(256,1,1) lds=%d' % LDS_SZ, '.amdgcn_target "amdgcn-amd-amdhsa--gfx950"', '.text', '.globl %s' % LABEL]
    out += [('    ' + l if not (l.endswith(':') or l.startswith('.')) else l) for l in P]
    out += ['.section .rodata,"a"', '.p2align 6', '.amdhsa_kernel %s' % LABEL,
            '  .amdhsa_next_free_vgpr %d' % (acc + na), '  .amdhsa_next_free_sgpr 102', '  .amdhsa_accum_offset %d' % acc,
            '  .amdhsa_group_segment_fixed_size 0', '  .amdhsa_kernarg_size 88', '  .amdhsa_user_sgpr_count 2',
            '  .amdhsa_user_sgpr_kernarg_segment_ptr 1', '  .amdhsa_system_sgpr_workgroup_id_x 1', '.end_amdhsa_kernel']
    open(path, 'w').write('\n'.join(out) + '\n')

if __name__ == '__main__':
    build(sys.argv[1] if len(sys.argv) > 1 else 'cdna_kernels/%s.s' % NAME)
```

```python
import sys, math, os
from dsl import *

NAME = 'gated_mix__spectral_gfnet__dense_activation_mish__prompt'
LABEL = NAME + '_kernel'
ACT_OFF = 0x4000; ACT_N2 = 0x20000
PART_OFF = 0x801000; PART_N2 = 0x8000
A1_OFF = 0x1002000
GATE_OFF = 0x1210000
FLAG_OFF = 0x1220000
FS = int(os.environ.get('FS', 64))
FSB = int(os.environ.get('FSB', 16))
FA_OFF = FLAG_OFF
FG_OFF = FA_OFF + 1024 * 128
FB_OFF = FG_OFF + 1024 * 128
FP_OFF = FB_OFF + 1024 * 128
EP_OFF = FP_OFF + 1024 * 128
B1_OFF = 0x1420000
WS_END = B1_OFF + 15 * 64 * 2048
X_SZ = 2048 * 896; W_SZ = 2048 * 450; W1_SZ = 448 * 3584; W2_SZ = 1792 * 896
LOG2E = math.log2(math.e)
MFMA = 'v_mfma_f32_16x16x32_bf16'
SC = 'sc1'
XR = 0; W1R = 65536; FL = 122880; XCH = 49152; PXC = FL; BXC = FL + 8192; RED = 65536; LDS_SZ = 155648
W2B = [W1R + 3 * 14336, W1R, W1R + 14336, W1R + 2 * 14336, 0, 14336, 28672]
sX, sWR, sWI, sW1, sB1, sW2, sGW, sOUT, sWS = 16, 18, 20, 24, 26, 28, 30, 32, 34
STAMP = os.environ.get('STAMP', '0') == '1'
TS_OFF = 0x2000000
SPIN_MAX = 200000
P = lambda k, d: int(os.environ.get(k, d))

def srd(L, d, base, size):
    L += ['s_mov_b32 %s, %s' % (S(d), S(base)), 's_mov_b32 %s, %s' % (S(d + 1), S(base + 1)),
          's_mov_b32 %s, 0x%x' % (S(d + 2), size), 's_mov_b32 %s, 0x20000' % S(d + 3)]

def resolve(L):
    out = []; ops = []; cur = None; nopt = 0; lks = []; waited = set()
    for l in L:
        if l == 'OPT_BEGIN': nopt += 1; cur = nopt; continue
        if l == 'OPT_END': cur = None; continue
        if l.startswith('LK '):
            _, tag, ins = l.split(' ', 2); lks.append(tag); out.append(ins); continue
        if l.startswith('ds_'): lks.append('_')
        if l.startswith('WAITLK '):
            tag = l.split(' ')[1]
            idx = max(k for k, o in enumerate(lks) if o == tag)
            out.append('s_waitcnt lgkmcnt(%d)' % min(len(lks) - 1 - idx, 15)); continue
        if l.startswith('VM '):
            _, tag, ins = l.split(' ', 2); assert tag not in waited, tag
            ops.append((tag, cur)); out.append(ins); continue
        if l.startswith('WAITVM '):
            parts = l.split(' ', 2); tag = parts[1]; extra = (' ' + parts[2]) if len(parts) > 2 else ''
            waited.add(tag)
            idx = max(k for k, o in enumerate(ops) if o[0] == tag)
            n = sum(1 for o in ops[idx + 1:] if (o[1] is None or o[1] == cur))
            out.append('s_waitcnt vmcnt(%d)%s' % (min(n, 63), extra)); continue
        assert not (l.startswith('buffer_') or l.startswith('global_')), l
        out.append(l[4:] if l.startswith('RAW ') else l)
    return out

def weave(mm, *streams):
    out = []; idx = [0] * len(streams)
    def put(u): out.extend(u if isinstance(u, list) else [u])
    for m in mm:
        put(m)
        for k, s in enumerate(streams):
            if idx[k] < len(s): put(s[idx[k]]); idx[k] += 1
    for k, s in enumerate(streams):
        for u in s[idx[k]:]: put(u)
    return out

TRANS_OPS = ('v_exp_f32', 'v_rcp_f32', 'v_sin_f32', 'v_cos_f32')
def cost(u):
    c = 0; n = 0
    for i in (u if isinstance(u, list) else [u]):
        if i.endswith(':') or i.startswith('OPT_'): continue
        n += 1
        if i.startswith('VM '): c += 15
        elif i.split()[0] in TRANS_OPS: c += 8
        elif i.startswith('s_') or i.startswith('WAIT'): pass
        else:
            assert not i.startswith('v_pk_'), i
            c += 4
    return c, n
VB = int(os.environ.get('VB', 8))
def sched(mm, rd, hi, lo):
    out = []; rd = list(rd)
    def put(u): out.extend(u if isinstance(u, list) else [u])
    for k, m in enumerate(mm):
        put(m)
        vb = VB; sl = 3
        if k + 1 < len(mm) and isinstance(mm[k + 1], list): sl -= len(mm[k + 1]) - 1
        left = len(mm) - k
        q = hi if hi else lo
        if q and (cost(q[0])[0] > 4 or cost(q[0])[1] > 2) and len(rd) <= 2 * (left - 1):
            c, n = cost(q[0]); put(q.pop(0)); vb -= c; sl -= n
        else:
            n = 0 if not rd else (1 if len(rd) <= left else 2)
            for _ in range(n): put(rd.pop(0)); vb -= 4; sl -= 1
        while True:
            done = True
            for q in (hi, lo):
                if q and cost(q[0])[0] <= max(vb, 0) and cost(q[0])[1] <= sl:
                    c, n = cost(q[0]); vb -= c; sl -= n; put(q.pop(0)); done = False; break
            if done: break
    out += rd
    return out

def spread(main, units, start=0, end=None):
    end = len(main) if end is None else end
    out = list(main[:start]); n = len(units); seg = main[start:end]
    for k in range(n):
        out += seg[len(seg) * k // n: len(seg) * (k + 1) // n] if False else []
    pos = [len(seg) * k // n for k in range(n)] if n else []
    ui = 0
    for k, ins in enumerate(seg):
        while ui < n and pos[ui] == k:
            out += units[ui] if isinstance(units[ui], list) else [units[ui]]; ui += 1
        out.append(ins)
    for u in units[ui:]: out += u if isinstance(u, list) else [u]
    return out + list(main[end:])

def build_kernel():
    L = []
    va = Alloc('v', 1, 256); sa = Alloc('s', 36, 102)
    stamps = []
    vST = va() if STAMP else None
    def st(name, real=False):
        if not STAMP: return
        stamps.append(name)
        L.extend(['%s s[10:11]' % ('s_memrealtime' if real else 's_memtime'), 's_waitcnt lgkmcnt(0)',
                  'v_writelane_b32 %s, s10, %d' % (V(vST), len(stamps) - 1)])
    npoll = [0]; slow = []
    def poll_issue(tag, vOff, vTmp):
        return ['VM %s buffer_load_dword %s, %s, %s, 0 offen %s' % (tag, V(vTmp), V(vOff), S(rWS, 4), SC)]
    def poll_check(tag, vOff, vTmp):
        n = npoll[0]; npoll[0] += 1
        slow.extend(['slow%d:' % n, 's_mov_b32 %s, 0' % S(sSpin), 'slowl%d:' % n,
                     'RAW buffer_load_dword %s, %s, %s, 0 offen %s' % (V(vTmp), V(vOff), S(rWS, 4), SC),
                     's_waitcnt vmcnt(0)', 'v_cmp_ne_u32 vcc, %s, %s' % (S(sTag), V(vTmp)), 's_add_u32 %s, %s, 1' % (S(sSpin), S(sSpin)),
                     's_nop 0', 's_cbranch_vccz back%d' % n, 's_sleep 1', 's_cmp_lt_u32 %s, %d' % (S(sSpin), SPIN_MAX),
                     's_cbranch_scc1 slowl%d' % n, 's_branch back%d' % n])
        return ['WAITVM %s' % tag, 'v_cmp_ne_u32 vcc, %s, %s' % (S(sTag), V(vTmp)), 's_nop 1', 's_cbranch_vccnz slow%d' % n, 'back%d:' % n]
    def setflag(sOff):
        return ['VM flag buffer_store_dword %s, %s, %s, %s offen %s' % (V(vTag), V(vZero), S(rWS, 4), S(sOff), SC)]
    def sx(dst, terms, const=0, tmp=None):
        tmp = sT if tmp is None else tmp
        o = []
        for k, (r, c) in enumerate(terms):
            d = dst if k == 0 else tmp
            if c == 1:
                if k == 0: o += ['s_mov_b32 %s, %s' % (S(d), S(r))]
                else: o += ['s_add_u32 %s, %s, %s' % (S(dst), S(dst), S(r))]
                continue
            o += ['s_mul_i32 %s, %s, %d' % (S(d), S(r), c)]
            if k: o += ['s_add_u32 %s, %s, %s' % (S(dst), S(dst), S(tmp))]
        if const: o += ['s_add_u32 %s, %s, 0x%x' % (S(dst), S(dst), const)]
        return o

    rX = sa(4); rW1 = sa(4); rBI = sa(4); rGW = sa(4); rW2 = sa(4); rWR = sa(4); rWI = sa(4); rOUT = sa(4); rWS = sa(4)
    L += ['.p2align 8', '.type %s,@function' % LABEL, '%s:' % LABEL, 's_cmp_ge_u32 s2, 256', 's_cbranch_scc1 L_end']
    for r_, off in ((rX, 0), (rW1, 32), (rBI, 40), (rWS, 80), (rGW, 56), (rW2, 48), (rWR, 8), (rWI, 16), (rOUT, 64)):
        L += ['s_load_dwordx2 %s, s[0:1], %d' % (S(r_, 2), off)]
    lo_ = Alloc('s', 3, 10)
    sT = lo_(); sT2 = lo_(); sT3 = lo_(); sSpin = lo_(); sTag = lo_(); sW = lo_(); sM = lo_()
    sPC = 12; sEp = 14; sCF = 15
    sI = sa(); sC = sa(); sN2 = sa(); sPar = sa(); sKS = sa(); sNB = sa(); sXc = sa(); sK1 = sa(); sHF = sa(); sKP = sa()
    sSig = sa(); sXb = sa(); sWb = sa(); sXs = sa(); sWs = sa(); sM0x = sa(); sM0w = sa(); sKap = sa(); sW2b = sa(); sRot2 = sa()
    sInv448 = sa(); sM448 = sa(); sN2f = sa(); sK0 = sa(); sG = sa(); sG2 = sa(); sL2E = sa(2)
    pl = Alloc('s', 16, 36)
    sA1o = pl(); sA1o2 = pl(); sActP = pl(); sActS = pl(); sFA = pl(); sFG = pl(); sFB = pl(); sFP = pl(); sWo = pl(); sDFo = pl()
    sB1s = pl(); sAFo = pl(); sPTs = pl(); sB1l = pl(); sGl = pl(); sPTl = pl(); sOut = pl()
    vL = va(); vQ = va(); vJ = va(); t0 = va(); t1 = va(); t2 = va(); t3 = va(); vL16 = va(); vZero = va(); vTag = va(); vDump = va()
    vCP = va(2)
    L += ['s_getpc_b64 %s' % S(sPC, 2), 'L_pc:',
          'v_and_b32 %s, 63, v0' % V(vL), 'v_lshrrev_b32 %s, 6, v0' % V(t0),
          's_lshr_b32 %s, s2, 3' % S(sM), 's_and_b32 %s, %s, 15' % (S(sCF), S(sM)), 's_lshl_b32 %s, %s, 11' % (S(sT), S(sCF)),
          'v_lshrrev_b32 %s, 4, v0' % V(t1), 'v_lshl_add_u32 %s, %s, 7, %s' % (V(t1), V(t1), S(sT)),
          'v_min_u32 %s, L_end-L_pc, %s' % (V(t1), V(t1)),
          'v_mov_b32 %s, %s' % (V(vCP + 1), S(sPC + 1)),
          'v_add_co_u32 %s, vcc, %s, %s' % (V(vCP), S(sPC), V(t1)),
          'v_readfirstlane_b32 %s, %s' % (S(sW), V(t0)), 'v_lshrrev_b32 %s, 4, %s' % (V(vQ), V(vL)),
          'v_addc_co_u32 %s, vcc, 0, %s, vcc' % (V(vCP + 1), V(vCP + 1)),
          'VM pf global_load_dword %s, %s, off' % (V(vDump), V(vCP, 2))]
    if STAMP:
        L += ['v_mov_b32 %s, 0' % V(vST), 's_memrealtime s[16:17]', 's_memtime s[18:19]']; stamps += ['r0', 'start']
    L += ['v_and_b32 %s, 15, v0' % V(vJ),
          'v_lshlrev_b32 %s, 4, %s' % (V(vL16), V(vL)), 'v_mov_b32 %s, 0' % V(vZero),
          's_and_b32 %s, s2, 7' % S(sXc),
          's_lshr_b32 %s, %s, 2' % (S(sI), S(sXc)), 's_lshl_b32 %s, %s, 3' % (S(sI), S(sI)),
          's_lshr_b32 %s, %s, 2' % (S(sT3), S(sM)), 's_add_u32 %s, %s, %s' % (S(sI), S(sI), S(sT3)),
          's_and_b32 %s, %s, 3' % (S(sKS), S(sXc)), 's_and_b32 %s, %s, 3' % (S(sNB), S(sM)),
          's_lshl_b32 %s, %s, 2' % (S(sC), S(sKS)), 's_add_u32 %s, %s, %s' % (S(sC), S(sC), S(sNB)),
          's_lshl_b32 %s, %s, 2' % (S(sN2f), S(sI)), 's_add_u32 %s, %s, %s' % (S(sN2), S(sN2f), S(sW)),
          's_add_u32 %s, %s, %s' % (S(sN2f), S(sN2f), S(sKS)),
          's_and_b32 %s, %s, 1' % (S(sPar), S(sC)),
          's_lshl_b32 %s, %s, 1' % (S(sSig), S(sNB)), 's_add_u32 %s, %s, %s' % (S(sSig), S(sSig), S(sT3)),
          's_sub_u32 %s, %s, 7' % (S(sT), S(sSig)), 's_min_u32 %s, %s, %s' % (S(sSig), S(sSig), S(sT))] + {
              0: [], 1: ['s_mov_b32 %s, 0' % S(sSig)],
              2: ['s_add_u32 %s, %s, %s' % (S(sSig), S(sNB), S(sT3)), 's_and_b32 %s, %s, 1' % (S(sSig), S(sSig)), 's_lshl_b32 %s, %s, 2' % (S(sSig), S(sSig))],
              4: ['s_add_u32 %s, %s, %s' % (S(sSig), S(sNB), S(sT3)), 's_and_b32 %s, %s, 3' % (S(sSig), S(sSig)), 's_lshl_b32 %s, %s, 1' % (S(sSig), S(sSig))]}[P('ROT', 0)] + [
          's_lshl_b32 %s, %s, 1' % (S(sRot2), S(sSig)), 's_add_u32 %s, %s, %s' % (S(sRot2), S(sRot2), S(sW)),
          's_mul_i32 %s, %s, 896' % (S(sXb), S(sN2))]
    L += sx(sWb, [(sC, 224), (sW, 8 * 3584)])
    L += ['s_lshl_b32 %s, %s, 12' % (S(sM0x), S(sW)), 's_mul_i32 %s, %s, 896' % (S(sM0w), S(sW)), 's_lshl_b32 %s, %s, 1' % (S(sT2), S(sPar))]
    vXs = va(2, 1); vW1s = va(); vW2s = va(); vQ16 = va(); vQ8 = va(); vTr = va(2, 1); vXr = va(2, 1)
    L += ['v_lshrrev_b32 %s, 3, %s' % (V(t0), V(vL)), 'v_mul_u32_u24 %s, 57344, %s' % (V(t0), V(t0)),
          'v_and_b32 %s, 7, %s' % (V(t1), V(vL)), 'v_xor_b32 %s, %s, %s' % (V(t1), V(t1), V(vQ)),
          'v_lshl_add_u32 %s, %s, 4, %s' % (V(vXs), V(t1), V(t0)),
          'v_xor_b32 %s, 64, %s' % (V(vXs + 1), V(vXs)), 'v_add_u32 %s, %d, %s' % (V(vXs + 1), 8 * 57344, V(vXs + 1)),
          'v_mul_u32_u24 %s, 4682, %s' % (V(t0), V(vL)), 'v_lshrrev_b32 %s, 16, %s' % (V(t0), V(t0)),
          'v_mul_u32_u24 %s, 14, %s' % (V(t1), V(t0)), 'v_sub_u32 %s, %s, %s' % (V(t1), V(vL), V(t1)),
          'v_mul_u32_u24 %s, 896, %s' % (V(t2), V(t0)), 'v_lshl_add_u32 %s, %s, 4, %s' % (V(vW2s), V(t1), V(t2)),
          'v_add_u32 %s, %s, %s' % (V(t1), S(sT2), V(t1)), 'v_subrev_u32 %s, 14, %s' % (V(t2), V(t1)), 'v_min_u32 %s, %s, %s' % (V(t1), V(t1), V(t2)),
          'v_mul_u32_u24 %s, 3584, %s' % (V(t2), V(t0)), 'v_lshl_add_u32 %s, %s, 4, %s' % (V(vW1s), V(t1), V(t2)),
          'v_lshlrev_b32 %s, 4, %s' % (V(vQ16), V(vQ)), 'v_lshlrev_b32 %s, 3, %s' % (V(vQ8), V(vQ))]
    for r_, sz in ((rX, X_SZ), (rW1, W1_SZ), (rBI, 3584), (rWS, WS_END), (rGW, 896), (rW2, W2_SZ), (rWR, W_SZ), (rWI, W_SZ), (rOUT, X_SZ)):
        L += ['s_mov_b32 %s, 0x%x' % (S(r_ + 2), sz), 's_mov_b32 %s, 0x20000' % S(r_ + 3)]
    L += sx(sG, [(sC, 224), (sPar, 32)]) + sx(sG2, [(sC, 224), (sPar, -192)], 192)
    L += ['v_min_u32 %s, 10, %s' % (V(t0), V(vJ)), 'v_lshlrev_b32 %s, 21, %s' % (V(t0), V(t0))]

    def stage_loads(s):
        slot = s % 4
        U = [['s_lshl_b32 %s, %s, 7' % (S(sXs), S(sSig))], ['s_add_u32 %s, %s, %s' % (S(sXs), S(sXs), S(sXb))],
             ['s_mul_i32 %s, %s, %d' % (S(sWs), S(sSig), 64 * 3584)], ['s_add_u32 %s, %s, %s' % (S(sWs), S(sWs), S(sWb))]]
        for kk in range(2):
            for e in (2 * kk, 2 * kk + 1):
                if e == 2: U += [['s_add_u32 %s, %s, 917504' % (S(sXs), S(sXs))]]
                U += [['s_add_u32 m0, %s, %d' % (S(sM0x), XR + slot * 16384 + e * 1024)],
                      ['VM st%d buffer_load_dwordx4 %s, %s, %s offen lds' % (s, V(vXs + (e & 1)), S(rX, 4), S(sXs))]]
            for b2 in range(2):
                if kk or b2: U += [['s_add_u32 %s, %s, %d' % (S(sWs), S(sWs), (4 if b2 else 28) * 3584)]]
                U += [['s_add_u32 m0, %s, %d' % (S(sM0w), W1R + slot * 14336 + (32 * kk + 16 * b2) * 224)],
                      ['s_mov_b32 exec_hi, 0xffffff', 'VM st%d buffer_load_dwordx4 %s, %s, %s offen lds' % (s, V(vW1s), S(rW1, 4), S(sWs)), 's_mov_b32 exec_hi, -1']]
        U += [['s_add_u32 %s, %s, 1' % (S(sSig), S(sSig))], ['s_cmp_eq_u32 %s, 7' % S(sSig), 's_cselect_b32 %s, 0, %s' % (S(sSig), S(sSig))]]
        return U
    def w2_loads(t):
        U = []
        for kk in range(2):
            U += [['s_mul_i32 %s, %s, %d' % (S(sWs), S(sKap), 32 * 896)], ['s_add_u32 %s, %s, %s' % (S(sWs), S(sWs), S(sW2b))],
                  ['s_add_u32 %s, %s, 1' % (S(sKap), S(sKap))], ['s_cmp_eq_u32 %s, 14' % S(sKap), 's_cselect_b32 %s, 0, %s' % (S(sKap), S(sKap))]]
            for b2 in range(2):
                if b2: U += [['s_add_u32 %s, %s, %d' % (S(sWs), S(sWs), 16 * 896)]]
                U += [['s_add_u32 m0, %s, %d' % (S(sM0w), W2B[t] + (32 * kk + 16 * b2) * 224)],
                      ['s_mov_b32 exec_hi, 0xffffff', 'VM w2_%d buffer_load_dwordx4 %s, %s, %s offen lds' % (t, V(vW2s), S(rW2, 4), S(sWs)), 's_mov_b32 exec_hi, -1']]
        return U
    flat = lambda U: [i for u in U for i in (u if isinstance(u, list) else [u])]
    def group_vm(U):
        out = []; cur = []
        for u in U:
            cur += u
            if any(i.startswith('VM ') for i in u): out.append(cur); cur = []
        if cur: out[-1] += cur
        return out

    vAmp = va(); vFw = va(); vFr = va(); vPa = va(); vPv = va(); vG = va(2); vG1 = va(2)
    NBIG = 220
    big = va(NBIG, 4)
    pa = Alloc('v', big, big + NBIG)
    accb = pa(72, 4)
    ACC = [[accb + 36 * rt + 4 * T for T in range(9)] for rt in range(2)]
    vB = [pa(4) for T in range(7)]
    MR = [[pa(4) for t in range(2)] for kt in range(2)]; MI = [[pa(4) for t in range(2)] for kt in range(2)]
    tmpA = pa(40, 4)
    WRr = [pa(4) for t in range(2)]; WIr = [pa(4) for t in range(2)]
    OWN = [[pa(4) for rt in range(2)] for Pp in range(3)]
    tmpN = pa(8, 4)
    ta = Alloc('v', accb, accb + 72)
    vGW = [tmpA + 4 * a for a in range(4)]; vBraw = [ta(2) for T in range(7)]
    cs = ta(8); sn = ta(8); th = ta(8); pk0 = ta(4); pk1 = ta(4); vKdf = ta(); vU = ta(); vD0 = ta()
    aa = Alloc('a', 0, 256)
    WF = [[aa(4) for T in range(9)] for b in range(2)]
    XF = [[aa(4) for rt in range(2)] for b in range(2)]
    AF = [[aa(4) for rt in range(2)] for s in range(11)]
    BF = [[aa(4) for u in range(2)] for a in range(4)]
    NR = [[aa(4) for u in range(2)] for tn in range(2)]; NI = [[aa(4) for u in range(2)] for tn in range(2)]

    def kact(dst, a, tmp):
        return ['s_add_u32 %s, %s, %d' % (S(dst), S(sRot2), 4 * a), 's_sub_u32 %s, %s, 14' % (S(tmp), S(dst)), 's_min_u32 %s, %s, %s' % (S(dst), S(dst), S(tmp))]
    G = ['s_mov_b32 %s, %s' % (S(sInv448), f2u(1.0 / 448)), 's_mov_b32 %s, %s' % (S(sM448), f2u(-448.0)),
         's_lshl_b32 %s, %s, 4' % (S(sT2), S(sC)),
         'v_add_u32 %s, %s, %s' % (V(vAmp), S(sT2), V(vJ)), 'v_cvt_f32_u32 %s, %s' % (V(vKdf), V(vAmp)),
         'v_mul_f32 %s, %s, %s' % (V(vU), S(sInv448), V(vKdf)),
         's_lshl_b32 %s, %s, 11' % (S(sT2), S(sW)), 'v_add_u32 %s, %d, %s' % (V(vFr), FL, V(vL16)),
         'v_add_u32 %s, %s, %s' % (V(vFw), S(sT2), V(vFr))]
    for a in range(4):
        G += kact(sT2, a, sT3) + [
              'v_lshl_add_u32 %s, %s, 5, %s' % (V(vD0), S(sT2), V(vQ8)), 'v_cvt_f32_u32 %s, %s' % (V(vD0), V(vD0)),
              'v_mul_f32 %s, %s, %s' % (V(t3), V(vKdf), V(vD0)), 'v_mul_f32 %s, %s, %s' % (V(th), S(sInv448), V(t3)),
              'v_floor_f32 %s, %s' % (V(th), V(th)), 'v_fma_f32 %s, %s, %s, %s' % (V(t3), V(th), S(sM448), V(t3)),
              'v_mul_f32 %s, %s, %s' % (V(th), S(sInv448), V(t3))]
        for e in range(1, 8): G += ['v_add_f32 %s, %s, %s' % (V(th + e), V(th + e - 1), V(vU))]
        for e in range(8): G += ['v_cos_f32 %s, %s' % (V(cs + e), V(th + e)), 'v_sin_f32 %s, %s' % (V(sn + e), V(th + e))]
        for e in range(4):
            G += ['v_cvt_pk_bf16_f32 %s, %s, %s' % (V(pk0 + e), V(cs + 2 * e), V(cs + 2 * e + 1)),
                  'v_cvt_pk_bf16_f32 %s, -%s, -%s' % (V(pk1 + e), V(sn + 2 * e), V(sn + 2 * e + 1))]
        G += ['ds_write_b128 %s, %s offset:%d' % (V(vFw), V(pk0, 4), a * 8192),
              'ds_write_b128 %s, %s offset:%d' % (V(vFw), V(pk1, 4), a * 8192 + 1024)]
    G += ['v_lshrrev_b32 %s, 2, %s' % (V(t3), V(vL)), 'v_mul_u32_u24 %s, 224, %s' % (V(vTr), V(t3)),
          'v_and_b32 %s, 3, %s' % (V(t3), V(vL)), 'v_lshl_add_u32 %s, %s, 3, %s' % (V(vTr), V(t3), V(vTr)),
          'v_add_u32 %s, 65536, %s' % (V(vTr + 1), V(vTr)),
          'v_lshrrev_b32 %s, 1, %s' % (V(t3), V(vJ)), 'v_xor_b32 %s, %s, %s' % (V(t3), V(t3), V(vQ)),
          'v_lshlrev_b32 %s, 4, %s' % (V(t3), V(t3)), 'v_lshl_add_u32 %s, %s, 7, %s' % (V(t3), V(vJ), V(t3)),
          'v_add_u32 %s, %s, %s' % (V(vXr), S(sM0x), V(t3)), 'v_xor_b32 %s, 64, %s' % (V(vXr + 1), V(vXr))]
    s0 = flat(stage_loads(0))
    npre = P('NPRE', 20)
    L += s0[:4] + G[:npre] + ['s_waitcnt lgkmcnt(0)'] + s0[4:]; G = G[npre:]
    if STAMP: L += ['v_writelane_b32 %s, s16, 0' % V(vST), 'v_writelane_b32 %s, s18, 1' % V(vST)]
    for T in range(7):
        L += ['VM bias buffer_load_dwordx2 %s, %s, %s, %s offen offset:%d' % (V(vBraw[T], 2), V(vQ8), S(rBI, 4), S(sG2 if T == 6 else sG), 32 * T if T < 6 else 0)]
    L += ['s_add_u32 %s, %s, 0x%x' % (S(sPC), S(rWS), EP_OFF), 's_addc_u32 %s, %s, 0' % (S(sPC + 1), S(rWS + 1)),
          's_load_dword %s, %s, 0' % (S(sEp), S(sPC, 2))]
    L += ['s_cmp_lg_u32 %s, 15' % S(sC), 's_cbranch_scc1 L_nogw', 'OPT_BEGIN']
    for a in range(4):
        L += kact(sG, a, sG2) + ['s_lshl_b32 %s, %s, 6' % (S(sG), S(sG)),
              'VM gw buffer_load_dwordx4 %s, %s, %s, %s offen' % (V(vGW[a], 4), V(vQ16), S(rGW, 4), S(sG))]
    L += ['OPT_END', 'L_nogw:']
    ld = group_vm(stage_loads(1)) + group_vm(stage_loads(2))
    L += spread(G, ld, int(len(G) * P('PRO0', 50) / 100), None)
    if P('TLB', 1):
        L += ['VM pf buffer_load_dword %s, %s, %s, 0 offen' % (V(vDump), V(t0), S(rWS, 4)),
              'VM pf buffer_load_dword %s, %s, %s, 0 offen' % (V(vDump), V(vZero), S(rOUT, 4))]
    st('issued')
    pro_pos = len(L)
    L += ['WAITVM bias']
    for T in range(7):
        for h in range(2):
            L += ['v_lshlrev_b32 %s, 16, %s' % (V(vB[T] + 2 * h), V(vBraw[T] + h)),
                  'v_and_b32 %s, 0xffff0000, %s' % (V(vB[T] + 2 * h + 1), V(vBraw[T] + h))]
    L += ['s_cmp_lg_u32 %s, 15' % S(sC), 's_cbranch_scc1 L_nogate0', 'WAITVM gw']
    for a in range(4): L += ['ds_write_b128 %s, %s offset:%d' % (V(vFw), V(vGW[a], 4), a * 8192)]
    L += ['L_nogate0:']

    gx = lambda dst, terms, const=0: sx(dst, terms, const, sG2)
    lo1 = ['s_lshr_b32 %s, %s, 1' % (S(sHF), S(sW)),
           's_mul_i32 %s, %s, 0x9e3779b1' % (S(sTag), S(sEp)), 's_add_u32 %s, %s, 0x7f4a7c15' % (S(sTag), S(sTag)), 'v_mov_b32 %s, %s' % (V(vTag), S(sTag)),
           's_lshr_b32 %s, %s, 4' % (S(sKP), S(sM)), 's_lshl_b32 %s, %s, 1' % (S(sG), S(sXc)), 's_add_u32 %s, %s, %s' % (S(sKP), S(sKP), S(sG)),
           's_and_b32 %s, %s, 1' % (S(sK1), S(sW)), 's_lshl_b32 %s, %s, 1' % (S(sG), S(sKP)), 's_add_u32 %s, %s, %s' % (S(sK1), S(sK1), S(sG)),
           's_mul_i32 %s, %s, 7' % (S(sK0), S(sNB)), 's_add_u32 %s, %s, 1' % (S(sK0), S(sK0)), 's_lshr_b32 %s, %s, 1' % (S(sK0), S(sK0)),
           's_mov_b32 %s, %s' % (S(sKap), S(sK0))]
    lo1 += gx(sW2b, [(sKS, 448 * 896), (sW, 4 * 896), (sNB, 224)]) + gx(sWo, [(sK1, 450), (sCF, 32), (sHF, 32 * 14400)])
    lo1 += ['v_mul_u32_u24 %s, %d, %s' % (V(t3), 4 * 14400, V(vQ)), 'v_lshl_add_u32 %s, %s, 1, %s' % (V(t3), V(vJ), V(t3))]
    for t in range(2):
        for r in range(4): lo1 += ['v_mov_b32 %s, 0' % V(WRr[t] + r), 'v_mov_b32 %s, 0' % V(WIr[t] + r)]
    lo2 = ['v_mov_b32 %s, 1.0' % V(t1),
           'v_cmp_eq_u32 vcc, 0, %s' % V(vAmp), 'v_cndmask_b32 %s, %s, 0.5, vcc' % (V(t1), V(t1)),
           'v_cmp_eq_u32 vcc, 224, %s' % V(vAmp), 'v_cndmask_b32 %s, %s, 0.5, vcc' % (V(t1), V(t1)),
           'v_cmp_lt_u32 vcc, 224, %s' % V(vAmp), 'v_cndmask_b32 %s, %s, 0, vcc' % (V(vAmp), V(t1))]
    q_ = tmpA + 16
    vK = [q_, q_ + 1]; vS0 = q_ + 2; vS = q_ + 3; vA = [q_ + 4, q_ + 5]; c_ = [q_ + 6, q_ + 7]; s_ = [q_ + 8, q_ + 9]
    mpr = []
    mpr += ['v_cvt_f32_u32 %s, %s' % (V(vK[0]), V(vJ)), 'v_mul_f32 %s, %s, %s' % (V(vK[0]), f2u(1.0 / 2048), V(vK[0])),
            'v_add_f32 %s, %s, %s' % (V(vK[1]), f2u(16.0 / 2048), V(vK[0])),
            'v_lshl_add_u32 %s, %s, 8, %s' % (V(vS0), V(vQ), S(sN2)), 'v_cvt_f32_u32 %s, %s' % (V(vS0), V(vS0))]
    for t in range(2):
        for r in range(4):
            mpr += ['v_add_f32 %s, %s, %s' % (V(vS), f2u(64.0 * (16 * t + r)), V(vS0))]
            for kt in range(2): mpr += ['v_mul_f32 %s, %s, %s' % (V(vA[kt]), V(vK[kt]), V(vS))]
            for kt in range(2): mpr += ['v_cos_f32 %s, %s' % (V(c_[kt]), V(vA[kt])), 'v_sin_f32 %s, %s' % (V(s_[kt]), V(vA[kt]))]
            for kt in range(2):
                mpr += ['v_cvt_pk_bf16_f32 %s, %s, %s' % (V(MR[kt][t] + r), V(c_[kt]), V(s_[kt])),
                        'v_cvt_pk_bf16_f32 %s, -%s, %s' % (V(MI[kt][t] + r), V(s_[kt]), V(c_[kt]))]
    c2 = vB[0]; cm2 = c2 + 2; c1 = vB[1]
    lo2 += ['s_mov_b32 %s, %s' % (S(sL2E), f2u(LOG2E)), 's_mov_b32 %s, %s' % (S(sL2E + 1), f2u(LOG2E)),
            'v_mov_b32 %s, 2.0' % V(c2), 'v_mov_b32 %s, 2.0' % V(c2 + 1), 'v_mov_b32 %s, -2.0' % V(cm2), 'v_mov_b32 %s, -2.0' % V(cm2 + 1),
            'v_mov_b32 %s, 1.0' % V(c1), 'v_mov_b32 %s, 1.0' % V(c1 + 1),
            's_lshl_b32 %s, %s, 2' % (S(sG), S(sW)), 's_add_u32 %s, %s, %d' % (S(sG), S(sG), XCH),
            'v_lshl_add_u32 %s, %s, 10, %s' % (V(t0), V(vQ), S(sG)), 'v_lshl_add_u32 %s, %s, 4, %s' % (V(t0), V(vJ), V(t0)),
            'v_lshlrev_b32 %s, 4, v0' % V(t2), 'v_add_u32 %s, %d, %s' % (V(t1), XCH, V(t2))]
    lo2 += gx(sA1o, [(sI, 16 * 8192), (sC, 8192)], A1_OFF) + ['s_add_u32 %s, %s, 4096' % (S(sA1o2), S(sA1o))]
    lo2 += gx(sAFo, [(sN2, ACT_N2), (sKS, 14 * 2048)], ACT_OFF) + gx(sActP, [(sK0, 2048), (sAFo, 1)])
    lo2 += gx(sActS, [(sPar, -4 * 2048 + 8), (sActP, 1)], 3 * 2048)
    lo2 += gx(sFA, [(sC, 64 * FS), (sW, 16 * FS), (sI, FS)], FA_OFF)
    lo2 += gx(sG, [(sCF, 64 * FS), (sKS, 16 * FS)], FA_OFF) + [
            'v_lshrrev_b32 %s, 2, %s' % (V(vPa), V(vL)), 'v_mul_u32_u24 %s, %d, %s' % (V(vPa), FS, V(vPa)), 'v_add_u32 %s, %s, %s' % (V(vPa), S(sG), V(vPa))]
    lo3 = gx(sFG, [(sN2, 16 * FS), (sC, FS)], FG_OFF) + gx(sDFo, [(sCF, 8192), (sK1, 256)], A1_OFF)
    lo4 = gx(sFB, [(sW, 256 * FSB), (sCF, 16 * FSB), (sKP, FSB)], FB_OFF)
    lo4 += gx(sFP, [(sN2, 16 * FS), (sNB, 4 * FS), (sKS, FS)], FP_OFF)
    lo4 += gx(sB1s, [(sCF, 64 * 2048), (sW, 16 * 2048), (sKP, 128)], B1_OFF)
    lo4 += gx(sPTs, [(sKS, 64 * PART_N2), (sN2, PART_N2), (sNB, 7 * 1024)], PART_OFF)
    lo4 += [['s_cmp_eq_u32 %s, %s' % (S(sW), S(sKS)), 's_cselect_b32 %s, 0x40000000, %s' % (S(sPTs), S(sPTs))]]
    lo4 += gx(sB1l, [(sW, 4 * 64 * 2048), (sN2f, 2048)], B1_OFF) + gx(sGl, [(sN2f, 128)], GATE_OFF)
    lo4 += gx(sPTl, [(sN2f, PART_N2), (sNB, 7 * 1024), (sW, 2048)], PART_OFF) + gx(sOut, [(sN2f, 896), (sNB, 224), (sW, 64)])
    vSs, vK0n, vKk, nc, ns, pn = tmpN, tmpN + 1, tmpN + 2, tmpN + 3, tmpN + 4, tmpN + 5
    ngen = []
    ngen += ['v_lshl_add_u32 %s, %s, 6, %s' % (V(vSs), V(vJ), S(sN2f)), 'v_cvt_f32_u32 %s, %s' % (V(vSs), V(vSs)), 'v_mul_f32 %s, %s, %s' % (V(vSs), f2u(1.0 / 2048), V(vSs)),
            'v_lshlrev_b32 %s, 2, %s' % (V(vK0n), V(vQ)), 'v_cvt_f32_u32 %s, %s' % (V(vK0n), V(vK0n))]
    for u in range(2):
        for r in range(4):
            ngen += ['v_add_f32 %s, %s, %s' % (V(vKk), f2u(16.0 * u + r), V(vK0n)), 'v_mul_f32 %s, %s, %s' % (V(vKk), V(vKk), V(vSs)),
                    'v_cos_f32 %s, %s' % (V(nc), V(vKk)), 'v_sin_f32 %s, %s' % (V(ns), V(vKk))]
            for tn in range(2):
                ng = '-' if (tn and r & 1) else ''; ps = '' if (tn and r & 1) else '-'
                if tn == 0 or r & 1:
                    ngen += ['v_cvt_pk_bf16_f32 %s, %s%s, %s%s' % (V(pn), ng, V(nc), ps, V(ns)), 'v_cvt_pk_bf16_f32 %s, %s%s, %s%s' % (V(pn + 1), ng, V(ns), ng, V(nc))]
                ngen += ['v_accvgpr_write_b32 %s, %s' % (A(NR[tn][u] + r), V(pn)), 'v_accvgpr_write_b32 %s, %s' % (A(NI[tn][u] + r), V(pn + 1))]
    pf = sx(sT2, [(sM, 12544), (sKS, 448 * 896), (sW, 25 * 128)]) + [
         'v_lshrrev_b32 %s, 1, %s' % (V(vCP), V(vL)), 'v_min_u32 %s, 24, %s' % (V(vCP), V(vCP)), 'v_lshlrev_b32 %s, 7, %s' % (V(vCP), V(vCP)),
         'VM pf buffer_load_dword %s, %s, %s, %s offen' % (V(vDump), V(vCP), S(rW2, 4), S(sT2)),
         's_lshr_b32 %s, %s, 1' % (S(sT3), S(sW))]
    pf += sx(sT2, [(sM, 2 * 14400), (sT3, 14400), (sXc, 1800)]) + [
         'v_lshrrev_b32 %s, 3, %s' % (V(vCP + 1), V(vL)), 's_and_b32 %s, %s, 1' % (S(sT), S(sW)), 's_lshl_b32 %s, %s, 10' % (S(sT), S(sT)),
         'v_lshl_add_u32 %s, %s, 7, %s' % (V(vCP + 1), V(vCP + 1), S(sT)), 'v_min_u32 %s, 1796, %s' % (V(vCP + 1), V(vCP + 1)),
         'VM pf buffer_load_dword %s, %s, %s, %s offen' % (V(vDump), V(vCP + 1), S(rWR, 4), S(sT2)),
         'VM pf buffer_load_dword %s, %s, %s, %s offen' % (V(vDump), V(vCP + 1), S(rWI, 4), S(sT2))]
    wl = []
    for t in range(2):
        for r in range(4):
            wl += ['s_add_u32 %s, %s, %d' % (S(sT2), S(sWo), (16 * t + r) * 14400),
                   'VM W buffer_load_short_d16_hi %s, %s, %s, %s offen' % (V(WRr[t] + r), V(t3), S(rWR, 4), S(sT2)),
                   'VM W buffer_load_short_d16_hi %s, %s, %s, %s offen' % (V(WIr[t] + r), V(t3), S(rWI, 4), S(sT2))]

    def tr_reads(tag, dst, base, order):
        o = []
        reg = vTr + (base >= 65536); off = base - (65536 if base >= 65536 else 0)
        for T in order:
            for b in range(2):
                o.append('LK %s_%d ds_read_b64_tr_b16 %s, %s offset:%d' % (tag, T, A(dst[T] + 2 * b, 2), V(reg), off + b * 3584 + T * 32))
        return o
    ORD_A = [7, 8, 6, 0, 1, 2, 3, 4, 5]
    def readsA(ks):
        s = ks // 2; kk = ks & 1
        o = ['LK a%d_x ds_read_b128 %s, %s offset:%d' % (ks, A(XF[kk][rt], 4), V(vXr + kk), XR + (s % 4) * 16384 + rt * 2048) for rt in range(2)]
        o += ['LK a%d_%d ds_read_b128 %s, %s offset:%d' % (ks, 7 + T, A(WF[kk][7 + T], 4), V(vFr), ks * 2048 + T * 1024) for T in range(2)]
        o += tr_reads('a%d' % ks, WF[kk], W1R + (s % 4) * 14336 + kk * 7168, ORD_A[2:])
        return o
    def with_waits(tag, order, mk, step=3):
        o = []
        for n, T in enumerate(order):
            ms = mk(T)
            if n % step == 0:
                ms[0] = ['WAITLK %s_%d' % (tag, order[min(n + step - 1, len(order) - 1)]), ms[0]]
            o += ms
        return o
    def mfmasA(ks):
        def mk(T):
            o = []
            for rt in range(2):
                c = V(ACC[rt][T], 4) if ks else (V(vB[T], 4) if T < 7 else '0')
                w = A(WF[ks & 1][T], 4); x = A(XF[ks & 1][rt], 4)
                o.append('%s %s, %s, %s, %s' % ((MFMA, V(ACC[rt][T], 4)) + ((w, x) if T < 7 else (x, w)) + (c,)))
            return o
        return with_waits('a%d' % ks, ORD_A, mk)
    L += ['WAITVM st0 lgkmcnt(0)', 's_barrier']
    st('b0')
    L += readsA(0)
    hi = stage_loads(3); lo = lo1 + lo2 + lo3 + lo4
    L[pro_pos:pro_pos] = mpr + ngen
    for ks in range(14):
        if ks & 1 and ks < 13:
            s = (ks + 1) // 2
            L += ['WAITVM st%d' % s, 's_barrier']
            if s == 1: hi += pf
            elif s + 2 <= 6: hi += stage_loads(s + 2)
            else:
                assert len(lo) <= len(lo2 + lo3 + lo4)
                hi += w2_loads(s - 5) + (wl if s == 6 else [])
            if s == 3: st('b3')
        L += sched(mfmasA(ks), readsA(ks + 1) if ks < 13 else [], hi, lo)
    L += flat(hi); hi = []
    k = max(0, len(lo) - len(lo3 + lo4))
    print('main A: leftover mandatory lo', k, 'optional', len(lo) - k, file=sys.stderr)
    L += flat(lo[:k]); lo = lo[k:]
    st('mainA')
    def mish(src, dst, E, Aa):
        nv = 4 * len(src)
        h = lambda k: src[k // 4] + (k % 4)
        o = []
        for k in range(0, nv, 2): o += ['v_pk_mul_f32 %s, %s, %s' % (V(E + k, 2), V(h(k), 2), S(sL2E, 2))]
        for k in range(nv): o += ['v_exp_f32 %s, %s' % (V(E + k), V(E + k))]
        for k in range(0, nv, 2): o += ['v_pk_add_f32 %s, %s, %s' % (V(Aa + k, 2), V(E + k, 2), V(c2, 2))]
        for k in range(0, nv, 2): o += ['v_pk_fma_f32 %s, %s, %s, %s' % (V(E + k, 2), V(E + k, 2), V(Aa + k, 2), V(c2, 2))]
        for k in range(nv): o += ['v_rcp_f32 %s, %s' % (V(E + k), V(E + k))]
        for k in range(0, nv, 2): o += ['v_pk_fma_f32 %s, %s, %s, %s' % (V(E + k, 2), V(E + k, 2), V(cm2, 2), V(c1, 2))]
        for k in range(0, nv, 2): o += ['v_pk_mul_f32 %s, %s, %s' % (V(E + k, 2), V(E + k, 2), V(h(k), 2))]
        for k in range(0, nv, 2): o += ['v_cvt_pk_bf16_f32 %s, %s, %s' % (V(dst[k // 4] + (k % 4) // 2), V(E + k), V(E + k + 1))]
        return o
    PX = [tmpA, tmpA + 4]; DR = [tmpA + 8, tmpA + 12]; DI = [tmpA + 16, tmpA + 20]; XO = [tmpA + 32, tmpA + 36]
    SING = [vB[6], vB[6] + 2]
    m0 = mish([ACC[0][6], ACC[1][6]], SING, vB[2], vB[4])
    L += ['s_cmp_eq_u32 %s, 15' % S(sC), 's_cbranch_scc1 L_gate']
    for t in range(2):
        for r in range(4): L += ['v_cvt_pk_bf16_f32 %s, %s, %s' % (V(PX[t] + r), V(ACC[t][7] + r), V(ACC[t][8] + r))]
    s1 = []
    for t in range(2):
        for kt in range(2):
            s1 += ['%s %s, %s, %s, %s' % (MFMA, V(DR[kt], 4), V(MR[kt][t], 4), V(PX[t], 4), V(DR[kt], 4) if t else '0'),
                   '%s %s, %s, %s, %s' % (MFMA, V(DI[kt], 4), V(MI[kt][t], 4), V(PX[t], 4), V(DI[kt], 4) if t else '0')]
    L += m0[:4] + weave(s1, m0[4:12]) + m0[12:20]
    for kt in range(2):
        for r in range(4):
            L += ['v_mul_f32 %s, %s, %s' % (V(DR[kt] + r), V(vAmp), V(DR[kt] + r)), 'v_mul_f32 %s, %s, %s' % (V(DI[kt] + r), V(vAmp), V(DI[kt] + r)),
                  'v_cvt_pk_bf16_f32 %s, %s, %s' % (V(DR[kt] + r), V(DR[kt] + r), V(DI[kt] + r)),
                  'ds_write_b32 %s, %s offset:%d' % (V(t0), V(DR[kt] + r), kt * 4096 + r * 256)]
    L += m0[20:28] + ['WAITVM w2_1 lgkmcnt(0)', 's_barrier']
    L += ['ds_read_b128 %s, %s offset:%d' % (V(XO[k], 4), V(t1), k * 4096) for k in range(2)]
    L += m0[28:] + ['s_waitcnt lgkmcnt(0)', 's_branch L_a1st', 'L_gate:', 's_nop 7']
    for rt in range(2):
        a = ACC[rt][7]; o = XO[rt]
        for r in range(4): L += ['v_mul_f32 %s, %s, %s' % (V(o + r), S(sL2E), V(a + r))]
        for r in range(4): L += ['v_exp_f32 %s, -%s' % (V(o + r), V(o + r))]
        for r in range(4): L += ['v_add_f32 %s, 1.0, %s' % (V(o + r), V(o + r))]
        for r in range(4): L += ['v_rcp_f32 %s, %s' % (V(o + r), V(o + r))]
    L += sx(sA1o, [(sN2, 128)], GATE_OFF) + ['s_add_u32 %s, %s, 64' % (S(sA1o2), S(sA1o)), 'v_mov_b32 %s, %s' % (V(t2), V(vQ16)), 'WAITVM w2_1', 's_barrier'] + m0 + ['L_a1st:']
    L += ['VM a1 buffer_store_dwordx4 %s, %s, %s, %s offen %s' % (V(XO[k], 4), V(t2), S(rWS, 4), S(sA1o2 if k else sA1o), SC) for k in range(2)]
    L += ['VM act buffer_store_dwordx2 %s, %s, %s, %s offen offset:%d %s' % (V(SING[rt], 2), V(vL16), S(rWS, 4), S(sActS), rt * 1024, SC) for rt in range(2)]
    st('a1st')
    ACB = [[big + 28 * rt + 4 * T for T in range(7)] for rt in range(2)]
    WF2 = [WF[0][:7], WF[1][:7]]
    def readsC(sl): return tr_reads('c%d' % sl, WF2[sl & 1], W2B[sl // 2] + (sl & 1) * 7168, range(7))
    L += ['v_add_u32 %s, 4096, %s' % (V(t1), V(vL16))]
    for Pp in range(3):
        L += mish([ACC[0][2 * Pp], ACC[0][2 * Pp + 1], ACC[1][2 * Pp], ACC[1][2 * Pp + 1]],
                  [OWN[Pp][0], OWN[Pp][0] + 2, OWN[Pp][1], OWN[Pp][1] + 2], tmpA, tmpA + 16)
        for rt in range(2):
            L += ['VM act buffer_store_dwordx4 %s, %s, %s, %s offen offset:%d %s' % (V(OWN[Pp][rt], 4), V(vL16 if Pp < 2 else t1), S(rWS, 4), S(sActP), (Pp % 2) * 2048 + rt * 1024, SC)]
        if Pp == 1: L += ['WAITVM a1'] + setflag(sFA)
    st('mish')
    def mfmasC(sl):
        def mk(T):
            return ['%s %s, %s, %s, %s' % (MFMA, V(ACB[rt][T], 4), A(WF2[sl & 1][T], 4), V(OWN[sl][rt], 4) if sl < 3 else A(AF[sl - 3][rt], 4),
                                           V(ACB[rt][T], 4) if sl else '0') for rt in range(2)]
        return with_waits('c%d' % sl, list(range(7)), mk, 2)
    L += readsC(0)
    pb = Alloc('v', big + 56, WRr[0])
    MM = [[[pb(4) for u in range(4)] for t in range(2)] for e in range(2)]
    DF = [pb(4) for u in range(4)]; XRr = [pb(4) for t in range(2)]; XIr = [pb(4) for t in range(2)]; PF = [pb(4) for t in range(4)]
    vI = XRr[0]; vN0 = vI + 1; vAn = vI + 2; vc = XIr[0]; vs = vc + 1
    mg = ['v_lshl_add_u32 %s, %s, 5, %s' % (V(vI), S(sHF), V(vJ)),
          'v_cvt_f32_u32 %s, %s' % (V(vI), V(vI)), 'v_mul_f32 %s, %s, %s' % (V(vI), f2u(1.0 / 64), V(vI)),
          'v_lshlrev_b32 %s, 2, %s' % (V(vN0), V(vQ)), 'v_cvt_f32_u32 %s, %s' % (V(vN0), V(vN0))]
    prev = []
    for u in range(4):
        for r in range(4):
            k = (4 * u + r) & 1
            mg += ['v_add_f32 %s, %s, %s' % (V(vAn + k), f2u(16.0 * u + r), V(vN0)), 'v_mul_f32 %s, %s, %s' % (V(vAn + k), V(vAn + k), V(vI)),
                   'v_cos_f32 %s, %s' % (V(vc + 2 * k), V(vAn + k)), 'v_sin_f32 %s, %s' % (V(vs + 2 * k), V(vAn + k))] + prev
            cc, ss = V(vc + 2 * k), V(vs + 2 * k)
            rot = [(cc, ss), ('-' + ss, cc), ('-' + cc, '-' + ss), (ss, '-' + cc)]
            prev = ['v_cvt_pk_bf16_f32 %s, %s, %s' % ((V(MM[e][t][u] + r),) + rot[(t * r + e) % 4]) for e in range(2) for t in range(2)]
    mg += prev
    k = max(0, len(lo) - len(lo4))
    L += flat(lo[:k]) + ['v_lshlrev_b32 %s, 17, %s' % (V(t0), V(vQ)), 'v_lshl_add_u32 %s, %s, 4, %s' % (V(t0), V(vJ), V(t0))]; lo = lo[k:] + mg
    hi = w2_loads(2) + w2_loads(3) + w2_loads(4) + w2_loads(5) + w2_loads(6)
    for sl in range(3):
        if sl == P('FASL', 1): L += poll_issue('pfa', vPa, vPv)
        L += sched(mfmasC(sl), readsC(sl + 1), hi, lo)
    st('ownC')
    L += poll_check('pfa', vPa, vPv)
    for u in range(4):
        L += ['s_add_u32 %s, %s, 0x%x' % (S(sT2), S(sDFo), u * 4 * 16 * 8192),
              'VM df buffer_load_dwordx4 %s, %s, %s, %s offen %s' % (V(DF[u], 4), V(t0), S(rWS, 4), S(sT2), SC)]
    L += ['WAITVM act'] + setflag(sFG)
    st('fa')
    L += flat(spread(lo, group_vm(hi)) if hi else lo)
    hi = []; lo = []
    L += sx(sT2, [(sN2, 16 * FS), (sKS, 4 * FS)], FG_OFF) + sx(sT3, [(sKS, 16 * FS), (sI, FS)], FA_OFF + 60 * 16 * FS) + [
          'v_lshrrev_b32 %s, 3, %s' % (V(vPa), V(vL)), 'v_mul_u32_u24 %s, %d, %s' % (V(vPa), FS, V(vPa)), 'v_add_u32 %s, %s, %s' % (V(vPa), S(sT2), V(vPa)),
          'v_mov_b32 %s, %s' % (V(t1), S(sT3)), 'v_cmp_lt_u32 vcc, 31, %s' % V(vL), 's_and_b32 %s, %s, 1' % (S(sT2), S(sW)), 's_lshl_b32 %s, %s, 12' % (S(sT3), S(sT2)),
          'v_cndmask_b32 %s, %s, %s, vcc' % (V(vPa), V(vPa), V(t1))]
    ad = ['s_add_u32 %s, %s, %d' % (S(sT3), S(sT3), PXC),
          'v_add_u32 %s, %s, %s' % (V(t1), S(sT3), V(vL16)), 's_lshl_b32 %s, %s, 11' % (S(sT3), S(sHF)), 'v_add_u32 %s, %s, %s' % (V(t0), S(sT3), V(t1)),
          's_lshl_b32 %s, %s, 2' % (S(sT2), S(sT2)), 's_lshl_b32 %s, %s, 12' % (S(sT3), S(sHF)), 's_add_u32 %s, %s, %s' % (S(sT2), S(sT2), S(sT3)),
          's_add_u32 %s, %s, %d' % (S(sT2), S(sT2), BXC),
          'v_lshl_add_u32 %s, %s, 9, %s' % (V(t2), V(vQ), S(sT2)), 'v_lshl_add_u32 %s, %s, 3, %s' % (V(t2), V(vJ), V(t2))]
    L += ['WAITVM df']
    st('df')
    TR = PF[2]; TI = PF[3]
    def cmul(t):
        o = []
        for r in range(4):
            xr, xi, wr, wi = V(XRr[t] + r), V(XIr[t] + r), V(WRr[t] + r), V(WIr[t] + r)
            o += ['v_mul_f32 %s, %s, %s' % (V(TR + r), xr, wr), 'v_mul_f32 %s, %s, %s' % (V(TI + r), xr, wi),
                  'v_fma_f32 %s, -%s, %s, %s' % (V(TR + r), xi, wi, V(TR + r)), 'v_fma_f32 %s, %s, %s, %s' % (V(TI + r), xi, wr, V(TI + r)),
                  'v_cvt_pk_bf16_f32 %s, %s, %s' % (V(PF[t] + r), V(TI + r), V(TR + r))]
        return o + ['ds_write_b128 %s, %s offset:%d' % (V(t0), V(PF[t], 4), t * 1024)]
    def cmulpk(t):
        o = []
        for h in range(2):
            xr, xi, wr, wi = V(XRr[t] + 2 * h, 2), V(XIr[t] + 2 * h, 2), V(WRr[t] + 2 * h, 2), V(WIr[t] + 2 * h, 2)
            o += ['v_pk_mul_f32 %s, %s, %s' % (V(TR + 2 * h, 2), xr, wr), 'v_pk_mul_f32 %s, %s, %s' % (V(TI + 2 * h, 2), xr, wi),
                  'v_pk_fma_f32 %s, %s, %s, %s neg_lo:[1,0,0] neg_hi:[1,0,0]' % (V(TR + 2 * h, 2), xi, wi, V(TR + 2 * h, 2)),
                  'v_pk_fma_f32 %s, %s, %s, %s' % (V(TI + 2 * h, 2), xi, wr, V(TI + 2 * h, 2))]
        o += ['v_cvt_pk_bf16_f32 %s, %s, %s' % (V(PF[t] + r), V(TI + r), V(TR + r)) for r in range(4)]
        return o + ['ds_write_b128 %s, %s offset:%d' % (V(t0), V(PF[t], 4), t * 1024)]
    sta = lambda t: [x for u in range(4) for x in
                     ('%s %s, %s, %s, %s' % (MFMA, V(XRr[t], 4), V(MM[0][t][u], 4), V(DF[u], 4), V(XRr[t], 4) if u else '0'),
                      '%s %s, %s, %s, %s' % (MFMA, V(XIr[t], 4), V(MM[1][t][u], 4), V(DF[u], 4), V(XIr[t], 4) if u else '0'))]
    s1_ = sta(1); cm0 = cmul(0)
    L += sched(sta(0), [], [], ad) + ad + s1_[:3] + sched(s1_[3:], [], [], cm0) + cm0 + poll_issue('pfg', vPa, vPv) + cmulpk(1) + ['s_waitcnt lgkmcnt(0)', 's_barrier']
    L += ['LK p%d ds_read_b128 %s, %s offset:%d' % (u, V(DF[u], 4), V(t1), u * 1024) for u in range(4)]
    L += ['s_lshl_b32 %s, %s, 11' % (S(sT2), S(sW)), 's_add_u32 %s, %s, %d' % (S(sT2), S(sT2), BXC), 'v_add_u32 %s, %s, %s' % (V(t1), S(sT2), V(vL16)),
          'v_lshrrev_b32 %s, 3, %s' % (V(t0), V(vL)), 'v_and_b32 %s, 7, %s' % (V(t3), V(vL)), 'v_lshlrev_b32 %s, 11, %s' % (V(t0), V(t0)),
          'v_lshl_add_u32 %s, %s, 4, %s' % (V(t0), V(t3), V(t0)), 's_add_u32 %s, %s, %d' % (S(sT2), S(sB1s), 8 * 2048), 's_waitcnt lgkmcnt(0)']
    stb = lambda t: [x for u in range(4) for x in
                     ('%s %s, %s, %s, %s' % (MFMA, V(XRr[t], 4), V(MM[1][t][u], 4), V(DF[u], 4), V(XRr[t], 4) if u else '0'),
                      '%s %s, %s, %s, %s' % (MFMA, V(XIr[t], 4), V(MM[0][t][u], 4), V(DF[u], 4), V(XIr[t], 4) if u else '0'))]
    outb = lambda t: [x for r in range(4) for x in ('v_cvt_pk_bf16_f32 %s, %s, %s' % (V(PF[t] + r), V(XRr[t] + r), V(XIr[t] + r)),
                                                     'ds_write_b32 %s, %s offset:%d' % (V(t2), V(PF[t] + r), t * 2048 + r * 128))]
    s1_ = stb(1); o0 = outb(0)
    L += stb(0) + s1_[:4] + sched(s1_[4:], [], [], o0) + o0 + outb(1)
    L += ['WAITVM w2_6 lgkmcnt(0)', 's_barrier']
    L += ['LK bx%d ds_read_b128 %s, %s offset:%d' % (k, V(PF[2 + k], 4), V(t1), k * 1024) for k in range(2)]
    chk = poll_check('pfg', vPa, vPv)
    L += chk[:2]
    for k in range(2):
        L += ['WAITLK bx%d' % k, 'VM b1 buffer_store_dwordx4 %s, %s, %s, %s offen %s' % (V(PF[2 + k], 4), V(t0), S(rWS, 4), S(sT2 if k else sB1s), SC)]
    st('fft')
    L += chk[3:]
    st('fg')
    af = [['s_add_u32 %s, %s, 3' % (S(sKap), S(sK0))]]
    for s in range(11):
        af += [['s_cmp_eq_u32 %s, 14' % S(sKap), 's_cselect_b32 %s, 0, %s' % (S(sKap), S(sKap))],
               ['s_lshl_b32 %s, %s, 11' % (S(sT), S(sKap))], ['s_add_u32 %s, %s, %s' % (S(sT), S(sT), S(sAFo))], ['s_add_u32 %s, %s, 1' % (S(sKap), S(sKap))]]
        for rt in range(2):
            af += [['VM af%d buffer_load_dwordx4 %s, %s, %s, %s offen offset:%d %s' % (s, A(AF[s][rt], 4), V(vL16), S(rWS, 4), S(sT), rt * 1024, SC)]]
    pd = Alloc('v', big + 56, big + NBIG)
    GF = [[pd(4) for a in range(4)] for T in range(7)]
    yb0 = pd.next
    CS = [[pd(2) for r in range(4)] for a in range(4)]
    kR = pd(2); kA = pd(2); vDf = pd(); vUu = pd(); vK0 = pd(); an = pd(4, 1)
    def gen_G(T, pk):
        o = []
        if T == 0:
            o += ['s_mul_i32 %s, %s, 112' % (S(sG), S(sNB)), 'v_add_u32 %s, %s, %s' % (V(t3), S(sG), V(vJ)), 'v_cvt_f32_u32 %s, %s' % (V(vDf), V(t3)),
                  's_lshl_b32 %s, %s, 6' % (S(sG), S(sW)), 'v_lshl_add_u32 %s, %s, 2, %s' % (V(t3), V(vQ), S(sG)), 'v_cvt_f32_u32 %s, %s' % (V(vK0), V(t3))]
        else: o += ['v_add_f32 %s, %s, %s' % (V(vDf), f2u(16.0), V(vDf))]
        o += ['v_mul_f32 %s, %s, %s' % (V(vUu), S(sInv448), V(vDf)),
              'v_mul_f32 %s, %s, %s' % (V(t3), V(vK0), V(vDf)), 'v_mul_f32 %s, %s, %s' % (V(an), S(sInv448), V(t3)), 'v_floor_f32 %s, %s' % (V(an), V(an)),
              'v_fma_f32 %s, %s, %s, %s' % (V(t3), V(an), S(sM448), V(t3)), 'v_mul_f32 %s, %s, %s' % (V(an), S(sInv448), V(t3)),
              'v_mul_f32 %s, %s, %s' % (V(t3), f2u(16.0), V(vUu)),
              'v_cos_f32 %s, %s mul:2' % (V(kR), V(vUu)), 'v_cos_f32 %s, %s mul:2' % (V(kA), V(t3)),
              'v_add_f32 %s, %s, %s' % (V(an + 1), V(an), V(vUu)), 'v_add_f32 %s, %s, %s' % (V(an + 2), V(an), V(t3)), 'v_add_f32 %s, %s, %s' % (V(an + 3), V(an + 1), V(t3))]
        if not P('OMOD', 0):
            o = [x.replace(' mul:2', '') for x in o] + ['v_add_f32 %s, %s, %s' % (V(kR), V(kR), V(kR)), 'v_add_f32 %s, %s, %s' % (V(kA), V(kA), V(kA))]
        for a in range(2):
            for r in range(2):
                o += ['v_cos_f32 %s, %s' % (V(CS[a][r]), V(an + 2 * a + r)), 'v_sin_f32 %s, -%s' % (V(CS[a][r] + 1), V(an + 2 * a + r))]
        if pk: cheb = lambda d, k, x1, x0: ['v_pk_fma_f32 %s, %s, %s, %s op_sel_hi:[0,1,1] neg_lo:[0,0,1] neg_hi:[0,0,1]' % (V(d, 2), V(k, 2), V(x1, 2), V(x0, 2))]
        else: cheb = lambda d, k, x1, x0: ['v_fma_f32 %s, %s, %s, -%s' % (V(d + h), V(k), V(x1 + h), V(x0 + h)) for h in range(2)]
        cv = lambda a, r: ['v_cvt_pk_bf16_f32 %s, %s, %s' % (V(GF[T][a] + r), V(CS[a][r]), V(CS[a][r] + 1))]
        o += cv(0, 0) + cheb(CS[0][2], kR, CS[0][1], CS[0][0]) + cheb(CS[1][2], kR, CS[1][1], CS[1][0]) + cv(0, 1) + cv(1, 0)
        o += cheb(CS[0][3], kR, CS[0][2], CS[0][1]) + cheb(CS[1][3], kR, CS[1][2], CS[1][1]) + cv(1, 1) + cv(0, 2)
        for r in range(4): o += cheb(CS[2][r], kA, CS[1][r], CS[0][r])
        o += cv(1, 2) + cv(0, 3) + cv(1, 3)
        for r in range(4): o += cheb(CS[3][r], kA, CS[2][r], CS[1][r])
        for a in (2, 3):
            for r in range(4): o += cv(a, r)
        return o
    ng0 = P('NG0', 3); nafp = P('AFPRE', 4)
    cut = 1 + 6 * nafp
    L += flat(af[:cut]); hi = af[cut:]
    L += [i for T in range(ng0) for i in gen_G(T, True)]
    L += ['WAITVM b1'] + setflag(sFB)
    st('g0')
    hi += ['v_lshlrev_b32 %s, 2, %s' % (V(t0), V(vJ))]
    hi += ['VM g buffer_load_dword %s, %s, %s, %s offen offset:%d %s' % (V(vG + rt), V(t0), S(rWS, 4), S(sGl), rt * 64, SC) for rt in range(2)]
    hi += ['s_lshr_b32 %s, %s, 4' % (S(sT3), S(sN2f))] + sx(sT2, [(sT3, 256 * FSB), (sW, 64 * FSB)], FB_OFF) + [
           'v_mul_u32_u24 %s, %d, %s' % (V(vPa), FSB, V(vL)), 'v_add_u32 %s, %s, %s' % (V(vPa), S(sT2), V(vPa)),
           'v_lshlrev_b32 %s, 8, %s' % (V(t0), V(vQ)), 'v_lshl_add_u32 %s, %s, 3, %s' % (V(t0), V(vJ), V(t0))]
    lo = [i for T in range(ng0, 7) for i in gen_G(T, False)]
    bfl = []
    for a in range(4):
        bfl += ['s_add_u32 %s, %s, 0x%x' % (S(sT2), S(sB1l), a * 64 * 2048)]
        for u in range(2):
            for h in range(2):
                bfl += ['VM bf%d buffer_load_dwordx2 %s, %s, %s, %s offen offset:%d %s' % (a, A(BF[a][u] + 2 * h, 2), V(t0), S(rWS, 4), S(sT2), u * 1024 + h * 128, SC)]
    for sl in range(3, 14):
        if sl == P('FBSL', 9): hi += poll_issue('pfb', vPa, vPv)
        if sl == P('FBCK', 12): hi += [poll_check('pfb', vPa, vPv)] + bfl
        L += ['WAITVM af%d' % (sl - 3)] + sched(mfmasC(sl), readsC(sl + 1) if sl < 13 else [], hi, lo)
    print('main C leftover hi', len(hi), 'lo', len(lo), file=sys.stderr)
    st('mainC')
    PO = [ACB[0][T] for T in range(7)]
    L += ['s_add_u32 %s, %s, 4096' % (S(sT3), S(sPTs))]
    cvp = lambda T: ['v_cvt_pk_bf16_f32 %s, %s, %s' % (V(PO[T] + 2 * rt + h), V(ACB[rt][T] + 2 * h), V(ACB[rt][T] + 2 * h + 1)) for rt in range(2) for h in range(2)]
    for T in range(7):
        L += cvp(T) + ['VM part buffer_store_dwordx4 %s, %s, %s, %s offen offset:%d %s' % (V(PO[T], 4), V(vL16), S(rWS, 4), S(sPTs if T < 4 else sT3), (T % 4) * 1024, SC)]
    L += ['s_cmp_lg_u32 %s, %s' % (S(sW), S(sKS)), 's_cbranch_scc1 L_partd']
    L += ['ds_write_b128 %s, %s offset:%d' % (V(vFr), V(PO[T], 4), T * 1024) for T in range(7)]
    L += ['L_partd:'] + flat(hi) + lo; hi = []; lo = []
    st('part')
    yb = Alloc('v', yb0, big + NBIG)
    YR = [[yb(4) for tn in range(2)] for a in range(4)]; YI = [[yb(4) for tn in range(2)] for a in range(2)]
    gs = yb(2)
    def step6(a):
        return ['%s %s, %s, %s, %s' % (MFMA, V(Y, 4), A(BF[a][u], 4), A(N[tn][u], 4), V(Y, 4) if u else '0')
                for u in range(2) for tn in range(2) for (Y, N) in ((YR[a][tn], NR), (YI[a & 1][tn], NI))]
    def packY(a):
        return [x for tn in range(2) for r in range(4) for x in
                ('v_mul_f32 %s, %s, %s' % (V(YR[a][tn] + r), V(gs + tn), V(YR[a][tn] + r)), 'v_mul_f32 %s, %s, %s' % (V(YI[a & 1][tn] + r), V(gs + tn), V(YI[a & 1][tn] + r)),
                 'v_cvt_pk_bf16_f32 %s, %s, %s' % (V(YR[a][tn] + r), V(YR[a][tn] + r), V(YI[a & 1][tn] + r)))]
    def mainD(T):
        return ['%s %s, %s, %s, %s' % (MFMA, V(ACB[rt][T], 4), V(GF[T][a], 4), V(YR[a][rt], 4), V(ACB[rt][T], 4) if a else '0') for a in range(4) for rt in range(2)]
    adr = []
    for rt in range(2):
        adr += ['v_mul_f32 %s, %s, %s' % (V(gs + rt), f2u(2.0 / (2048 * 448)), V(vG + rt)), 'v_sub_f32 %s, 1.0, %s' % (V(vG1 + rt), V(vG + rt))]
    adr += sx(sT2, [(sW, 14336)], RED) + ['v_add_u32 %s, %s, %s' % (V(t0), S(sT2), V(vL16))] + sx(sT2, [(sW, 4096)], RED) + [
           'v_add_u32 %s, %s, %s' % (V(t1), S(sT2), V(vL16))] + sx(sT2, [(sN2f, 16 * FS), (sNB, 4 * FS)], FP_OFF) + [
           's_add_u32 %s, %s, 1' % (S(sT3), S(sKS)),
           'v_min_u32 %s, 2, %s' % (V(vPa), V(vQ)), 'v_add_u32 %s, %s, %s' % (V(vPa), S(sT3), V(vPa)), 'v_and_b32 %s, 3, %s' % (V(vPa), V(vPa)),
           'v_mul_u32_u24 %s, %d, %s' % (V(vPa), FS, V(vPa)), 'v_add_u32 %s, %s, %s' % (V(vPa), S(sT2), V(vPa)),
           'v_mul_u32_u24 %s, 57344, %s' % (V(t2), V(vJ)), 'v_add_u32 %s, %s, %s' % (V(t2), V(t2), V(vQ8))]
    L += ['s_barrier']
    L += ['BFW 0'] + sched(step6(0), [], [], adr) + adr
    for a in range(1, 4):
        pk_ = packY(a - 1)
        L += ['BFW %d' % a] + sched(step6(a), [], [], pk_) + pk_
    L += packY(3)
    st('s6')
    fpset = ['WAITVM part'] + setflag(sFP)
    wr = lambda T: ['ds_write_b128 %s, %s offset:%d' % (V(t0), V(ACB[rt][T], 4), (T * 2 + rt) * 1024) for rt in range(2)]
    for T in range(7):
        if T == P('FPT', 1): L += fpset
        if T == P('FPI', 6): L += poll_issue('pfp', vPa, vPv)
        md = mainD(T)
        if T: L += md[:5] + wr(T - 1)[:1] + md[5:7] + wr(T - 1)[1:] + md[7:]
        else: L += md
    L += ['s_add_u32 %s, %s, 917504' % (S(sT3), S(sOut)), 's_lshl_b32 %s, %s, 11' % (S(sT2), S(sW)), 'v_add_u32 %s, %s, %s' % (V(t3), S(sT2), V(vFr))] + wr(6)
    st('mainD')
    rb = Alloc('v', big + 56, big + NBIG)
    PT = [[rb(4) for a in range(2)] for k in range(4)]
    RD = [[rb(4) for k in range(4)] for w in range(4)]
    UP = [rb(4) for k in range(4)]
    L += ['s_waitcnt lgkmcnt(0)', 's_barrier']
    for k in range(4):
        for w in range(4): L += ['LK rd%d ds_read_b128 %s, %s offset:%d' % (k, V(RD[w][k], 4), V(t1), w * 14336 + k * 1024)]
    L += ['LK po ds_read_b128 %s, %s offset:%d' % (V(PT[3][a], 4), V(t3), a * 1024) for a in range(2)]
    L += poll_check('pfp', vPa, vPv)
    for k in range(3):
        L += ['s_add_u32 %s, %s, %d' % (S(sT2), S(sKS), k + 1), 's_and_b32 %s, %s, 3' % (S(sT2), S(sT2)),
              's_mul_i32 %s, %s, %d' % (S(sT2), S(sT2), 64 * PART_N2), 's_add_u32 %s, %s, %s' % (S(sT2), S(sT2), S(sPTl))]
        for a in range(2): L += ['VM pt buffer_load_dwordx4 %s, %s, %s, %s offen offset:%d %s' % (V(PT[k][a], 4), V(vL16), S(rWS, 4), S(sT2), a * 1024, SC)]
    st('fp')
    L += ['s_waitcnt lgkmcnt(0)']
    for k in range(4):
        for h in range(2): L += ['v_pk_add_f32 %s, %s, %s' % (V(RD[0][k] + 2 * h, 2), V(RD[0][k] + 2 * h, 2), V(RD[1][k] + 2 * h, 2))]
        for h in range(2): L += ['v_pk_add_f32 %s, %s, %s' % (V(RD[2][k] + 2 * h, 2), V(RD[2][k] + 2 * h, 2), V(RD[3][k] + 2 * h, 2))]
    for k in range(4):
        for h in range(2): L += ['v_pk_add_f32 %s, %s, %s' % (V(RD[0][k] + 2 * h, 2), V(RD[0][k] + 2 * h, 2), V(RD[2][k] + 2 * h, 2))]
    osel = lambda rt: 'op_sel:[0,1,0]' if rt else 'op_sel_hi:[1,0,1]'
    for a in range(2):
        for rt in range(2):
            for h in range(2):
                src = V(PT[3][a] + 2 * rt + h); d = UP[2 * a + rt] + 2 * h
                L += ['v_lshlrev_b32 %s, 16, %s' % (V(d), src), 'v_and_b32 %s, 0xffff0000, %s' % (V(d + 1), src),
                      'v_pk_fma_f32 %s, %s, %s, %s %s' % (V(RD[0][2 * a + rt] + 2 * h, 2), V(d, 2), V(vG1, 2), V(RD[0][2 * a + rt] + 2 * h, 2), osel(rt))]
    st('red')
    L += ['WAITVM pt']
    for a in range(2):
        for rt in range(2):
            for h in range(2):
                for k in range(3):
                    src = V(PT[k][a] + 2 * rt + h); d = RD[1 + k][2 * a + rt] + 2 * h
                    L += ['v_lshlrev_b32 %s, 16, %s' % (V(d), src), 'v_and_b32 %s, 0xffff0000, %s' % (V(d + 1), src)]
        prs = [(rt, h, RD[1][2 * a + rt] + 2 * h) for rt in range(2) for h in range(2)]
        for rt, h, d in prs: L += ['v_pk_add_f32 %s, %s, %s' % (V(d, 2), V(d, 2), V(RD[2][2 * a + rt] + 2 * h, 2))]
        for rt, h, d in prs: L += ['v_pk_add_f32 %s, %s, %s' % (V(d, 2), V(d, 2), V(RD[3][2 * a + rt] + 2 * h, 2))]
        for rt, h, d in prs: L += ['v_pk_fma_f32 %s, %s, %s, %s %s' % (V(d, 2), V(d, 2), V(vG1, 2), V(RD[0][2 * a + rt] + 2 * h, 2), osel(rt))]
        for rt, h, d in prs: L += ['v_cvt_pk_bf16_f32 %s, %s, %s' % (V(RD[0][2 * a + rt] + h), V(d), V(d + 1))]
        for rt in range(2):
            L += ['VM out buffer_store_dwordx2 %s, %s, %s, %s offen offset:%d' % (V(RD[0][2 * a + rt], 2), V(t2), S(rOUT, 4), S(sT3 if rt else sOut), a * 32)]
        if a == 0: L += ['s_cmp_eq_u32 %s, 3' % S(sW), 's_cbranch_scc1 L_w3']
    L += ['s_branch L_fin', 'L_w3:']
    L += ['s_cmp_lg_u32 s2, 0', 's_cbranch_scc1 L_fin', 's_mov_b32 %s, 0x%x' % (S(sT), EP_OFF)] + setflag(sT)
    L += ['L_fin:']
    L = ['WAITVM bf' + l[4:] if l.startswith('BFW ') else l for l in L]
    sWS = rWS
    if STAMP:
        st('end'); st('r1', True)
        L += ['s_add_u32 s4, %s, 0x%x' % (S(sWS), TS_OFF), 's_addc_u32 s5, %s, 0' % S(sWS + 1), 's_mov_b32 s6, 0x100000', 's_mov_b32 s12, %s' % S(sW), 's_mov_b32 s7, 0x20000',
              's_lshl_b32 s13, s2, 3', 's_add_u32 s13, s13, s12', 's_lshl_b32 s13, s13, 8', 'v_lshlrev_b32 %s, 2, %s' % (V(t0), V(vL)),
              'VM x buffer_store_dword %s, %s, s[4:7], s13 offen' % (V(vST), V(t0))]
        open('stamps.txt', 'w').write(' '.join(stamps))
    L += ['s_endpgm'] + slow + ['L_end:', 's_endpgm']
    return resolve(L), va.hi, aa.hi

def build(path):
    hdr = open('cdna_kernels/%s.s.ref' % NAME).read().split('\n')
    top = [l for l in hdr if l.startswith(';') and '@launch' not in l]
    L, nv, na = build_kernel()
    Pd, nn = pad_hazards(L)
    print('lines', len(Pd), 'nops', nn, 'vgpr', nv, 'agpr', na, file=sys.stderr)
    acc = (nv + 3) // 4 * 4
    out = top + ['; @launch grid=(256,1,1) block=(256,1,1) lds=%d' % LDS_SZ, '.amdgcn_target "amdgcn-amd-amdhsa--gfx950"', '.text', '.globl %s' % LABEL]
    out += [('    ' + l if not (l.endswith(':') or l.startswith('.')) else l) for l in Pd]
    out += ['.section .rodata,"a"', '.p2align 6', '.amdhsa_kernel %s' % LABEL,
            '  .amdhsa_next_free_vgpr %d' % (acc + na), '  .amdhsa_next_free_sgpr 102', '  .amdhsa_accum_offset %d' % acc,
            '  .amdhsa_group_segment_fixed_size 0', '  .amdhsa_kernarg_size 88', '  .amdhsa_user_sgpr_count 2',
            '  .amdhsa_user_sgpr_kernarg_segment_ptr 1', '  .amdhsa_system_sgpr_workgroup_id_x 1', '.end_amdhsa_kernel']
    open(path, 'w').write('\n'.join(out) + '\n')

if __name__ == '__main__':
    build(sys.argv[1] if len(sys.argv) > 1 else 'cdna_kernels/%s.s' % NAME)
```

```python
import sys, math, os
from dsl import *

NAME = 'gated_mix__spectral_gfnet__dense_activation_mish__prompt'
LABEL = NAME + '_kernel'
ACT_OFF = 0x4000; ACT_N2 = 0x20000
PART_OFF = 0x801000; PART_N2 = 0x8000
A1_OFF = 0x1002000
GATE_OFF = 0x1210000
FLAG_OFF = 0x1220000
FS = int(os.environ.get('FS', 64))
FSB = int(os.environ.get('FSB', 16))
FA_OFF = FLAG_OFF
FG_OFF = FA_OFF + 1024 * 128
FB_OFF = FG_OFF + 1024 * 128
FP_OFF = FB_OFF + 1024 * 128
EP_OFF = FP_OFF + 1024 * 128
B1_OFF = 0x1420000
WS_END = B1_OFF + 15 * 64 * 2048
X_SZ = 2048 * 896; W_SZ = 2048 * 450; W1_SZ = 448 * 3584; W2_SZ = 1792 * 896
LOG2E = math.log2(math.e)
MFMA = 'v_mfma_f32_16x16x32_bf16'
SC = 'sc1'
XR = 0; W1R = 65536; FL = 122880; XCH = 49152; PXC = FL; BXC = FL + 8192; RED = 65536; LDS_SZ = 155648
W2B = [W1R + 3 * 14336, W1R, W1R + 14336, W1R + 2 * 14336, 0, 14336, 28672]
sX, sWR, sWI, sW1, sB1, sW2, sGW, sOUT, sWS = 16, 18, 20, 24, 26, 28, 30, 32, 34
STAMP = os.environ.get('STAMP', '0') == '1'
TS_OFF = 0x2000000
SPIN_MAX = 200000
P = lambda k, d: int(os.environ.get(k, d))

def srd(L, d, base, size):
    L += ['s_mov_b32 %s, %s' % (S(d), S(base)), 's_mov_b32 %s, %s' % (S(d + 1), S(base + 1)),
          's_mov_b32 %s, 0x%x' % (S(d + 2), size), 's_mov_b32 %s, 0x20000' % S(d + 3)]

def resolve(L):
    out = []; ops = []; cur = None; nopt = 0; lks = []; waited = set()
    for l in L:
        if l == 'OPT_BEGIN': nopt += 1; cur = nopt; continue
        if l == 'OPT_END': cur = None; continue
        if l.startswith('LK '):
            _, tag, ins = l.split(' ', 2); lks.append(tag); out.append(ins); continue
        if l.startswith('ds_'): lks.append('_')
        if l.startswith('WAITLK '):
            tag = l.split(' ')[1]
            idx = max(k for k, o in enumerate(lks) if o == tag)
            out.append('s_waitcnt lgkmcnt(%d)' % min(len(lks) - 1 - idx, 15)); continue
        if l.startswith('VM '):
            _, tag, ins = l.split(' ', 2); assert tag not in waited, tag
            ops.append((tag, cur)); out.append(ins); continue
        if l.startswith('WAITVM '):
            parts = l.split(' ', 2); tag = parts[1]; extra = (' ' + parts[2]) if len(parts) > 2 else ''
            waited.add(tag)
            idx = max(k for k, o in enumerate(ops) if o[0] == tag)
            n = sum(1 for o in ops[idx + 1:] if (o[1] is None or o[1] == cur))
            out.append('s_waitcnt vmcnt(%d)%s' % (min(n, 63), extra)); continue
        assert not (l.startswith('buffer_') or l.startswith('global_')), l
        out.append(l[4:] if l.startswith('RAW ') else l)
    return out

def weave(mm, *streams):
    out = []; idx = [0] * len(streams)
    def put(u): out.extend(u if isinstance(u, list) else [u])
    for m in mm:
        put(m)
        for k, s in enumerate(streams):
            if idx[k] < len(s): put(s[idx[k]]); idx[k] += 1
    for k, s in enumerate(streams):
        for u in s[idx[k]:]: put(u)
    return out

TRANS_OPS = ('v_exp_f32', 'v_rcp_f32', 'v_sin_f32', 'v_cos_f32')
def cost(u):
    c = 0; n = 0
    for i in (u if isinstance(u, list) else [u]):
        if i.endswith(':') or i.startswith('OPT_'): continue
        n += 1
        if i.startswith('VM '): c += 15
        elif i.split()[0] in TRANS_OPS: c += 8
        elif i.startswith('s_') or i.startswith('WAIT'): pass
        else:
            assert not i.startswith('v_pk_'), i
            c += 4
    return c, n
VB = int(os.environ.get('VB', 8))
def sched(mm, rd, hi, lo):
    out = []; rd = list(rd)
    def put(u): out.extend(u if isinstance(u, list) else [u])
    for k, m in enumerate(mm):
        put(m)
        vb = VB; sl = 3
        if k + 1 < len(mm) and isinstance(mm[k + 1], list): sl -= len(mm[k + 1]) - 1
        left = len(mm) - k
        q = hi if hi else lo
        if q and (cost(q[0])[0] > 4 or cost(q[0])[1] > 2) and len(rd) <= 2 * (left - 1):
            c, n = cost(q[0]); put(q.pop(0)); vb -= c; sl -= n
        else:
            n = 0 if not rd else (1 if len(rd) <= left else 2)
            for _ in range(n): put(rd.pop(0)); vb -= 4; sl -= 1
        while True:
            done = True
            for q in (hi, lo):
                if q and cost(q[0])[0] <= max(vb, 0) and cost(q[0])[1] <= sl:
                    c, n = cost(q[0]); vb -= c; sl -= n; put(q.pop(0)); done = False; break
            if done: break
    out += rd
    return out

def spread(main, units, start=0, end=None):
    end = len(main) if end is None else end
    out = list(main[:start]); n = len(units); seg = main[start:end]
    for k in range(n):
        out += seg[len(seg) * k // n: len(seg) * (k + 1) // n] if False else []
    pos = [len(seg) * k // n for k in range(n)] if n else []
    ui = 0
    for k, ins in enumerate(seg):
        while ui < n and pos[ui] == k:
            out += units[ui] if isinstance(units[ui], list) else [units[ui]]; ui += 1
        out.append(ins)
    for u in units[ui:]: out += u if isinstance(u, list) else [u]
    return out + list(main[end:])

def build_kernel():
    L = []
    va = Alloc('v', 1, 256); sa = Alloc('s', 36, 102)
    stamps = []
    vST = va() if STAMP else None
    def st(name, real=False):
        if not STAMP: return
        if os.environ.get('STSEL') and name not in os.environ['STSEL'].split(','): return
        stamps.append(name)
        L.extend(['%s s[10:11]' % ('s_memrealtime' if real else 's_memtime'), 's_waitcnt lgkmcnt(0)',
                  'v_writelane_b32 %s, s10, %d' % (V(vST), len(stamps) - 1)])
    npoll = [0]; slow = []
    def poll_issue(tag, vOff, vTmp):
        return ['VM %s buffer_load_dword %s, %s, %s, 0 offen %s' % (tag, V(vTmp), V(vOff), S(rWS, 4), SC)]
    def poll_check(tag, vOff, vTmp):
        n = npoll[0]; npoll[0] += 1
        slow.extend(['slow%d:' % n, 's_mov_b32 %s, 0' % S(sSpin), 'slowl%d:' % n,
                     'RAW buffer_load_dword %s, %s, %s, 0 offen %s' % (V(vTmp), V(vOff), S(rWS, 4), SC),
                     's_waitcnt vmcnt(0)', 'v_cmp_ne_u32 vcc, %s, %s' % (S(sTag), V(vTmp)), 's_add_u32 %s, %s, 1' % (S(sSpin), S(sSpin)),
                     's_nop 0', 's_cbranch_vccz back%d' % n, 's_sleep 1', 's_cmp_lt_u32 %s, %d' % (S(sSpin), SPIN_MAX),
                     's_cbranch_scc1 slowl%d' % n, 's_branch back%d' % n])
        return ['WAITVM %s' % tag, 'v_cmp_ne_u32 vcc, %s, %s' % (S(sTag), V(vTmp)), 's_nop 1', 's_cbranch_vccnz slow%d' % n, 'back%d:' % n]
    def setflag(sOff):
        return ['VM flag buffer_store_dword %s, %s, %s, %s offen %s' % (V(vTag), V(vZero), S(rWS, 4), S(sOff), SC)]
    def sx(dst, terms, const=0, tmp=None):
        tmp = sT if tmp is None else tmp
        o = []
        for k, (r, c) in enumerate(terms):
            d = dst if k == 0 else tmp
            if c == 1:
                if k == 0: o += ['s_mov_b32 %s, %s' % (S(d), S(r))]
                else: o += ['s_add_u32 %s, %s, %s' % (S(dst), S(dst), S(r))]
                continue
            o += ['s_mul_i32 %s, %s, %d' % (S(d), S(r), c)]
            if k: o += ['s_add_u32 %s, %s, %s' % (S(dst), S(dst), S(tmp))]
        if const: o += ['s_add_u32 %s, %s, 0x%x' % (S(dst), S(dst), const)]
        return o

    rX = sa(4); rW1 = sa(4); rBI = sa(4); rGW = sa(4); rW2 = sa(4); rWR = sa(4); rWI = sa(4); rOUT = sa(4); rWS = sa(4)
    L += ['.p2align 8', '.type %s,@function' % LABEL, '%s:' % LABEL, 's_cmp_ge_u32 s2, 256', 's_cbranch_scc1 L_end']
    for r_, off in ((rX, 0), (rW1, 32), (rBI, 40), (rWS, 80), (rGW, 56), (rW2, 48), (rWR, 8), (rWI, 16), (rOUT, 64)):
        L += ['s_load_dwordx2 %s, s[0:1], %d' % (S(r_, 2), off)]
    lo_ = Alloc('s', 3, 10)
    sT = lo_(); sT2 = lo_(); sT3 = lo_(); sSpin = lo_(); sTag = lo_(); sW = lo_(); sM = lo_()
    sPC = 12; sEp = 14; sCF = 15
    sI = sa(); sC = sa(); sN2 = sa(); sPar = sa(); sKS = sa(); sNB = sa(); sXc = sa(); sK1 = sa(); sHF = sa(); sKP = sa()
    sSig = sa(); sXb = sa(); sWb = sa(); sXs = sa(); sWs = sa(); sM0x = sa(); sM0w = sa(); sKap = sa(); sW2b = sa(); sRot2 = sa()
    sInv448 = sa(); sM448 = sa(); sN2f = sa(); sK0 = sa(); sG = sa(); sG2 = sa(); sL2E = sa(2)
    pl = Alloc('s', 16, 36)
    sA1o = pl(); sA1o2 = pl(); sActP = pl(); sActS = pl(); sFA = pl(); sFG = pl(); sFB = pl(); sFP = pl(); sWo = pl(); sDFo = pl()
    sB1s = pl(); sAFo = pl(); sPTs = pl(); sB1l = pl(); sGl = pl(); sPTl = pl(); sOut = pl()
    vL = va(); vQ = va(); vJ = va(); t0 = va(); t1 = va(); t2 = va(); t3 = va(); vL16 = va(); vZero = va(); vTag = va(); vDump = va()
    vCP = va(2)
    L += ['s_getpc_b64 %s' % S(sPC, 2), 'L_pc:',
          'v_and_b32 %s, 63, v0' % V(vL), 'v_lshrrev_b32 %s, 6, v0' % V(t0),
          's_lshr_b32 %s, s2, 3' % S(sM), 's_and_b32 %s, %s, 15' % (S(sCF), S(sM)), 's_lshl_b32 %s, %s, 11' % (S(sT), S(sCF)),
          'v_lshrrev_b32 %s, 4, v0' % V(t1), 'v_lshl_add_u32 %s, %s, 7, %s' % (V(t1), V(t1), S(sT)),
          'v_min_u32 %s, L_end-L_pc, %s' % (V(t1), V(t1)),
          'v_mov_b32 %s, %s' % (V(vCP + 1), S(sPC + 1)),
          'v_add_co_u32 %s, vcc, %s, %s' % (V(vCP), S(sPC), V(t1)),
          'v_readfirstlane_b32 %s, %s' % (S(sW), V(t0)), 'v_lshrrev_b32 %s, 4, %s' % (V(vQ), V(vL)),
          'v_addc_co_u32 %s, vcc, 0, %s, vcc' % (V(vCP + 1), V(vCP + 1)),
          'VM pf global_load_dword %s, %s, off' % (V(vDump), V(vCP, 2))]
    if STAMP:
        L += ['v_mov_b32 %s, 0' % V(vST), 's_memrealtime s[16:17]', 's_memtime s[18:19]']; stamps += ['r0', 'start']
    L += ['v_and_b32 %s, 15, v0' % V(vJ),
          'v_lshlrev_b32 %s, 4, %s' % (V(vL16), V(vL)), 'v_mov_b32 %s, 0' % V(vZero),
          's_and_b32 %s, s2, 7' % S(sXc),
          's_lshr_b32 %s, %s, 2' % (S(sI), S(sXc)), 's_lshl_b32 %s, %s, 3' % (S(sI), S(sI)),
          's_lshr_b32 %s, %s, 2' % (S(sT3), S(sM)), 's_add_u32 %s, %s, %s' % (S(sI), S(sI), S(sT3)),
          's_and_b32 %s, %s, 3' % (S(sKS), S(sXc)), 's_and_b32 %s, %s, 3' % (S(sNB), S(sM)),
          's_lshl_b32 %s, %s, 2' % (S(sC), S(sKS)), 's_add_u32 %s, %s, %s' % (S(sC), S(sC), S(sNB)),
          's_lshl_b32 %s, %s, 2' % (S(sN2f), S(sI)), 's_add_u32 %s, %s, %s' % (S(sN2), S(sN2f), S(sW)),
          's_add_u32 %s, %s, %s' % (S(sN2f), S(sN2f), S(sKS)),
          's_and_b32 %s, %s, 1' % (S(sPar), S(sC)),
          's_lshl_b32 %s, %s, 1' % (S(sSig), S(sNB)), 's_add_u32 %s, %s, %s' % (S(sSig), S(sSig), S(sT3)),
          's_sub_u32 %s, %s, 7' % (S(sT), S(sSig)), 's_min_u32 %s, %s, %s' % (S(sSig), S(sSig), S(sT))] + {
              0: [], 1: ['s_mov_b32 %s, 0' % S(sSig)],
              2: ['s_add_u32 %s, %s, %s' % (S(sSig), S(sNB), S(sT3)), 's_and_b32 %s, %s, 1' % (S(sSig), S(sSig)), 's_lshl_b32 %s, %s, 2' % (S(sSig), S(sSig))],
              4: ['s_add_u32 %s, %s, %s' % (S(sSig), S(sNB), S(sT3)), 's_and_b32 %s, %s, 3' % (S(sSig), S(sSig)), 's_lshl_b32 %s, %s, 1' % (S(sSig), S(sSig))]}[P('ROT', 0)] + [
          's_lshl_b32 %s, %s, 1' % (S(sRot2), S(sSig)), 's_add_u32 %s, %s, %s' % (S(sRot2), S(sRot2), S(sW)),
          's_mul_i32 %s, %s, 896' % (S(sXb), S(sN2))]
    L += sx(sWb, [(sC, 224), (sW, 8 * 3584)])
    L += ['s_lshl_b32 %s, %s, 12' % (S(sM0x), S(sW)), 's_mul_i32 %s, %s, 896' % (S(sM0w), S(sW)), 's_lshl_b32 %s, %s, 1' % (S(sT2), S(sPar))]
    vXs = va(2, 1); vW1s = va(); vW2s = va(); vQ16 = va(); vQ8 = va(); vTr = va(2, 1); vXr = va(2, 1)
    L += ['v_lshrrev_b32 %s, 3, %s' % (V(t0), V(vL)), 'v_mul_u32_u24 %s, 57344, %s' % (V(t0), V(t0)),
          'v_and_b32 %s, 7, %s' % (V(t1), V(vL)), 'v_xor_b32 %s, %s, %s' % (V(t1), V(t1), V(vQ)),
          'v_lshl_add_u32 %s, %s, 4, %s' % (V(vXs), V(t1), V(t0)),
          'v_xor_b32 %s, 64, %s' % (V(vXs + 1), V(vXs)), 'v_add_u32 %s, %d, %s' % (V(vXs + 1), 8 * 57344, V(vXs + 1)),
          'v_mul_u32_u24 %s, 4682, %s' % (V(t0), V(vL)), 'v_lshrrev_b32 %s, 16, %s' % (V(t0), V(t0)),
          'v_mul_u32_u24 %s, 14, %s' % (V(t1), V(t0)), 'v_sub_u32 %s, %s, %s' % (V(t1), V(vL), V(t1)),
          'v_mul_u32_u24 %s, 896, %s' % (V(t2), V(t0)), 'v_lshl_add_u32 %s, %s, 4, %s' % (V(vW2s), V(t1), V(t2)),
          'v_add_u32 %s, %s, %s' % (V(t1), S(sT2), V(t1)), 'v_subrev_u32 %s, 14, %s' % (V(t2), V(t1)), 'v_min_u32 %s, %s, %s' % (V(t1), V(t1), V(t2)),
          'v_mul_u32_u24 %s, 3584, %s' % (V(t2), V(t0)), 'v_lshl_add_u32 %s, %s, 4, %s' % (V(vW1s), V(t1), V(t2)),
          'v_lshlrev_b32 %s, 4, %s' % (V(vQ16), V(vQ)), 'v_lshlrev_b32 %s, 3, %s' % (V(vQ8), V(vQ))]
    for r_, sz in ((rX, X_SZ), (rW1, W1_SZ), (rBI, 3584), (rWS, WS_END), (rGW, 896), (rW2, W2_SZ), (rWR, W_SZ), (rWI, W_SZ), (rOUT, X_SZ)):
        L += ['s_mov_b32 %s, 0x%x' % (S(r_ + 2), sz), 's_mov_b32 %s, 0x20000' % S(r_ + 3)]
    L += sx(sG, [(sC, 224), (sPar, 32)]) + sx(sG2, [(sC, 224), (sPar, -192)], 192)
    L += ['v_min_u32 %s, 10, %s' % (V(t0), V(vJ)), 'v_lshlrev_b32 %s, 21, %s' % (V(t0), V(t0))]

    def stage_loads(s):
        slot = s % 4
        U = [['s_lshl_b32 %s, %s, 7' % (S(sXs), S(sSig))], ['s_add_u32 %s, %s, %s' % (S(sXs), S(sXs), S(sXb))],
             ['s_mul_i32 %s, %s, %d' % (S(sWs), S(sSig), 64 * 3584)], ['s_add_u32 %s, %s, %s' % (S(sWs), S(sWs), S(sWb))]]
        for kk in range(2):
            for e in (2 * kk, 2 * kk + 1):
                if e == 2: U += [['s_add_u32 %s, %s, 917504' % (S(sXs), S(sXs))]]
                U += [['s_add_u32 m0, %s, %d' % (S(sM0x), XR + slot * 16384 + e * 1024)],
                      ['VM st%d buffer_load_dwordx4 %s, %s, %s offen lds' % (s, V(vXs + (e & 1)), S(rX, 4), S(sXs))]]
            for b2 in range(2):
                if kk or b2: U += [['s_add_u32 %s, %s, %d' % (S(sWs), S(sWs), (4 if b2 else 28) * 3584)]]
                U += [['s_add_u32 m0, %s, %d' % (S(sM0w), W1R + slot * 14336 + (32 * kk + 16 * b2) * 224)],
                      ['s_mov_b32 exec_hi, 0xffffff', 'VM st%d buffer_load_dwordx4 %s, %s, %s offen lds' % (s, V(vW1s), S(rW1, 4), S(sWs)), 's_mov_b32 exec_hi, -1']]
        U += [['s_add_u32 %s, %s, 1' % (S(sSig), S(sSig))], ['s_cmp_eq_u32 %s, 7' % S(sSig), 's_cselect_b32 %s, 0, %s' % (S(sSig), S(sSig))]]
        return U
    def w2_loads(t):
        U = []
        for kk in range(2):
            U += [['s_mul_i32 %s, %s, %d' % (S(sWs), S(sKap), 32 * 896)], ['s_add_u32 %s, %s, %s' % (S(sWs), S(sWs), S(sW2b))],
                  ['s_add_u32 %s, %s, 1' % (S(sKap), S(sKap))], ['s_cmp_eq_u32 %s, 14' % S(sKap), 's_cselect_b32 %s, 0, %s' % (S(sKap), S(sKap))]]
            for b2 in range(2):
                if b2: U += [['s_add_u32 %s, %s, %d' % (S(sWs), S(sWs), 16 * 896)]]
                U += [['s_add_u32 m0, %s, %d' % (S(sM0w), W2B[t] + (32 * kk + 16 * b2) * 224)],
                      ['s_mov_b32 exec_hi, 0xffffff', 'VM w2_%d buffer_load_dwordx4 %s, %s, %s offen lds' % (t, V(vW2s), S(rW2, 4), S(sWs)), 's_mov_b32 exec_hi, -1']]
        return U
    flat = lambda U: [i for u in U for i in (u if isinstance(u, list) else [u])]
    def group_vm(U):
        out = []; cur = []
        for u in U:
            cur += u
            if any(i.startswith('VM ') for i in u): out.append(cur); cur = []
        if cur: out[-1] += cur
        return out

    vAmp = va(); vFw = va(); vFr = va(); vPa = va(); vPv = va(); vG = va(2); vG1 = va(2)
    NBIG = 220
    big = va(NBIG, 4)
    pa = Alloc('v', big, big + NBIG)
    accb = pa(72, 4)
    ACC = [[accb + 36 * rt + 4 * T for T in range(9)] for rt in range(2)]
    vB = [pa(4) for T in range(7)]
    MR = [[pa(4) for t in range(2)] for kt in range(2)]; MI = [[pa(4) for t in range(2)] for kt in range(2)]
    tmpA = pa(40, 4)
    WRr = [pa(4) for t in range(2)]; WIr = [pa(4) for t in range(2)]
    OWN = [[pa(4) for rt in range(2)] for Pp in range(3)]
    tmpN = pa(8, 4)
    ta = Alloc('v', accb, accb + 72)
    vGW = [tmpA + 4 * a for a in range(4)]; vBraw = [ta(2) for T in range(7)]
    cs = ta(8); sn = ta(8); th = ta(8); pk0 = ta(4); pk1 = ta(4); vKdf = ta(); vU = ta(); vD0 = ta()
    aa = Alloc('a', 0, 256)
    WF = [[aa(4) for T in range(9)] for b in range(2)]
    XF = [[aa(4) for rt in range(2)] for b in range(2)]
    AF = [[aa(4) for rt in range(2)] for s in range(11)]
    BF = [[aa(4) for u in range(2)] for a in range(4)]
    NR = [[aa(4) for u in range(2)] for tn in range(2)]; NI = [[aa(4) for u in range(2)] for tn in range(2)]

    def kact(dst, a, tmp):
        return ['s_add_u32 %s, %s, %d' % (S(dst), S(sRot2), 4 * a), 's_sub_u32 %s, %s, 14' % (S(tmp), S(dst)), 's_min_u32 %s, %s, %s' % (S(dst), S(dst), S(tmp))]
    G = ['s_mov_b32 %s, %s' % (S(sInv448), f2u(1.0 / 448)), 's_mov_b32 %s, %s' % (S(sM448), f2u(-448.0)),
         's_lshl_b32 %s, %s, 4' % (S(sT2), S(sC)),
         'v_add_u32 %s, %s, %s' % (V(vAmp), S(sT2), V(vJ)), 'v_cvt_f32_u32 %s, %s' % (V(vKdf), V(vAmp)),
         'v_mul_f32 %s, %s, %s' % (V(vU), S(sInv448), V(vKdf)),
         's_lshl_b32 %s, %s, 11' % (S(sT2), S(sW)), 'v_add_u32 %s, %d, %s' % (V(vFr), FL, V(vL16)),
         'v_add_u32 %s, %s, %s' % (V(vFw), S(sT2), V(vFr))]
    for a in range(4):
        G += kact(sT2, a, sT3) + [
              'v_lshl_add_u32 %s, %s, 5, %s' % (V(vD0), S(sT2), V(vQ8)), 'v_cvt_f32_u32 %s, %s' % (V(vD0), V(vD0)),
              'v_mul_f32 %s, %s, %s' % (V(t3), V(vKdf), V(vD0)), 'v_mul_f32 %s, %s, %s' % (V(th), S(sInv448), V(t3)),
              'v_floor_f32 %s, %s' % (V(th), V(th)), 'v_fma_f32 %s, %s, %s, %s' % (V(t3), V(th), S(sM448), V(t3)),
              'v_mul_f32 %s, %s, %s' % (V(th), S(sInv448), V(t3))]
        for e in range(1, 8): G += ['v_add_f32 %s, %s, %s' % (V(th + e), V(th + e - 1), V(vU))]
        for e in range(8): G += ['v_cos_f32 %s, %s' % (V(cs + e), V(th + e)), 'v_sin_f32 %s, %s' % (V(sn + e), V(th + e))]
        for e in range(4):
            G += ['v_cvt_pk_bf16_f32 %s, %s, %s' % (V(pk0 + e), V(cs + 2 * e), V(cs + 2 * e + 1)),
                  'v_cvt_pk_bf16_f32 %s, -%s, -%s' % (V(pk1 + e), V(sn + 2 * e), V(sn + 2 * e + 1))]
        G += ['ds_write_b128 %s, %s offset:%d' % (V(vFw), V(pk0, 4), a * 8192),
              'ds_write_b128 %s, %s offset:%d' % (V(vFw), V(pk1, 4), a * 8192 + 1024)]
    G += ['v_lshrrev_b32 %s, 2, %s' % (V(t3), V(vL)), 'v_mul_u32_u24 %s, 224, %s' % (V(vTr), V(t3)),
          'v_and_b32 %s, 3, %s' % (V(t3), V(vL)), 'v_lshl_add_u32 %s, %s, 3, %s' % (V(vTr), V(t3), V(vTr)),
          'v_add_u32 %s, 65536, %s' % (V(vTr + 1), V(vTr)),
          'v_lshrrev_b32 %s, 1, %s' % (V(t3), V(vJ)), 'v_xor_b32 %s, %s, %s' % (V(t3), V(t3), V(vQ)),
          'v_lshlrev_b32 %s, 4, %s' % (V(t3), V(t3)), 'v_lshl_add_u32 %s, %s, 7, %s' % (V(t3), V(vJ), V(t3)),
          'v_add_u32 %s, %s, %s' % (V(vXr), S(sM0x), V(t3)), 'v_xor_b32 %s, 64, %s' % (V(vXr + 1), V(vXr))]
    s0 = flat(stage_loads(0))
    npre = P('NPRE', 20)
    L += s0[:4] + G[:npre] + ['s_waitcnt lgkmcnt(0)'] + s0[4:]; G = G[npre:]
    if STAMP: L += ['v_writelane_b32 %s, s16, 0' % V(vST), 'v_writelane_b32 %s, s18, 1' % V(vST)]
    for T in range(7):
        L += ['VM bias buffer_load_dwordx2 %s, %s, %s, %s offen offset:%d' % (V(vBraw[T], 2), V(vQ8), S(rBI, 4), S(sG2 if T == 6 else sG), 32 * T if T < 6 else 0)]
    L += ['s_add_u32 %s, %s, 0x%x' % (S(sPC), S(rWS), EP_OFF), 's_addc_u32 %s, %s, 0' % (S(sPC + 1), S(rWS + 1)),
          's_load_dword %s, %s, 0' % (S(sEp), S(sPC, 2))]
    L += ['s_cmp_lg_u32 %s, 15' % S(sC), 's_cbranch_scc1 L_nogw', 'OPT_BEGIN']
    for a in range(4):
        L += kact(sG, a, sG2) + ['s_lshl_b32 %s, %s, 6' % (S(sG), S(sG)),
              'VM gw buffer_load_dwordx4 %s, %s, %s, %s offen' % (V(vGW[a], 4), V(vQ16), S(rGW, 4), S(sG))]
    L += ['OPT_END', 'L_nogw:']
    ld = group_vm(stage_loads(1)) + group_vm(stage_loads(2))
    L += spread(G, ld, int(len(G) * P('PRO0', 50) / 100), None)
    if P('TLB', 1):
        L += ['VM pf buffer_load_dword %s, %s, %s, 0 offen' % (V(vDump), V(t0), S(rWS, 4)),
              'VM pf buffer_load_dword %s, %s, %s, 0 offen' % (V(vDump), V(vZero), S(rOUT, 4))]
    st('issued')
    pro_pos = len(L)
    L += ['WAITVM bias']
    for T in range(7):
        for h in range(2):
            L += ['v_lshlrev_b32 %s, 16, %s' % (V(vB[T] + 2 * h), V(vBraw[T] + h)),
                  'v_and_b32 %s, 0xffff0000, %s' % (V(vB[T] + 2 * h + 1), V(vBraw[T] + h))]
    L += ['s_cmp_lg_u32 %s, 15' % S(sC), 's_cbranch_scc1 L_nogate0', 'WAITVM gw']
    for a in range(4): L += ['ds_write_b128 %s, %s offset:%d' % (V(vFw), V(vGW[a], 4), a * 8192)]
    L += ['L_nogate0:']

    gx = lambda dst, terms, const=0: sx(dst, terms, const, sG2)
    lo1 = ['s_lshr_b32 %s, %s, 1' % (S(sHF), S(sW)),
           's_mul_i32 %s, %s, 0x9e3779b1' % (S(sTag), S(sEp)), 's_add_u32 %s, %s, 0x7f4a7c15' % (S(sTag), S(sTag)), 'v_mov_b32 %s, %s' % (V(vTag), S(sTag)),
           's_lshr_b32 %s, %s, 4' % (S(sKP), S(sM)), 's_lshl_b32 %s, %s, 1' % (S(sG), S(sXc)), 's_add_u32 %s, %s, %s' % (S(sKP), S(sKP), S(sG)),
           's_and_b32 %s, %s, 1' % (S(sK1), S(sW)), 's_lshl_b32 %s, %s, 1' % (S(sG), S(sKP)), 's_add_u32 %s, %s, %s' % (S(sK1), S(sK1), S(sG)),
           's_mul_i32 %s, %s, 7' % (S(sK0), S(sNB)), 's_add_u32 %s, %s, 1' % (S(sK0), S(sK0)), 's_lshr_b32 %s, %s, 1' % (S(sK0), S(sK0)),
           's_mov_b32 %s, %s' % (S(sKap), S(sK0))]
    lo1 += gx(sW2b, [(sKS, 448 * 896), (sW, 4 * 896), (sNB, 224)]) + gx(sWo, [(sK1, 450), (sCF, 32), (sHF, 32 * 14400)])
    lo1 += ['v_mul_u32_u24 %s, %d, %s' % (V(t3), 4 * 14400, V(vQ)), 'v_lshl_add_u32 %s, %s, 1, %s' % (V(t3), V(vJ), V(t3))]
    for t in range(2):
        for r in range(4): lo1 += ['v_mov_b32 %s, 0' % V(WRr[t] + r), 'v_mov_b32 %s, 0' % V(WIr[t] + r)]
    lo2 = ['v_mov_b32 %s, 1.0' % V(t1),
           'v_cmp_eq_u32 vcc, 0, %s' % V(vAmp), 'v_cndmask_b32 %s, %s, 0.5, vcc' % (V(t1), V(t1)),
           'v_cmp_eq_u32 vcc, 224, %s' % V(vAmp), 'v_cndmask_b32 %s, %s, 0.5, vcc' % (V(t1), V(t1)),
           'v_cmp_lt_u32 vcc, 224, %s' % V(vAmp), 'v_cndmask_b32 %s, %s, 0, vcc' % (V(vAmp), V(t1))]
    q_ = tmpA + 16
    vK = [q_, q_ + 1]; vS0 = q_ + 2; vS = q_ + 3; vA = [q_ + 4, q_ + 5]; c_ = [q_ + 6, q_ + 7]; s_ = [q_ + 8, q_ + 9]
    mpr = []
    mpr += ['v_cvt_f32_u32 %s, %s' % (V(vK[0]), V(vJ)), 'v_mul_f32 %s, %s, %s' % (V(vK[0]), f2u(1.0 / 2048), V(vK[0])),
            'v_add_f32 %s, %s, %s' % (V(vK[1]), f2u(16.0 / 2048), V(vK[0])),
            'v_lshl_add_u32 %s, %s, 8, %s' % (V(vS0), V(vQ), S(sN2)), 'v_cvt_f32_u32 %s, %s' % (V(vS0), V(vS0))]
    for t in range(2):
        for r in range(4):
            mpr += ['v_add_f32 %s, %s, %s' % (V(vS), f2u(64.0 * (16 * t + r)), V(vS0))]
            for kt in range(2): mpr += ['v_mul_f32 %s, %s, %s' % (V(vA[kt]), V(vK[kt]), V(vS))]
            for kt in range(2): mpr += ['v_cos_f32 %s, %s' % (V(c_[kt]), V(vA[kt])), 'v_sin_f32 %s, %s' % (V(s_[kt]), V(vA[kt]))]
            for kt in range(2):
                mpr += ['v_cvt_pk_bf16_f32 %s, %s, %s' % (V(MR[kt][t] + r), V(c_[kt]), V(s_[kt])),
                        'v_cvt_pk_bf16_f32 %s, -%s, %s' % (V(MI[kt][t] + r), V(s_[kt]), V(c_[kt]))]
    c2 = vB[0]; cm2 = c2 + 2; c1 = vB[1]
    lo2 += ['s_mov_b32 %s, %s' % (S(sL2E), f2u(LOG2E)), 's_mov_b32 %s, %s' % (S(sL2E + 1), f2u(LOG2E)),
            'v_mov_b32 %s, 2.0' % V(c2), 'v_mov_b32 %s, 2.0' % V(c2 + 1), 'v_mov_b32 %s, -2.0' % V(cm2), 'v_mov_b32 %s, -2.0' % V(cm2 + 1),
            'v_mov_b32 %s, 1.0' % V(c1), 'v_mov_b32 %s, 1.0' % V(c1 + 1),
            's_lshl_b32 %s, %s, 2' % (S(sG), S(sW)), 's_add_u32 %s, %s, %d' % (S(sG), S(sG), XCH),
            'v_lshl_add_u32 %s, %s, 10, %s' % (V(t0), V(vQ), S(sG)), 'v_lshl_add_u32 %s, %s, 4, %s' % (V(t0), V(vJ), V(t0)),
            'v_lshlrev_b32 %s, 4, v0' % V(t2), 'v_add_u32 %s, %d, %s' % (V(t1), XCH, V(t2))]
    lo2 += gx(sA1o, [(sI, 16 * 8192), (sC, 8192)], A1_OFF) + ['s_add_u32 %s, %s, 4096' % (S(sA1o2), S(sA1o))]
    lo2 += gx(sAFo, [(sN2, ACT_N2), (sKS, 14 * 2048)], ACT_OFF) + gx(sActP, [(sK0, 2048), (sAFo, 1)])
    lo2 += gx(sActS, [(sPar, -4 * 2048 + 8), (sActP, 1)], 3 * 2048)
    lo2 += gx(sFA, [(sC, 64 * FS), (sW, 16 * FS), (sI, FS)], FA_OFF)
    lo2 += gx(sG, [(sCF, 64 * FS), (sKS, 16 * FS)], FA_OFF) + [
            'v_lshrrev_b32 %s, 2, %s' % (V(vPa), V(vL)), 'v_mul_u32_u24 %s, %d, %s' % (V(vPa), FS, V(vPa)), 'v_add_u32 %s, %s, %s' % (V(vPa), S(sG), V(vPa))]
    lo3 = gx(sFG, [(sN2, 16 * FS), (sC, FS)], FG_OFF) + gx(sDFo, [(sCF, 8192), (sK1, 256)], A1_OFF)
    lo4 = gx(sFB, [(sW, 256 * FSB), (sCF, 16 * FSB), (sKP, FSB)], FB_OFF)
    lo4 += gx(sFP, [(sN2, 16 * FS), (sNB, 4 * FS), (sKS, FS)], FP_OFF)
    lo4 += gx(sB1s, [(sCF, 64 * 2048), (sW, 16 * 2048), (sKP, 128)], B1_OFF)
    lo4 += gx(sPTs, [(sKS, 64 * PART_N2), (sN2, PART_N2), (sNB, 7 * 1024)], PART_OFF)
    lo4 += [['s_cmp_eq_u32 %s, %s' % (S(sW), S(sKS)), 's_cselect_b32 %s, 0x40000000, %s' % (S(sPTs), S(sPTs))]]
    lo4 += gx(sB1l, [(sW, 4 * 64 * 2048), (sN2f, 2048)], B1_OFF) + gx(sGl, [(sN2f, 128)], GATE_OFF)
    lo4 += gx(sPTl, [(sN2f, PART_N2), (sNB, 7 * 1024), (sW, 2048)], PART_OFF) + gx(sOut, [(sN2f, 896), (sNB, 224), (sW, 64)])
    vSs, vK0n, vKk, nc, ns, pn = tmpN, tmpN + 1, tmpN + 2, tmpN + 3, tmpN + 4, tmpN + 5
    ngen = []
    ngen += ['v_lshl_add_u32 %s, %s, 6, %s' % (V(vSs), V(vJ), S(sN2f)), 'v_cvt_f32_u32 %s, %s' % (V(vSs), V(vSs)), 'v_mul_f32 %s, %s, %s' % (V(vSs), f2u(1.0 / 2048), V(vSs)),
            'v_lshlrev_b32 %s, 2, %s' % (V(vK0n), V(vQ)), 'v_cvt_f32_u32 %s, %s' % (V(vK0n), V(vK0n))]
    for u in range(2):
        for r in range(4):
            ngen += ['v_add_f32 %s, %s, %s' % (V(vKk), f2u(16.0 * u + r), V(vK0n)), 'v_mul_f32 %s, %s, %s' % (V(vKk), V(vKk), V(vSs)),
                    'v_cos_f32 %s, %s' % (V(nc), V(vKk)), 'v_sin_f32 %s, %s' % (V(ns), V(vKk))]
            for tn in range(2):
                ng = '-' if (tn and r & 1) else ''; ps = '' if (tn and r & 1) else '-'
                if tn == 0 or r & 1:
                    ngen += ['v_cvt_pk_bf16_f32 %s, %s%s, %s%s' % (V(pn), ng, V(nc), ps, V(ns)), 'v_cvt_pk_bf16_f32 %s, %s%s, %s%s' % (V(pn + 1), ng, V(ns), ng, V(nc))]
                ngen += ['v_accvgpr_write_b32 %s, %s' % (A(NR[tn][u] + r), V(pn)), 'v_accvgpr_write_b32 %s, %s' % (A(NI[tn][u] + r), V(pn + 1))]
    pf = sx(sT2, [(sM, 12544), (sKS, 448 * 896), (sW, 25 * 128)]) + [
         'v_lshrrev_b32 %s, 1, %s' % (V(vCP), V(vL)), 'v_min_u32 %s, 24, %s' % (V(vCP), V(vCP)), 'v_lshlrev_b32 %s, 7, %s' % (V(vCP), V(vCP)),
         'VM pf buffer_load_dword %s, %s, %s, %s offen' % (V(vDump), V(vCP), S(rW2, 4), S(sT2)),
         's_lshr_b32 %s, %s, 1' % (S(sT3), S(sW))]
    pf += sx(sT2, [(sM, 2 * 14400), (sT3, 14400), (sXc, 1800)]) + [
         'v_lshrrev_b32 %s, 3, %s' % (V(vCP + 1), V(vL)), 's_and_b32 %s, %s, 1' % (S(sT), S(sW)), 's_lshl_b32 %s, %s, 10' % (S(sT), S(sT)),
         'v_lshl_add_u32 %s, %s, 7, %s' % (V(vCP + 1), V(vCP + 1), S(sT)), 'v_min_u32 %s, 1796, %s' % (V(vCP + 1), V(vCP + 1)),
         'VM pf buffer_load_dword %s, %s, %s, %s offen' % (V(vDump), V(vCP + 1), S(rWR, 4), S(sT2)),
         'VM pf buffer_load_dword %s, %s, %s, %s offen' % (V(vDump), V(vCP + 1), S(rWI, 4), S(sT2))]
    wl = []
    for t in range(2):
        for r in range(4):
            wl += ['s_add_u32 %s, %s, %d' % (S(sT2), S(sWo), (16 * t + r) * 14400),
                   'VM W buffer_load_short_d16_hi %s, %s, %s, %s offen' % (V(WRr[t] + r), V(t3), S(rWR, 4), S(sT2)),
                   'VM W buffer_load_short_d16_hi %s, %s, %s, %s offen' % (V(WIr[t] + r), V(t3), S(rWI, 4), S(sT2))]

    def tr_reads(tag, dst, base, order):
        o = []
        reg = vTr + (base >= 65536); off = base - (65536 if base >= 65536 else 0)
        for T in order:
            for b in range(2):
                o.append('LK %s_%d ds_read_b64_tr_b16 %s, %s offset:%d' % (tag, T, A(dst[T] + 2 * b, 2), V(reg), off + b * 3584 + T * 32))
        return o
    ORD_A = [7, 8, 6, 0, 1, 2, 3, 4, 5]
    def readsA(ks):
        s = ks // 2; kk = ks & 1
        o = ['LK a%d_x ds_read_b128 %s, %s offset:%d' % (ks, A(XF[kk][rt], 4), V(vXr + kk), XR + (s % 4) * 16384 + rt * 2048) for rt in range(2)]
        o += ['LK a%d_%d ds_read_b128 %s, %s offset:%d' % (ks, 7 + T, A(WF[kk][7 + T], 4), V(vFr), ks * 2048 + T * 1024) for T in range(2)]
        o += tr_reads('a%d' % ks, WF[kk], W1R + (s % 4) * 14336 + kk * 7168, ORD_A[2:])
        return o
    def with_waits(tag, order, mk, step=3):
        o = []
        for n, T in enumerate(order):
            ms = mk(T)
            if n % step == 0:
                ms[0] = ['WAITLK %s_%d' % (tag, order[min(n + step - 1, len(order) - 1)]), ms[0]]
            o += ms
        return o
    def mfmasA(ks):
        def mk(T):
            o = []
            for rt in range(2):
                c = V(ACC[rt][T], 4) if ks else (V(vB[T], 4) if T < 7 else '0')
                w = A(WF[ks & 1][T], 4); x = A(XF[ks & 1][rt], 4)
                o.append('%s %s, %s, %s, %s' % ((MFMA, V(ACC[rt][T], 4)) + ((w, x) if T < 7 else (x, w)) + (c,)))
            return o
        return with_waits('a%d' % ks, ORD_A, mk)
    L += ['WAITVM st0 lgkmcnt(0)', 's_barrier']
    st('b0')
    L += readsA(0)
    hi = stage_loads(3); lo = lo1 + lo2 + lo3 + lo4
    L[pro_pos:pro_pos] = mpr + ngen
    for ks in range(14):
        if ks & 1 and ks < 13:
            s = (ks + 1) // 2
            L += ['WAITVM st%d' % s, 's_barrier']
            if s == 1: hi += pf
            elif s + 2 <= 6: hi += stage_loads(s + 2)
            else:
                assert len(lo) <= len(lo2 + lo3 + lo4)
                hi += w2_loads(s - 5) + (wl if s == 6 else [])
            if s == 3: st('b3')
        L += sched(mfmasA(ks), readsA(ks + 1) if ks < 13 else [], hi, lo)
    L += flat(hi); hi = []
    k = max(0, len(lo) - len(lo3 + lo4))
    print('main A: leftover mandatory lo', k, 'optional', len(lo) - k, file=sys.stderr)
    L += flat(lo[:k]); lo = lo[k:]
    st('mainA')
    def mish(src, dst, E, Aa):
        nv = 4 * len(src)
        h = lambda k: src[k // 4] + (k % 4)
        o = []
        for k in range(0, nv, 2): o += ['v_pk_mul_f32 %s, %s, %s' % (V(E + k, 2), V(h(k), 2), S(sL2E, 2))]
        for k in range(nv): o += ['v_exp_f32 %s, %s' % (V(E + k), V(E + k))]
        for k in range(0, nv, 2): o += ['v_pk_add_f32 %s, %s, %s' % (V(Aa + k, 2), V(E + k, 2), V(c2, 2))]
        for k in range(0, nv, 2): o += ['v_pk_fma_f32 %s, %s, %s, %s' % (V(E + k, 2), V(E + k, 2), V(Aa + k, 2), V(c2, 2))]
        for k in range(nv): o += ['v_rcp_f32 %s, %s' % (V(E + k), V(E + k))]
        for k in range(0, nv, 2): o += ['v_pk_fma_f32 %s, %s, %s, %s' % (V(E + k, 2), V(E + k, 2), V(cm2, 2), V(c1, 2))]
        for k in range(0, nv, 2): o += ['v_pk_mul_f32 %s, %s, %s' % (V(E + k, 2), V(E + k, 2), V(h(k), 2))]
        for k in range(0, nv, 2): o += ['v_cvt_pk_bf16_f32 %s, %s, %s' % (V(dst[k // 4] + (k % 4) // 2), V(E + k), V(E + k + 1))]
        return o
    PX = [tmpA, tmpA + 4]; DR = [tmpA + 8, tmpA + 12]; DI = [tmpA + 16, tmpA + 20]; XO = [tmpA + 32, tmpA + 36]
    SING = [vB[6], vB[6] + 2]
    m0 = mish([ACC[0][6], ACC[1][6]], SING, vB[2], vB[4])
    L += ['s_cmp_eq_u32 %s, 15' % S(sC), 's_cbranch_scc1 L_gate']
    for t in range(2):
        for r in range(4): L += ['v_cvt_pk_bf16_f32 %s, %s, %s' % (V(PX[t] + r), V(ACC[t][7] + r), V(ACC[t][8] + r))]
    s1 = []
    for t in range(2):
        for kt in range(2):
            s1 += ['%s %s, %s, %s, %s' % (MFMA, V(DR[kt], 4), V(MR[kt][t], 4), V(PX[t], 4), V(DR[kt], 4) if t else '0'),
                   '%s %s, %s, %s, %s' % (MFMA, V(DI[kt], 4), V(MI[kt][t], 4), V(PX[t], 4), V(DI[kt], 4) if t else '0')]
    L += m0[:4] + weave(s1, m0[4:12]) + m0[12:20]
    for kt in range(2):
        for r in range(4):
            L += ['v_mul_f32 %s, %s, %s' % (V(DR[kt] + r), V(vAmp), V(DR[kt] + r)), 'v_mul_f32 %s, %s, %s' % (V(DI[kt] + r), V(vAmp), V(DI[kt] + r)),
                  'v_cvt_pk_bf16_f32 %s, %s, %s' % (V(DR[kt] + r), V(DR[kt] + r), V(DI[kt] + r)),
                  'ds_write_b32 %s, %s offset:%d' % (V(t0), V(DR[kt] + r), kt * 4096 + r * 256)]
    L += m0[20:28] + ['WAITVM w2_1 lgkmcnt(0)', 's_barrier']
    L += ['ds_read_b128 %s, %s offset:%d' % (V(XO[k], 4), V(t1), k * 4096) for k in range(2)]
    L += m0[28:] + ['s_waitcnt lgkmcnt(0)', 's_branch L_a1st', 'L_gate:', 's_nop 7']
    for rt in range(2):
        a = ACC[rt][7]; o = XO[rt]
        for r in range(4): L += ['v_mul_f32 %s, %s, %s' % (V(o + r), S(sL2E), V(a + r))]
        for r in range(4): L += ['v_exp_f32 %s, -%s' % (V(o + r), V(o + r))]
        for r in range(4): L += ['v_add_f32 %s, 1.0, %s' % (V(o + r), V(o + r))]
        for r in range(4): L += ['v_rcp_f32 %s, %s' % (V(o + r), V(o + r))]
    L += sx(sA1o, [(sN2, 128)], GATE_OFF) + ['s_add_u32 %s, %s, 64' % (S(sA1o2), S(sA1o)), 'v_mov_b32 %s, %s' % (V(t2), V(vQ16)), 'WAITVM w2_1', 's_barrier'] + m0 + ['L_a1st:']
    L += ['VM a1 buffer_store_dwordx4 %s, %s, %s, %s offen %s' % (V(XO[k], 4), V(t2), S(rWS, 4), S(sA1o2 if k else sA1o), SC) for k in range(2)]
    L += ['VM act buffer_store_dwordx2 %s, %s, %s, %s offen offset:%d %s' % (V(SING[rt], 2), V(vL16), S(rWS, 4), S(sActS), rt * 1024, SC) for rt in range(2)]
    st('a1st')
    ACB = [[big + 28 * rt + 4 * T for T in range(7)] for rt in range(2)]
    WF2 = [WF[0][:7], WF[1][:7]]
    def readsC(sl): return tr_reads('c%d' % sl, WF2[sl & 1], W2B[sl // 2] + (sl & 1) * 7168, range(7))
    L += ['v_add_u32 %s, 4096, %s' % (V(t1), V(vL16))]
    for Pp in range(3):
        L += mish([ACC[0][2 * Pp], ACC[0][2 * Pp + 1], ACC[1][2 * Pp], ACC[1][2 * Pp + 1]],
                  [OWN[Pp][0], OWN[Pp][0] + 2, OWN[Pp][1], OWN[Pp][1] + 2], tmpA, tmpA + 16)
        for rt in range(2):
            L += ['VM act buffer_store_dwordx4 %s, %s, %s, %s offen offset:%d %s' % (V(OWN[Pp][rt], 4), V(vL16 if Pp < 2 else t1), S(rWS, 4), S(sActP), (Pp % 2) * 2048 + rt * 1024, SC)]
        if Pp == 1: L += ['WAITVM a1'] + setflag(sFA)
    st('mish')
    def mfmasC(sl):
        def mk(T):
            return ['%s %s, %s, %s, %s' % (MFMA, V(ACB[rt][T], 4), A(WF2[sl & 1][T], 4), V(OWN[sl][rt], 4) if sl < 3 else A(AF[sl - 3][rt], 4),
                                           V(ACB[rt][T], 4) if sl else '0') for rt in range(2)]
        return with_waits('c%d' % sl, list(range(7)), mk, 2)
    L += readsC(0)
    pb = Alloc('v', big + 56, WRr[0])
    MM = [[[pb(4) for u in range(4)] for t in range(2)] for e in range(2)]
    DF = [pb(4) for u in range(4)]; XRr = [pb(4) for t in range(2)]; XIr = [pb(4) for t in range(2)]; PF = [pb(4) for t in range(4)]
    vI = XRr[0]; vN0 = vI + 1; vAn = vI + 2; vc = XIr[0]; vs = vc + 1
    mg = ['v_lshl_add_u32 %s, %s, 5, %s' % (V(vI), S(sHF), V(vJ)),
          'v_cvt_f32_u32 %s, %s' % (V(vI), V(vI)), 'v_mul_f32 %s, %s, %s' % (V(vI), f2u(1.0 / 64), V(vI)),
          'v_lshlrev_b32 %s, 2, %s' % (V(vN0), V(vQ)), 'v_cvt_f32_u32 %s, %s' % (V(vN0), V(vN0))]
    prev = []
    for u in range(4):
        for r in range(4):
            k = (4 * u + r) & 1
            mg += ['v_add_f32 %s, %s, %s' % (V(vAn + k), f2u(16.0 * u + r), V(vN0)), 'v_mul_f32 %s, %s, %s' % (V(vAn + k), V(vAn + k), V(vI)),
                   'v_cos_f32 %s, %s' % (V(vc + 2 * k), V(vAn + k)), 'v_sin_f32 %s, %s' % (V(vs + 2 * k), V(vAn + k))] + prev
            cc, ss = V(vc + 2 * k), V(vs + 2 * k)
            rot = [(cc, ss), ('-' + ss, cc), ('-' + cc, '-' + ss), (ss, '-' + cc)]
            prev = ['v_cvt_pk_bf16_f32 %s, %s, %s' % ((V(MM[e][t][u] + r),) + rot[(t * r + e) % 4]) for e in range(2) for t in range(2)]
    mg += prev
    k = max(0, len(lo) - len(lo4))
    L += flat(lo[:k]) + ['v_lshlrev_b32 %s, 17, %s' % (V(t0), V(vQ)), 'v_lshl_add_u32 %s, %s, 4, %s' % (V(t0), V(vJ), V(t0))]; lo = lo[k:] + mg
    hi = w2_loads(2) + w2_loads(3) + w2_loads(4) + w2_loads(5) + w2_loads(6)
    for sl in range(3):
        if sl == P('FASL', 1): L += poll_issue('pfa', vPa, vPv)
        L += sched(mfmasC(sl), readsC(sl + 1), hi, lo)
    st('ownC')
    L += poll_check('pfa', vPa, vPv)
    for u in range(4):
        L += ['s_add_u32 %s, %s, 0x%x' % (S(sT2), S(sDFo), u * 4 * 16 * 8192),
              'VM df buffer_load_dwordx4 %s, %s, %s, %s offen %s' % (V(DF[u], 4), V(t0), S(rWS, 4), S(sT2), SC)]
    L += ['WAITVM act'] + setflag(sFG)
    st('fa')
    L += flat(spread(lo, group_vm(hi)) if hi else lo)
    hi = []; lo = []
    L += sx(sT2, [(sN2, 16 * FS), (sKS, 4 * FS)], FG_OFF) + sx(sT3, [(sKS, 16 * FS), (sI, FS)], FA_OFF + 60 * 16 * FS) + [
          'v_lshrrev_b32 %s, 3, %s' % (V(vPa), V(vL)), 'v_mul_u32_u24 %s, %d, %s' % (V(vPa), FS, V(vPa)), 'v_add_u32 %s, %s, %s' % (V(vPa), S(sT2), V(vPa)),
          'v_mov_b32 %s, %s' % (V(t1), S(sT3)), 'v_cmp_lt_u32 vcc, 31, %s' % V(vL), 's_and_b32 %s, %s, 1' % (S(sT2), S(sW)), 's_lshl_b32 %s, %s, 12' % (S(sT3), S(sT2)),
          'v_cndmask_b32 %s, %s, %s, vcc' % (V(vPa), V(vPa), V(t1))]
    ad = ['s_add_u32 %s, %s, %d' % (S(sT3), S(sT3), PXC),
          'v_add_u32 %s, %s, %s' % (V(t1), S(sT3), V(vL16)), 's_lshl_b32 %s, %s, 11' % (S(sT3), S(sHF)), 'v_add_u32 %s, %s, %s' % (V(t0), S(sT3), V(t1)),
          's_lshl_b32 %s, %s, 2' % (S(sT2), S(sT2)), 's_lshl_b32 %s, %s, 12' % (S(sT3), S(sHF)), 's_add_u32 %s, %s, %s' % (S(sT2), S(sT2), S(sT3)),
          's_add_u32 %s, %s, %d' % (S(sT2), S(sT2), BXC),
          'v_lshl_add_u32 %s, %s, 9, %s' % (V(t2), V(vQ), S(sT2)), 'v_lshl_add_u32 %s, %s, 3, %s' % (V(t2), V(vJ), V(t2))]
    L += ['WAITVM df']
    st('df')
    TR = PF[2]; TI = PF[3]
    def cmul(t):
        o = []
        for r in range(4):
            xr, xi, wr, wi = V(XRr[t] + r), V(XIr[t] + r), V(WRr[t] + r), V(WIr[t] + r)
            o += ['v_mul_f32 %s, %s, %s' % (V(TR + r), xr, wr), 'v_mul_f32 %s, %s, %s' % (V(TI + r), xr, wi),
                  'v_fma_f32 %s, -%s, %s, %s' % (V(TR + r), xi, wi, V(TR + r)), 'v_fma_f32 %s, %s, %s, %s' % (V(TI + r), xi, wr, V(TI + r)),
                  'v_cvt_pk_bf16_f32 %s, %s, %s' % (V(PF[t] + r), V(TI + r), V(TR + r))]
        return o + ['ds_write_b128 %s, %s offset:%d' % (V(t0), V(PF[t], 4), t * 1024)]
    def cmulpk(t):
        o = []
        for h in range(2):
            xr, xi, wr, wi = V(XRr[t] + 2 * h, 2), V(XIr[t] + 2 * h, 2), V(WRr[t] + 2 * h, 2), V(WIr[t] + 2 * h, 2)
            o += ['v_pk_mul_f32 %s, %s, %s' % (V(TR + 2 * h, 2), xr, wr), 'v_pk_mul_f32 %s, %s, %s' % (V(TI + 2 * h, 2), xr, wi),
                  'v_pk_fma_f32 %s, %s, %s, %s neg_lo:[1,0,0] neg_hi:[1,0,0]' % (V(TR + 2 * h, 2), xi, wi, V(TR + 2 * h, 2)),
                  'v_pk_fma_f32 %s, %s, %s, %s' % (V(TI + 2 * h, 2), xi, wr, V(TI + 2 * h, 2))]
        o += ['v_cvt_pk_bf16_f32 %s, %s, %s' % (V(PF[t] + r), V(TI + r), V(TR + r)) for r in range(4)]
        return o + ['ds_write_b128 %s, %s offset:%d' % (V(t0), V(PF[t], 4), t * 1024)]
    sta = lambda t: [x for u in range(4) for x in
                     ('%s %s, %s, %s, %s' % (MFMA, V(XRr[t], 4), V(MM[0][t][u], 4), V(DF[u], 4), V(XRr[t], 4) if u else '0'),
                      '%s %s, %s, %s, %s' % (MFMA, V(XIr[t], 4), V(MM[1][t][u], 4), V(DF[u], 4), V(XIr[t], 4) if u else '0'))]
    s1_ = sta(1); cm0 = cmul(0)
    L += sched(sta(0), [], [], ad) + ad + s1_[:3] + sched(s1_[3:], [], [], cm0) + cm0 + poll_issue('pfg', vPa, vPv) + cmulpk(1) + ['s_waitcnt lgkmcnt(0)', 's_barrier']
    L += ['LK p%d ds_read_b128 %s, %s offset:%d' % (u, V(DF[u], 4), V(t1), u * 1024) for u in range(4)]
    L += ['s_lshl_b32 %s, %s, 11' % (S(sT2), S(sW)), 's_add_u32 %s, %s, %d' % (S(sT2), S(sT2), BXC), 'v_add_u32 %s, %s, %s' % (V(t1), S(sT2), V(vL16)),
          'v_lshrrev_b32 %s, 3, %s' % (V(t0), V(vL)), 'v_and_b32 %s, 7, %s' % (V(t3), V(vL)), 'v_lshlrev_b32 %s, 11, %s' % (V(t0), V(t0)),
          'v_lshl_add_u32 %s, %s, 4, %s' % (V(t0), V(t3), V(t0)), 's_add_u32 %s, %s, %d' % (S(sT2), S(sB1s), 8 * 2048), 's_waitcnt lgkmcnt(0)']
    stb = lambda t: [x for u in range(4) for x in
                     ('%s %s, %s, %s, %s' % (MFMA, V(XRr[t], 4), V(MM[1][t][u], 4), V(DF[u], 4), V(XRr[t], 4) if u else '0'),
                      '%s %s, %s, %s, %s' % (MFMA, V(XIr[t], 4), V(MM[0][t][u], 4), V(DF[u], 4), V(XIr[t], 4) if u else '0'))]
    outb = lambda t: [x for r in range(4) for x in ('v_cvt_pk_bf16_f32 %s, %s, %s' % (V(PF[t] + r), V(XRr[t] + r), V(XIr[t] + r)),
                                                     'ds_write_b32 %s, %s offset:%d' % (V(t2), V(PF[t] + r), t * 2048 + r * 128))]
    s1_ = stb(1); o0 = outb(0)
    L += stb(0) + s1_[:4] + sched(s1_[4:], [], [], o0) + o0 + outb(1)
    L += ['WAITVM w2_6 lgkmcnt(0)', 's_barrier']
    L += ['LK bx%d ds_read_b128 %s, %s offset:%d' % (k, V(PF[2 + k], 4), V(t1), k * 1024) for k in range(2)]
    chk = poll_check('pfg', vPa, vPv)
    L += chk[:2]
    for k in range(2):
        L += ['WAITLK bx%d' % k, 'VM b1 buffer_store_dwordx4 %s, %s, %s, %s offen %s' % (V(PF[2 + k], 4), V(t0), S(rWS, 4), S(sT2 if k else sB1s), SC)]
    st('fft')
    L += chk[3:]
    st('fg')
    af = [['s_add_u32 %s, %s, 3' % (S(sKap), S(sK0))]]
    for s in range(11):
        af += [['s_cmp_eq_u32 %s, 14' % S(sKap), 's_cselect_b32 %s, 0, %s' % (S(sKap), S(sKap))],
               ['s_lshl_b32 %s, %s, 11' % (S(sT), S(sKap))], ['s_add_u32 %s, %s, %s' % (S(sT), S(sT), S(sAFo))], ['s_add_u32 %s, %s, 1' % (S(sKap), S(sKap))]]
        for rt in range(2):
            af += [['VM af%d buffer_load_dwordx4 %s, %s, %s, %s offen offset:%d %s' % (s, A(AF[s][rt], 4), V(vL16), S(rWS, 4), S(sT), rt * 1024, SC)]]
    pd = Alloc('v', big + 56, big + NBIG)
    GF = [[pd(4) for a in range(4)] for T in range(7)]
    yb0 = pd.next
    CS = [[pd(2) for r in range(4)] for a in range(4)]
    kR = pd(2); kA = pd(2); vDf = pd(); vUu = pd(); vK0 = pd(); an = pd(4, 1)
    def gen_G(T, pk):
        o = []
        if T == 0:
            o += ['s_mul_i32 %s, %s, 112' % (S(sG), S(sNB)), 'v_add_u32 %s, %s, %s' % (V(t3), S(sG), V(vJ)), 'v_cvt_f32_u32 %s, %s' % (V(vDf), V(t3)),
                  's_lshl_b32 %s, %s, 6' % (S(sG), S(sW)), 'v_lshl_add_u32 %s, %s, 2, %s' % (V(t3), V(vQ), S(sG)), 'v_cvt_f32_u32 %s, %s' % (V(vK0), V(t3))]
        else: o += ['v_add_f32 %s, %s, %s' % (V(vDf), f2u(16.0), V(vDf))]
        o += ['v_mul_f32 %s, %s, %s' % (V(vUu), S(sInv448), V(vDf)),
              'v_mul_f32 %s, %s, %s' % (V(t3), V(vK0), V(vDf)), 'v_mul_f32 %s, %s, %s' % (V(an), S(sInv448), V(t3)), 'v_floor_f32 %s, %s' % (V(an), V(an)),
              'v_fma_f32 %s, %s, %s, %s' % (V(t3), V(an), S(sM448), V(t3)), 'v_mul_f32 %s, %s, %s' % (V(an), S(sInv448), V(t3)),
              'v_mul_f32 %s, %s, %s' % (V(t3), f2u(16.0), V(vUu)),
              'v_cos_f32 %s, %s mul:2' % (V(kR), V(vUu)), 'v_cos_f32 %s, %s mul:2' % (V(kA), V(t3)),
              'v_add_f32 %s, %s, %s' % (V(an + 1), V(an), V(vUu)), 'v_add_f32 %s, %s, %s' % (V(an + 2), V(an), V(t3)), 'v_add_f32 %s, %s, %s' % (V(an + 3), V(an + 1), V(t3))]
        if not P('OMOD', 0):
            o = [x.replace(' mul:2', '') for x in o] + ['v_add_f32 %s, %s, %s' % (V(kR), V(kR), V(kR)), 'v_add_f32 %s, %s, %s' % (V(kA), V(kA), V(kA))]
        for a in range(2):
            for r in range(2):
                o += ['v_cos_f32 %s, %s' % (V(CS[a][r]), V(an + 2 * a + r)), 'v_sin_f32 %s, -%s' % (V(CS[a][r] + 1), V(an + 2 * a + r))]
        if pk: cheb = lambda d, k, x1, x0: ['v_pk_fma_f32 %s, %s, %s, %s op_sel_hi:[0,1,1] neg_lo:[0,0,1] neg_hi:[0,0,1]' % (V(d, 2), V(k, 2), V(x1, 2), V(x0, 2))]
        else: cheb = lambda d, k, x1, x0: ['v_fma_f32 %s, %s, %s, -%s' % (V(d + h), V(k), V(x1 + h), V(x0 + h)) for h in range(2)]
        cv = lambda a, r: ['v_cvt_pk_bf16_f32 %s, %s, %s' % (V(GF[T][a] + r), V(CS[a][r]), V(CS[a][r] + 1))]
        o += cv(0, 0) + cheb(CS[0][2], kR, CS[0][1], CS[0][0]) + cheb(CS[1][2], kR, CS[1][1], CS[1][0]) + cv(0, 1) + cv(1, 0)
        o += cheb(CS[0][3], kR, CS[0][2], CS[0][1]) + cheb(CS[1][3], kR, CS[1][2], CS[1][1]) + cv(1, 1) + cv(0, 2)
        for r in range(4): o += cheb(CS[2][r], kA, CS[1][r], CS[0][r])
        o += cv(1, 2) + cv(0, 3) + cv(1, 3)
        for r in range(4): o += cheb(CS[3][r], kA, CS[2][r], CS[1][r])
        for a in (2, 3):
            for r in range(4): o += cv(a, r)
        return o
    ng0 = P('NG0', 3); nafp = P('AFPRE', 4)
    cut = 1 + 6 * nafp
    L += flat(af[:cut]); hi = af[cut:]
    L += [i for T in range(ng0) for i in gen_G(T, True)]
    L += ['WAITVM b1'] + setflag(sFB)
    st('g0')
    hi += ['v_lshlrev_b32 %s, 2, %s' % (V(t0), V(vJ))]
    hi += ['VM g buffer_load_dword %s, %s, %s, %s offen offset:%d %s' % (V(vG + rt), V(t0), S(rWS, 4), S(sGl), rt * 64, SC) for rt in range(2)]
    hi += ['s_lshr_b32 %s, %s, 4' % (S(sT3), S(sN2f))] + sx(sT2, [(sT3, 256 * FSB), (sW, 64 * FSB)], FB_OFF) + [
           'v_mul_u32_u24 %s, %d, %s' % (V(vPa), FSB, V(vL)), 'v_add_u32 %s, %s, %s' % (V(vPa), S(sT2), V(vPa)),
           'v_lshlrev_b32 %s, 8, %s' % (V(t0), V(vQ)), 'v_lshl_add_u32 %s, %s, 3, %s' % (V(t0), V(vJ), V(t0))]
    lo = [i for T in range(ng0, 7) for i in gen_G(T, False)]
    bfl = []
    for a in range(4):
        bfl += ['s_add_u32 %s, %s, 0x%x' % (S(sT2), S(sB1l), a * 64 * 2048)]
        for u in range(2):
            for h in range(2):
                bfl += ['VM bf%d buffer_load_dwordx2 %s, %s, %s, %s offen offset:%d %s' % (a, A(BF[a][u] + 2 * h, 2), V(t0), S(rWS, 4), S(sT2), u * 1024 + h * 128, SC)]
    for sl in range(3, 14):
        if sl == P('FBSL', 9): hi += poll_issue('pfb', vPa, vPv)
        if sl == P('FBCK', 12): hi += [poll_check('pfb', vPa, vPv)] + bfl
        L += ['WAITVM af%d' % (sl - 3)] + sched(mfmasC(sl), readsC(sl + 1) if sl < 13 else [], hi, lo)
    print('main C leftover hi', len(hi), 'lo', len(lo), file=sys.stderr)
    st('mainC')
    PO = [ACB[0][T] for T in range(7)]
    L += ['s_add_u32 %s, %s, 4096' % (S(sT3), S(sPTs))]
    cvp = lambda T: ['v_cvt_pk_bf16_f32 %s, %s, %s' % (V(PO[T] + 2 * rt + h), V(ACB[rt][T] + 2 * h), V(ACB[rt][T] + 2 * h + 1)) for rt in range(2) for h in range(2)]
    for T in range(7):
        L += cvp(T) + ['VM part buffer_store_dwordx4 %s, %s, %s, %s offen offset:%d %s' % (V(PO[T], 4), V(vL16), S(rWS, 4), S(sPTs if T < 4 else sT3), (T % 4) * 1024, SC)]
    L += ['s_cmp_lg_u32 %s, %s' % (S(sW), S(sKS)), 's_cbranch_scc1 L_partd']
    L += ['ds_write_b128 %s, %s offset:%d' % (V(vFr), V(PO[T], 4), T * 1024) for T in range(7)]
    L += ['L_partd:'] + flat(hi) + lo; hi = []; lo = []
    st('part')
    yb = Alloc('v', yb0, big + NBIG)
    YR = [[yb(4) for tn in range(2)] for a in range(4)]; YI = [[yb(4) for tn in range(2)] for a in range(2)]
    gs = yb(2)
    def step6(a):
        return ['%s %s, %s, %s, %s' % (MFMA, V(Y, 4), A(BF[a][u], 4), A(N[tn][u], 4), V(Y, 4) if u else '0')
                for u in range(2) for tn in range(2) for (Y, N) in ((YR[a][tn], NR), (YI[a & 1][tn], NI))]
    def packY(a):
        return [x for tn in range(2) for r in range(4) for x in
                ('v_mul_f32 %s, %s, %s' % (V(YR[a][tn] + r), V(gs + tn), V(YR[a][tn] + r)), 'v_mul_f32 %s, %s, %s' % (V(YI[a & 1][tn] + r), V(gs + tn), V(YI[a & 1][tn] + r)),
                 'v_cvt_pk_bf16_f32 %s, %s, %s' % (V(YR[a][tn] + r), V(YR[a][tn] + r), V(YI[a & 1][tn] + r)))]
    def mainD(T):
        return ['%s %s, %s, %s, %s' % (MFMA, V(ACB[rt][T], 4), V(GF[T][a], 4), V(YR[a][rt], 4), V(ACB[rt][T], 4) if a else '0') for a in range(4) for rt in range(2)]
    adr = []
    for rt in range(2):
        adr += ['v_mul_f32 %s, %s, %s' % (V(gs + rt), f2u(2.0 / (2048 * 448)), V(vG + rt)), 'v_sub_f32 %s, 1.0, %s' % (V(vG1 + rt), V(vG + rt))]
    adr += sx(sT2, [(sW, 14336)], RED) + ['v_add_u32 %s, %s, %s' % (V(t0), S(sT2), V(vL16))] + sx(sT2, [(sW, 4096)], RED) + [
           'v_add_u32 %s, %s, %s' % (V(t1), S(sT2), V(vL16))] + sx(sT2, [(sN2f, 16 * FS), (sNB, 4 * FS)], FP_OFF) + [
           's_add_u32 %s, %s, 1' % (S(sT3), S(sKS)),
           'v_min_u32 %s, 2, %s' % (V(vPa), V(vQ)), 'v_add_u32 %s, %s, %s' % (V(vPa), S(sT3), V(vPa)), 'v_and_b32 %s, 3, %s' % (V(vPa), V(vPa)),
           'v_mul_u32_u24 %s, %d, %s' % (V(vPa), FS, V(vPa)), 'v_add_u32 %s, %s, %s' % (V(vPa), S(sT2), V(vPa)),
           'v_mul_u32_u24 %s, 57344, %s' % (V(t2), V(vJ)), 'v_add_u32 %s, %s, %s' % (V(t2), V(t2), V(vQ8))]
    L += ['s_barrier']
    L += ['BFW 0'] + sched(step6(0), [], [], adr) + adr
    for a in range(1, 4):
        pk_ = packY(a - 1)
        L += ['BFW %d' % a] + sched(step6(a), [], [], pk_) + pk_
    L += packY(3)
    st('s6')
    fpset = ['WAITVM part'] + setflag(sFP)
    wr = lambda T: ['ds_write_b128 %s, %s offset:%d' % (V(t0), V(ACB[rt][T], 4), (T * 2 + rt) * 1024) for rt in range(2)]
    for T in range(7):
        if T == P('FPT', 1): L += fpset
        if T == P('FPI', 6): L += poll_issue('pfp', vPa, vPv)
        md = mainD(T)
        if T: L += md[:5] + wr(T - 1)[:1] + md[5:7] + wr(T - 1)[1:] + md[7:]
        else: L += md
    L += ['s_add_u32 %s, %s, 917504' % (S(sT3), S(sOut)), 's_lshl_b32 %s, %s, 11' % (S(sT2), S(sW)), 'v_add_u32 %s, %s, %s' % (V(t3), S(sT2), V(vFr))] + wr(6)
    st('mainD')
    rb = Alloc('v', big + 56, big + NBIG)
    PT = [[rb(4) for a in range(2)] for k in range(4)]
    RD = [[rb(4) for k in range(4)] for w in range(4)]
    UP = [rb(4) for k in range(4)]
    L += ['s_waitcnt lgkmcnt(0)', 's_barrier']
    for k in range(4):
        for w in range(4): L += ['LK rd%d ds_read_b128 %s, %s offset:%d' % (k, V(RD[w][k], 4), V(t1), w * 14336 + k * 1024)]
    L += ['LK po ds_read_b128 %s, %s offset:%d' % (V(PT[3][a], 4), V(t3), a * 1024) for a in range(2)]
    L += poll_check('pfp', vPa, vPv)
    for k in range(3):
        L += ['s_add_u32 %s, %s, %d' % (S(sT2), S(sKS), k + 1), 's_and_b32 %s, %s, 3' % (S(sT2), S(sT2)),
              's_mul_i32 %s, %s, %d' % (S(sT2), S(sT2), 64 * PART_N2), 's_add_u32 %s, %s, %s' % (S(sT2), S(sT2), S(sPTl))]
        for a in range(2): L += ['VM pt buffer_load_dwordx4 %s, %s, %s, %s offen offset:%d %s' % (V(PT[k][a], 4), V(vL16), S(rWS, 4), S(sT2), a * 1024, SC)]
    st('fp')
    L += ['s_waitcnt lgkmcnt(0)']
    for k in range(4):
        for h in range(2): L += ['v_pk_add_f32 %s, %s, %s' % (V(RD[0][k] + 2 * h, 2), V(RD[0][k] + 2 * h, 2), V(RD[1][k] + 2 * h, 2))]
        for h in range(2): L += ['v_pk_add_f32 %s, %s, %s' % (V(RD[2][k] + 2 * h, 2), V(RD[2][k] + 2 * h, 2), V(RD[3][k] + 2 * h, 2))]
    for k in range(4):
        for h in range(2): L += ['v_pk_add_f32 %s, %s, %s' % (V(RD[0][k] + 2 * h, 2), V(RD[0][k] + 2 * h, 2), V(RD[2][k] + 2 * h, 2))]
    osel = lambda rt: 'op_sel:[0,1,0]' if rt else 'op_sel_hi:[1,0,1]'
    for a in range(2):
        for rt in range(2):
            for h in range(2):
                src = V(PT[3][a] + 2 * rt + h); d = UP[2 * a + rt] + 2 * h
                L += ['v_lshlrev_b32 %s, 16, %s' % (V(d), src), 'v_and_b32 %s, 0xffff0000, %s' % (V(d + 1), src),
                      'v_pk_fma_f32 %s, %s, %s, %s %s' % (V(RD[0][2 * a + rt] + 2 * h, 2), V(d, 2), V(vG1, 2), V(RD[0][2 * a + rt] + 2 * h, 2), osel(rt))]
    st('red')
    L += ['WAITVM pt']
    for a in range(2):
        for rt in range(2):
            for h in range(2):
                for k in range(3):
                    src = V(PT[k][a] + 2 * rt + h); d = RD[1 + k][2 * a + rt] + 2 * h
                    L += ['v_lshlrev_b32 %s, 16, %s' % (V(d), src), 'v_and_b32 %s, 0xffff0000, %s' % (V(d + 1), src)]
        prs = [(rt, h, RD[1][2 * a + rt] + 2 * h) for rt in range(2) for h in range(2)]
        for rt, h, d in prs: L += ['v_pk_add_f32 %s, %s, %s' % (V(d, 2), V(d, 2), V(RD[2][2 * a + rt] + 2 * h, 2))]
        for rt, h, d in prs: L += ['v_pk_add_f32 %s, %s, %s' % (V(d, 2), V(d, 2), V(RD[3][2 * a + rt] + 2 * h, 2))]
        for rt, h, d in prs: L += ['v_pk_fma_f32 %s, %s, %s, %s %s' % (V(d, 2), V(d, 2), V(vG1, 2), V(RD[0][2 * a + rt] + 2 * h, 2), osel(rt))]
        for rt, h, d in prs: L += ['v_cvt_pk_bf16_f32 %s, %s, %s' % (V(RD[0][2 * a + rt] + h), V(d), V(d + 1))]
        for rt in range(2):
            L += ['VM out buffer_store_dwordx2 %s, %s, %s, %s offen offset:%d' % (V(RD[0][2 * a + rt], 2), V(t2), S(rOUT, 4), S(sT3 if rt else sOut), a * 32)]
        if a == 0: L += ['s_cmp_eq_u32 %s, 3' % S(sW), 's_cbranch_scc1 L_w3']
    L += ['s_branch L_fin', 'L_w3:']
    L += ['s_cmp_lg_u32 s2, 0', 's_cbranch_scc1 L_fin', 's_mov_b32 %s, 0x%x' % (S(sT), EP_OFF)] + setflag(sT)
    L += ['L_fin:']
    L = ['WAITVM bf' + l[4:] if l.startswith('BFW ') else l for l in L]
    sWS = rWS
    if STAMP:
        st('end'); st('r1', True)
        L += ['s_add_u32 s4, %s, 0x%x' % (S(sWS), TS_OFF), 's_addc_u32 s5, %s, 0' % S(sWS + 1), 's_mov_b32 s6, 0x100000', 's_mov_b32 s12, %s' % S(sW), 's_mov_b32 s7, 0x20000',
              's_lshl_b32 s13, s2, 3', 's_add_u32 s13, s13, s12', 's_lshl_b32 s13, s13, 8', 'v_lshlrev_b32 %s, 2, %s' % (V(t0), V(vL)),
              'VM x buffer_store_dword %s, %s, s[4:7], s13 offen' % (V(vST), V(t0))]
        if os.environ.get('DBGWG'):
            L += ['s_cmp_lg_u32 s13, %d' % (int(os.environ['DBGWG']) * 8 * 256), 's_cbranch_scc1 L_nodbg', 's_load_dwordx2 s[4:5], s[0:1], 72', 's_mov_b32 s6, 256', 's_waitcnt lgkmcnt(0)',
                  'VM x2 buffer_store_dword %s, %s, s[4:7], 0 offen' % (V(vST), V(t0)), 'L_nodbg:']
        open('stamps.txt', 'w').write(' '.join(stamps))
    L += ['s_endpgm'] + slow + ['L_end:', 's_endpgm']
    return resolve(L), va.hi, aa.hi

def build(path):
    hdr = open('cdna_kernels/%s.s.ref' % NAME).read().split('\n')
    top = [l for l in hdr if l.startswith(';') and '@launch' not in l]
    L, nv, na = build_kernel()
    Pd, nn = pad_hazards(L)
    print('lines', len(Pd), 'nops', nn, 'vgpr', nv, 'agpr', na, file=sys.stderr)
    acc = (nv + 3) // 4 * 4
    out = top + ['; @launch grid=(256,1,1) block=(256,1,1) lds=%d' % LDS_SZ, '.amdgcn_target "amdgcn-amd-amdhsa--gfx950"', '.text', '.globl %s' % LABEL]
    out += [('    ' + l if not (l.endswith(':') or l.startswith('.')) else l) for l in Pd]
    out += ['.section .rodata,"a"', '.p2align 6', '.amdhsa_kernel %s' % LABEL,
            '  .amdhsa_next_free_vgpr %d' % (acc + na), '  .amdhsa_next_free_sgpr 102', '  .amdhsa_accum_offset %d' % acc,
            '  .amdhsa_group_segment_fixed_size 0', '  .amdhsa_kernarg_size 88', '  .amdhsa_user_sgpr_count 2',
            '  .amdhsa_user_sgpr_kernarg_segment_ptr 1', '  .amdhsa_system_sgpr_workgroup_id_x 1', '.end_amdhsa_kernel']
    open(path, 'w').write('\n'.join(out) + '\n')

if __name__ == '__main__':
    build(sys.argv[1] if len(sys.argv) > 1 else 'cdna_kernels/%s.s' % NAME)
```

```python
import sys, math, os
from dsl import *

NAME = 'gated_mix__spectral_gfnet__dense_activation_mish__prompt'
LABEL = NAME + '_kernel'
ACT_OFF = 0x0; ACT_C = 10240; ACT_N2 = 16 * ACT_C
PART_OFF = 0xA00000; PART_B = 12288
A1_OFF = 0x1600000
GATE_OFF = 0x1800000
FS = 128
FC_OFF = 0x1810000
EP_OFF = 0x1820000
B1_OFF = 0x1840000
WS_END = B1_OFF + 15 * 64 * 2048
OOB = 0x40000000
X_SZ = 2048 * 896; W_SZ = 2048 * 450; W1_SZ = 448 * 3584; W2_SZ = 1792 * 896
LOG2E = math.log2(math.e)
MFMA = 'v_mfma_f32_16x16x32_bf16'
SC = 'sc1'
NT = ' nt' if int(os.environ.get('LNT', 0)) else ''
XR = 0; W1R = 65536; FL = 122880; XCH = 32768; PXC = 40960; BXC = 32768; YL = FL; OPL = 155648; LF = OPL + 7168; LDS_SZ = 163840
NV = 184; NA = 72
W2B = [W1R + 3 * 14336, 49152, W1R, 0, W1R + 14336, W1R + 2 * 14336, 16384]
sX, sWR, sWI, sW1, sB1, sW2, sGW, sOUT, sWS = 16, 18, 20, 24, 26, 28, 30, 32, 34
STAMP = os.environ.get('STAMP', '0') == '1'
TS_OFF = 0x2000000
SPIN_MAX = 20000
P = lambda k, d: int(os.environ.get(k, d))

def srd(L, d, base, size):
    L += ['s_mov_b32 %s, %s' % (S(d), S(base)), 's_mov_b32 %s, %s' % (S(d + 1), S(base + 1)),
          's_mov_b32 %s, 0x%x' % (S(d + 2), size), 's_mov_b32 %s, 0x20000' % S(d + 3)]

def resolve(L):
    out = []; ops = []; cur = None; nopt = 0; lks = []; waited = set()
    for l in L:
        if l == 'OPT_BEGIN': nopt += 1; cur = nopt; continue
        if l == 'OPT_END': cur = None; continue
        if l.startswith('LK '):
            _, tag, ins = l.split(' ', 2); lks.append(tag); out.append(ins); continue
        if l.startswith('ds_'): lks.append('_')
        if l.startswith('WAITLK '):
            tag = l.split(' ')[1]
            idx = max(k for k, o in enumerate(lks) if o == tag)
            out.append('s_waitcnt lgkmcnt(%d)' % min(len(lks) - 1 - idx, 15)); continue
        if l.startswith('VM '):
            _, tag, ins = l.split(' ', 2); assert tag not in waited, tag
            ops.append((tag, cur)); out.append(ins); continue
        if l.startswith('WAITVM '):
            parts = l.split(' ', 2); tag = parts[1]; extra = (' ' + parts[2]) if len(parts) > 2 else ''
            waited.add(tag)
            idx = max(k for k, o in enumerate(ops) if o[0] == tag)
            n = sum(1 for o in ops[idx + 1:] if (o[1] is None or o[1] == cur))
            out.append('s_waitcnt vmcnt(%d)%s' % (min(n, 63), extra)); continue
        assert not (l.startswith('buffer_') or l.startswith('global_')), l
        out.append(l[4:] if l.startswith('RAW ') else l)
    return out

def weave(mm, *streams):
    out = []; idx = [0] * len(streams)
    def put(u): out.extend(u if isinstance(u, list) else [u])
    for m in mm:
        put(m)
        for k, s in enumerate(streams):
            if idx[k] < len(s): put(s[idx[k]]); idx[k] += 1
    for k, s in enumerate(streams):
        for u in s[idx[k]:]: put(u)
    return out

TRANS_OPS = ('v_exp_f32', 'v_rcp_f32', 'v_sin_f32', 'v_cos_f32')
def cost(u):
    c = 0; n = 0
    for i in (u if isinstance(u, list) else [u]):
        if i.endswith(':') or i.startswith('OPT_'): continue
        n += 1
        if i.startswith('VM '): c += 15
        elif i.split()[0] in TRANS_OPS: c += 8
        elif i.startswith('s_') or i.startswith('WAIT'): pass
        else:
            assert not i.startswith('v_pk_'), i
            c += 4
    return c, n
VB = int(os.environ.get('VB', 8))
def sched(mm, rd, hi, lo, pace=1, state=None):
    out = []; rd = list(rd)
    state = state if state is not None else [99]
    def put(u): out.extend(u if isinstance(u, list) else [u])
    for k, m in enumerate(mm):
        put(m)
        state[0] += 1
        vb = VB; sl = 3
        if k + 1 < len(mm) and isinstance(mm[k + 1], list): sl -= len(mm[k + 1]) - 1
        left = len(mm) - k
        q = hi if (hi and (cost(hi[0])[0] < 15 or state[0] >= pace)) else lo
        if q and (cost(q[0])[0] > 4 or cost(q[0])[1] > 2) and len(rd) <= 2 * (left - 1):
            c, n = cost(q[0]); put(q.pop(0)); vb -= c; sl -= n
            if c >= 15: state[0] = 0
        else:
            n = 0 if not rd else (1 if len(rd) <= left else 2)
            for _ in range(n): put(rd.pop(0)); vb -= 4; sl -= 1
        while True:
            done = True
            for q in (hi, lo):
                if q and cost(q[0])[0] <= max(vb, 0) and cost(q[0])[1] <= sl:
                    c, n = cost(q[0]); vb -= c; sl -= n; put(q.pop(0)); done = False; break
            if done: break
    out += rd
    return out

def spread(main, units, start=0, end=None):
    end = len(main) if end is None else end
    out = list(main[:start]); n = len(units); seg = main[start:end]
    for k in range(n):
        out += seg[len(seg) * k // n: len(seg) * (k + 1) // n] if False else []
    pos = [len(seg) * k // n for k in range(n)] if n else []
    ui = 0
    for k, ins in enumerate(seg):
        while ui < n and pos[ui] == k:
            out += units[ui] if isinstance(units[ui], list) else [units[ui]]; ui += 1
        out.append(ins)
    for u in units[ui:]: out += u if isinstance(u, list) else [u]
    return out + list(main[end:])


def build_kernel():
    flat = lambda U: [i for u in U for i in (u if isinstance(u, list) else [u])]
    sa = Alloc('s', 16, 102)
    rX = sa(4); rW1 = sa(4); rW2 = sa(4); rWS = sa(4); rBI = rWR = sa(4); rGW = rWI = sa(4); rOUT = sa(4)
    sT, sT2, sT3, sSpin, sTag, sW, sM = 3, 4, 5, 6, 7, 8, 9
    sPC = 12; sEp = 14; sW8 = 15
    sI = sa(); sC = sa(); sN2 = sa(); sPar = sa(); sKS = sa(); sNB = sa(); sXc = sa(); sSig = sa(); sN2f = sa(); sM0x = sa()
    sInv448 = sa(); sM448 = sa(); sG = sa(); sG2 = sa(); sR0 = sa(4)
    va = Alloc('v', 1, NV)
    vST = va(); vL = va(); vQ = va(); vJ = va(); t0 = va(); t1 = va(); t2 = va(); t3 = va(); vL16 = va(); vZero = va(); vTag = va()
    vXr = va(2, 1); vPa = va(); vPv = va(); vLF = va(); vOne = va(); vQ8 = va()
    npoll = [0]; slow = []
    stamps = {'M': ['r0', 'start'], 'S': ['r0', 'start']}
    def mk_st(L, role):
        def st(name, real=False):
            if not STAMP: return
            if os.environ.get('STSEL') and name not in os.environ['STSEL'].split(','): return
            stamps[role].append(name)
            L.extend(['%s s[10:11]' % ('s_memrealtime' if real else 's_memtime'), 's_waitcnt lgkmcnt(0)',
                      'v_writelane_b32 %s, s10, %d' % (V(vST), len(stamps[role]) - 1)])
        return st
    def poll_issue(tag):
        return ['VM %s buffer_load_dword %s, %s, %s, 0 offen %s' % (tag, V(vPv), V(vPa), S(rWS, 4), SC)]
    def poll_check(tag):
        n = npoll[0]; npoll[0] += 1
        slow.extend(['slow%d:' % n, 's_mov_b32 %s, 0' % S(sSpin), 'slowl%d:' % n, 's_sleep %d' % P('SLP_' + tag, P('SLP', 6)),
                     'buffer_load_dword %s, %s, %s, 0 offen %s' % (V(vPv), V(vPa), S(rWS, 4), SC),
                     's_waitcnt vmcnt(0)', 'v_cmp_ne_u32 vcc, %s, %s' % (S(sTag), V(vPv)), 's_add_u32 %s, %s, 1' % (S(sSpin), S(sSpin)),
                     's_nop 0', 's_cbranch_vccz back%d' % n, 's_cmp_lt_u32 %s, %d' % (S(sSpin), SPIN_MAX),
                     's_cbranch_scc1 slowl%d' % n, 's_branch back%d' % n])
        return ['WAITVM %s' % tag, 'v_cmp_ne_u32 vcc, %s, %s' % (S(sTag), V(vPv)), 's_nop 1', 's_cbranch_vccnz slow%d' % n, 'back%d:' % n]
    sCk = sa(2); sCk2 = sa(2)
    def dcheck(tag, cmps, reload, pre=[]):
        n = npoll[0]; npoll[0] += 1
        test = list(pre)
        for k, (op, s0_, r) in enumerate(cmps):
            d = 'vcc' if k == 0 else S(sCk if k & 1 else sCk2, 2)
            test += ['%s %s, %s, %s' % (op, d, s0_, r)]
            if k >= 2: test += ['s_or_b64 vcc, vcc, %s' % S(sCk2 if k & 1 else sCk, 2)]
        last = len(cmps) - 1
        test += ['s_or_b64 vcc, vcc, %s' % (S(sCk if last & 1 else sCk2, 2) if last else 'vcc')]
        slow.extend(['slow%d:' % n, 's_mov_b32 %s, 0' % S(sSpin), 'slowl%d:' % n, 's_sleep %d' % P('SLP', 4)] + reload + ['s_waitcnt vmcnt(0)'] + test +
                    ['s_cbranch_scc0 back%d' % n, 's_add_u32 %s, %s, 1' % (S(sSpin), S(sSpin)), 's_cmp_lt_u32 %s, %d' % (S(sSpin), SPIN_MAX),
                     's_cbranch_scc1 slowl%d' % n, 's_branch back%d' % n])
        return [['WAITVM %s' % tag]] + [[i] for i in test[:-1]] + [[test[-1], 's_cbranch_scc1 slow%d' % n, 'back%d:' % n]]
    raw = lambda U: [i.split(' ', 2)[2] if i.startswith('VM ') else i for i in flat(U)]
    def setflag(sOff):
        return ['VM flag buffer_store_dword %s, %s, %s, %s offen %s' % (V(vTag), V(vZero), S(rWS, 4), S(sOff), SC)]
    def lsig(k, vtmp):
        return ['v_lshl_add_u32 %s, %s, 2, %s' % (V(vtmp), S(sW), V(vZero)), 'ds_write_b32 %s, %s offset:%d' % (V(vtmp), V(vOne), LF - 131072 + k * 16)] if False else \
               ['ds_write_b32 %s, %s offset:%d' % (V(vLW), V(vOne), k * 16)]
    def lwait(k, vtmp, reg=None):
        n = npoll[0]; npoll[0] += 1
        return ['lw%d:' % n, 'ds_read_b32 %s, %s offset:%d' % (V(vtmp), V(vLF if reg is None else reg), k * 16), 's_waitcnt lgkmcnt(0)',
                'v_cmp_ne_u32 vcc, 1, %s' % V(vtmp), 's_nop 1', 's_cbranch_vccnz lw%d' % n]
    vLW = va()
    def sx(dst, terms, const=0, tmp=None):
        tmp = sT if tmp is None else tmp
        o = []
        for k, (r, c) in enumerate(terms):
            d = dst if k == 0 else tmp
            if c == 1:
                o += ['s_mov_b32 %s, %s' % (S(d), S(r))] if k == 0 else ['s_add_u32 %s, %s, %s' % (S(dst), S(dst), S(r))]
                continue
            o += ['s_mul_i32 %s, %s, %d' % (S(d), S(r), c)]
            if k: o += ['s_add_u32 %s, %s, %s' % (S(dst), S(dst), S(tmp))]
        if const: o += ['s_add_u32 %s, %s, 0x%x' % (S(dst), S(dst), const)]
        return o
    def group_vm(U):
        out = []; cur = []
        for u in U:
            cur += u
            if any(i.startswith('VM ') for i in u): out.append(cur); cur = []
        if cur: out[-1] += cur
        return out
    def with_waits(tag, order, mk, step=3):
        o = []
        for n, T in enumerate(order):
            ms = mk(T)
            if n % step == 0: ms[0] = ['WAITLK %s_%d' % (tag, order[min(n + step - 1, len(order) - 1)]), ms[0]]
            o += ms
        return o
    tagc = ['s_mul_i32 %s, %s, 0x9e3779b1' % (S(sTag), S(sEp)), 's_add_u32 %s, %s, 0x7f4a7c15' % (S(sTag), S(sTag)), 'v_mov_b32 %s, %s' % (V(vTag), S(sTag))]
    epld = ['s_add_u32 %s, %s, 0x%x' % (S(sPC), S(rWS), EP_OFF), 's_addc_u32 %s, %s, 0' % (S(sPC + 1), S(rWS + 1)), 's_load_dword %s, %s, 0' % (S(sEp), S(sPC, 2))]
    def finish(L, st, role):
        if STAMP:
            st('end'); st('r1', True)
            L += ['s_add_u32 s4, %s, 0x%x' % (S(rWS), TS_OFF), 's_addc_u32 s5, %s, 0' % S(rWS + 1), 's_mov_b32 s6, 0x100000', 's_mov_b32 s7, 0x20000',
                  's_lshl_b32 s13, s2, 3', 's_add_u32 s13, s13, %s' % S(sW8), 's_lshl_b32 s13, s13, 8', 'v_lshlrev_b32 %s, 2, %s' % (V(t0), V(vL)),
                  'VM x buffer_store_dword %s, %s, s[4:7], s13 offen' % (V(vST), V(t0))]
        L += ['s_endpgm']

    H = ['.p2align 8', '.type %s,@function' % LABEL, '%s:' % LABEL, 's_cmp_ge_u32 s2, 256', 's_cbranch_scc1 L_end']
    for r_, off in ((rX, 0), (rW1, 32), (rWS, 80), (rW2, 48)):
        H += ['s_load_dwordx2 %s, s[0:1], %d' % (S(r_, 2), off)]
    if STAMP: H += ['v_mov_b32 %s, 0' % V(vST), 's_memrealtime %s' % S(sR0, 2), 's_memtime %s' % S(sR0 + 2, 2)]
    H += ['v_and_b32 %s, 63, v0' % V(vL), 'v_lshrrev_b32 %s, 6, v0' % V(t0), 's_lshr_b32 %s, s2, 3' % S(sM), 's_and_b32 %s, s2, 7' % S(sXc),
          'v_readfirstlane_b32 %s, %s' % (S(sW8), V(t0)), 'v_lshrrev_b32 %s, 4, %s' % (V(vQ), V(vL)), 'v_and_b32 %s, 15, v0' % V(vJ),
          's_lshr_b32 %s, %s, 2' % (S(sI), S(sXc)), 's_lshl_b32 %s, %s, 3' % (S(sI), S(sI)),
          's_lshr_b32 %s, %s, 2' % (S(sT3), S(sM)), 's_add_u32 %s, %s, %s' % (S(sI), S(sI), S(sT3)),
          's_and_b32 %s, %s, 3' % (S(sW), S(sW8)),
          's_and_b32 %s, %s, 3' % (S(sKS), S(sXc)), 's_and_b32 %s, %s, 3' % (S(sNB), S(sM)),
          's_lshl_b32 %s, %s, 2' % (S(sC), S(sKS)), 's_add_u32 %s, %s, %s' % (S(sC), S(sC), S(sNB)),
          's_lshl_b32 %s, %s, 2' % (S(sN2f), S(sI)), 's_add_u32 %s, %s, %s' % (S(sN2), S(sN2f), S(sW)),
          's_and_b32 %s, %s, 1' % (S(sPar), S(sC))]
    H += {0: ['s_lshl_b32 %s, %s, 1' % (S(sSig), S(sNB)), 's_add_u32 %s, %s, %s' % (S(sSig), S(sSig), S(sT3)),
              's_sub_u32 %s, %s, 7' % (S(sT), S(sSig)), 's_min_u32 %s, %s, %s' % (S(sSig), S(sSig), S(sT))],
          1: ['s_mov_b32 %s, 0' % S(sSig)],
          2: ['s_add_u32 %s, %s, %s' % (S(sSig), S(sNB), S(sT3)), 's_and_b32 %s, %s, 1' % (S(sSig), S(sSig)), 's_lshl_b32 %s, %s, 2' % (S(sSig), S(sSig))],
          4: ['s_add_u32 %s, %s, %s' % (S(sSig), S(sNB), S(sT3)), 's_and_b32 %s, %s, 3' % (S(sSig), S(sSig)), 's_lshl_b32 %s, %s, 1' % (S(sSig), S(sSig))]}[P('ROT', 0)]
    H += ['s_xor_b32 %s, %s, %d' % (S(sNB), S(sNB), P('NBX', 1)), 's_lshl_b32 %s, %s, 12' % (S(sM0x), S(sW)),
          's_mov_b32 %s, 0x%x' % (S(rWS + 2), WS_END), 's_mov_b32 %s, 0x20000' % S(rWS + 3),
          's_cmp_ge_u32 %s, 4' % S(sW8), 's_cbranch_scc1 L_S']
    common2 = ['v_lshlrev_b32 %s, 4, %s' % (V(vL16), V(vL)), 'v_mov_b32 %s, 0' % V(vZero), 'v_mov_b32 %s, 1' % V(vOne), 'v_lshlrev_b32 %s, 3, %s' % (V(vQ8), V(vQ)),
               's_add_u32 %s, %s, %s' % (S(sN2f), S(sN2f), S(sKS)),
               's_mov_b32 %s, %s' % (S(sInv448), f2u(1.0 / 448)), 's_mov_b32 %s, %s' % (S(sM448), f2u(-448.0)),
               'v_lshrrev_b32 %s, 1, %s' % (V(t3), V(vJ)), 'v_xor_b32 %s, %s, %s' % (V(t3), V(t3), V(vQ)),
               'v_lshlrev_b32 %s, 4, %s' % (V(t3), V(t3)), 'v_lshl_add_u32 %s, %s, 7, %s' % (V(t3), V(vJ), V(t3)),
               'v_add_u32 %s, %s, %s' % (V(vXr), S(sM0x), V(t3)), 'v_xor_b32 %s, 64, %s' % (V(vXr + 1), V(vXr)),
               'v_and_b32 %s, 3, %s' % (V(vLF), V(vL)), 'v_lshlrev_b32 %s, 2, %s' % (V(vLF), V(vLF)), 'v_add_u32 %s, %d, %s' % (V(vLF), LF, V(vLF)),
               's_lshl_b32 %s, %s, 2' % (S(sG), S(sW)), 's_add_u32 %s, %s, %d' % (S(sG), S(sG), LF), 'v_mov_b32 %s, %s' % (V(vLW), S(sG))]
    wst = ['v_writelane_b32 %s, %s, 0' % (V(vST), S(sR0)), 'v_writelane_b32 %s, %s, 1' % (V(vST), S(sR0 + 2))] if STAMP else []
    sXb = sa(); sWb = sa(); sXs = sa(); sWs = sa(); sM0w = sa(); sW2b = sa()
    vXs = va(2, 1); vW1s = va(); vW2s = va()
    dmaddr = ['s_mul_i32 %s, %s, 896' % (S(sXb), S(sN2))] + sx(sWb, [(sC, 224), (sW, 8 * 3584)])
    dmaddr += ['s_mul_i32 %s, %s, 896' % (S(sM0w), S(sW)), 's_lshl_b32 %s, %s, 1' % (S(sT2), S(sPar)),
          'v_lshrrev_b32 %s, 3, %s' % (V(t0), V(vL)), 'v_mul_u32_u24 %s, 57344, %s' % (V(t0), V(t0)),
          'v_and_b32 %s, 7, %s' % (V(t1), V(vL)), 'v_xor_b32 %s, %s, %s' % (V(t1), V(t1), V(vQ)),
          'v_lshl_add_u32 %s, %s, 4, %s' % (V(vXs), V(t1), V(t0)),
          'v_xor_b32 %s, 64, %s' % (V(vXs + 1), V(vXs)), 'v_add_u32 %s, %d, %s' % (V(vXs + 1), 8 * 57344, V(vXs + 1)),
          'v_mul_u32_u24 %s, 4682, %s' % (V(t0), V(vL)), 'v_lshrrev_b32 %s, 16, %s' % (V(t0), V(t0)),
          'v_mul_u32_u24 %s, 14, %s' % (V(t1), V(t0)), 'v_sub_u32 %s, %s, %s' % (V(t1), V(vL), V(t1)),
          'v_mul_u32_u24 %s, 896, %s' % (V(t2), V(t0)), 'v_lshl_add_u32 %s, %s, 4, %s' % (V(vW2s), V(t1), V(t2)),
          'v_add_u32 %s, %s, %s' % (V(t1), S(sT2), V(t1)), 'v_subrev_u32 %s, 14, %s' % (V(t2), V(t1)), 'v_min_u32 %s, %s, %s' % (V(t1), V(t1), V(t2)),
          'v_mul_u32_u24 %s, 3584, %s' % (V(t2), V(t0)), 'v_lshl_add_u32 %s, %s, 4, %s' % (V(vW1s), V(t1), V(t2))]
    for r_, sz in ((rX, X_SZ), (rW1, W1_SZ), (rW2, W2_SZ)):
        dmaddr += ['s_mov_b32 %s, 0x%x' % (S(r_ + 2), sz), 's_mov_b32 %s, 0x20000' % S(r_ + 3)]
    def stage_loads(s):
        slot = s % 4
        U = [['s_lshl_b32 %s, %s, 7' % (S(sXs), S(sSig))], ['s_add_u32 %s, %s, %s' % (S(sXs), S(sXs), S(sXb))],
             ['s_mul_i32 %s, %s, %d' % (S(sWs), S(sSig), 64 * 3584)], ['s_add_u32 %s, %s, %s' % (S(sWs), S(sWs), S(sWb))]]
        for kk in range(2):
            for e in (2 * kk, 2 * kk + 1):
                if e == 2: U += [['s_add_u32 %s, %s, 917504' % (S(sXs), S(sXs))]]
                U += [['s_add_u32 m0, %s, %d' % (S(sM0x), XR + slot * 16384 + e * 1024)],
                      [('VM st%d buffer_load_dwordx4 %s, %s, %s offen' + NT + ' lds') % (s, V(vXs + (e & 1)), S(rX, 4), S(sXs))]]
            for b2 in range(2):
                if kk or b2: U += [['s_add_u32 %s, %s, %d' % (S(sWs), S(sWs), (4 if b2 else 28) * 3584)]]
                U += [['s_add_u32 m0, %s, %d' % (S(sM0w), W1R + slot * 14336 + (32 * kk + 16 * b2) * 224)],
                      ['s_mov_b32 exec_hi, 0xffffff', ('VM st%d buffer_load_dwordx4 %s, %s, %s offen' + NT + ' lds') % (s, V(vW1s), S(rW1, 4), S(sWs)), 's_mov_b32 exec_hi, -1']]
        U += [['s_add_u32 %s, %s, 1' % (S(sSig), S(sSig))], ['s_cmp_eq_u32 %s, 7' % S(sSig), 's_cselect_b32 %s, 0, %s' % (S(sSig), S(sSig))]]
        return U
    sWp = sa(4, 1); sWm = sa(4, 1); sC4 = sa()
    SLOT = [(0, 0), (0, 1), (0, 2), (1, 0), (2, 0), (3, 0), ('m', 0), ('m', 1), (1, 1), (2, 1), (3, 1), (1, 2), (2, 2), (3, 2)]
    w2tab = ['s_and_b32 %s, %s, 3' % (S(sC4), S(sC))] + sx(sW2b, [(sKS, 448 * 896), (sW, 4 * 896), (sNB, 224)])
    for d in range(4):
        w2tab += ['s_xor_b32 %s, %s, %d' % (S(sT), S(sC4), d), 's_mul_i32 %s, %s, 7' % (S(sT), S(sT)), 's_add_u32 %s, %s, 1' % (S(sT), S(sT)), 's_lshr_b32 %s, %s, 1' % (S(sT), S(sT)),
                  's_mul_i32 %s, %s, 28672' % (S(sT), S(sT)), 's_add_u32 %s, %s, %s' % (S(sWp + d), S(sT), S(sW2b))]
    for mm_ in range(2):
        w2tab += ['s_lshr_b32 %s, %s, 1' % (S(sT), S(sC4)), 's_xor_b32 %s, %s, %d' % (S(sT), S(sT), mm_), 's_mul_i32 %s, %s, %d' % (S(sT), S(sT), 7 * 28672),
                  's_add_u32 %s, %s, %s' % (S(sT), S(sT), S(sW2b)), 's_add_u32 %s, %s, %d' % (S(sT), S(sT), 3 * 28672),
                  's_mul_i32 %s, %s, %d' % (S(sT2), S(sPar), 16 * 896), 's_add_u32 %s, %s, %s' % (S(sWm + 2 * mm_), S(sT), S(sT2)),
                  's_sub_u32 %s, %s, %s' % (S(sT), S(sT), S(sT2)), 's_add_u32 %s, %s, %d' % (S(sWm + 2 * mm_ + 1), S(sT), 16 * 896)]
    def w2_loads(t):
        U = []
        for kk in range(2):
            d, Pp = SLOT[2 * t + kk]
            for b2 in range(2):
                if d == 'm': so = sWm + 2 * Pp + b2
                elif Pp == 0 and b2 == 0: so = sWp + d
                else: so = sWs; U += [['s_add_u32 %s, %s, %d' % (S(sWs), S(sWp + d), (32 * Pp + 16 * b2) * 896)]]
                U += [['s_add_u32 m0, %s, %d' % (S(sM0w), W2B[t] + (32 * kk + 16 * b2) * 224)],
                      ['s_mov_b32 exec_hi, 0xffffff', 'VM w2_%d buffer_load_dwordx4 %s, %s, %s offen lds' % (t, V(vW2s), S(rW2, 4), S(so)), 's_mov_b32 exec_hi, -1']]
        return U
    vbase = va.next; sbase = sa.next
    xread = lambda ks, XF: ['LK a%d_x ds_read_b128 %s, %s offset:%d' % (ks, A(XF[ks & 1][rt], 4), V(vXr + (ks & 1)), XR + ((ks // 2) % 4) * 16384 + rt * 2048) for rt in range(2)]

    L = []; st = mk_st(L, 'M')
    va = Alloc('v', vbase, NV); sa = Alloc('s', sbase, 102); aa = Alloc('a', 0, NA)
    sL2E = sa(2); sAct = sa(4, 1); sPTs = sa(); sJunk = sa()
    vTr = va(2, 1)
    accb = va(56, 4)
    ACC = [[accb + 28 * rt + 4 * T for T in range(7)] for rt in range(2)]
    fr = va(48, 4)
    OWN = [[va(4) for rt in range(2)] for Pp in range(3)]
    assert OWN[0][0] == fr + 48
    RG = [fr + 12 * k for k in range(6)]
    U0 = [va(4) for d in range(4)]
    XU = [va(4) for Pp in range(3)]
    vB = [fr + 4 * T for T in range(7)]
    tmpA = fr + 24; c2 = fr + 40
    WF = [[aa(4) for T in range(7)] for b in range(2)]
    XF = [[aa(4) for rt in range(2)] for b in range(2)]
    vBraw = [accb + 2 * T for T in range(7)]; vCP = accb + 16
    L += ['s_load_dwordx2 %s, s[0:1], 40' % S(rBI, 2), 's_load_dwordx2 %s, s[0:1], 56' % S(rGW, 2)]
    L += ['s_getpc_b64 %s' % S(sPC, 2), 'L_pc:', 's_and_b32 %s, %s, 15' % (S(sT), S(sM)), 's_lshl_b32 %s, %s, 11' % (S(sT), S(sT)),
          'v_lshrrev_b32 %s, 4, v0' % V(t1), 'v_lshl_add_u32 %s, %s, 7, %s' % (V(t1), V(t1), S(sT)), 'v_min_u32 %s, L_end-L_pc, %s' % (V(t1), V(t1)),
          'v_mov_b32 %s, %s' % (V(vCP + 1), S(sPC + 1)), 'v_add_co_u32 %s, vcc, %s, %s' % (V(vCP), S(sPC), V(t1)),
          'v_addc_co_u32 %s, vcc, 0, %s, vcc' % (V(vCP + 1), V(vCP + 1)), 'VM pf global_load_dword %s, %s, off' % (V(vPv), V(vCP, 2))]
    L += [i for i in dmaddr if i != 'W2S'] + common2
    L += ['s_mov_b32 %s, 3584' % S(rBI + 2), 's_mov_b32 %s, 0x20000' % S(rBI + 3)]
    L += sx(sG, [(sC, 224), (sPar, 32)]) + sx(sG2, [(sC, 224), (sPar, -192)], 192)
    s0 = flat(stage_loads(0))
    L += s0[:4] + ['s_waitcnt lgkmcnt(0)'] + wst
    st('ka')
    if P('STLB', 1):
        for k, r_ in enumerate((rW1, rX, rBI, rW2)): L += ['s_load_dword %s, %s, 0' % (S(sJunk), S(r_, 2))]
    bl = ['VM bias buffer_load_dwordx2 %s, %s, %s, %s offen offset:%d' % (V(vBraw[T], 2), V(vQ8), S(rBI, 4), S(sG2 if T == 6 else sG), 32 * T if T < 6 else 0) for T in range(7)]
    gwl = ['s_cmp_lg_u32 %s, 15' % S(sC), 's_cbranch_scc1 L_nogw', 'OPT_BEGIN', 'v_lshlrev_b32 %s, 4, %s' % (V(t0), V(vQ)),
           's_mov_b32 %s, 896' % S(rGW + 2), 's_mov_b32 %s, 0x20000' % S(rGW + 3), 's_lshl_b32 %s, %s, 1' % (S(sT3), S(sSig)), 's_add_u32 %s, %s, %s' % (S(sT3), S(sT3), S(sW)),
           's_lshl_b32 %s, %s, 11' % (S(sSpin), S(sW))]
    for a2 in range(4):
        gwl += ['s_add_u32 %s, %s, %d' % (S(sT2), S(sT3), 4 * a2), 's_sub_u32 %s, %s, 14' % (S(sT), S(sT2)), 's_min_u32 %s, %s, %s' % (S(sT2), S(sT2), S(sT)),
                's_lshl_b32 %s, %s, 6' % (S(sT2), S(sT2)), 's_add_u32 m0, %s, %d' % (S(sSpin), FL + a2 * 8192),
                'VM gw buffer_load_dwordx4 %s, %s, %s offen lds' % (V(t0), S(rGW, 4), S(sT2))]
    gwl += ['OPT_END', 'L_nogw:']
    wst_ = []
    for k in range(4):
        wst_ += ['s_lshl_b32 %s, %s, 21' % (S(sT2), S(sW)), 's_add_u32 %s, %s, 0x%x' % (S(sT2), S(sT2), k << 23), 's_load_dword %s, %s, %s' % (S(sJunk), S(rWS, 2), S(sT2))]
    L += epld + gwl + (bl + s0[4:] if P('BFIRST', 1) else s0[4:] + bl)
    st('s0i')
    if P('WTLB', 1): L += wst_
    L += w2tab
    L += ['v_lshrrev_b32 %s, 2, %s' % (V(t3), V(vL)), 'v_mul_u32_u24 %s, 224, %s' % (V(vTr), V(t3)),
          'v_and_b32 %s, 3, %s' % (V(t3), V(vL)), 'v_lshl_add_u32 %s, %s, 3, %s' % (V(vTr), V(t3), V(vTr)), 'v_add_u32 %s, 65536, %s' % (V(vTr + 1), V(vTr)),
          's_mov_b32 %s, %s' % (S(sL2E), f2u(LOG2E)), 's_mov_b32 %s, %s' % (S(sL2E + 1), f2u(LOG2E))]
    for d in range(4):
        L += ['s_xor_b32 %s, %s, %d' % (S(sT2), S(sC), d)] + sx(sAct + d, [(sN2, ACT_N2), (sT2, ACT_C)], ACT_OFF)
    L += sx(sPTs, [(sN2, 16 * PART_B), (sNB, 4 * PART_B), (sKS, PART_B)], PART_OFF)
    L += ['v_add_u32 %s, 4096, %s' % (V(t0), V(vL16)), 'v_add_u32 %s, 8192, %s' % (V(t1), V(vL16)), 'v_add_u32 %s, %d, %s' % (V(t2), OPL, V(vL16))]
    vU = [vL16, t0, t1]
    uaddr = lambda u: (V(vU[u // 4]), (u % 4) * 1024)
    cm2 = c2 + 2; c1 = c2 + 4
    L += ['v_mov_b32 %s, 2.0' % V(c2), 'v_mov_b32 %s, 2.0' % V(c2 + 1), 'v_mov_b32 %s, -2.0' % V(cm2), 'v_mov_b32 %s, -2.0' % V(cm2 + 1),
          'v_mov_b32 %s, 1.0' % V(c1), 'v_mov_b32 %s, 1.0' % V(c1 + 1)]
    L += flat(stage_loads(1)) + ['WAITVM bias']
    bcv = []
    for T in range(7):
        for hh in range(2):
            bcv += ['v_lshlrev_b32 %s, 16, %s' % (V(vB[T] + 2 * hh), V(vBraw[T] + hh)), 'v_and_b32 %s, 0xffff0000, %s' % (V(vB[T] + 2 * hh + 1), V(vBraw[T] + hh))]
    L += ['WAITVM st0 lgkmcnt(0)']
    st('pro')
    def tr_reads(tag, dst, base, order):
        reg = vTr + (base >= 65536); off = base - (65536 if base >= 65536 else 0)
        return ['LK %s_%d ds_read_b64_tr_b16 %s, %s offset:%d' % (tag, T, A(dst[T] + 2 * b, 2), V(reg), off + b * 3584 + T * 32) for T in order for b in range(2)]
    ORD = [6, 0, 1, 2, 3, 4, 5]
    readsA = lambda ks: xread(ks, XF) + tr_reads('a%d' % ks, WF[ks & 1], W1R + ((ks // 2) % 4) * 14336 + (ks & 1) * 7168, ORD)
    mfA = lambda ks: with_waits('a%d' % ks, ORD, lambda T: ['%s %s, %s, %s, %s' % (MFMA, V(ACC[rt][T], 4), A(WF[ks & 1][T], 4), A(XF[ks & 1][rt], 4),
                                                            V(ACC[rt][T], 4) if ks else V(vB[T], 4)) for rt in range(2)], 3)
    L += ['s_barrier']
    st('b0')
    L += readsA(0) + bcv + tagc
    L += ['v_mov_b32 %s, %s' % (V(r + 3), S(sTag)) for r in [U0[0]] + XU + [OWN[Pp][rt] for Pp in range(3) for rt in range(2)]]
    for ks in range(14):
        if ks & 1: L += (['s_waitcnt lgkmcnt(0)'] if ks == 13 else []) + (['WAITVM st1'] if ks == 1 else []) + ['s_barrier']
        if ks & 1: st('b%d' % ((ks + 1) // 2))
        L += sched(mfA(ks), readsA(ks + 1) if ks < 13 else [], [], [])
    L += ['s_setprio %d' % P('PRM', 0)]
    st('mainA')
    def mish(src, dst, E, Aa):
        nv = 4 * len(src)
        h = lambda k: src[k // 4] + (k % 4)
        o = []
        for k in range(0, nv, 2): o += ['v_pk_mul_f32 %s, %s, %s' % (V(E + k, 2), V(h(k), 2), S(sL2E, 2))]
        for k in range(nv): o += ['v_exp_f32 %s, %s' % (V(E + k), V(E + k))]
        for k in range(0, nv, 2): o += ['v_pk_add_f32 %s, %s, %s' % (V(Aa + k, 2), V(E + k, 2), V(c2, 2))]
        for k in range(0, nv, 2): o += ['v_pk_fma_f32 %s, %s, %s, %s' % (V(E + k, 2), V(E + k, 2), V(Aa + k, 2), V(c2, 2))]
        for k in range(nv): o += ['v_rcp_f32 %s, %s' % (V(E + k), V(E + k))]
        for k in range(0, nv, 2): o += ['v_pk_fma_f32 %s, %s, %s, %s' % (V(E + k, 2), V(E + k, 2), V(cm2, 2), V(c1, 2))]
        for k in range(0, nv, 2): o += ['v_pk_mul_f32 %s, %s, %s' % (V(E + k, 2), V(E + k, 2), V(h(k), 2))]
        for k in range(0, nv, 2): o += ['v_cvt_pk_bf16_f32 %s, %s, %s' % (V(dst[k // 2]), V(E + k), V(E + k + 1))]
        return o
    ust = lambda r, u: 'VM act%d buffer_store_dwordx4 %s, %s, %s, %s offen offset:%d %s' % (max(u - 1, 0) // 3, V(r, 4), uaddr(u)[0], S(rWS, 4), S(sAct), uaddr(u)[1], SC)
    L += mish([ACC[0][6], ACC[1][6]], [U0[0], U0[0] + 1, U0[0] + 2, XU[0] + 2], tmpA, tmpA + 8) + [ust(U0[0], 0)]
    readsC = lambda sl: tr_reads('c%d' % sl, WF[sl & 1], W2B[sl // 2] + (sl & 1) * 7168, range(7))
    for Pp in range(3):
        for rt in range(2):
            o = OWN[Pp][rt]
            L += mish([ACC[rt][2 * Pp], ACC[rt][2 * Pp + 1]], [o, o + 1, o + 2, XU[Pp] + rt], tmpA, tmpA + 8) + [ust(o, 1 + 3 * Pp + rt)]
        L += [ust(XU[Pp], 3 + 3 * Pp)]
    st('mish')
    GR = [(sl, SLOT[sl]) for sl in range(3, 14) if SLOT[sl][0] != 'm']
    greg = {sl: RG[k % 6] for k, (sl, _) in enumerate(GR)}
    uld = lambda tag, r, d, u: ['VM %s buffer_load_dwordx4 %s, %s, %s, %s offen offset:%d %s' % (tag, V(r, 4), uaddr(u)[0], S(rWS, 4), S(sAct + d), uaddr(u)[1], SC)]
    def gload(sl):
        d, Pp = SLOT[sl]
        return ([uld('g%d' % sl, U0[d], d, 0)] if Pp == 0 else []) + [uld('g%d' % sl, greg[sl] + 4 * k, d, 1 + 3 * Pp + k) for k in range(3)]
    def gfix(sl):
        d, Pp = SLOT[sl]
        if d == 'm':
            fa, fb_ = (0, 1) if Pp == 0 else (2, 3)
            s11 = lambda dd: XU[0] + 2 if dd == 0 else greg[2 + dd] + 10
            src = [[U0[fa], U0[fa] + 1, U0[fb_], U0[fb_] + 1], [U0[fa] + 2, s11(fa), U0[fb_] + 2, s11(fb_)]]
            return [['v_accvgpr_write_b32 %s, %s' % (A(XF[Pp][rt] + k), V(src[rt][k]))] for rt in range(2) for k in range(4)]
        r = greg[sl]
        regs = [r + 3, r + 7, r + 11] + ([U0[d] + 3] if Pp == 0 else [])
        return dcheck('g%d' % sl, [('v_cmp_ne_u32', S(sTag), V(x)) for x in regs], raw(gload(sl))) + \
               [['v_mov_b32 %s, %s' % (V(r + 4 * rt + 3), V(r + 8 + rt))] for rt in range(2)]
    def opC(sl, rt):
        if sl < 3: return V(OWN[sl][rt], 4)
        return A(XF[SLOT[sl][1]][rt], 4) if SLOT[sl][0] == 'm' else V(greg[sl] + 4 * rt, 4)
    mfC = lambda sl: with_waits('c%d' % sl, list(range(7)), lambda T: ['%s %s, %s, %s, %s' % (MFMA, V(ACC[rt][T], 4), A(WF[sl & 1][T], 4),
                                opC(sl, rt), V(ACC[rt][T], 4) if sl else '0') for rt in range(2)], 2)
    NS = P('W2SN', 3)
    L += lwait(6, t3) + readsC(0) + ['v_mov_b32 %s, %s' % (V(OWN[Pp][rt] + 3), V(XU[Pp] + rt)) for Pp in range(3) for rt in range(2)]
    gate = lambda k: [['WAITVM act%d' % k]] if P('GATE', 1) else []
    hi = [u for t in range(2 + NS, 7) for u in w2_loads(t)] + gate(0) + gload(3) + gload(4) + gload(5); pst = [99]
    later = {2: [9], 3: [10], 8: [11, 12, 13]}
    PU = [fr + 4 * k for k in range(9)] + [U0[1], U0[2], U0[3]]
    for sl in range(14):
        lo = gfix(sl + 1) if 3 <= sl + 1 < 14 else []
        if sl + 1 == 4: L += lwait(7, t3)
        if sl + 1 == 2 * (2 + NS) and NS < 5: L += lwait(0, t3)
        if sl == 2 * (2 + NS) - 3 and NS < 5: L += flat(hi) + ['WAITVM w2_6'] + lsig(0, t3); hi = []
        mm = mfC(sl); rd = readsC(sl + 1) if sl < 13 else []
        if lo and any(i.startswith('WAITVM') for i in flat(lo)):
            tg = flat(lo)[0].split()[1]
            while any(i.startswith('VM %s ' % tg) for i in flat(hi)): L += flat([hi.pop(0)])
        h = P('CKPOS', 4)
        L += sched(mm[:h], rd[:h], hi, [], P('PACEC', 2), pst) + sched(mm[h:], rd[h:], lo, hi, P('PACEC', 2), pst) + flat(lo)
        if sl == 6: hi += gload(11) + gload(12) + gload(13)
        elif sl == 2: hi += gload(8) + gload(9) + gload(10)
        if sl == 2: st('ownC')
        if sl == 7: st('c7')
    st('mainC')
    L += ['s_cmp_eq_u32 %s, %s' % (S(sW), S(sKS)), 's_cbranch_scc1 L_ownp']
    PU = [RG[3] + 4 * k for k in range(9)] + [U0[1], U0[2], U0[3]]
    L += ['v_mov_b32 %s, %s' % (V(r + 3), S(sTag)) for r in PU if r not in (RG[3] + 8, RG[4] + 8, RG[5] + 8, U0[1], U0[2], U0[3])]
    for g in range(4):
        for k in range(3):
            for e in range(3):
                D = 3 * k + e; T = 2 * g + D // 4
                if D < 8 and T < 7: L += ['v_cvt_pk_bf16_f32 %s, %s, %s' % (V(PU[3 * g + k] + e), V(ACC[(D % 4) // 2][T] + 2 * (D % 2)), V(ACC[(D % 4) // 2][T] + 2 * (D % 2) + 1))]
            u = 3 * g + k
            L += ['VM part buffer_store_dwordx4 %s, %s, %s, %s offen offset:%d %s' % (V(PU[u], 4), uaddr(u)[0], S(rWS, 4), S(sPTs), uaddr(u)[1], SC)]
    L += ['s_branch L_partd', 'L_ownp:', 's_nop 7']
    for T in range(7):
        L += ['v_cvt_pk_bf16_f32 %s, %s, %s' % (V(ACC[0][T] + 2 * rt + hh), V(ACC[rt][T] + 2 * hh), V(ACC[rt][T] + 2 * hh + 1)) for rt in range(2) for hh in range(2)]
        L += ['ds_write_b128 %s, %s offset:%d' % (V(t2), V(ACC[0][T], 4), T * 1024)]
    L += ['L_partd:', 's_waitcnt vmcnt(%d)' % P('PGATE', 0)] + lsig(5, t3)
    finish(L, st, 'M')
    LM = L; nvM = va.hi

    L = ['L_S:']; st = mk_st(L, 'S')
    va = Alloc('v', vbase, NV); sa = Alloc('s', sbase, 102); aa = Alloc('a', 0, NA)
    sCF = sa(); sK1 = sa(); sHF = sa(); sKP = sa(); sRot2 = sa()
    sA1o = sa(); sA1o2 = sa(); sFC = sa(); sB1c = sa(); sWo = sa(); sDFo = sa(); sB1s = sa(); sB1l = sa(); sGl = sa(); sPTl = sa(); sOut = sa()
    vAmp = va(); vFr = va(); vG = va(2); vG1 = va(2); vA1 = va()
    big = va(NV - ((va.next + 3) // 4 * 4), 4); NB = NV - big
    pa = Alloc('v', big, NV)
    MM = [[[pa(4) for u in range(4)] for t in range(2)] for e in range(2)]
    WRr = [pa(4) for t in range(2)]; WIr = [pa(4) for t in range(2)]
    fb = pa.next
    ACD = [[pa(4) for T in range(2)] for rt in range(2)]
    MR = [[pa(4) for t in range(2)] for kt in range(2)]; MI = [[pa(4) for t in range(2)] for kt in range(2)]
    tmpS = pa(24, 4)
    XF = [[aa(4) for rt in range(2)] for b in range(2)]; FF = [[aa(4) for T in range(2)] for b in range(2)]
    NR = [[aa(4) for u in range(2)] for tn in range(2)]; NI = [[aa(4) for u in range(2)] for tn in range(2)]
    BF = [[XF[0][0] + 8 * a + 4 * u for u in range(2)] for a in range(4)]
    L += ['s_load_dwordx2 %s, s[0:1], %d' % (S(r_, 2), off) for r_, off in ((rWR, 8), (rWI, 16), (rOUT, 64))]
    L += common2 + ['v_add_u32 %s, %d, %s' % (V(vFr), FL, V(vL16)),
          's_lshl_b32 %s, %s, 1' % (S(sRot2), S(sSig)), 's_add_u32 %s, %s, %s' % (S(sRot2), S(sRot2), S(sW)),
          'v_lshlrev_b32 %s, 2, %s' % (V(t0), V(vL)), 'v_add_u32 %s, %d, %s' % (V(t0), LF, V(t0)), 'ds_write_b32 %s, %s' % (V(t0), V(vZero))]
    ta = Alloc('v', big, big + 64)
    cs = ta(8); sn = ta(8); th = ta(8); pk0 = ta(4); pk1 = ta(4); vKdf = ta(); vU = ta(); vD0 = ta(); vFw = vG
    vGW = [ACD[0][0] + 4 * a for a in range(4)]
    def kact(dst, a, tmp):
        return ['s_add_u32 %s, %s, %d' % (S(dst), S(sRot2), 4 * a), 's_sub_u32 %s, %s, 14' % (S(tmp), S(dst)), 's_min_u32 %s, %s, %s' % (S(dst), S(dst), S(tmp))]
    L += ['s_cmp_eq_u32 %s, 15' % S(sC), 's_cbranch_scc1 L_nofg', 'v_lshl_add_u32 %s, %s, 4, %s' % (V(vKdf), S(sC), V(vJ)), 'v_cvt_f32_u32 %s, %s' % (V(vKdf), V(vKdf)), 'v_mul_f32 %s, %s, %s' % (V(vU), S(sInv448), V(vKdf)),
          's_lshl_b32 %s, %s, 11' % (S(sT2), S(sW)), 'v_add_u32 %s, %s, %s' % (V(vFw), S(sT2), V(vFr))]
    for a in range(4):
        L += kact(sT2, a, sT3) + [
              'v_lshl_add_u32 %s, %s, 5, %s' % (V(vD0), S(sT2), V(vQ8)), 'v_cvt_f32_u32 %s, %s' % (V(vD0), V(vD0)),
              'v_mul_f32 %s, %s, %s' % (V(t3), V(vKdf), V(vD0)), 'v_mul_f32 %s, %s, %s' % (V(th), S(sInv448), V(t3)),
              'v_floor_f32 %s, %s' % (V(th), V(th)), 'v_fma_f32 %s, %s, %s, %s' % (V(t3), V(th), S(sM448), V(t3)),
              'v_mul_f32 %s, %s, %s' % (V(th), S(sInv448), V(t3))]
        for e in range(1, 8): L += ['v_add_f32 %s, %s, %s' % (V(th + e), V(th + e - 1), V(vU))]
        for e in range(8): L += ['v_cos_f32 %s, %s' % (V(cs + e), V(th + e)), 'v_sin_f32 %s, %s' % (V(sn + e), V(th + e))]
        for e in range(4):
            L += ['v_cvt_pk_bf16_f32 %s, %s, %s' % (V(pk0 + e), V(cs + 2 * e), V(cs + 2 * e + 1)),
                  'v_cvt_pk_bf16_f32 %s, -%s, -%s' % (V(pk1 + e), V(sn + 2 * e), V(sn + 2 * e + 1))]
        L += ['ds_write_b128 %s, %s offset:%d' % (V(vFw), V(pk0, 4), a * 8192), 'ds_write_b128 %s, %s offset:%d' % (V(vFw), V(pk1, 4), a * 8192 + 1024)]
    L += ['L_nofg:']
    L += dmaddr
    for r_, sz in ((rWR, W_SZ), (rWI, W_SZ), (rOUT, X_SZ)):
        L += ['s_mov_b32 %s, 0x%x' % (S(r_ + 2), sz), 's_mov_b32 %s, 0x20000' % S(r_ + 3)]
    L += ['s_add_u32 %s, %s, 2' % (S(sSig), S(sSig)), 's_sub_u32 %s, %s, 7' % (S(sT), S(sSig)), 's_min_u32 %s, %s, %s' % (S(sSig), S(sSig), S(sT))]
    gx = lambda dst, terms, const=0: sx(dst, terms, const, sG2)
    lo1 = ['s_lshr_b32 %s, %s, 1' % (S(sHF), S(sW)), 's_and_b32 %s, %s, 15' % (S(sCF), S(sM)),
           's_lshr_b32 %s, %s, 4' % (S(sKP), S(sM)), 's_lshl_b32 %s, %s, 1' % (S(sG), S(sXc)), 's_add_u32 %s, %s, %s' % (S(sKP), S(sKP), S(sG)),
           's_and_b32 %s, %s, 1' % (S(sK1), S(sW)), 's_lshl_b32 %s, %s, 1' % (S(sG), S(sKP)), 's_add_u32 %s, %s, %s' % (S(sK1), S(sK1), S(sG))]
    lo1 += w2tab + gx(sWo, [(sK1, 450), (sCF, 32), (sHF, 32 * 14400)])
    lo1 += gx(sA1o, [(sI, 16 * 8192), (sC, 8192), (sW, 1024)], A1_OFF) + gx(sG, [(sN2, 128)], GATE_OFF)
    lo1 += ['s_cmp_eq_u32 %s, 15' % S(sC), 's_cselect_b32 %s, %s, %s' % (S(sA1o), S(sG), S(sA1o)), 's_cselect_b32 %s, 64, 4096' % S(sG), 's_cselect_b64 vcc, -1, 0',
            's_add_u32 %s, %s, %s' % (S(sA1o2), S(sA1o), S(sG)), 'v_lshlrev_b32 %s, 4, %s' % (V(vA1), V(vQ)), 'v_cndmask_b32 %s, %s, %s, vcc' % (V(vA1), V(vL16), V(vA1))]
    lo1 += gx(sFC, [(sI, 16 * FS), (sC, FS)], FC_OFF) + ['s_cmp_eq_u32 %s, 0' % S(sW), 's_cselect_b32 %s, %s, 0x%x' % (S(sFC), S(sFC), OOB)]
    lo1 += gx(sDFo, [(sCF, 8192), (sK1, 256)], A1_OFF) + ['s_cmp_eq_u32 %s, 15' % S(sCF), 's_cselect_b32 %s, 0x%x, %s' % (S(sDFo), OOB, S(sDFo))]
    lo1 += gx(sB1c, [(sC, 64 * 2048), (sN2, 2048)], B1_OFF)
    lo1 += gx(sB1s, [(sCF, 64 * 2048), (sW, 16 * 2048), (sKP, 128)], B1_OFF) + gx(sB1l, [(sW, 4 * 64 * 2048), (sN2f, 2048)], B1_OFF)
    lo1 += gx(sGl, [(sN2f, 128)], GATE_OFF) + gx(sPTl, [(sN2f, 16 * PART_B), (sNB, 4 * PART_B), (sW, 3072)], PART_OFF) + gx(sOut, [(sN2f, 896), (sNB, 224), (sW, 64)])
    sJunk = sa()
    L += ['s_waitcnt lgkmcnt(0)'] + wst + epld + ['s_load_dword %s, %s, 0' % (S(sJunk), S(r_, 2)) for r_ in (rWR, rWI, rOUT)] + lo1
    q_ = tmpS
    lo = ['v_lshl_add_u32 %s, %s, 4, %s' % (V(vAmp), S(sC), V(vJ)), 'v_mov_b32 %s, 1.0' % V(q_),
          'v_cmp_eq_u32 vcc, 0, %s' % V(vAmp), 'v_cndmask_b32 %s, %s, 0.5, vcc' % (V(q_), V(q_)),
          'v_cmp_eq_u32 vcc, 224, %s' % V(vAmp), 'v_cndmask_b32 %s, %s, 0.5, vcc' % (V(q_), V(q_)),
          'v_cmp_lt_u32 vcc, 224, %s' % V(vAmp), 'v_cndmask_b32 %s, %s, 0, vcc' % (V(vAmp), V(q_)),
          'v_mul_u32_u24 %s, %d, %s' % (V(t3), 4 * 14400, V(vQ)), 'v_lshl_add_u32 %s, %s, 1, %s' % (V(t3), V(vJ), V(t3))]
    for t in range(2):
        for r in range(4): lo += ['v_mov_b32 %s, 0' % V(WRr[t] + r), 'v_mov_b32 %s, 0' % V(WIr[t] + r)]
    nlo1 = len(lo)
    vK = [q_, q_ + 1]; vS0 = q_ + 2; vS = q_ + 3; vA = [q_ + 4, q_ + 5]; c_ = [q_ + 6, q_ + 7]; s_ = [q_ + 8, q_ + 9]
    lo += ['v_cvt_f32_u32 %s, %s' % (V(vK[0]), V(vJ)), 'v_mul_f32 %s, %s, %s' % (V(vK[0]), f2u(1.0 / 2048), V(vK[0])),
           'v_add_f32 %s, %s, %s' % (V(vK[1]), f2u(16.0 / 2048), V(vK[0])),
           'v_lshl_add_u32 %s, %s, 8, %s' % (V(vS0), V(vQ), S(sN2)), 'v_cvt_f32_u32 %s, %s' % (V(vS0), V(vS0))]
    for t in range(2):
        for r in range(4):
            lo += ['v_add_f32 %s, %s, %s' % (V(vS), f2u(64.0 * (16 * t + r)), V(vS0))]
            for kt in range(2): lo += ['v_mul_f32 %s, %s, %s' % (V(vA[kt]), V(vK[kt]), V(vS))]
            for kt in range(2): lo += ['v_cos_f32 %s, %s' % (V(c_[kt]), V(vA[kt])), 'v_sin_f32 %s, %s' % (V(s_[kt]), V(vA[kt]))]
            for kt in range(2):
                lo += ['v_cvt_pk_bf16_f32 %s, %s, %s' % (V(MR[kt][t] + r), V(c_[kt]), V(s_[kt])),
                       'v_cvt_pk_bf16_f32 %s, -%s, %s' % (V(MI[kt][t] + r), V(s_[kt]), V(c_[kt]))]
    vI = q_; vN0 = q_ + 1; vAn = q_ + 2; vc = q_ + 4; vs = q_ + 5
    lo += ['v_lshl_add_u32 %s, %s, 5, %s' % (V(vI), S(sHF), V(vJ)), 'v_cvt_f32_u32 %s, %s' % (V(vI), V(vI)), 'v_mul_f32 %s, %s, %s' % (V(vI), f2u(1.0 / 64), V(vI)),
           'v_lshlrev_b32 %s, 2, %s' % (V(vN0), V(vQ)), 'v_cvt_f32_u32 %s, %s' % (V(vN0), V(vN0))]
    prev = []
    for u in range(4):
        for r in range(4):
            k = (4 * u + r) & 1
            lo += ['v_add_f32 %s, %s, %s' % (V(vAn + k), f2u(16.0 * u + r), V(vN0)), 'v_mul_f32 %s, %s, %s' % (V(vAn + k), V(vAn + k), V(vI)),
                   'v_cos_f32 %s, %s' % (V(vc + 2 * k), V(vAn + k)), 'v_sin_f32 %s, %s' % (V(vs + 2 * k), V(vAn + k))] + prev
            cc, ss = V(vc + 2 * k), V(vs + 2 * k)
            rot = [(cc, ss), ('-' + ss, cc), ('-' + cc, '-' + ss), (ss, '-' + cc)]
            prev = ['v_cvt_pk_bf16_f32 %s, %s, %s' % ((V(MM[e][t][u] + r),) + rot[(t * r + e) % 4]) for e in range(2) for t in range(2)]
    lo += prev
    ngen = []
    vSs, vKk, nc, ns, pn = q_, q_ + 2, q_ + 3, q_ + 4, q_ + 5
    ngen += ['v_lshl_add_u32 %s, %s, 6, %s' % (V(vSs), V(vJ), S(sN2f)), 'v_cvt_f32_u32 %s, %s' % (V(vSs), V(vSs)), 'v_mul_f32 %s, %s, %s' % (V(vSs), f2u(1.0 / 2048), V(vSs))]
    for u in range(2):
        for r in range(4):
            ngen += ['v_add_f32 %s, %s, %s' % (V(vKk), f2u(16.0 * u + r), V(vN0)), 'v_mul_f32 %s, %s, %s' % (V(vKk), V(vKk), V(vSs)),
                   'v_cos_f32 %s, %s' % (V(nc), V(vKk)), 'v_sin_f32 %s, %s' % (V(ns), V(vKk))]
            for tn in range(2):
                ng = '-' if (tn and r & 1) else ''; ps = '' if (tn and r & 1) else '-'
                if tn == 0 or r & 1:
                    ngen += ['v_cvt_pk_bf16_f32 %s, %s%s, %s%s' % (V(pn), ng, V(nc), ps, V(ns)), 'v_cvt_pk_bf16_f32 %s, %s%s, %s%s' % (V(pn + 1), ng, V(ns), ng, V(nc))]
                ngen += ['v_accvgpr_write_b32 %s, %s' % (A(NR[tn][u] + r), V(pn)), 'v_accvgpr_write_b32 %s, %s' % (A(NI[tn][u] + r), V(pn + 1))]
    lo += ['s_lshl_b32 %s, %s, 2' % (S(sG), S(sW)), 's_add_u32 %s, %s, %d' % (S(sG), S(sG), XCH),
           'v_lshl_add_u32 %s, %s, 10, %s' % (V(t0), V(vQ), S(sG)), 'v_lshl_add_u32 %s, %s, 4, %s' % (V(t0), V(vJ), V(t0)),
           's_lshl_b32 %s, %s, 10' % (S(sG), S(sW)), 's_add_u32 %s, %s, %d' % (S(sG), S(sG), XCH), 'v_add_u32 %s, %s, %s' % (V(t1), S(sG), V(vL16))]
    lo += ['v_lshl_add_u32 %s, %s, 2, %s' % (V(vPa), S(sW), V(vQ)), 'v_lshl_add_u32 %s, %s, 4, %s' % (V(t2), V(vPa), S(sCF)),
           'v_lshl_add_u32 %s, %s, 4, %s' % (V(vPa), S(sI), V(vPa)), 'v_cmp_gt_u32 vcc, 8, %s' % V(vJ), 'v_cndmask_b32 %s, %s, %s, vcc' % (V(vPa), V(vPa), V(t2)),
           'v_mul_u32_u24 %s, %d, %s' % (V(vPa), FS, V(vPa)), 'v_add_u32 %s, 0x%x, %s' % (V(vPa), FC_OFF, V(vPa))]
    SEN = tmpS + 20
    lo += ['v_mov_b32 %s, -1' % V(SEN + k) for k in range(4)]
    clr = ['VM clr buffer_store_dwordx4 %s, %s, %s, %s offen %s' % (V(SEN, 4), V(vA1), S(rWS, 4), S(sA1o2 if k else sA1o), SC) for k in range(2)]
    clr += ['VM clr buffer_store_dwordx4 %s, %s, %s, %s offen offset:%d %s' % (V(SEN, 4), V(vL16), S(rWS, 4), S(sB1c), k * 1024, SC) for k in range(2)]
    pf = sx(sT2, [(sM, 12544), (sKS, 448 * 896), (sW, 25 * 128)]) + [
         'v_lshrrev_b32 %s, 1, %s' % (V(t2), V(vL)), 'v_min_u32 %s, 24, %s' % (V(t2), V(t2)), 'v_lshlrev_b32 %s, 7, %s' % (V(t2), V(t2)),
         'VM pf buffer_load_dword %s, %s, %s, %s offen%s' % (V(vPv), V(t2), S(rW2, 4), S(sT2), NT)]
    pf += sx(sT2, [(sM, 2 * 14400), (sHF, 14400), (sXc, 1800)]) + [
         'v_lshrrev_b32 %s, 3, %s' % (V(t2), V(vL)), 's_and_b32 %s, %s, 1' % (S(sT), S(sW)), 's_lshl_b32 %s, %s, 10' % (S(sT), S(sT)),
         'v_lshl_add_u32 %s, %s, 7, %s' % (V(t2), V(t2), S(sT)), 'v_min_u32 %s, 1796, %s' % (V(t2), V(t2)),
         'VM pf buffer_load_dword %s, %s, %s, %s offen%s' % (V(vPv), V(t2), S(rWR, 4), S(sT2), NT),
         'VM pf buffer_load_dword %s, %s, %s, %s offen%s' % (V(vPv), V(t2), S(rWI, 4), S(sT2), NT)]
    wl = []
    for t in range(2):
        for r in range(4):
            wl += ['s_add_u32 %s, %s, %d' % (S(sT2), S(sWo), (16 * t + r) * 14400),
                   'VM W buffer_load_short_d16_hi %s, %s, %s, %s offen' % (V(WRr[t] + r), V(t3), S(rWR, 4), S(sT2)),
                   'VM W buffer_load_short_d16_hi %s, %s, %s, %s offen' % (V(WIr[t] + r), V(t3), S(rWI, 4), S(sT2))]
    readsS = lambda ks: xread(ks, XF) + ['LK a%d_f ds_read_b128 %s, %s offset:%d' % (ks, A(FF[ks & 1][T], 4), V(vFr), ks * 2048 + T * 1024) for T in range(2)]
    mfS = lambda ks: ['%s %s, %s, %s, %s' % (MFMA, V(ACD[rt][T], 4), A(XF[ks & 1][rt], 4), A(FF[ks & 1][T], 4), V(ACD[rt][T], 4) if ks else '0') for T in range(2) for rt in range(2)]
    L += lo
    if P('NGPRO', 0): L += ngen; ngen = []
    if P('PFS', 2) == -1: L += pf
    L += ['s_waitcnt lgkmcnt(0)', 's_setprio %d' % P('PRS', 1)] + tagc
    st('pro')
    L += ['s_barrier']
    L += readsS(0)
    ngl = []
    if P('W2SN', 3): ngl = ngen; ngen = []
    lo = ngen; per = (len(lo) + 5) // 6
    ld = []
    for ks in range(14):
        if ks == 0: ld = group_vm(stage_loads(2)) + ([pf] if P('PFS', 2) == 0 else [])
        if ks & 1:
            s = (ks + 1) // 2
            L += flat(ld); ld = []
            L += (['WAITVM st%d' % s] if 2 <= s < 7 else []) + (['s_waitcnt lgkmcnt(0)'] if s == 7 else []) + ['s_barrier']
            if s + 2 <= 6: ld = group_vm(stage_loads(s + 2))
            if s == P('PFS', 2): ld += [pf]
            if s == P('CLS', 1): ld = [clr] + ld
            if s == P('CLS', 1) + 2: ld = [setflag(sFC)] + ld
            if s == 7: ld = [poll_issue('pfc')]
            if s == P('W2S', 6): ld += group_vm(w2_loads(0) + w2_loads(1))
        if ks == P('WLK', 10): ld += [wl]
        L += ['WAITLK a%d_f' % ks] + weave(mfS(ks), readsS(ks + 1) if ks < 13 else [])
        h = (len(ld) + 1) // 2 if (ks & 1 and P('SPLITLD', 1)) else len(ld)
        L += flat(ld[:h]); ld = ld[h:]
        if ks % 2 == 0 and ks: L += lo[:per]; lo = lo[per:]
    assert not lo
    L += ['s_setprio %d' % P('PRS2', 1)]
    st('mainA')
    PX = [tmpS, tmpS + 4]; DR = [tmpS + 8, tmpS + 12]; DI = [tmpS + 16, tmpS + 20]; XO = [ACD[0][0], ACD[1][0]]
    L += ['s_nop 4', 's_cmp_eq_u32 %s, 15' % S(sC), 's_cbranch_scc1 L_gate']
    for t in range(2):
        for r in range(4): L += ['v_cvt_pk_bf16_f32 %s, %s, %s' % (V(PX[t] + r), V(ACD[t][0] + r), V(ACD[t][1] + r))]
    for t in range(2):
        for kt in range(2):
            L += ['%s %s, %s, %s, %s' % (MFMA, V(DR[kt], 4), V(MR[kt][t], 4), V(PX[t], 4), V(DR[kt], 4) if t else '0'),
                  '%s %s, %s, %s, %s' % (MFMA, V(DI[kt], 4), V(MI[kt][t], 4), V(PX[t], 4), V(DI[kt], 4) if t else '0')]
    for kt in range(2):
        for r in range(4):
            L += ['v_mul_f32 %s, %s, %s' % (V(DR[kt] + r), V(vAmp), V(DR[kt] + r)), 'v_mul_f32 %s, %s, %s' % (V(DI[kt] + r), V(vAmp), V(DI[kt] + r)),
                  'v_cvt_pk_bf16_f32 %s, %s, %s' % (V(DR[kt] + r), V(DR[kt] + r), V(DI[kt] + r)),
                  'ds_write_b32 %s, %s offset:%d' % (V(t0), V(DR[kt] + r), kt * 4096 + r * 256)]
    L += lsig(1, t0) + lwait(1, t0)
    L += ['ds_read_b128 %s, %s offset:%d' % (V(XO[k], 4), V(t1), k * 4096) for k in range(2)]
    L += ['s_waitcnt lgkmcnt(0)', 's_branch L_a1st', 'L_gate:', 's_nop 3']
    for rt in range(2):
        o = XO[rt]
        for r in range(4): L += ['v_mul_f32 %s, %s, %s' % (V(o + r), f2u(LOG2E), V(o + r))]
        for r in range(4): L += ['v_exp_f32 %s, -%s' % (V(o + r), V(o + r))]
        for r in range(4): L += ['v_add_f32 %s, 1.0, %s' % (V(o + r), V(o + r))]
        for r in range(4): L += ['v_rcp_f32 %s, %s' % (V(o + r), V(o + r))]
    L += ['s_nop 0', 'L_a1st:']
    L += ['VM a1 buffer_store_dwordx4 %s, %s, %s, %s offen %s' % (V(XO[k], 4), V(vA1), S(rWS, 4), S(sA1o2 if k else sA1o), SC) for k in range(2)]
    st('a1st')
    NS = P('W2SN', 3)
    L += ['WAITVM w2_1'] + lsig(6, t3) + poll_check('pfc') + lsig(8, t3)
    ws_ = group_vm([u for t in range(2, 2 + NS) for u in w2_loads(t)])
    pb = Alloc('v', fb, NV)
    DF = [pb(4) for u in range(4)]; XRr = [pb(4) for t in range(2)]; XIr = [pb(4) for t in range(2)]; PF = [pb(4) for t in range(4)]
    ngl = ['v_lshlrev_b32 %s, 2, %s' % (V(vN0), V(vQ)), 'v_cvt_f32_u32 %s, %s' % (V(vN0), V(vN0))] + ngl
    n1 = min(len(ws_), P('W2A', 4)); k1 = len(ngl) * n1 // len(ws_)
    dfl = []
    for u in range(4):
        dfl += ['s_add_u32 %s, %s, 0x%x' % (S(sT2), S(sDFo), u * 4 * 16 * 8192),
                'VM df buffer_load_dwordx4 %s, %s, %s, %s offen %s' % (V(DF[u], 4), V(vPa), S(rWS, 4), S(sT2), SC)]
    L += ['v_lshlrev_b32 %s, 17, %s' % (V(vPa), V(vQ)), 'v_lshl_add_u32 %s, %s, 4, %s' % (V(vPa), V(vJ), V(vPa))]
    thr = ['s_waitcnt vmcnt(%d)' % P('THR', 5)] if P('THR', 5) else []
    L += flat([thr + u for u in ws_]) + ['WAITVM w2_%d' % (1 + NS)] + lsig(7, t3) + lwait(8, t3) + dfl
    st('fa')
    L += ngl
    L += ['s_and_b32 %s, %s, 1' % (S(sT2), S(sW)), 's_lshl_b32 %s, %s, 12' % (S(sT3), S(sT2)), 's_add_u32 %s, %s, %d' % (S(sT3), S(sT3), PXC),
          'v_add_u32 %s, %s, %s' % (V(t1), S(sT3), V(vL16)), 's_lshl_b32 %s, %s, 11' % (S(sT3), S(sHF)), 'v_add_u32 %s, %s, %s' % (V(t0), S(sT3), V(t1)),
          's_lshl_b32 %s, %s, 2' % (S(sT2), S(sT2)), 's_lshl_b32 %s, %s, 12' % (S(sT3), S(sHF)), 's_add_u32 %s, %s, %s' % (S(sT2), S(sT2), S(sT3)),
          's_add_u32 %s, %s, %d' % (S(sT2), S(sT2), BXC),
          'v_lshl_add_u32 %s, %s, 9, %s' % (V(t2), V(vQ), S(sT2)), 'v_lshl_add_u32 %s, %s, 3, %s' % (V(t2), V(vJ), V(t2))]
    L += flat(dcheck('df', [('v_cmp_eq_u32', '-1', V(DF[u])) for u in range(4)], raw(dfl)))
    st('df')
    TR = PF[2]; TI = PF[3]
    def cmulpk(t):
        o = []
        for r in range(4):
            xr, xi, wr, wi = V(XRr[t] + r), V(XIr[t] + r), V(WRr[t] + r), V(WIr[t] + r)
            o += ['v_mul_f32 %s, %s, %s' % (V(TR + r), xr, wr), 'v_mul_f32 %s, %s, %s' % (V(TI + r), xr, wi),
                  'v_fma_f32 %s, -%s, %s, %s' % (V(TR + r), xi, wi, V(TR + r)), 'v_fma_f32 %s, %s, %s, %s' % (V(TI + r), xi, wr, V(TI + r)),
                  'v_cvt_pk_bf16_f32 %s, %s, %s' % (V(PF[t] + r), V(TI + r), V(TR + r))]
        return o + ['ds_write_b128 %s, %s offset:%d' % (V(t0), V(PF[t], 4), t * 1024)]
    stg = lambda t, e0: [x for u in range(4) for x in
                         ('%s %s, %s, %s, %s' % (MFMA, V(XRr[t], 4), V(MM[e0][t][u], 4), V(DF[u], 4), V(XRr[t], 4) if u else '0'),
                          '%s %s, %s, %s, %s' % (MFMA, V(XIr[t], 4), V(MM[1 - e0][t][u], 4), V(DF[u], 4), V(XIr[t], 4) if u else '0'))]
    cm0 = cmulpk(0); sg1 = stg(1, 0)
    L += stg(0, 0) + sg1[:3] + sched(sg1[3:], [], [], cm0) + cm0 + cmulpk(1) + lsig(2, t3); st('sta')
    L += lwait(2, t3); st('px')
    L += ['ds_read_b128 %s, %s offset:%d' % (V(DF[u], 4), V(t1), u * 1024) for u in range(4)]
    L += ['s_lshl_b32 %s, %s, 11' % (S(sT2), S(sW)), 's_add_u32 %s, %s, %d' % (S(sT2), S(sT2), BXC), 'v_add_u32 %s, %s, %s' % (V(t1), S(sT2), V(vL16)),
          'v_lshrrev_b32 %s, 3, %s' % (V(t0), V(vL)), 'v_and_b32 %s, 7, %s' % (V(t3), V(vL)), 'v_lshlrev_b32 %s, 11, %s' % (V(t0), V(t0)),
          'v_lshl_add_u32 %s, %s, 4, %s' % (V(t0), V(t3), V(t0)), 's_add_u32 %s, %s, %d' % (S(sT2), S(sB1s), 8 * 2048), 's_waitcnt lgkmcnt(0)']
    outb = lambda t: [x for r in range(4) for x in ('v_cvt_pk_bf16_f32 %s, %s, %s' % (V(PF[t] + r), V(XRr[t] + r), V(XIr[t] + r)),
                                                     'ds_write_b32 %s, %s offset:%d' % (V(t2), V(PF[t] + r), t * 2048 + r * 128))]
    ob0 = outb(0); sg1 = stg(1, 1)
    L += stg(0, 1) + sg1[:4] + sched(sg1[4:], [], [], ob0) + ob0 + outb(1) + lsig(3, t3); st('stb')
    L += lwait(3, t3); st('bx')
    L += ['LK bx%d ds_read_b128 %s, %s offset:%d' % (k, V(PF[2 + k], 4), V(t1), k * 1024) for k in range(2)]
    for k in range(2):
        L += ['WAITLK bx%d' % k, 'VM b1 buffer_store_dwordx4 %s, %s, %s, %s offen %s' % (V(PF[2 + k], 4), V(t0), S(rWS, 4), S(sT2 if k else sB1s), SC)]
    st('fft')
    gl = ['VM g buffer_load_dword %s, %s, %s, %s offen offset:%d %s' % (V(vG + rt), V(vPa), S(rWS, 4), S(sGl), rt * 64, SC) for rt in range(2)]
    L += ['v_lshlrev_b32 %s, 2, %s' % (V(vPa), V(vJ))] + gl
    pd = Alloc('v', big, NV)
    GF = [[pd(4) for ct in range(2)] for T in range(15)]
    yb0 = pd.next
    CS = [[pd(2) for r in range(4)] for a in range(2)]
    kR = pd(2); kA = pd(2); vDf = pd(); vUu = pd(); vK0 = pd(); an = pd(4, 1)
    if P('GPK', 0): cheb = lambda d, k, x1, x0: ['v_pk_fma_f32 %s, %s, %s, %s op_sel_hi:[0,1,1] neg_lo:[0,0,1] neg_hi:[0,0,1]' % (V(d, 2), V(k, 2), V(x1, 2), V(x0, 2))]
    else: cheb = lambda d, k, x1, x0: ['v_fma_f32 %s, %s, %s, -%s' % (V(d + hh), V(k), V(x1 + hh), V(x0 + hh)) for hh in range(2)]
    def gen_G(ct):
        o = []
        if ct == 0:
            o += sx(sG, [(sNB, 112), (sW, 32)], 0, sG2) + ['v_add_u32 %s, %s, %s' % (V(vDf), S(sG), V(vJ)), 'v_cvt_f32_u32 %s, %s' % (V(vDf), V(vDf)),
                  'v_lshlrev_b32 %s, 2, %s' % (V(vK0), V(vQ)), 'v_cvt_f32_u32 %s, %s' % (V(vK0), V(vK0))]
        else: o += ['v_add_f32 %s, %s, %s' % (V(vDf), f2u(16.0), V(vDf))]
        o += ['v_mul_f32 %s, %s, %s' % (V(vUu), S(sInv448), V(vDf)), 'v_mul_f32 %s, %s, %s' % (V(an), V(vK0), V(vUu)),
              'v_mul_f32 %s, %s, %s' % (V(t3), f2u(16.0), V(vUu)),
              'v_cos_f32 %s, %s' % (V(kR), V(vUu)), 'v_cos_f32 %s, %s' % (V(kA), V(t3)),
              'v_add_f32 %s, %s, %s' % (V(an + 1), V(an), V(vUu)), 'v_add_f32 %s, %s, %s' % (V(an + 2), V(an), V(t3)), 'v_add_f32 %s, %s, %s' % (V(an + 3), V(an + 1), V(t3)),
              'v_add_f32 %s, %s, %s' % (V(kR), V(kR), V(kR)), 'v_add_f32 %s, %s, %s' % (V(kA), V(kA), V(kA))]
        for a in range(2):
            for r in range(2):
                o += ['v_cos_f32 %s, %s' % (V(CS[a][r]), V(an + 2 * a + r)), 'v_sin_f32 %s, -%s' % (V(CS[a][r] + 1), V(an + 2 * a + r))]
        for r in (2, 3):
            for a in range(2): o += cheb(CS[a][r], kR, CS[a][r - 1], CS[a][r - 2])
        for T in range(15):
            a = T & 1
            if T >= 2: o += [x for r in range(4) for x in cheb(CS[a][r], kA, CS[1 - a][r], CS[a][r])]
            o += ['v_cvt_pk_bf16_f32 %s, %s, %s' % (V(GF[T][ct] + r), V(CS[a][r]), V(CS[a][r] + 1)) for r in range(4)]
        return o
    bfl = [['s_add_u32 %s, %s, 0x%x' % (S(sT2), S(sB1l), a * 64 * 2048)] +
           ['VM bf%d buffer_load_dwordx2 %s, %s, %s, %s offen offset:%d %s' % (a, A(BF[a][u] + 2 * hh, 2), V(t0), S(rWS, 4), S(sT2), u * 1024 + hh * 128, SC)
            for u in range(2) for hh in range(2)] for a in range(4)]
    gg = gen_G(0) + gen_G(1); kk_ = len(gg) * P('BFPOS', 60) // 100
    L += ['v_lshlrev_b32 %s, 8, %s' % (V(t0), V(vQ)), 'v_lshl_add_u32 %s, %s, 3, %s' % (V(t0), V(vJ), V(t0)), 's_setprio %d' % P('PRG', 1)]
    L += gg[:kk_] + ['WAITVM b1'] + flat(bfl) + gg[kk_:] + ['s_setprio %d' % P('PRS2', 1)]
    L += flat(dcheck('g', [('v_cmp_eq_u32', '-1', V(vG + rt)) for rt in range(2)], raw(gl)))
    st('gen')
    yb = Alloc('v', yb0, NV)
    YR = [[yb(4) for tn in range(2)] for a in range(2)]; YI = [[yb(4) for tn in range(2)] for a in range(2)]
    gs = vG
    for rt in range(2):
        L += ['v_sub_f32 %s, 1.0, %s' % (V(vG1 + rt), V(vG + rt)), 'v_mul_f32 %s, %s, %s' % (V(gs + rt), f2u(2.0 / (2048 * 448)), V(vG + rt))]
    L += ['s_lshl_b32 %s, %s, 13' % (S(sT2), S(sW)), 'v_add_u32 %s, %s, %s' % (V(t1), S(sT2), V(vFr))]
    L += ['v_mul_u32_u24 %s, 57344, %s' % (V(t2), V(vJ)), 'v_add_u32 %s, %s, %s' % (V(t2), V(t2), V(vQ8)),
          's_lshl_b32 %s, %s, 11' % (S(sT2), S(sW)), 's_add_u32 %s, %s, %d' % (S(sT2), S(sT2), OPL), 'v_add_u32 %s, %s, %s' % (V(vPa), S(sT2), V(vL16))]
    ck = [vXr, vXr + 1, vPv, vAmp]
    bfck = lambda a: flat(dcheck('bf%d' % a, [('v_cmp_eq_u32', '-1', V(ck[k])) for k in range(4)], raw(bfl[a]),
                                 ['v_accvgpr_read_b32 %s, %s' % (V(ck[k]), A(BF[a][0] + 2 * k)) for k in range(4)]))
    step6 = lambda a: ['%s %s, %s, %s, %s' % (MFMA, V(Y[a & 1][tn], 4), A(BF[a][u], 4), A(N[tn][u], 4), V(Y[a & 1][tn], 4) if u else '0')
                       for u in range(2) for tn in range(2) for (Y, N) in ((YR, NR), (YI, NI))]
    def packY(a):
        o = []
        for tn in range(2):
            for r in range(4):
                o += ['v_mul_f32 %s, %s, %s' % (V(YR[a & 1][tn] + r), V(gs + tn), V(YR[a & 1][tn] + r)), 'v_mul_f32 %s, %s, %s' % (V(YI[a & 1][tn] + r), V(gs + tn), V(YI[a & 1][tn] + r)),
                      'v_cvt_pk_bf16_f32 %s, %s, %s' % (V(YR[a & 1][tn] + r), V(YR[a & 1][tn] + r), V(YI[a & 1][tn] + r))]
            o += ['ds_write_b128 %s, %s offset:%d' % (V(t1), V(YR[a & 1][tn], 4), a * 2048 + tn * 1024)]
        return o
    L += bfck(0); st('bf0')
    L += step6(0)
    for a in range(1, 4):
        pk_ = packY(a - 1)
        L += bfck(a) + sched(step6(a), [], [], pk_) + pk_
    L += packY(3) + lsig(4, t3); st('s6a')
    L += lwait(4, t3)
    st('s6')
    NY = 16
    YF = [4 * n for n in range(NY)]
    AC = [[yb0 + 16 + 8 * ct + 4 * rt for rt in range(2)] for ct in range(2)]
    seq = [(T, rt) for T in range(15) for rt in range(2)]
    rdY = lambda n: 'LK y%d ds_read_b128 %s, %s offset:%d' % (n, A(YF[n % NY], 4), V(vFr), seq[n][0] * 2048 + seq[n][1] * 1024)
    PT = [GF[0][0] + 12 * k for k in range(3)]; PO = GF[5][0]; ub = GF[6][0]
    ptl = []
    for k in range(3):
        ptl += ['s_add_u32 %s, %s, %d' % (S(sT2), S(sKS), k + 1), 's_and_b32 %s, %s, 3' % (S(sT2), S(sT2)),
                's_mul_i32 %s, %s, %d' % (S(sT2), S(sT2), PART_B), 's_add_u32 %s, %s, %s' % (S(sT2), S(sT2), S(sPTl))]
        ptl += ['VM pt buffer_load_dwordx4 %s, %s, %s, %s offen offset:%d %s' % (V(PT[k] + 4 * u, 4), V(vL16), S(rWS, 4), S(sT2), u * 1024, SC) for u in range(3)]
    LA = 10
    L += [rdY(n) for n in range(LA)]
    for n, (T, rt) in enumerate(seq):
        if n == P('PTN', 99): L += ptl
        if n % 2 == 0: L += ['WAITLK y%d' % (n + 1)]
        L += ['%s %s, %s, %s, %s' % (MFMA, V(AC[0][rt], 4), V(GF[T][0], 4), A(YF[n % NY], 4), V(AC[0][rt], 4) if T else '0')]
        if n + LA < len(seq): L += [rdY(n + LA)]
        L += ['%s %s, %s, %s, %s' % (MFMA, V(AC[1][rt], 4), V(GF[T][1], 4), A(YF[n % NY], 4), V(AC[1][rt], 4) if T else '0')]
    st('mainD')
    L += lwait(5, t3)
    if P('PTN', 99) == 99: L += ptl
    st('fp')
    L += ['ds_read_b128 %s, %s offset:%d' % (V(PO + 4 * a, 4), V(vPa), a * 1024) for a in range(2)]
    L += ['s_add_u32 %s, %s, 917504' % (S(sT3), S(sOut)), 's_waitcnt lgkmcnt(0)']
    osel = lambda rt: 'op_sel:[0,1,0]' if rt else 'op_sel_hi:[1,0,1]'
    for a in range(2):
        for rt in range(2):
            for hh in range(2):
                src = V(PO + 4 * a + 2 * rt + hh); d = ub + 8 * a + 4 * rt + 2 * hh
                L += ['v_lshlrev_b32 %s, 16, %s' % (V(d), src), 'v_and_b32 %s, 0xffff0000, %s' % (V(d + 1), src),
                      'v_pk_fma_f32 %s, %s, %s, %s %s' % (V(AC[a][rt] + 2 * hh, 2), V(d, 2), V(vG1, 2), V(AC[a][rt] + 2 * hh, 2), osel(rt))]
    L += flat(dcheck('pt', [('v_cmp_ne_u32', S(sTag), V(PT[0] + 4 * u + 3)) for u in range(9)], raw(ptl))); st('ptl')
    for a in range(2):
        prs = [(rt, hh, ub + 4 * rt + 2 * hh) for rt in range(2) for hh in range(2)]
        for rt, hh, d in prs:
            for k in range(3):
                D = 4 * a + 2 * rt + hh
                src = V(PT[k] + 4 * (D // 3) + D % 3)
                L += ['v_lshlrev_b32 %s, 16, %s' % (V(d + 8 * k), src), 'v_and_b32 %s, 0xffff0000, %s' % (V(d + 8 * k + 1), src)]
        for rt, hh, d in prs: L += ['v_pk_add_f32 %s, %s, %s' % (V(d, 2), V(d, 2), V(d + 8, 2))]
        for rt, hh, d in prs: L += ['v_pk_add_f32 %s, %s, %s' % (V(d, 2), V(d, 2), V(d + 16, 2))]
        for rt, hh, d in prs: L += ['v_pk_fma_f32 %s, %s, %s, %s %s' % (V(d, 2), V(d, 2), V(vG1, 2), V(AC[a][rt] + 2 * hh, 2), osel(rt))]
        for rt, hh, d in prs: L += ['v_cvt_pk_bf16_f32 %s, %s, %s' % (V(AC[a][rt] + hh), V(d), V(d + 1))]
        for rt in range(2):
            L += ['VM out buffer_store_dwordx2 %s, %s, %s, %s offen offset:%d' % (V(AC[a][rt], 2), V(t2), S(rOUT, 4), S(sT3 if rt else sOut), a * 32)]
        if a == 0: L += ['s_cmp_eq_u32 %s, 3' % S(sW), 's_cbranch_scc1 L_w3']
    L += ['s_branch L_fin', 'L_w3:', 's_cmp_lg_u32 s2, 120', 's_cbranch_scc1 L_fin', 's_mov_b32 %s, 0x%x' % (S(sT), EP_OFF)] + setflag(sT) + ['L_fin:']
    finish(L, st, 'S')
    LS = L
    if STAMP: open('stamps.txt', 'w').write(' '.join(stamps['M']) + ' / ' + ' '.join(stamps['S']))
    print('role M vgpr', nvM, 'instr', len(LM), ' role S big', NB, 'instr', len(LS), file=sys.stderr)
    if P('HACKACT', 0): LM = [l.replace(' sc1', '') if l.startswith('VM act') else l for l in LM]
    return H + resolve(LM) + resolve(LS) + slow + ['L_end:', 's_endpgm'], NV, NA

def build(path):
    hdr = open('cdna_kernels/%s.s.ref' % NAME).read().split('\n')
    top = [l for l in hdr if l.startswith(';') and '@launch' not in l]
    L, nv, na = build_kernel()
    Pd, nn = pad_hazards(L)
    print('lines', len(Pd), 'nops', nn, file=sys.stderr)
    out = top + ['; @launch grid=(256,1,1) block=(512,1,1) lds=%d' % LDS_SZ, '.amdgcn_target "amdgcn-amd-amdhsa--gfx950"', '.text', '.globl %s' % LABEL]
    out += [('    ' + l if not (l.endswith(':') or l.startswith('.')) else l) for l in Pd]
    out += ['.section .rodata,"a"', '.p2align 6', '.amdhsa_kernel %s' % LABEL,
            '  .amdhsa_next_free_vgpr %d' % (nv + na), '  .amdhsa_next_free_sgpr 102', '  .amdhsa_accum_offset %d' % nv,
            '  .amdhsa_group_segment_fixed_size 0', '  .amdhsa_kernarg_size 88', '  .amdhsa_user_sgpr_count 2',
            '  .amdhsa_user_sgpr_kernarg_segment_ptr 1', '  .amdhsa_system_sgpr_workgroup_id_x 1', '.end_amdhsa_kernel']
    open(path, 'w').write('\n'.join(out) + '\n')

if __name__ == '__main__':
    build(sys.argv[1] if len(sys.argv) > 1 else 'cdna_kernels/%s.s' % NAME)
```

```python
import sys, math, os
from dsl import *

NAME = 'gated_mix__spectral_gfnet__dense_activation_mish__prompt'
LABEL = NAME + '_kernel'
ACT_OFF = 0x0; ACT_C = 7168; ACT_N2 = 16 * ACT_C
PART_OFF = 0x800000; PTAG = int(os.environ.get('PTAG', 0)); PART_B = 12288 if PTAG else 7168
A1_OFF = 0x1400000; A1_B = 12288
GATE_OFF = 0x1800000
FS = int(os.environ.get('FS', 128))
FSB = int(os.environ.get('FSB', 16)); FBL = max(128, 16 * FSB)
FG_OFF = 0x1810000; FP_OFF = 0x1850000; FB_OFF = 0x1890000; FA_OFF = 0x18d0000
EP_OFF = 0x1910000
B1_OFF = 0x1920000
WS_END = B1_OFF + 15 * 64 * 2048
OOB = 0x40000000
X_SZ = 2048 * 896; W_SZ = 2048 * 450; W1_SZ = 448 * 3584; W2_SZ = 1792 * 896
LOG2E = math.log2(math.e)
MFMA = 'v_mfma_f32_16x16x32_bf16'
SC = 'sc1'
NT = ' nt' if int(os.environ.get('LNT', 0)) else ''
XR = 0; W1R = 65536; FL = 122880; XCH = 0; PXC = 40960; BXC = 32768; YL = FL; OPL = 155648; LF = OPL + 7168; LDS_SZ = 163840
NV = 184; NA = 72
W2B = [W1R + 3 * 14336, 49152, W1R, 0, W1R + 14336, W1R + 2 * 14336, 16384]
sX, sWR, sWI, sW1, sB1, sW2, sGW, sOUT, sWS = 16, 18, 20, 24, 26, 28, 30, 32, 34
STAMP = os.environ.get('STAMP', '0') == '1'
TS_OFF = 0x2000000
SPIN_MAX = 20000
P = lambda k, d: int(os.environ.get(k, d))

def srd(L, d, base, size):
    L += ['s_mov_b32 %s, %s' % (S(d), S(base)), 's_mov_b32 %s, %s' % (S(d + 1), S(base + 1)),
          's_mov_b32 %s, 0x%x' % (S(d + 2), size), 's_mov_b32 %s, 0x20000' % S(d + 3)]

def resolve(L):
    out = []; ops = []; cur = None; nopt = 0; lks = []; waited = set()
    for l in L:
        if l == 'OPT_BEGIN': nopt += 1; cur = nopt; continue
        if l == 'OPT_END': cur = None; continue
        if l.startswith('LK '):
            _, tag, ins = l.split(' ', 2); lks.append(tag); out.append(ins); continue
        if l.startswith('ds_'): lks.append('_')
        if l.startswith('WAITLK '):
            tag = l.split(' ')[1]
            idx = max(k for k, o in enumerate(lks) if o == tag)
            out.append('s_waitcnt lgkmcnt(%d)' % min(len(lks) - 1 - idx, 15)); continue
        if l.startswith('VM '):
            _, tag, ins = l.split(' ', 2); assert tag not in waited, tag
            ops.append((tag, cur)); out.append(ins); continue
        if l.startswith('WAITVM '):
            parts = l.split(' ', 2); tag = parts[1]; extra = (' ' + parts[2]) if len(parts) > 2 else ''
            waited.add(tag)
            idx = max(k for k, o in enumerate(ops) if o[0] == tag)
            n = sum(1 for o in ops[idx + 1:] if (o[1] is None or o[1] == cur))
            out.append('s_waitcnt vmcnt(%d)%s' % (min(n, 63), extra)); continue
        assert not (l.startswith('buffer_') or l.startswith('global_')), l
        out.append(l[4:] if l.startswith('RAW ') else l)
    return out

def weave(mm, *streams):
    out = []; idx = [0] * len(streams)
    def put(u): out.extend(u if isinstance(u, list) else [u])
    for m in mm:
        put(m)
        for k, s in enumerate(streams):
            if idx[k] < len(s): put(s[idx[k]]); idx[k] += 1
    for k, s in enumerate(streams):
        for u in s[idx[k]:]: put(u)
    return out

TRANS_OPS = ('v_exp_f32', 'v_rcp_f32', 'v_sin_f32', 'v_cos_f32')
def cost(u):
    c = 0; n = 0
    for i in (u if isinstance(u, list) else [u]):
        if i.endswith(':') or i.startswith('OPT_'): continue
        n += 1
        if i.startswith('VM '): c += 15
        elif i.split()[0] in TRANS_OPS: c += 8
        elif i.startswith('s_') or i.startswith('WAIT'): pass
        else:
            assert not i.startswith('v_pk_'), i
            c += 4
    return c, n
VB = int(os.environ.get('VB', 8))
def sched(mm, rd, hi, lo, pace=1, state=None):
    out = []; rd = list(rd)
    state = state if state is not None else [99]
    def put(u): out.extend(u if isinstance(u, list) else [u])
    for k, m in enumerate(mm):
        put(m)
        state[0] += 1
        vb = VB; sl = 3
        if k + 1 < len(mm) and isinstance(mm[k + 1], list): sl -= len(mm[k + 1]) - 1
        left = len(mm) - k
        q = hi if (hi and (cost(hi[0])[0] < 15 or state[0] >= pace)) else lo
        if q and (cost(q[0])[0] > 4 or cost(q[0])[1] > 2) and len(rd) <= 2 * (left - 1):
            c, n = cost(q[0]); put(q.pop(0)); vb -= c; sl -= n
            if c >= 15: state[0] = 0
        else:
            n = 0 if not rd else (1 if len(rd) <= left else 2)
            for _ in range(n): put(rd.pop(0)); vb -= 4; sl -= 1
        while True:
            done = True
            for q in (hi, lo):
                if q and cost(q[0])[0] <= max(vb, 0) and cost(q[0])[1] <= sl:
                    c, n = cost(q[0]); vb -= c; sl -= n; put(q.pop(0)); done = False; break
            if done: break
    out += rd
    return out

def spread(main, units, start=0, end=None):
    end = len(main) if end is None else end
    out = list(main[:start]); n = len(units); seg = main[start:end]
    for k in range(n):
        out += seg[len(seg) * k // n: len(seg) * (k + 1) // n] if False else []
    pos = [len(seg) * k // n for k in range(n)] if n else []
    ui = 0
    for k, ins in enumerate(seg):
        while ui < n and pos[ui] == k:
            out += units[ui] if isinstance(units[ui], list) else [units[ui]]; ui += 1
        out.append(ins)
    for u in units[ui:]: out += u if isinstance(u, list) else [u]
    return out + list(main[end:])


def build_kernel():
    flat = lambda U: [i for u in U for i in (u if isinstance(u, list) else [u])]
    sa = Alloc('s', 16, 102)
    rX = sa(4); rW1 = sa(4); rW2 = sa(4); rWS = sa(4); rBI = rWR = sa(4); rGW = rWI = sa(4); rOUT = sa(4)
    sT, sT2, sT3, sSpin, sTag, sW, sM = 3, 4, 5, 6, 7, 8, 9
    sPC = 12; sEp = 14; sW8 = 15
    sI = sa(); sC = sa(); sN2 = sa(); sPar = sa(); sKS = sa(); sNB = sa(); sXc = sa(); sSig = sa(); sN2f = sa(); sM0x = sa()
    sInv448 = sa(); sM448 = sa(); sG = sa(); sG2 = sa(); sR0 = sa(4)
    va = Alloc('v', 1, NV)
    vST = va(); vL = va(); vQ = va(); vJ = va(); t0 = va(); t1 = va(); t2 = va(); t3 = va(); vL16 = va(); vZero = va(); vTag = va()
    vXr = va(2, 1); vPa = va(); vPv = va(); vLF = va(); vOne = va(); vQ8 = va()
    npoll = [0]; slow = []
    stamps = {'M': ['r0', 'start'], 'S': ['r0', 'start']}
    def mk_st(L, role):
        def st(name, real=False):
            if not STAMP: return
            if os.environ.get('STSEL') and name not in os.environ['STSEL'].split(','): return
            stamps[role].append(name)
            L.extend(['%s s[10:11]' % ('s_memrealtime' if real else 's_memtime'), 's_waitcnt lgkmcnt(0)',
                      'v_writelane_b32 %s, s10, %d' % (V(vST), len(stamps[role]) - 1)])
        return st
    def poll_issue(tag):
        return ['VM %s buffer_load_dword %s, %s, %s, 0 offen %s' % (tag, V(vPv), V(vPa), S(rWS, 4), SC)]
    def poll_check(tag):
        n = npoll[0]; npoll[0] += 1
        slow.extend(['slow%d:' % n, 's_mov_b32 %s, 0' % S(sSpin), 'slowl%d:' % n, 's_sleep %d' % P('SLP_' + tag, P('SLP', 6)),
                     'buffer_load_dword %s, %s, %s, 0 offen %s' % (V(vPv), V(vPa), S(rWS, 4), SC),
                     's_waitcnt vmcnt(0)', 'v_cmp_ne_u32 vcc, %s, %s' % (S(sTag), V(vPv)), 's_add_u32 %s, %s, 1' % (S(sSpin), S(sSpin)),
                     's_nop 0', 's_cbranch_vccz back%d' % n, 's_cmp_lt_u32 %s, %d' % (S(sSpin), SPIN_MAX),
                     's_cbranch_scc1 slowl%d' % n, 's_branch back%d' % n])
        return ['WAITVM %s' % tag, 'v_cmp_ne_u32 vcc, %s, %s' % (S(sTag), V(vPv)), 's_nop 1', 's_cbranch_vccnz slow%d' % n, 'back%d:' % n]
    sCk = sa(2); sCk2 = sa(2)
    def dcheck(tag, cmps, reload, pre=[]):
        n = npoll[0]; npoll[0] += 1
        test = list(pre)
        for k, (op, s0_, r) in enumerate(cmps):
            d = 'vcc' if k == 0 else S(sCk if k & 1 else sCk2, 2)
            test += ['%s %s, %s, %s' % (op, d, s0_, r)]
            if k >= 2: test += ['s_or_b64 vcc, vcc, %s' % S(sCk2 if k & 1 else sCk, 2)]
        last = len(cmps) - 1
        test += ['s_or_b64 vcc, vcc, %s' % (S(sCk if last & 1 else sCk2, 2) if last else 'vcc')]
        slow.extend(['slow%d:' % n, 's_mov_b32 %s, 0' % S(sSpin), 'slowl%d:' % n, 's_sleep %d' % P('SLP', 4)] + reload + ['s_waitcnt vmcnt(0)'] + test +
                    ['s_cbranch_scc0 back%d' % n, 's_add_u32 %s, %s, 1' % (S(sSpin), S(sSpin)), 's_cmp_lt_u32 %s, %d' % (S(sSpin), SPIN_MAX),
                     's_cbranch_scc1 slowl%d' % n, 's_branch back%d' % n])
        return [['WAITVM %s' % tag]] + [[i] for i in test[:-1]] + [[test[-1], 's_cbranch_scc1 slow%d' % n, 'back%d:' % n]]
    def spoll(name, locs, exp, first=0):
        n = npoll[0]; npoll[0] += 1
        rs = [sCk, sCk + 1, sCk2, sCk2 + 1]
        o = ['s_mov_b32 %s, 0' % S(sSpin), 'sp%d:' % n]
        o += ['s_load_dword %s, %s, %s offset:%d glc' % (S(rs[k]), S(rWS, 2), S(so), im) for k, (so, im) in enumerate(locs)]
        o += ['s_add_u32 %s, %s, 1' % (S(sSpin), S(sSpin)), 's_cmp_ge_u32 %s, %d' % (S(sSpin), SPIN_MAX), 's_cbranch_scc1 spd%d' % n, 's_waitcnt lgkmcnt(0)']
        for k in range(len(locs)):
            o += ['s_xor_b32 %s, %s, %s' % (S(rs[k]), S(rs[k]), S(exp))]
            if k: o += ['s_or_b32 %s, %s, %s' % (S(rs[0]), S(rs[0]), S(rs[k]))]
        o += ['s_cbranch_scc1 sp%d' % n, 'spd%d:' % n, 's_waitcnt lgkmcnt(0)']
        return o
    def apoll(name, locs, exp):
        n = npoll[0]; npoll[0] += 1
        rs = [sCk, sCk + 1, sCk2, sCk2 + 1]
        ld = ['s_load_dword %s, %s, %s offset:%d glc' % (S(rs[k]), S(rWS, 2), S(so), im) for k, (so, im) in enumerate(locs)]
        t = ['s_waitcnt lgkmcnt(0)']
        for k in range(len(locs)):
            t += ['s_xor_b32 %s, %s, %s' % (S(rs[k]), S(rs[k]), S(exp))]
            if k: t += ['s_or_b32 %s, %s, %s' % (S(rs[0]), S(rs[0]), S(rs[k]))]
        slow.extend(['slow%d:' % n, 's_mov_b32 %s, 0' % S(sSpin), 'slowl%d:' % n] + (['s_sleep %d' % P('SSL', 2)] if P('SSL', 2) else []) + ld + t +
                    ['s_cbranch_scc0 back%d' % n, 's_add_u32 %s, %s, 1' % (S(sSpin), S(sSpin)), 's_cmp_lt_u32 %s, %d' % (S(sSpin), SPIN_MAX),
                     's_cbranch_scc1 slowl%d' % n, 's_branch back%d' % n])
        return ld, t + ['s_cbranch_scc1 slow%d' % n, 'back%d:' % n]
    sflag = lambda so: ['s_atomic_swap %s, %s, %s' % (S(sTag), S(rWS, 2), S(so))]
    raw = lambda U: [i.split(' ', 2)[2] if i.startswith('VM ') else i for i in flat(U)]
    def setflag(sOff):
        return ['VM flag buffer_store_dword %s, %s, %s, %s offen %s' % (V(vTag), V(vZero), S(rWS, 4), S(sOff), SC)]
    def lsig(k, vtmp):
        return ['v_lshl_add_u32 %s, %s, 2, %s' % (V(vtmp), S(sW), V(vZero)), 'ds_write_b32 %s, %s offset:%d' % (V(vtmp), V(vOne), LF - 131072 + k * 16)] if False else \
               ['ds_write_b32 %s, %s offset:%d' % (V(vLW), V(vOne), k * 16)]
    def lwait(k, vtmp, reg=None):
        n = npoll[0]; npoll[0] += 1
        return ['lw%d:' % n, 'ds_read_b32 %s, %s offset:%d' % (V(vtmp), V(vLF if reg is None else reg), k * 16), 's_waitcnt lgkmcnt(0)',
                'v_cmp_ne_u32 vcc, 1, %s' % V(vtmp), 's_nop 1', 's_cbranch_vccnz lw%d' % n]
    vLW = va()
    def sx(dst, terms, const=0, tmp=None):
        tmp = sT if tmp is None else tmp
        o = []
        for k, (r, c) in enumerate(terms):
            d = dst if k == 0 else tmp
            if c == 1:
                o += ['s_mov_b32 %s, %s' % (S(d), S(r))] if k == 0 else ['s_add_u32 %s, %s, %s' % (S(dst), S(dst), S(r))]
                continue
            o += ['s_mul_i32 %s, %s, %d' % (S(d), S(r), c)]
            if k: o += ['s_add_u32 %s, %s, %s' % (S(dst), S(dst), S(tmp))]
        if const: o += ['s_add_u32 %s, %s, 0x%x' % (S(dst), S(dst), const)]
        return o
    def group_vm(U):
        out = []; cur = []
        for u in U:
            cur += u
            if any(i.startswith('VM ') for i in u): out.append(cur); cur = []
        if cur: out[-1] += cur
        return out
    def with_waits(tag, order, mk, step=3):
        o = []
        for n, T in enumerate(order):
            ms = mk(T)
            if n % step == 0: ms[0] = ['WAITLK %s_%d' % (tag, order[min(n + step - 1, len(order) - 1)]), ms[0]]
            o += ms
        return o
    tagc = ['s_mul_i32 %s, %s, 0x9e3779b1' % (S(sTag), S(sEp)), 's_add_u32 %s, %s, 0x7f4a7c15' % (S(sTag), S(sTag)), 'v_mov_b32 %s, %s' % (V(vTag), S(sTag))]
    epld = ['s_add_u32 %s, %s, 0x%x' % (S(sPC), S(rWS), EP_OFF), 's_addc_u32 %s, %s, 0' % (S(sPC + 1), S(rWS + 1)), 's_load_dword %s, %s, 0' % (S(sEp), S(sPC, 2))]
    def finish(L, st, role):
        if STAMP:
            st('end'); st('r1', True)
            L += ['s_add_u32 s4, %s, 0x%x' % (S(rWS), TS_OFF), 's_addc_u32 s5, %s, 0' % S(rWS + 1), 's_mov_b32 s6, 0x100000', 's_mov_b32 s7, 0x20000',
                  's_lshl_b32 s13, s2, 3', 's_add_u32 s13, s13, %s' % S(sW8), 's_lshl_b32 s13, s13, 8', 'v_lshlrev_b32 %s, 2, %s' % (V(t0), V(vL)),
                  'VM x buffer_store_dword %s, %s, s[4:7], s13 offen' % (V(vST), V(t0))]
        L += ['s_endpgm']

    H = ['.p2align 8', '.type %s,@function' % LABEL, '%s:' % LABEL, 's_cmp_ge_u32 s2, 256', 's_cbranch_scc1 L_end']
    for r_, off in ((rX, 0), (rW1, 32), (rWS, 80), (rW2, 48)):
        H += ['s_load_dwordx2 %s, s[0:1], %d' % (S(r_, 2), off)]
    if STAMP: H += ['v_mov_b32 %s, 0' % V(vST), 's_memrealtime %s' % S(sR0, 2), 's_memtime %s' % S(sR0 + 2, 2)]
    H += ['v_and_b32 %s, 63, v0' % V(vL), 'v_lshrrev_b32 %s, 6, v0' % V(t0), 's_lshr_b32 %s, s2, 3' % S(sM), 's_and_b32 %s, s2, 7' % S(sXc),
          'v_readfirstlane_b32 %s, %s' % (S(sW8), V(t0)), 'v_lshrrev_b32 %s, 4, %s' % (V(vQ), V(vL)), 'v_and_b32 %s, 15, v0' % V(vJ),
          's_lshr_b32 %s, %s, 2' % (S(sI), S(sXc)), 's_lshl_b32 %s, %s, 3' % (S(sI), S(sI)),
          's_lshr_b32 %s, %s, 2' % (S(sT3), S(sM)), 's_add_u32 %s, %s, %s' % (S(sI), S(sI), S(sT3)),
          's_and_b32 %s, %s, 3' % (S(sW), S(sW8)),
          's_and_b32 %s, %s, 3' % (S(sKS), S(sXc)), 's_and_b32 %s, %s, 3' % (S(sNB), S(sM)),
          's_lshl_b32 %s, %s, 2' % (S(sC), S(sKS)), 's_add_u32 %s, %s, %s' % (S(sC), S(sC), S(sNB)),
          's_lshl_b32 %s, %s, 2' % (S(sN2f), S(sI)), 's_add_u32 %s, %s, %s' % (S(sN2), S(sN2f), S(sW)),
          's_and_b32 %s, %s, 1' % (S(sPar), S(sC))]
    H += {0: ['s_lshl_b32 %s, %s, 1' % (S(sSig), S(sNB)), 's_add_u32 %s, %s, %s' % (S(sSig), S(sSig), S(sT3)),
              's_sub_u32 %s, %s, 7' % (S(sT), S(sSig)), 's_min_u32 %s, %s, %s' % (S(sSig), S(sSig), S(sT))],
          1: ['s_mov_b32 %s, 0' % S(sSig)],
          2: ['s_add_u32 %s, %s, %s' % (S(sSig), S(sNB), S(sT3)), 's_and_b32 %s, %s, 1' % (S(sSig), S(sSig)), 's_lshl_b32 %s, %s, 2' % (S(sSig), S(sSig))],
          4: ['s_add_u32 %s, %s, %s' % (S(sSig), S(sNB), S(sT3)), 's_and_b32 %s, %s, 3' % (S(sSig), S(sSig)), 's_lshl_b32 %s, %s, 1' % (S(sSig), S(sSig))]}[P('ROT', 0)]
    H += ['s_xor_b32 %s, %s, %d' % (S(sNB), S(sNB), P('NBX', 1)), 's_lshl_b32 %s, %s, 12' % (S(sM0x), S(sW)),
          's_mov_b32 %s, 0x%x' % (S(rWS + 2), WS_END), 's_mov_b32 %s, 0x20000' % S(rWS + 3),
          's_cmp_ge_u32 %s, 4' % S(sW8), 's_cbranch_scc1 L_S']
    common2 = ['v_lshlrev_b32 %s, 4, %s' % (V(vL16), V(vL)), 'v_mov_b32 %s, 0' % V(vZero), 'v_mov_b32 %s, 1' % V(vOne), 'v_lshlrev_b32 %s, 3, %s' % (V(vQ8), V(vQ)),
               's_add_u32 %s, %s, %s' % (S(sN2f), S(sN2f), S(sKS)),
               's_mov_b32 %s, %s' % (S(sInv448), f2u(1.0 / 448)), 's_mov_b32 %s, %s' % (S(sM448), f2u(-448.0)),
               'v_lshrrev_b32 %s, 1, %s' % (V(t3), V(vJ)), 'v_xor_b32 %s, %s, %s' % (V(t3), V(t3), V(vQ)),
               'v_lshlrev_b32 %s, 4, %s' % (V(t3), V(t3)), 'v_lshl_add_u32 %s, %s, 7, %s' % (V(t3), V(vJ), V(t3)),
               'v_add_u32 %s, %s, %s' % (V(vXr), S(sM0x), V(t3)), 'v_xor_b32 %s, 64, %s' % (V(vXr + 1), V(vXr)),
               'v_and_b32 %s, 3, %s' % (V(vLF), V(vL)), 'v_lshlrev_b32 %s, 2, %s' % (V(vLF), V(vLF)), 'v_add_u32 %s, %d, %s' % (V(vLF), LF, V(vLF)),
               's_lshl_b32 %s, %s, 2' % (S(sG), S(sW)), 's_add_u32 %s, %s, %d' % (S(sG), S(sG), LF), 'v_mov_b32 %s, %s' % (V(vLW), S(sG))]
    wst = ['v_writelane_b32 %s, %s, 0' % (V(vST), S(sR0)), 'v_writelane_b32 %s, %s, 1' % (V(vST), S(sR0 + 2))] if STAMP else []
    if P('WSB', 0): wst += ['s_add_u32 %s, %s, 0x%x' % (S(rWS), S(rWS), P('WSB', 0) << 20), 's_addc_u32 %s, %s, 0' % (S(rWS + 1), S(rWS + 1))]
    sXb = sa(); sWb = sa(); sXs = sa(); sWs = sa(); sM0w = sa(); sW2b = sa()
    vXs = va(2, 1); vW1s = va(); vW2s = va()
    dmaddr = ['s_mul_i32 %s, %s, 896' % (S(sXb), S(sN2))] + sx(sWb, [(sC, 224), (sW, 8 * 3584)])
    dmaddr += ['s_mul_i32 %s, %s, 896' % (S(sM0w), S(sW)), 's_lshl_b32 %s, %s, 1' % (S(sT2), S(sPar)),
          'v_lshrrev_b32 %s, 3, %s' % (V(t0), V(vL)), 'v_mul_u32_u24 %s, 57344, %s' % (V(t0), V(t0)),
          'v_and_b32 %s, 7, %s' % (V(t1), V(vL)), 'v_xor_b32 %s, %s, %s' % (V(t1), V(t1), V(vQ)),
          'v_lshl_add_u32 %s, %s, 4, %s' % (V(vXs), V(t1), V(t0)),
          'v_xor_b32 %s, 64, %s' % (V(vXs + 1), V(vXs)), 'v_add_u32 %s, %d, %s' % (V(vXs + 1), 8 * 57344, V(vXs + 1)),
          'v_mul_u32_u24 %s, 4682, %s' % (V(t0), V(vL)), 'v_lshrrev_b32 %s, 16, %s' % (V(t0), V(t0)),
          'v_mul_u32_u24 %s, 14, %s' % (V(t1), V(t0)), 'v_sub_u32 %s, %s, %s' % (V(t1), V(vL), V(t1)),
          'v_mul_u32_u24 %s, 896, %s' % (V(t2), V(t0)), 'v_lshl_add_u32 %s, %s, 4, %s' % (V(vW2s), V(t1), V(t2)),
          'v_add_u32 %s, %s, %s' % (V(t1), S(sT2), V(t1)), 'v_subrev_u32 %s, 14, %s' % (V(t2), V(t1)), 'v_min_u32 %s, %s, %s' % (V(t1), V(t1), V(t2)),
          'v_mul_u32_u24 %s, 3584, %s' % (V(t2), V(t0)), 'v_lshl_add_u32 %s, %s, 4, %s' % (V(vW1s), V(t1), V(t2))]
    for r_, sz in ((rX, X_SZ), (rW1, W1_SZ), (rW2, W2_SZ)):
        dmaddr += ['s_mov_b32 %s, 0x%x' % (S(r_ + 2), sz), 's_mov_b32 %s, 0x20000' % S(r_ + 3)]
    def stage_loads(s):
        slot = s % 4
        U = [['s_lshl_b32 %s, %s, 7' % (S(sXs), S(sSig))], ['s_add_u32 %s, %s, %s' % (S(sXs), S(sXs), S(sXb))],
             ['s_mul_i32 %s, %s, %d' % (S(sWs), S(sSig), 64 * 3584)], ['s_add_u32 %s, %s, %s' % (S(sWs), S(sWs), S(sWb))]]
        for kk in range(2):
            for e in (2 * kk, 2 * kk + 1):
                if e == 2: U += [['s_add_u32 %s, %s, 917504' % (S(sXs), S(sXs))]]
                U += [['s_add_u32 m0, %s, %d' % (S(sM0x), XR + slot * 16384 + e * 1024)],
                      [('VM st%d buffer_load_dwordx4 %s, %s, %s offen' + NT + ' lds') % (s, V(vXs + (e & 1)), S(rX, 4), S(sXs))]]
            for b2 in range(2):
                if kk or b2: U += [['s_add_u32 %s, %s, %d' % (S(sWs), S(sWs), (4 if b2 else 28) * 3584)]]
                U += [['s_add_u32 m0, %s, %d' % (S(sM0w), W1R + slot * 14336 + (32 * kk + 16 * b2) * 224)],
                      ['s_mov_b32 exec_hi, 0xffffff', ('VM st%d buffer_load_dwordx4 %s, %s, %s offen' + NT + ' lds') % (s, V(vW1s), S(rW1, 4), S(sWs)), 's_mov_b32 exec_hi, -1']]
        U += [['s_add_u32 %s, %s, 1' % (S(sSig), S(sSig))], ['s_cmp_eq_u32 %s, 7' % S(sSig), 's_cselect_b32 %s, 0, %s' % (S(sSig), S(sSig))]]
        return U
    sWp = sa(4, 1); sWm = sa(4, 1); sC4 = sa()
    SLOT = [(0, 0), (0, 1), (0, 2), (1, 0), (1, 1), (1, 2), ('m', 0), (2, 0), (2, 1), (2, 2), (3, 0), ('m', 1), (3, 1), (3, 2)]
    w2tab = ['s_and_b32 %s, %s, 3' % (S(sC4), S(sC))] + sx(sW2b, [(sKS, 448 * 896), (sW, 4 * 896), (sNB, 224)])
    for d in range(4):
        w2tab += ['s_xor_b32 %s, %s, %d' % (S(sT), S(sC4), d), 's_mul_i32 %s, %s, 7' % (S(sT), S(sT)), 's_add_u32 %s, %s, 1' % (S(sT), S(sT)), 's_lshr_b32 %s, %s, 1' % (S(sT), S(sT)),
                  's_mul_i32 %s, %s, 28672' % (S(sT), S(sT)), 's_add_u32 %s, %s, %s' % (S(sWp + d), S(sT), S(sW2b))]
    for mm_ in range(2):
        w2tab += ['s_lshr_b32 %s, %s, 1' % (S(sT), S(sC4)), 's_xor_b32 %s, %s, %d' % (S(sT), S(sT), mm_), 's_mul_i32 %s, %s, %d' % (S(sT), S(sT), 7 * 28672),
                  's_add_u32 %s, %s, %s' % (S(sT), S(sT), S(sW2b)), 's_add_u32 %s, %s, %d' % (S(sT), S(sT), 3 * 28672),
                  's_mul_i32 %s, %s, %d' % (S(sT2), S(sPar), 16 * 896), 's_add_u32 %s, %s, %s' % (S(sWm + 2 * mm_), S(sT), S(sT2)),
                  's_sub_u32 %s, %s, %s' % (S(sT), S(sT), S(sT2)), 's_add_u32 %s, %s, %d' % (S(sWm + 2 * mm_ + 1), S(sT), 16 * 896)]
    def w2_loads(t):
        U = []
        for kk in range(2):
            d, Pp = SLOT[2 * t + kk]
            for b2 in range(2):
                if d == 'm': so = sWm + 2 * Pp + b2
                elif Pp == 0 and b2 == 0: so = sWp + d
                else: so = sWs; U += [['s_add_u32 %s, %s, %d' % (S(sWs), S(sWp + d), (32 * Pp + 16 * b2) * 896)]]
                U += [['s_add_u32 m0, %s, %d' % (S(sM0w), W2B[t] + (32 * kk + 16 * b2) * 224)],
                      ['s_mov_b32 exec_hi, 0xffffff', 'VM w2_%d buffer_load_dwordx4 %s, %s, %s offen lds' % (t, V(vW2s), S(rW2, 4), S(so)), 's_mov_b32 exec_hi, -1']]
        return U
    vbase = va.next; sbase = sa.next
    xread = lambda ks, XF: ['LK a%d_x ds_read_b128 %s, %s offset:%d' % (ks, A(XF[ks & 1][rt], 4), V(vXr + (ks & 1)), XR + ((ks // 2) % 4) * 16384 + rt * 2048) for rt in range(2)]

    L = []; st = mk_st(L, 'M')
    va = Alloc('v', vbase, NV); sa = Alloc('s', sbase, 102); aa = Alloc('a', 0, NA)
    sL2E = sa(2); sAct = sa(4, 1); sPTs = sa(); sJunk = sa(); sFG = sa(); sFP = sa(); sFGp = sa()
    vTr = va(2, 1)
    accb = va(56, 4)
    ACC = [[accb + 28 * rt + 4 * T for T in range(7)] for rt in range(2)]
    fr = va(56, 4)
    OWN = [[va(4) for rt in range(2)] for Pp in range(3)]
    assert OWN[0][0] == fr + 56
    RG = [fr + 8 * k for k in range(9)]
    U0 = [va(4) for d in range(4)]
    vB = [fr + 4 * T for T in range(7)]
    tmpA = fr + 32; c2 = fr + 48
    WF = [[aa(4) for T in range(7)] for b in range(2)]
    XF = [[aa(4) for rt in range(2)] for b in range(2)]
    vBraw = [accb + 2 * T for T in range(7)]; vCP = accb + 16
    L += ['s_load_dwordx2 %s, s[0:1], 40' % S(rBI, 2), 's_load_dwordx2 %s, s[0:1], 56' % S(rGW, 2)]
    L += ['s_getpc_b64 %s' % S(sPC, 2), 'L_pc:', 's_and_b32 %s, %s, 15' % (S(sT), S(sM)), 's_lshl_b32 %s, %s, 11' % (S(sT), S(sT)),
          'v_lshrrev_b32 %s, 4, v0' % V(t1), 'v_lshl_add_u32 %s, %s, 7, %s' % (V(t1), V(t1), S(sT)), 'v_min_u32 %s, L_end-L_pc, %s' % (V(t1), V(t1)),
          'v_mov_b32 %s, %s' % (V(vCP + 1), S(sPC + 1)), 'v_add_co_u32 %s, vcc, %s, %s' % (V(vCP), S(sPC), V(t1)),
          'v_addc_co_u32 %s, vcc, 0, %s, vcc' % (V(vCP + 1), V(vCP + 1)), 'VM pf global_load_dword %s, %s, off' % (V(vPv), V(vCP, 2))]
    L += [i for i in dmaddr if i != 'W2S'] + common2
    L += ['s_mov_b32 %s, 3584' % S(rBI + 2), 's_mov_b32 %s, 0x20000' % S(rBI + 3)]
    L += sx(sG, [(sC, 224), (sPar, 32)]) + sx(sG2, [(sC, 224), (sPar, -192)], 192)
    s0 = flat(stage_loads(0))
    L += s0[:4] + ['s_waitcnt lgkmcnt(0)'] + wst
    st('ka')
    if P('STLB', 1):
        for k, r_ in enumerate((rW1, rX, rBI, rW2)): L += ['s_load_dword %s, %s, 0' % (S(sJunk), S(r_, 2))]
    bl = ['VM bias buffer_load_dwordx2 %s, %s, %s, %s offen offset:%d' % (V(vBraw[T], 2), V(vQ8), S(rBI, 4), S(sG2 if T == 6 else sG), 32 * T if T < 6 else 0) for T in range(7)]
    gwl = ['s_cmp_lg_u32 %s, 15' % S(sC), 's_cbranch_scc1 L_nogw', 'OPT_BEGIN', 'v_lshlrev_b32 %s, 4, %s' % (V(t0), V(vQ)),
           's_mov_b32 %s, 896' % S(rGW + 2), 's_mov_b32 %s, 0x20000' % S(rGW + 3), 's_lshl_b32 %s, %s, 1' % (S(sT3), S(sSig)), 's_add_u32 %s, %s, %s' % (S(sT3), S(sT3), S(sW)),
           's_lshl_b32 %s, %s, 11' % (S(sSpin), S(sW))]
    for a2 in range(4):
        gwl += ['s_add_u32 %s, %s, %d' % (S(sT2), S(sT3), 4 * a2), 's_sub_u32 %s, %s, 14' % (S(sT), S(sT2)), 's_min_u32 %s, %s, %s' % (S(sT2), S(sT2), S(sT)),
                's_lshl_b32 %s, %s, 6' % (S(sT2), S(sT2)), 's_add_u32 m0, %s, %d' % (S(sSpin), FL + a2 * 8192),
                'VM gw buffer_load_dwordx4 %s, %s, %s offen lds' % (V(t0), S(rGW, 4), S(sT2))]
    gwl += ['OPT_END', 'L_nogw:']
    wst_ = []
    for k in range(4):
        wst_ += ['s_lshl_b32 %s, %s, 21' % (S(sT2), S(sW)), 's_add_u32 %s, %s, 0x%x' % (S(sT2), S(sT2), k << 23), 's_load_dword %s, %s, %s' % (S(sJunk), S(rWS, 2), S(sT2))]
    L += epld + gwl + (bl + s0[4:] if P('BFIRST', 0) else s0[4:] + bl)
    st('s0i')
    if P('WTLB', 1): L += wst_
    L += w2tab
    L += ['v_lshrrev_b32 %s, 2, %s' % (V(t3), V(vL)), 'v_mul_u32_u24 %s, 224, %s' % (V(vTr), V(t3)),
          'v_and_b32 %s, 3, %s' % (V(t3), V(vL)), 'v_lshl_add_u32 %s, %s, 3, %s' % (V(vTr), V(t3), V(vTr)), 'v_add_u32 %s, 65536, %s' % (V(vTr + 1), V(vTr)),
          's_mov_b32 %s, %s' % (S(sL2E), f2u(LOG2E)), 's_mov_b32 %s, %s' % (S(sL2E + 1), f2u(LOG2E))]
    for d in range(4):
        L += ['s_xor_b32 %s, %s, %d' % (S(sT2), S(sC), d)] + sx(sAct + d, [(sN2, ACT_N2), (sT2, ACT_C)], ACT_OFF)
    L += sx(sPTs, [(sN2, 16 * PART_B), (sNB, 4 * PART_B), (sKS, PART_B)], PART_OFF)
    L += sx(sFG, [(sN2, 16 * FS), (sC, FS)], FG_OFF) + sx(sFP, [(sN2, 16 * FS), (sNB, 4 * FS), (sKS, FS)], FP_OFF)
    L += sx(sFGp, [(sN2, 16 * FS), (sKS, 4 * FS)], FG_OFF)
    L += ['v_add_u32 %s, 4096, %s' % (V(t0), V(vL16)), 'v_add_u32 %s, 8192, %s' % (V(t1), V(vL16)), 'v_add_u32 %s, %d, %s' % (V(t2), OPL, V(vL16))]
    vU = [vL16, t0, t1]
    uaddr = lambda u: (V(vU[u // 4]), (u % 4) * 1024)
    cm2 = c2 + 2; c1 = c2 + 4
    L += ['v_mov_b32 %s, 2.0' % V(c2), 'v_mov_b32 %s, 2.0' % V(c2 + 1), 'v_mov_b32 %s, -2.0' % V(cm2), 'v_mov_b32 %s, -2.0' % V(cm2 + 1),
          'v_mov_b32 %s, 1.0' % V(c1), 'v_mov_b32 %s, 1.0' % V(c1 + 1)]
    L += flat(stage_loads(1)) + ['WAITVM bias']
    bcv = []
    for T in range(7):
        for hh in range(2):
            bcv += ['v_lshlrev_b32 %s, 16, %s' % (V(vB[T] + 2 * hh), V(vBraw[T] + hh)), 'v_and_b32 %s, 0xffff0000, %s' % (V(vB[T] + 2 * hh + 1), V(vBraw[T] + hh))]
    L += ['WAITVM st0 lgkmcnt(0)']
    st('pro')
    def tr_reads(tag, dst, base, order):
        reg = vTr + (base >= 65536); off = base - (65536 if base >= 65536 else 0)
        return ['LK %s_%d ds_read_b64_tr_b16 %s, %s offset:%d' % (tag, T, A(dst[T] + 2 * b, 2), V(reg), off + b * 3584 + T * 32) for T in order for b in range(2)]
    ORD = [6, 0, 1, 2, 3, 4, 5]
    readsA = lambda ks: xread(ks, XF) + tr_reads('a%d' % ks, WF[ks & 1], W1R + ((ks // 2) % 4) * 14336 + (ks & 1) * 7168, ORD)
    mfA = lambda ks: with_waits('a%d' % ks, ORD, lambda T: ['%s %s, %s, %s, %s' % (MFMA, V(ACC[rt][T], 4), A(WF[ks & 1][T], 4), A(XF[ks & 1][rt], 4),
                                                            V(ACC[rt][T], 4) if ks else V(vB[T], 4)) for rt in range(2)], 3)
    L += ['s_barrier']
    st('b0')
    L += readsA(0) + bcv + tagc
    for ks in range(14):
        if ks == 13: L += lsig(9, t3)
        elif ks & 1: L += (['WAITVM st1'] if ks == 1 else []) + ['s_barrier']
        if ks & 1: st('b%d' % ((ks + 1) // 2))
        L += sched(mfA(ks), readsA(ks + 1) if ks < 13 else [], [], [])
    L += ['s_setprio %d' % P('PRM', 0)]
    st('mainA')
    def mish(src, dst, E, Aa):
        nv = 4 * len(src)
        h = lambda k: src[k // 4] + (k % 4)
        o = []
        for k in range(0, nv, 2): o += ['v_pk_mul_f32 %s, %s, %s' % (V(E + k, 2), V(h(k), 2), S(sL2E, 2))]
        for k in range(nv): o += ['v_exp_f32 %s, %s' % (V(E + k), V(E + k))]
        for k in range(0, nv, 2): o += ['v_pk_add_f32 %s, %s, %s' % (V(Aa + k, 2), V(E + k, 2), V(c2, 2))]
        for k in range(0, nv, 2): o += ['v_pk_fma_f32 %s, %s, %s, %s' % (V(E + k, 2), V(E + k, 2), V(Aa + k, 2), V(c2, 2))]
        for k in range(nv): o += ['v_rcp_f32 %s, %s' % (V(E + k), V(E + k))]
        for k in range(0, nv, 2): o += ['v_pk_fma_f32 %s, %s, %s, %s' % (V(E + k, 2), V(E + k, 2), V(cm2, 2), V(c1, 2))]
        for k in range(0, nv, 2): o += ['v_pk_mul_f32 %s, %s, %s' % (V(E + k, 2), V(E + k, 2), V(h(k), 2))]
        for k in range(0, nv, 2): o += ['v_cvt_pk_bf16_f32 %s, %s, %s' % (V(dst[k // 2]), V(E + k), V(E + k + 1))]
        return o
    ust = lambda r, u: 'VM act%d buffer_store_dwordx4 %s, %s, %s, %s offen offset:%d %s' % (max(u - 1, 0) // 2, V(r, 4), uaddr(u)[0], S(rWS, 4), S(sAct), uaddr(u)[1], SC)
    L += mish([ACC[0][6], ACC[1][6]], [U0[0] + k for k in range(4)], tmpA, tmpA + 8) + [ust(U0[0], 0)]
    readsC = lambda sl: tr_reads('c%d' % sl, WF[sl & 1], W2B[sl // 2] + (sl & 1) * 7168, range(7))
    for Pp in range(3):
        for rt in range(2):
            o = OWN[Pp][rt]
            L += mish([ACC[rt][2 * Pp], ACC[rt][2 * Pp + 1]], [o + k for k in range(4)], tmpA, tmpA + 8) + [ust(o, 1 + 2 * Pp + rt)]
    st('mish')
    GR = [sl for sl in range(3, 14) if SLOT[sl][0] != 'm']
    greg = {sl: RG[k] for k, sl in enumerate(GR)}
    uld = lambda tag, r, d, u: ['VM %s buffer_load_dwordx4 %s, %s, %s, %s offen offset:%d %s' % (tag, V(r, 4), uaddr(u)[0], S(rWS, 4), S(sAct + d), uaddr(u)[1], SC)]
    def gload(sl):
        d, Pp = SLOT[sl]
        if d == 'm': return [uld('g%d' % sl, U0[dd], dd, 0) for dd in ((1,) if Pp == 0 else (2, 3))]
        return [uld('g%d' % sl, greg[sl] + 4 * k, d, 1 + 2 * Pp + k) for k in range(2)]
    def gfix(sl):
        d, Pp = SLOT[sl]
        if d != 'm': return []
        fa, fb_ = (0, 1) if Pp == 0 else (2, 3)
        return [['WAITVM g%d' % sl]] + [['v_accvgpr_write_b32 %s, %s' % (A(XF[Pp][rt] + k), V(U0[fb_ if k >= 2 else fa] + 2 * rt + (k & 1)))] for rt in range(2) for k in range(4)]
    def opC(sl, rt):
        if sl < 3: return V(OWN[sl][rt], 4)
        return A(XF[SLOT[sl][1]][rt], 4) if SLOT[sl][0] == 'm' else V(greg[sl] + 4 * rt, 4)
    mfC = lambda sl: with_waits('c%d' % sl, list(range(7)), lambda T: ['%s %s, %s, %s, %s' % (MFMA, V(ACC[rt][T], 4), A(WF[sl & 1][T], 4),
                                opC(sl, rt), V(ACC[rt][T], 4) if sl else '0') for rt in range(2)], 2)
    NS = P('W2SN', 0)
    L += lwait(6, t3) + lwait(9, t3) + readsC(0)
    W2L = P('W2L', 2)
    hi = [u for t in range(W2L + NS, 7) for u in w2_loads(t)]; pst = [99]
    hq = hi if P('OWNDMA', 0) else []
    for sl in range(3): L += sched(mfC(sl), readsC(sl + 1), hq, [], P('PACEO', 3), pst)
    st('own0')
    hg = group_vm(hi) if hi else []
    late = 4 * P('W2LATE', 0); hl = hg[len(hg) - late:]; hg = hg[:len(hg) - late]
    n0 = min(len(hg), P('FGPRE', 4)); n1 = max(n0, len(hg) - P('FGTAIL', 6))
    pl_, pc_ = apoll('fg', [(sFGp, k * FS) for k in range(4)], sTag)
    L += flat(hg[:n0]) + ['WAITVM act2'] + (sflag(sFG) if P('SFG', 1) else setflag(sFG)); st('ack')
    L += flat(hg[n0:n1]) + pl_ + flat(hg[n1:])
    st('w2i')
    tl = 6 - P('W2LATE', 0)
    L += ['WAITVM w2_%d' % tl] + lsig(0, t3) + pc_
    st('fg')
    hi = [u for sl in range(3, 14) for u in gload(sl)]
    k = P('AFPRE', 7); L += flat(hi[:k]) + lwait(0, t3); k2 = P('AFMID', 13)
    hi = hi[k:k2] + [u for t in range(tl + 1, 7) for u in w2_loads(t)] + hi[k2:]
    if NS: L += lwait(7, t3)
    TM = P('TMAJ', 0)
    for sl in range(3, 14 - TM):
        lo = gfix(sl + 1) if sl + 1 < 14 else []
        tg = 'g%d' % sl
        while any(i.startswith('VM %s ' % tg) or (lo and i.startswith('VM g%d ' % (sl + 1))) for i in flat(hi)): L += flat([hi.pop(0)])
        if late and sl == 2 * (tl + 1) - 2:
            while any(i.startswith('VM w2_') for i in flat(hi)): L += flat([hi.pop(0)])
            L += ['WAITVM w2_6'] + lsig(10, t3)
        if late and sl == 2 * (tl + 1) - 1: L += lwait(10, t3)
        if SLOT[sl][0] != 'm': L += ['WAITVM %s' % tg]
        mm = mfC(sl); rd = readsC(sl + 1) if sl < 13 else []
        L += sched(mm[:4], rd[:4], hi, [], P('PACEC', 2), pst) + sched(mm[4:], rd[4:], lo, hi, P('PACEC', 2), pst) + flat(lo)
        if sl == 3: st('c3')
    st('mainC')
    L += ['s_cmp_eq_u32 %s, %s' % (S(sW), S(sKS)), 's_cbranch_scc1 L_ownp']
    cvp = lambda T: ['v_cvt_pk_bf16_f32 %s, %s, %s' % (V(ACC[0][T] + 2 * rt + hh), V(ACC[rt][T] + 2 * hh), V(ACC[rt][T] + 2 * hh + 1)) for rt in range(2) for hh in range(2)]
    if PTAG:
        PU = [fr + 4 * k for k in range(11)]
        L += ['v_mov_b32 %s, %s' % (V(r + 3), S(sTag)) for r in PU]
        for u in range(11):
            g, k = u // 3, u % 3
            for e in range(3):
                D = 3 * k + e; T = 2 * g + D // 4
                if D < 8 and T < 7: L += ['v_cvt_pk_bf16_f32 %s, %s, %s' % (V(PU[u] + e), V(ACC[(D % 4) // 2][T] + 2 * (D % 2)), V(ACC[(D % 4) // 2][T] + 2 * (D % 2) + 1))]
            L += ['VM part buffer_store_dwordx4 %s, %s, %s, %s offen offset:%d %s' % (V(PU[u], 4), uaddr(u)[0], S(rWS, 4), S(sPTs), uaddr(u)[1], SC)]
        L += ['s_waitcnt vmcnt(%d)' % P('PGATE', 4)] + setflag(sFP)
    else:
        for T in range(7):
            L += cvp(T) + ['VM part buffer_store_dwordx4 %s, %s, %s, %s offen offset:%d %s' % (V(ACC[0][T], 4), uaddr(T)[0], S(rWS, 4), S(sPTs), uaddr(T)[1], SC)]
        L += ['s_waitcnt vmcnt(0)'] + setflag(sFP)
    L += ['s_branch L_partd', 'L_ownp:', 's_nop 7']
    for T in range(7): L += cvp(T) + ['ds_write_b128 %s, %s offset:%d' % (V(t2), V(ACC[0][T], 4), T * 1024)]
    L += ['L_partd:'] + lsig(5, t3)
    finish(L, st, 'M')
    LM = L; nvM = va.hi

    L = ['L_S:']; st = mk_st(L, 'S')
    va = Alloc('v', vbase, NV); sa = Alloc('s', sbase, 102); aa = Alloc('a', 0, NA)
    sCF = sa(); sK1 = sa(); sHF = sa(); sKP = sa(); sRot2 = sa()
    sA1o = sa(); sA1o2 = sa(); sFB = sa(); sA1x = sa(); sDFx = sa(); sPTl2 = sa(); sFA = sa(); sWo = sa(); sDFo = sa(); sB1s = sa(); sB1l = sa(); sGl = sa(); sPTl = sa(); sOut = sa()
    vAmp = va(); vFr = va(); vG = va(2); vG1 = va(2); vA1 = va()
    big = va(NV - ((va.next + 3) // 4 * 4), 4); NB = NV - big
    pa = Alloc('v', big, NV)
    MM = [[[pa(4) for u in range(4)] for t in range(2)] for e in range(2)]
    WRr = [pa(4) for t in range(2)]; WIr = [pa(4) for t in range(2)]
    fb = pa.next
    ACD = [[pa(4) for T in range(2)] for rt in range(2)]
    MR = [[pa(4) for t in range(2)] for kt in range(2)]; MI = [[pa(4) for t in range(2)] for kt in range(2)]
    tmpS = pa(24, 4)
    XF = [[aa(4) for rt in range(2)] for b in range(2)]; FF = [[aa(4) for T in range(2)] for b in range(2)]
    NR = [[aa(4) for u in range(2)] for tn in range(2)]; NI = [[aa(4) for u in range(2)] for tn in range(2)]
    BF = [[XF[0][0] + 8 * a + 4 * u for u in range(2)] for a in range(4)]
    L += ['s_load_dwordx2 %s, s[0:1], %d' % (S(r_, 2), off) for r_, off in ((rWR, 8), (rWI, 16), (rOUT, 64))]
    L += common2 + ['v_add_u32 %s, %d, %s' % (V(vFr), FL, V(vL16)),
          's_lshl_b32 %s, %s, 1' % (S(sRot2), S(sSig)), 's_add_u32 %s, %s, %s' % (S(sRot2), S(sRot2), S(sW)),
          'v_lshlrev_b32 %s, 2, %s' % (V(t0), V(vL)), 'v_add_u32 %s, %d, %s' % (V(t0), LF, V(t0)), 'ds_write_b32 %s, %s' % (V(t0), V(vZero))]
    ta = Alloc('v', big, big + 64)
    cs = ta(8); sn = ta(8); th = ta(8); pk0 = ta(4); pk1 = ta(4); vKdf = ta(); vU = ta(); vD0 = ta(); vFw = vG
    vGW = [ACD[0][0] + 4 * a for a in range(4)]
    def kact(dst, a, tmp):
        return ['s_add_u32 %s, %s, %d' % (S(dst), S(sRot2), 4 * a), 's_sub_u32 %s, %s, 14' % (S(tmp), S(dst)), 's_min_u32 %s, %s, %s' % (S(dst), S(dst), S(tmp))]
    L += ['s_cmp_eq_u32 %s, 15' % S(sC), 's_cbranch_scc1 L_nofg', 'v_lshl_add_u32 %s, %s, 4, %s' % (V(vKdf), S(sC), V(vJ)), 'v_mov_b32 %s, 1.0' % V(vG1),
          'v_cmp_eq_u32 vcc, 0, %s' % V(vKdf), 'v_cndmask_b32 %s, %s, 0.5, vcc' % (V(vG1), V(vG1)),
          'v_cmp_eq_u32 vcc, 224, %s' % V(vKdf), 'v_cndmask_b32 %s, %s, 0.5, vcc' % (V(vG1), V(vG1)),
          'v_cmp_lt_u32 vcc, 224, %s' % V(vKdf), 'v_cndmask_b32 %s, %s, 0, vcc' % (V(vG1), V(vG1)), 'v_cvt_f32_u32 %s, %s' % (V(vKdf), V(vKdf)), 'v_mul_f32 %s, %s, %s' % (V(vU), S(sInv448), V(vKdf)),
          's_lshl_b32 %s, %s, 11' % (S(sT2), S(sW)), 'v_add_u32 %s, %s, %s' % (V(vFw), S(sT2), V(vFr))]
    for a in range(4):
        L += kact(sT2, a, sT3) + [
              'v_lshl_add_u32 %s, %s, 5, %s' % (V(vD0), S(sT2), V(vQ8)), 'v_cvt_f32_u32 %s, %s' % (V(vD0), V(vD0)),
              'v_mul_f32 %s, %s, %s' % (V(t3), V(vKdf), V(vD0)), 'v_mul_f32 %s, %s, %s' % (V(th), S(sInv448), V(t3)),
              'v_floor_f32 %s, %s' % (V(th), V(th)), 'v_fma_f32 %s, %s, %s, %s' % (V(t3), V(th), S(sM448), V(t3)),
              'v_mul_f32 %s, %s, %s' % (V(th), S(sInv448), V(t3))]
        for e in range(1, 8): L += ['v_add_f32 %s, %s, %s' % (V(th + e), V(th + e - 1), V(vU))]
        for e in range(8): L += ['v_cos_f32 %s, %s' % (V(cs + e), V(th + e)), 'v_sin_f32 %s, %s' % (V(sn + e), V(th + e))]
        for e in range(0, 8, 2):
            L += ['v_pk_mul_f32 %s, %s, %s op_sel_hi:[1,0]' % (V(cs + e, 2), V(cs + e, 2), V(vG1, 2)), 'v_pk_mul_f32 %s, %s, %s op_sel_hi:[1,0]' % (V(sn + e, 2), V(sn + e, 2), V(vG1, 2))]
        for e in range(4):
            L += ['v_cvt_pk_bf16_f32 %s, %s, %s' % (V(pk0 + e), V(cs + 2 * e), V(cs + 2 * e + 1)),
                  'v_cvt_pk_bf16_f32 %s, -%s, -%s' % (V(pk1 + e), V(sn + 2 * e), V(sn + 2 * e + 1))]
        L += ['ds_write_b128 %s, %s offset:%d' % (V(vFw), V(pk0, 4), a * 8192), 'ds_write_b128 %s, %s offset:%d' % (V(vFw), V(pk1, 4), a * 8192 + 1024)]
    L += ['L_nofg:']
    L += dmaddr
    for r_, sz in ((rWR, W_SZ), (rWI, W_SZ), (rOUT, X_SZ)):
        L += ['s_mov_b32 %s, 0x%x' % (S(r_ + 2), sz), 's_mov_b32 %s, 0x20000' % S(r_ + 3)]
    L += ['s_add_u32 %s, %s, 2' % (S(sSig), S(sSig)), 's_sub_u32 %s, %s, 7' % (S(sT), S(sSig)), 's_min_u32 %s, %s, %s' % (S(sSig), S(sSig), S(sT))]
    gx = lambda dst, terms, const=0: sx(dst, terms, const, sG2)
    lo1 = ['s_lshr_b32 %s, %s, 1' % (S(sHF), S(sW)), 's_and_b32 %s, %s, 15' % (S(sCF), S(sM)),
           's_lshr_b32 %s, %s, 4' % (S(sKP), S(sM)), 's_lshl_b32 %s, %s, 1' % (S(sG), S(sXc)), 's_add_u32 %s, %s, %s' % (S(sKP), S(sKP), S(sG)),
           's_and_b32 %s, %s, 1' % (S(sK1), S(sW)), 's_lshl_b32 %s, %s, 1' % (S(sG), S(sKP)), 's_add_u32 %s, %s, %s' % (S(sK1), S(sK1), S(sG))]
    lo1 += w2tab + gx(sWo, [(sK1, 450), (sCF, 32), (sHF, 32 * 14400)])
    lo1 += gx(sA1o, [(sI, 16 * A1_B), (sC, A1_B), (sW, 1024)], A1_OFF) + gx(sG, [(sN2, 128)], GATE_OFF) + ['s_add_u32 %s, %s, 8192' % (S(sA1x), S(sA1o))]
    lo1 += ['s_cmp_eq_u32 %s, 15' % S(sC), 's_cselect_b32 %s, %s, %s' % (S(sA1o), S(sG), S(sA1o)), 's_cselect_b32 %s, 64, 4096' % S(sG), 's_cselect_b64 vcc, -1, 0',
            's_add_u32 %s, %s, %s' % (S(sA1o2), S(sA1o), S(sG)), 'v_lshlrev_b32 %s, 4, %s' % (V(vA1), V(vQ)), 'v_cndmask_b32 %s, %s, %s, vcc' % (V(vA1), V(vL16), V(vA1))]
    lo1 += gx(sFB, [(sW, 16 * 16 * FS), (sCF, FS)], FB_OFF) + gx(sPTl2, [(sN2, 16 * FS), (sC, FS)], FB_OFF)
    lo1 += gx(sFA, [(sC, 64 * FS), (sW, 16 * FS), (sI, FS)], FA_OFF)
    lo1 += ['s_min_u32 %s, %s, 14' % (S(sG), S(sCF))] + gx(sDFo, [(sG, A1_B), (sK1, 256)], A1_OFF)
    lo1 += ['s_lshr_b32 %s, %s, 4' % (S(sG), S(sK1))] + gx(sDFx, [(sG, -4096 + 8), (sDFo, 1)], 8192)
    lo1 += gx(sB1s, [(sCF, 64 * 2048), (sW, 16 * 2048), (sKP, 128)], B1_OFF) + gx(sB1l, [(sW, 4 * 64 * 2048), (sN2f, 2048)], B1_OFF)
    lo1 += gx(sGl, [(sN2f, 128)], GATE_OFF) + gx(sPTl, [(sN2f, 16 * PART_B), (sNB, 4 * PART_B), (sW, 3072 if PTAG else 2048)], PART_OFF) + gx(sOut, [(sN2f, 896), (sNB, 224), (sW, 64)])
    sJunk = sSpin
    L += ['s_waitcnt lgkmcnt(0)'] + wst + epld + ['s_load_dword %s, %s, 0' % (S(sJunk), S(r_, 2)) for r_ in (rWR, rWI, rOUT)] + lo1
    q_ = tmpS
    lo = [
          'v_mul_u32_u24 %s, %d, %s' % (V(t3), 4 * 14400, V(vQ)), 'v_lshl_add_u32 %s, %s, 1, %s' % (V(t3), V(vJ), V(t3))]
    for t in range(2):
        for r in range(4): lo += ['v_mov_b32 %s, 0' % V(WRr[t] + r), 'v_mov_b32 %s, 0' % V(WIr[t] + r)]
    nlo1 = len(lo)
    vK = [q_, q_ + 1]; vS0 = q_ + 2; vS = q_ + 3; vA = [q_ + 4, q_ + 5]; c_ = [q_ + 6, q_ + 7]; s_ = [q_ + 8, q_ + 9]
    lo += ['v_cvt_f32_u32 %s, %s' % (V(vK[0]), V(vJ)), 'v_mul_f32 %s, %s, %s' % (V(vK[0]), f2u(1.0 / 2048), V(vK[0])),
           'v_add_f32 %s, %s, %s' % (V(vK[1]), f2u(16.0 / 2048), V(vK[0])),
           'v_lshl_add_u32 %s, %s, 8, %s' % (V(vS0), V(vQ), S(sN2)), 'v_cvt_f32_u32 %s, %s' % (V(vS0), V(vS0))]
    for t in range(2):
        for r in range(4):
            lo += ['v_add_f32 %s, %s, %s' % (V(vS), f2u(64.0 * (16 * t + r)), V(vS0))]
            for kt in range(2): lo += ['v_mul_f32 %s, %s, %s' % (V(vA[kt]), V(vK[kt]), V(vS))]
            for kt in range(2): lo += ['v_cos_f32 %s, %s' % (V(c_[kt]), V(vA[kt])), 'v_sin_f32 %s, %s' % (V(s_[kt]), V(vA[kt]))]
            for kt in range(2):
                lo += ['v_cvt_pk_bf16_f32 %s, %s, %s' % (V(MR[kt][t] + r), V(c_[kt]), V(s_[kt])),
                       'v_cvt_pk_bf16_f32 %s, -%s, %s' % (V(MI[kt][t] + r), V(s_[kt]), V(c_[kt]))]
    vI = q_; vN0 = q_ + 1; vAn = q_ + 2; vc = q_ + 4; vs = q_ + 5
    lo += ['v_lshl_add_u32 %s, %s, 5, %s' % (V(vI), S(sHF), V(vJ)), 'v_cvt_f32_u32 %s, %s' % (V(vI), V(vI)), 'v_mul_f32 %s, %s, %s' % (V(vI), f2u(1.0 / 64), V(vI)),
           'v_lshlrev_b32 %s, 2, %s' % (V(vN0), V(vQ)), 'v_cvt_f32_u32 %s, %s' % (V(vN0), V(vN0))]
    prev = []
    for u in range(4):
        for r in range(4):
            k = (4 * u + r) & 1
            lo += ['v_add_f32 %s, %s, %s' % (V(vAn + k), f2u(16.0 * u + r), V(vN0)), 'v_mul_f32 %s, %s, %s' % (V(vAn + k), V(vAn + k), V(vI)),
                   'v_cos_f32 %s, %s' % (V(vc + 2 * k), V(vAn + k)), 'v_sin_f32 %s, %s' % (V(vs + 2 * k), V(vAn + k))] + prev
            cc, ss = V(vc + 2 * k), V(vs + 2 * k)
            rot = [(cc, ss), ('-' + ss, cc), ('-' + cc, '-' + ss), (ss, '-' + cc)]
            prev = ['v_cvt_pk_bf16_f32 %s, %s, %s' % ((V(MM[e][t][u] + r),) + rot[(t * r + e) % 4]) for e in range(2) for t in range(2)]
    lo += prev
    ngen = []
    vSs, vKk, nc, ns, pn = q_, q_ + 2, q_ + 3, q_ + 4, q_ + 5
    ngen += ['v_lshl_add_u32 %s, %s, 6, %s' % (V(vSs), V(vJ), S(sN2f)), 'v_cvt_f32_u32 %s, %s' % (V(vSs), V(vSs)), 'v_mul_f32 %s, %s, %s' % (V(vSs), f2u(1.0 / 2048), V(vSs))]
    for u in range(2):
        for r in range(4):
            ngen += ['v_add_f32 %s, %s, %s' % (V(vKk), f2u(16.0 * u + r), V(vN0)), 'v_mul_f32 %s, %s, %s' % (V(vKk), V(vKk), V(vSs)),
                   'v_cos_f32 %s, %s' % (V(nc), V(vKk)), 'v_sin_f32 %s, %s' % (V(ns), V(vKk))]
            for tn in range(2):
                ng = '-' if (tn and r & 1) else ''; ps = '' if (tn and r & 1) else '-'
                if tn == 0 or r & 1:
                    ngen += ['v_cvt_pk_bf16_f32 %s, %s%s, %s%s' % (V(pn), ng, V(nc), ps, V(ns)), 'v_cvt_pk_bf16_f32 %s, %s%s, %s%s' % (V(pn + 1), ng, V(ns), ng, V(nc))]
                ngen += ['v_accvgpr_write_b32 %s, %s' % (A(NR[tn][u] + r), V(pn)), 'v_accvgpr_write_b32 %s, %s' % (A(NI[tn][u] + r), V(pn + 1))]
    lo += ['s_lshl_b32 %s, %s, 2' % (S(sG), S(sW)), 's_add_u32 %s, %s, %d' % (S(sG), S(sG), XCH),
           'v_lshl_add_u32 %s, %s, 10, %s' % (V(t0), V(vQ), S(sG)), 'v_lshl_add_u32 %s, %s, 4, %s' % (V(t0), V(vJ), V(t0)),
           's_lshl_b32 %s, %s, 10' % (S(sG), S(sW)), 's_add_u32 %s, %s, %d' % (S(sG), S(sG), XCH), 'v_add_u32 %s, %s, %s' % (V(t1), S(sG), V(vL16))]
    pf = sx(sT2, [(sM, 12544), (sKS, 448 * 896), (sW, 25 * 128)]) + [
         'v_lshrrev_b32 %s, 1, %s' % (V(t2), V(vL)), 'v_min_u32 %s, 24, %s' % (V(t2), V(t2)), 'v_lshlrev_b32 %s, 7, %s' % (V(t2), V(t2)),
         'VM pf buffer_load_dword %s, %s, %s, %s offen%s' % (V(vPv), V(t2), S(rW2, 4), S(sT2), NT)]
    pf += sx(sT2, [(sM, 2 * 14400), (sHF, 14400), (sXc, 1800)]) + [
         'v_lshrrev_b32 %s, 3, %s' % (V(t2), V(vL)), 's_and_b32 %s, %s, 1' % (S(sT), S(sW)), 's_lshl_b32 %s, %s, 10' % (S(sT), S(sT)),
         'v_lshl_add_u32 %s, %s, 7, %s' % (V(t2), V(t2), S(sT)), 'v_min_u32 %s, 1796, %s' % (V(t2), V(t2)),
         'VM pf buffer_load_dword %s, %s, %s, %s offen%s' % (V(vPv), V(t2), S(rWR, 4), S(sT2), NT),
         'VM pf buffer_load_dword %s, %s, %s, %s offen%s' % (V(vPv), V(t2), S(rWI, 4), S(sT2), NT)]
    if P('PF2', 1):
        pf = ['s_lshr_b32 %s, %s, 2' % (S(sT3), S(sM)), 's_lshl_b32 %s, %s, 1' % (S(sT3), S(sT3)), 's_and_b32 %s, %s, 1' % (S(sT), S(sM)), 's_add_u32 %s, %s, %s' % (S(sT3), S(sT3), S(sT)),
              's_add_u32 %s, %s, 1' % (S(sG), S(sM)), 's_and_b32 %s, %s, 2' % (S(sG), S(sG)), 's_lshl_b32 %s, %s, 29' % (S(sG), S(sG))]
        pf += sx(sT2, [(sT3, 25088), (sKS, 448 * 896), (sW, 49 * 128), (sG, 1)]) + [
              'v_min_u32 %s, 48, %s' % (V(t2), V(vL)), 'v_lshlrev_b32 %s, 7, %s' % (V(t2), V(t2)),
              'VM pf buffer_load_dword %s, %s, %s, %s offen' % (V(vPv), V(t2), S(rW2, 4), S(sT2))]
        pf += sx(sT2, [(sT3, 4 * 14400), (sW, 14400), (sXc, 1800), (sG, 1)]) + [
              'v_lshrrev_b32 %s, 2, %s' % (V(t2), V(vL)), 'v_lshlrev_b32 %s, 7, %s' % (V(t2), V(t2)), 'v_min_u32 %s, 1796, %s' % (V(t2), V(t2)),
              'VM pf buffer_load_dword %s, %s, %s, %s offen' % (V(vPv), V(t2), S(rWR, 4), S(sT2)),
              'VM pf buffer_load_dword %s, %s, %s, %s offen' % (V(vPv), V(t2), S(rWI, 4), S(sT2))]
    wl = []
    for t in range(2):
        for r in range(4):
            wl += ['s_add_u32 %s, %s, %d' % (S(sT2), S(sWo), (16 * t + r) * 14400),
                   'VM W buffer_load_short_d16_hi %s, %s, %s, %s offen' % (V(WRr[t] + r), V(t3), S(rWR, 4), S(sT2)),
                   'VM W buffer_load_short_d16_hi %s, %s, %s, %s offen' % (V(WIr[t] + r), V(t3), S(rWI, 4), S(sT2))]
    readsS = lambda ks: xread(ks, XF) + ['LK a%d_f ds_read_b128 %s, %s offset:%d' % (ks, A(FF[ks & 1][T], 4), V(vFr), ks * 2048 + T * 1024) for T in range(2)]
    mfS = lambda ks: ['%s %s, %s, %s, %s' % (MFMA, V(ACD[rt][T], 4), A(XF[ks & 1][rt], 4), A(FF[ks & 1][T], 4), V(ACD[rt][T], 4) if ks else '0') for T in range(2) for rt in range(2)]
    L += lo
    if P('NGPRO', 0): L += ngen; ngen = []
    if P('PFS', 2) == -1: L += pf
    L += ['s_waitcnt lgkmcnt(0)', 's_setprio %d' % P('PRS', 1)] + tagc
    st('pro')
    L += ['s_barrier']
    L += readsS(0)
    ngl = []
    if not P('NGL', 0): ngl = ngen; ngen = []
    lo = ngen; per = (len(lo) + 5) // 6
    ld = []
    for ks in range(14):
        if ks == 0: ld = [setflag(sPTl2)] + group_vm(stage_loads(2)) + ([pf] if P('PFS', 2) == 0 else [])
        if ks & 1:
            s = (ks + 1) // 2
            if s < 7: L += flat(ld) + (['WAITVM st%d' % s] if 2 <= s else []) + ['s_barrier']; ld = []
            if s + 2 <= 6: ld = group_vm(stage_loads(s + 2))
            if s == P('PFS', 2): ld += [pf]
            if s == 6: w01 = group_vm(w2_loads(0) + w2_loads(1)); ld += w01[:P('W2E', 4)]; w01 = w01[P('W2E', 4):]
        if ks == P('WLK', 10): ld += [wl]
        L += ['WAITLK a%d_f' % ks] + weave(mfS(ks), readsS(ks + 1) if ks < 13 else [])
        h = (len(ld) + 1) // 2 if (ks & 1 and P('SPLITLD', 1)) else len(ld)
        L += flat(ld[:h]); ld = ld[h:]
        if ks % 2 == 0 and ks: L += lo[:per]; lo = lo[per:]
    assert not lo
    L += ['s_setprio %d' % P('PRS2', 1)]
    st('mainA')
    PX = [tmpS, tmpS + 4]; DR = [tmpS + 8, tmpS + 12]; DI = [tmpS + 16, tmpS + 20]; XO = [ACD[0][0], ACD[1][0]]
    L += ['s_nop 4', 's_cmp_eq_u32 %s, 15' % S(sC), 's_cbranch_scc1 L_gate']
    for t in range(2):
        for r in range(4): L += ['v_cvt_pk_bf16_f32 %s, %s, %s' % (V(PX[t] + r), V(ACD[t][0] + r), V(ACD[t][1] + r))]
    for t in range(2):
        for kt in range(2):
            L += ['%s %s, %s, %s, %s' % (MFMA, V(DR[kt], 4), V(MR[kt][t], 4), V(PX[t], 4), V(DR[kt], 4) if t else '0'),
                  '%s %s, %s, %s, %s' % (MFMA, V(DI[kt], 4), V(MI[kt][t], 4), V(PX[t], 4), V(DI[kt], 4) if t else '0')]
    for kt in range(2):
        for r in range(4):
            L += ['v_cvt_pk_bf16_f32 %s, %s, %s' % (V(DR[kt] + r), V(DR[kt] + r), V(DI[kt] + r)),
                  'ds_write_b32 %s, %s offset:%d' % (V(t0), V(DR[kt] + r), kt * 4096 + r * 256)]
    L += lsig(1, t0) + lwait(1, t0)
    L += ['ds_read_b128 %s, %s offset:%d' % (V(XO[k], 4), V(t1), k * 4096) for k in range(2)]
    XX = ACD[0][1]
    L += ['v_mov_b32 %s, %s' % (V(XX + 1), S(sTag)), 'v_mov_b32 %s, %s' % (V(XX + 3), S(sTag)), 's_waitcnt lgkmcnt(0)']
    for k in range(2): L += ['v_mov_b32 %s, %s' % (V(XX + 2 * k), V(XO[k] + 3)), 'v_mov_b32 %s, %s' % (V(XO[k] + 3), S(sTag))]
    L += ['OPT_BEGIN', 'VM a1x buffer_store_dwordx4 %s, %s, %s, %s offen %s' % (V(XX, 4), V(vL16), S(rWS, 4), S(sA1x), SC), 'OPT_END']
    L += ['s_branch L_a1st', 'L_gate:', 's_nop 3']
    for rt in range(2):
        o = XO[rt]
        for r in range(4): L += ['v_mul_f32 %s, %s, %s' % (V(o + r), f2u(LOG2E), V(o + r))]
        for r in range(4): L += ['v_exp_f32 %s, -%s' % (V(o + r), V(o + r))]
        for r in range(4): L += ['v_add_f32 %s, 1.0, %s' % (V(o + r), V(o + r))]
        for r in range(4): L += ['v_rcp_f32 %s, %s' % (V(o + r), V(o + r))]
    L += ['s_nop 0', 'L_a1st:']
    L += ['VM a1 buffer_store_dwordx4 %s, %s, %s, %s offen %s' % (V(XO[k], 4), V(vA1), S(rWS, 4), S(sA1o2 if k else sA1o), SC) for k in range(2)]
    L += ['s_cmp_lg_u32 %s, 15' % S(sC), 's_cbranch_scc1 L_fa', 's_waitcnt vmcnt(0)', 'L_fa:'] + (['WAITVM a1'] if P('FAACK', 0) else []) + setflag(sFA)
    st('a1st')
    L += ['s_setprio %d' % P('PRW', 1)] + flat(w01) + (wl if P('WLK', 10) == 99 else []) + ['s_setprio %d' % P('PRS2', 1), 'WAITVM w2_1'] + lsig(6, t3) + lwait(9, t3) + (lwait(6, t3) if P('W2SN', 0) >= 2 else [])
    NS = P('W2SN', 0)
    ws_ = group_vm([u for t in range(P('W2L', 2), P('W2L', 2) + NS) for u in w2_loads(t)]) if NS else []
    pb = Alloc('v', fb, NV)
    DF = [pb(4) for u in range(4)]; XRr = [pb(4) for t in range(2)]; XIr = [pb(4) for t in range(2)]; PF = [pb(4) for t in range(4)]
    if ngl: ngl = ['v_lshlrev_b32 %s, 2, %s' % (V(vN0), V(vQ)), 'v_cvt_f32_u32 %s, %s' % (V(vN0), V(vN0))] + ngl
    dfl = []
    for u in range(4):
        dfl += ['s_add_u32 %s, %s, 0x%x' % (S(sT2), S(sDFo), u * 4 * 16 * A1_B),
                'VM df buffer_load_dwordx4 %s, %s, %s, %s offen %s' % (V(DF[u], 4), V(vPa), S(rWS, 4), S(sT2), SC),
                's_add_u32 %s, %s, 0x%x' % (S(sT2), S(sDFx), u * 4 * 16 * A1_B),
                'VM df buffer_load_dwordx2 %s, %s, %s, %s offen %s' % (V(PF[0] + 2 * u, 2), V(vPa), S(rWS, 4), S(sT2), SC)]
    L += ['v_mul_u32_u24 %s, %d, %s' % (V(vPa), 16 * A1_B, V(vQ)), 'v_lshl_add_u32 %s, %s, 4, %s' % (V(vPa), V(vJ), V(vPa))]
    k1 = P('NGA', 0)
    L += ['s_min_u32 %s, %s, 14' % (S(sT3), S(sCF))] + sx(sT2, [(sT3, 64 * FS), (sKS, 16 * FS), (sW, 4 * FS)], FA_OFF)
    L += flat(ws_) + (['WAITVM a1'] if P('FAW', 1) else []) + flat(list(apoll('fa', [(sT2, k * FS) for k in range(4)], sTag))) + lsig(8, t3) + lwait(8, t3) + dfl
    st('fa')
    gp_, gc_ = apoll('gt', [(sG, 0)], sTag)
    gl = ['VM g buffer_load_dword %s, %s, %s, %s offen offset:%d %s' % (V(vG + rt), V(vAmp), S(rWS, 4), S(sGl), rt * 64, SC) for rt in range(2)]
    L += sx(sG, [(sKS, 16 * FS), (sI, FS)], FA_OFF + 60 * 16 * FS) + gp_ + ngl[k1:] + gc_ + ['v_lshlrev_b32 %s, 2, %s' % (V(vAmp), V(vJ))] + gl
    if NS: L += ['WAITVM w2_%d' % (P('W2L', 2) - 1 + NS)] + lsig(7, t3)
    L += ['s_and_b32 %s, %s, 1' % (S(sT2), S(sW)), 's_lshl_b32 %s, %s, 12' % (S(sT3), S(sT2)), 's_add_u32 %s, %s, %d' % (S(sT3), S(sT3), PXC),
          'v_add_u32 %s, %s, %s' % (V(t1), S(sT3), V(vL16)), 's_lshl_b32 %s, %s, 11' % (S(sT3), S(sHF)), 'v_add_u32 %s, %s, %s' % (V(t0), S(sT3), V(t1)),
          's_lshl_b32 %s, %s, 2' % (S(sT2), S(sT2)), 's_lshl_b32 %s, %s, 12' % (S(sT3), S(sHF)), 's_add_u32 %s, %s, %s' % (S(sT2), S(sT2), S(sT3)),
          's_add_u32 %s, %s, %d' % (S(sT2), S(sT2), BXC),
          'v_lshl_add_u32 %s, %s, 9, %s' % (V(t2), V(vQ), S(sT2)), 'v_lshl_add_u32 %s, %s, 3, %s' % (V(t2), V(vJ), V(t2))]
    L += flat(dcheck('df', [('v_cmp_ne_u32', S(sTag), V(r)) for u in range(4) for r in (DF[u] + 3, PF[0] + 2 * u + 1)], raw(dfl)))
    L += ['v_mov_b32 %s, %s' % (V(DF[u] + 3), V(PF[0] + 2 * u)) for u in range(4)]
    st('df')
    TR = PF[2]; TI = PF[3]
    def cmulpk(t):
        o = []
        for r in range(4):
            xr, xi, wr, wi = V(XRr[t] + r), V(XIr[t] + r), V(WRr[t] + r), V(WIr[t] + r)
            o += ['v_mul_f32 %s, %s, %s' % (V(TR + r), xr, wr), 'v_mul_f32 %s, %s, %s' % (V(TI + r), xr, wi),
                  'v_fma_f32 %s, -%s, %s, %s' % (V(TR + r), xi, wi, V(TR + r)), 'v_fma_f32 %s, %s, %s, %s' % (V(TI + r), xi, wr, V(TI + r)),
                  'v_cvt_pk_bf16_f32 %s, %s, %s' % (V(PF[t] + r), V(TI + r), V(TR + r))]
        return o + ['ds_write_b128 %s, %s offset:%d' % (V(t0), V(PF[t], 4), t * 1024)]
    stg = lambda t, e0: [x for u in range(4) for x in
                         ('%s %s, %s, %s, %s' % (MFMA, V(XRr[t], 4), V(MM[e0][t][u], 4), V(DF[u], 4), V(XRr[t], 4) if u else '0'),
                          '%s %s, %s, %s, %s' % (MFMA, V(XIr[t], 4), V(MM[1 - e0][t][u], 4), V(DF[u], 4), V(XIr[t], 4) if u else '0'))]
    cm0 = cmulpk(0); sg1 = stg(1, 0)
    L += stg(0, 0) + sg1[:3] + sched(sg1[3:], [], [], cm0) + cm0 + cmulpk(1) + lsig(2, t3); st('sta')
    L += lwait(2, t3); st('px')
    L += ['ds_read_b128 %s, %s offset:%d' % (V(DF[u], 4), V(t1), u * 1024) for u in range(4)]
    L += ['s_lshl_b32 %s, %s, 11' % (S(sT2), S(sW)), 's_add_u32 %s, %s, %d' % (S(sT2), S(sT2), BXC), 'v_add_u32 %s, %s, %s' % (V(t1), S(sT2), V(vL16)),
          'v_lshrrev_b32 %s, 3, %s' % (V(t0), V(vL)), 'v_and_b32 %s, 7, %s' % (V(t3), V(vL)), 'v_lshlrev_b32 %s, 11, %s' % (V(t0), V(t0)),
          'v_lshl_add_u32 %s, %s, 4, %s' % (V(t0), V(t3), V(t0)), 's_add_u32 %s, %s, %d' % (S(sT2), S(sB1s), 8 * 2048), 's_waitcnt lgkmcnt(0)']
    outb = lambda t: [x for r in range(4) for x in ('v_cvt_pk_bf16_f32 %s, %s, %s' % (V(PF[t] + r), V(XRr[t] + r), V(XIr[t] + r)),
                                                     'ds_write_b32 %s, %s offset:%d' % (V(t2), V(PF[t] + r), t * 2048 + r * 128))]
    ob0 = outb(0); sg1 = stg(1, 1)
    L += stg(0, 1) + sg1[:4] + sched(sg1[4:], [], [], ob0) + ob0 + outb(1) + lsig(3, t3); st('stb')
    L += lwait(3, t3); st('bx')
    L += ['LK bx%d ds_read_b128 %s, %s offset:%d' % (k, V(PF[2 + k], 4), V(t1), k * 1024) for k in range(2)]
    for k in range(2):
        L += ['WAITLK bx%d' % k, 'VM b1 buffer_store_dwordx4 %s, %s, %s, %s offen %s' % (V(PF[2 + k], 4), V(t0), S(rWS, 4), S(sT2 if k else sB1s), SC)]
    st('fft')

    pd = Alloc('v', big, NV)
    GF = [[pd(4) for ct in range(2)] for T in range(15)]
    yb0 = pd.next
    CS = [[pd(2) for r in range(4)] for a in range(2)]
    kR = pd(2); kA = pd(2); vDf = pd(); vUu = pd(); vK0 = pd(); an = pd(4, 1)
    if P('GPK', 0): cheb = lambda d, k, x1, x0: ['v_pk_fma_f32 %s, %s, %s, %s op_sel_hi:[0,1,1] neg_lo:[0,0,1] neg_hi:[0,0,1]' % (V(d, 2), V(k, 2), V(x1, 2), V(x0, 2))]
    else: cheb = lambda d, k, x1, x0: ['v_fma_f32 %s, %s, %s, -%s' % (V(d + hh), V(k), V(x1 + hh), V(x0 + hh)) for hh in range(2)]
    def gen_G(ct):
        o = []
        if ct == 0:
            o += sx(sG, [(sNB, 112), (sW, 32)], 0, sG2) + ['v_add_u32 %s, %s, %s' % (V(vDf), S(sG), V(vJ)), 'v_cvt_f32_u32 %s, %s' % (V(vDf), V(vDf)),
                  'v_lshlrev_b32 %s, 2, %s' % (V(vK0), V(vQ)), 'v_cvt_f32_u32 %s, %s' % (V(vK0), V(vK0))]
        else: o += ['v_add_f32 %s, %s, %s' % (V(vDf), f2u(16.0), V(vDf))]
        o += ['v_mul_f32 %s, %s, %s' % (V(vUu), S(sInv448), V(vDf)), 'v_mul_f32 %s, %s, %s' % (V(an), V(vK0), V(vUu)),
              'v_mul_f32 %s, %s, %s' % (V(t3), f2u(16.0), V(vUu)),
              'v_cos_f32 %s, %s' % (V(kR), V(vUu)), 'v_cos_f32 %s, %s' % (V(kA), V(t3)),
              'v_add_f32 %s, %s, %s' % (V(an + 1), V(an), V(vUu)), 'v_add_f32 %s, %s, %s' % (V(an + 2), V(an), V(t3)), 'v_add_f32 %s, %s, %s' % (V(an + 3), V(an + 1), V(t3)),
              'v_add_f32 %s, %s, %s' % (V(kR), V(kR), V(kR)), 'v_add_f32 %s, %s, %s' % (V(kA), V(kA), V(kA))]
        for a in range(2):
            for r in range(2):
                o += ['v_cos_f32 %s, %s' % (V(CS[a][r]), V(an + 2 * a + r)), 'v_sin_f32 %s, -%s' % (V(CS[a][r] + 1), V(an + 2 * a + r))]
        for r in (2, 3):
            for a in range(2): o += cheb(CS[a][r], kR, CS[a][r - 1], CS[a][r - 2])
        for T in range(15):
            a = T & 1
            if T >= 2: o += [x for r in range(4) for x in cheb(CS[a][r], kA, CS[1 - a][r], CS[a][r])]
            o += ['v_cvt_pk_bf16_f32 %s, %s, %s' % (V(GF[T][ct] + r), V(CS[a][r]), V(CS[a][r] + 1)) for r in range(4)]
        return o
    bfl = [['s_add_u32 %s, %s, 0x%x' % (S(sT2), S(sB1l), a * 64 * 2048)] +
           ['VM bf%d buffer_load_dwordx2 %s, %s, %s, %s offen offset:%d %s' % (a, A(BF[a][u] + 2 * hh, 2), V(t0), S(rWS, 4), S(sT2), u * 1024 + hh * 128, SC)
            for u in range(2) for hh in range(2)] for a in range(4)]
    gg = gen_G(0) + gen_G(1); k0_ = len(gg) * P('FBPOS', 30) // 100
    L += ['v_lshlrev_b32 %s, 8, %s' % (V(t0), V(vQ)), 'v_lshl_add_u32 %s, %s, 3, %s' % (V(t0), V(vJ), V(t0)),
          'v_mul_u32_u24 %s, %d, %s' % (V(vPa), 16 * FS, V(vJ)), 's_setprio %d' % P('PRG', 1)]
    L += gg[:k0_] + ['WAITVM b1', 's_mov_b64 exec, 0xffff', 'VM fb buffer_atomic_add %s, %s, %s, %s offen sc1' % (V(vOne), V(vPa), S(rWS, 4), S(sFB)), 's_mov_b64 exec, -1']
    k1_ = len(gg) * P('FBI', 65) // 100; k2_ = len(gg) * P('FBC', 85) // 100
    bp_, bc_ = apoll('fb', [(sFA, 0), (sFA, FS), (sFA, 2 * FS), (sT3, 0)], sDFx)
    L += sx(sFA, [(sN2f, 16 * FS), (sW, 4 * FS)], FB_OFF) + ['s_cmp_eq_u32 %s, 3' % S(sW), 's_cselect_b32 %s, %d, %d' % (S(sT3), 0, 1), 's_mul_i32 %s, %s, %d' % (S(sT3), S(sT3), 3 * FS),
          's_add_u32 %s, %s, %s' % (S(sT3), S(sT3), S(sFA)), 's_add_u32 %s, %s, 16' % (S(sDFx), S(sTag))]
    L += gg[k0_:k1_] + bp_ + gg[k1_:k2_] + bc_ + flat(bfl); st('fb')
    L += gg[k2_:] + ['s_setprio %d' % P('PRS2', 1)]
    st('gen')
    yb = Alloc('v', yb0, NV)
    YR = [[yb(4) for tn in range(2)] for a in range(2)]; YI = [[yb(4) for tn in range(2)] for a in range(2)]
    L += ['s_lshl_b32 %s, %s, 13' % (S(sT2), S(sW)), 'v_add_u32 %s, %s, %s' % (V(t1), S(sT2), V(vFr))]
    L += ['v_mul_u32_u24 %s, 57344, %s' % (V(t2), V(vJ)), 'v_add_u32 %s, %s, %s' % (V(t2), V(t2), V(vQ8)),
          's_lshl_b32 %s, %s, 11' % (S(sT2), S(sW)), 's_add_u32 %s, %s, %d' % (S(sT2), S(sT2), OPL), 'v_add_u32 %s, %s, %s' % (V(vA1), S(sT2), V(vL16))]
    bfck = lambda a: ['WAITVM bf%d' % a]
    step6 = lambda a: ['%s %s, %s, %s, %s' % (MFMA, V(Y[a & 1][tn], 4), A(BF[a][u], 4), A(N[tn][u], 4), V(Y[a & 1][tn], 4) if u else '0')
                       for u in range(2) for tn in range(2) for (Y, N) in ((YR, NR), (YI, NI))]
    def packY(a):
        o = []
        for tn in range(2):
            for r in range(4):
                o += ['v_cvt_pk_bf16_f32 %s, %s, %s' % (V(YR[a & 1][tn] + r), V(YR[a & 1][tn] + r), V(YI[a & 1][tn] + r))]
            o += ['ds_write_b128 %s, %s offset:%d' % (V(t1), V(YR[a & 1][tn], 4), a * 2048 + tn * 1024)]
        return o
    L += bfck(0); st('bf0')
    L += step6(0)
    for a in range(1, 4):
        pk_ = packY(a - 1)
        L += bfck(a) + sched(step6(a), [], [], pk_) + pk_
    L += packY(3) + lsig(4, t3); st('s6a')
    L += lwait(4, t3)
    st('s6')
    NY = 16
    YF = [4 * n for n in range(NY)]
    AC = [[yb0 + 16 + 8 * ct + 4 * rt for rt in range(2)] for ct in range(2)]
    seq = [(T, rt) for T in range(15) for rt in range(2)]
    rdY = lambda n: 'LK y%d ds_read_b128 %s, %s offset:%d' % (n, A(YF[n % NY], 4), V(vFr), seq[n][0] * 2048 + seq[n][1] * 1024)
    nu = 3 if PTAG else 2
    PT = [GF[0][0] + 4 * nu * k for k in range(3)]; PO = GF[5][0]; ub = GF[6][0]
    ptl = []
    for k in range(3):
        ptl += ['s_add_u32 %s, %s, %d' % (S(sT2), S(sKS), k + 1), 's_and_b32 %s, %s, 3' % (S(sT2), S(sT2)),
                's_mul_i32 %s, %s, %d' % (S(sT2), S(sT2), PART_B), 's_add_u32 %s, %s, %s' % (S(sT2), S(sT2), S(sPTl))]
        ptl += ['VM pt buffer_load_dwordx4 %s, %s, %s, %s offen offset:%d %s' % (V(PT[k] + 4 * u, 4), V(vL16), S(rWS, 4), S(sT2), u * 1024, SC) for u in range(nu - 1)]
        ptl += ['s_add_u32 %s, %s, %s' % (S(sT2), S(sT2), S(sPTl2)),
                'VM pt buffer_load_dwordx4 %s, %s, %s, %s offen %s' % (V(PT[k] + 4 * (nu - 1), 4), V(vL16), S(rWS, 4), S(sT2), SC)]
    L += ['s_cmp_eq_u32 %s, 3' % S(sW), 's_cselect_b32 %s, 0, %d' % (S(sPTl2), (nu - 1) * 1024)]
    L += sx(sG, [(sN2f, 16 * FS), (sNB, 4 * FS)], FP_OFF)
    for k, r_ in enumerate((sFA, sFB, sDFx)):
        L += ['s_add_u32 %s, %s, %d' % (S(r_), S(sKS), k + 1), 's_and_b32 %s, %s, 3' % (S(r_), S(r_)), 's_mul_i32 %s, %s, %d' % (S(r_), S(r_), FS), 's_add_u32 %s, %s, %s' % (S(r_), S(r_), S(sG))]
    fp_, fc_ = apoll('fp', [(sFA, 0), (sFB, 0), (sDFx, 0)], sTag)
    LA = 14
    L += [rdY(n) for n in range(LA)]
    for n, (T, rt) in enumerate(seq):
        if n == 17: L += ['s_waitcnt lgkmcnt(0)'] + fp_
        if n % 2 == 0 and n < 17: L += ['WAITLK y%d' % (n + 1)]
        L += ['%s %s, %s, %s, %s' % (MFMA, V(AC[0][rt], 4), V(GF[T][0], 4), A(YF[n % NY], 4), V(AC[0][rt], 4) if T else '0')]
        if n + LA < len(seq): L += [rdY(n + LA)]
        L += ['%s %s, %s, %s, %s' % (MFMA, V(AC[1][rt], 4), V(GF[T][1], 4), A(YF[n % NY], 4), V(AC[1][rt], 4) if T else '0')]
    st('mainD')
    L += ['WAITVM g']
    for rt in range(2):
        L += ['v_sub_f32 %s, 1.0, %s' % (V(vG1 + rt), V(vG + rt)), 'v_mul_f32 %s, %s, %s' % (V(vG + rt), f2u(2.0 / (2048 * 448)), V(vG + rt))]
    L += fc_ + ptl + lwait(5, t3)
    st('fp')
    L += ['ds_read_b128 %s, %s offset:%d' % (V(PO + 4 * a, 4), V(vA1), a * 1024) for a in range(2)]
    L += ['v_mul_f32 %s, %s, %s' % (V(AC[a][rt] + r), V(vG + rt), V(AC[a][rt] + r)) for a in range(2) for rt in range(2) for r in range(4)]
    L += ['s_add_u32 %s, %s, 917504' % (S(sT3), S(sOut)), 's_waitcnt lgkmcnt(0)']
    osel = lambda rt: 'op_sel:[0,1,0]' if rt else 'op_sel_hi:[1,0,1]'
    for a in range(2):
        for rt in range(2):
            for hh in range(2):
                src = V(PO + 4 * a + 2 * rt + hh); d = ub + 8 * a + 4 * rt + 2 * hh
                L += ['v_lshlrev_b32 %s, 16, %s' % (V(d), src), 'v_and_b32 %s, 0xffff0000, %s' % (V(d + 1), src),
                      'v_pk_fma_f32 %s, %s, %s, %s %s' % (V(AC[a][rt] + 2 * hh, 2), V(d, 2), V(vG1, 2), V(AC[a][rt] + 2 * hh, 2), osel(rt))]
    L += flat(dcheck('pt', [('v_cmp_ne_u32', S(sTag), V(PT[0] + 4 * u + 3)) for u in range(9)], raw(ptl))) if PTAG else ['WAITVM pt']
    st('ptl')
    for a in range(2):
        prs = [(rt, hh, ub + 4 * rt + 2 * hh) for rt in range(2) for hh in range(2)]
        for rt, hh, d in prs:
            for k in range(3):
                D = 4 * a + 2 * rt + hh
                src = V(PT[k] + 4 * (D // 3) + D % 3) if PTAG else V(PT[k] + D)
                L += ['v_lshlrev_b32 %s, 16, %s' % (V(d + 8 * k), src), 'v_and_b32 %s, 0xffff0000, %s' % (V(d + 8 * k + 1), src)]
        for rt, hh, d in prs: L += ['v_pk_add_f32 %s, %s, %s' % (V(d, 2), V(d, 2), V(d + 8, 2))]
        for rt, hh, d in prs: L += ['v_pk_add_f32 %s, %s, %s' % (V(d, 2), V(d, 2), V(d + 16, 2))]
        for rt, hh, d in prs: L += ['v_pk_fma_f32 %s, %s, %s, %s %s' % (V(d, 2), V(d, 2), V(vG1, 2), V(AC[a][rt] + 2 * hh, 2), osel(rt))]
        for rt, hh, d in prs: L += ['v_cvt_pk_bf16_f32 %s, %s, %s' % (V(AC[a][rt] + hh), V(d), V(d + 1))]
        for rt in range(2):
            L += ['VM out buffer_store_dwordx2 %s, %s, %s, %s offen offset:%d' % (V(AC[a][rt], 2), V(t2), S(rOUT, 4), S(sT3 if rt else sOut), a * 32)]
        if a == 0: L += ['s_cmp_eq_u32 %s, 3' % S(sW), 's_cbranch_scc1 L_w3']
    L += ['s_branch L_fin', 'L_w3:', 's_cmp_lg_u32 s2, 120', 's_cbranch_scc1 L_fin', 's_mov_b32 %s, 0x%x' % (S(sT2), FA_OFF + 60 * 16 * FS)] + spoll('ep', [(sT2, (3 + 4 * k) * FS) for k in range(4)], sTag) + ['s_mov_b32 %s, 0x%x' % (S(sT), EP_OFF)] + setflag(sT) + ['L_fin:']
    finish(L, st, 'S')
    LS = L
    if STAMP: open('stamps.txt', 'w').write(' '.join(stamps['M']) + ' / ' + ' '.join(stamps['S']))
    print('role M vgpr', nvM, 'instr', len(LM), ' role S big', NB, 'instr', len(LS), file=sys.stderr)
    if P('HACKACT', 0): LM = [l.replace(' sc1', '') if l.startswith('VM act') else l for l in LM]
    return H + resolve(LM) + resolve(LS) + slow + ['L_end:', 's_endpgm'], NV, NA

def build(path):
    hdr = open('cdna_kernels/%s.s.ref' % NAME).read().split('\n')
    top = [l for l in hdr if l.startswith(';') and '@launch' not in l]
    L, nv, na = build_kernel()
    Pd, nn = pad_hazards(L)
    print('lines', len(Pd), 'nops', nn, file=sys.stderr)
    out = top + ['; @launch grid=(256,1,1) block=(512,1,1) lds=%d' % LDS_SZ, '.amdgcn_target "amdgcn-amd-amdhsa--gfx950"', '.text', '.globl %s' % LABEL]
    out += [('    ' + l if not (l.endswith(':') or l.startswith('.')) else l) for l in Pd]
    out += ['.section .rodata,"a"', '.p2align 6', '.amdhsa_kernel %s' % LABEL,
            '  .amdhsa_next_free_vgpr %d' % (nv + na), '  .amdhsa_next_free_sgpr 102', '  .amdhsa_accum_offset %d' % nv,
            '  .amdhsa_group_segment_fixed_size 0', '  .amdhsa_kernarg_size 88', '  .amdhsa_user_sgpr_count 2',
            '  .amdhsa_user_sgpr_kernarg_segment_ptr 1', '  .amdhsa_system_sgpr_workgroup_id_x 1', '.end_amdhsa_kernel']
    open(path, 'w').write('\n'.join(out) + '\n')

if __name__ == '__main__':
    build(sys.argv[1] if len(sys.argv) > 1 else 'cdna_kernels/%s.s' % NAME)
```

```python
import sys, math, os
from dsl import *

NAME = 'gated_mix__spectral_gfnet__dense_activation_mish__prompt'
LABEL = NAME + '_kernel'
ACT_OFF = 0x0; ACT_C = 7168; ACT_N2 = 16 * ACT_C
PART_OFF = 0x800000; PTAG = int(os.environ.get('PTAG', 0)); PART_B = 12288 if PTAG else 7168
A1_OFF = 0x1400000; A1_B = 12288
GATE_OFF = 0x1800000
FS = int(os.environ.get('FS', 128))
FSB = int(os.environ.get('FSB', 16)); FBL = max(128, 16 * FSB)
FG_OFF = 0x1810000; FP_OFF = 0x1850000; FB_OFF = 0x1890000; FA_OFF = 0x18d0000
EP_OFF = 0x1910000
B1_OFF = 0x1920000
WS_END = B1_OFF + 15 * 64 * 2048
OOB = 0x40000000
X_SZ = 2048 * 896; W_SZ = 2048 * 450; W1_SZ = 448 * 3584; W2_SZ = 1792 * 896
LOG2E = math.log2(math.e)
MFMA = 'v_mfma_f32_16x16x32_bf16'
SC = 'sc1'
NT = ' nt' if int(os.environ.get('LNT', 0)) else ''
XR = 0; W1R = 65536; FL = 122880; XCH = 0; PXC = 40960; BXC = 32768; YL = FL; OPL = 155648; LF = OPL + 7168; LDS_SZ = 163840
NV = 184; NA = 72
W2B = [W1R + 3 * 14336, 49152, W1R, 0, W1R + 14336, W1R + 2 * 14336, 16384]
sX, sWR, sWI, sW1, sB1, sW2, sGW, sOUT, sWS = 16, 18, 20, 24, 26, 28, 30, 32, 34
STAMP = os.environ.get('STAMP', '0') == '1'
TS_OFF = 0x2000000
SPIN_MAX = 20000
P = lambda k, d: int(os.environ.get(k, d))

def srd(L, d, base, size):
    L += ['s_mov_b32 %s, %s' % (S(d), S(base)), 's_mov_b32 %s, %s' % (S(d + 1), S(base + 1)),
          's_mov_b32 %s, 0x%x' % (S(d + 2), size), 's_mov_b32 %s, 0x20000' % S(d + 3)]

def resolve(L):
    out = []; ops = []; cur = None; nopt = 0; lks = []; waited = set()
    for l in L:
        if l == 'OPT_BEGIN': nopt += 1; cur = nopt; continue
        if l == 'OPT_END': cur = None; continue
        if l.startswith('LK '):
            _, tag, ins = l.split(' ', 2); lks.append(tag); out.append(ins); continue
        if l.startswith('ds_'): lks.append('_')
        if l.startswith('WAITLK '):
            tag = l.split(' ')[1]
            idx = max(k for k, o in enumerate(lks) if o == tag)
            out.append('s_waitcnt lgkmcnt(%d)' % min(len(lks) - 1 - idx, 15)); continue
        if l.startswith('VM '):
            _, tag, ins = l.split(' ', 2); assert tag not in waited, tag
            ops.append((tag, cur)); out.append(ins); continue
        if l.startswith('WAITVM '):
            parts = l.split(' ', 2); tag = parts[1]; extra = (' ' + parts[2]) if len(parts) > 2 else ''
            waited.add(tag)
            idx = max(k for k, o in enumerate(ops) if o[0] == tag)
            n = sum(1 for o in ops[idx + 1:] if (o[1] is None or o[1] == cur))
            out.append('s_waitcnt vmcnt(%d)%s' % (min(n, 63), extra)); continue
        assert not (l.startswith('buffer_') or l.startswith('global_')), l
        out.append(l[4:] if l.startswith('RAW ') else l)
    return out

def weave(mm, *streams):
    out = []; idx = [0] * len(streams)
    def put(u): out.extend(u if isinstance(u, list) else [u])
    for m in mm:
        put(m)
        for k, s in enumerate(streams):
            if idx[k] < len(s): put(s[idx[k]]); idx[k] += 1
    for k, s in enumerate(streams):
        for u in s[idx[k]:]: put(u)
    return out

TRANS_OPS = ('v_exp_f32', 'v_rcp_f32', 'v_sin_f32', 'v_cos_f32')
def cost(u):
    c = 0; n = 0
    for i in (u if isinstance(u, list) else [u]):
        if i.endswith(':') or i.startswith('OPT_'): continue
        n += 1
        if i.startswith('VM '): c += 15
        elif i.split()[0] in TRANS_OPS: c += 8
        elif i.startswith('s_') or i.startswith('WAIT'): pass
        else:
            assert not i.startswith('v_pk_'), i
            c += 4
    return c, n
VB = int(os.environ.get('VB', 8))
def sched(mm, rd, hi, lo, pace=1, state=None):
    out = []; rd = list(rd)
    state = state if state is not None else [99]
    def put(u): out.extend(u if isinstance(u, list) else [u])
    for k, m in enumerate(mm):
        put(m)
        state[0] += 1
        vb = VB; sl = 3
        if k + 1 < len(mm) and isinstance(mm[k + 1], list): sl -= len(mm[k + 1]) - 1
        left = len(mm) - k
        q = hi if (hi and (cost(hi[0])[0] < 15 or state[0] >= pace)) else lo
        if q and (cost(q[0])[0] > 4 or cost(q[0])[1] > 2) and len(rd) <= 2 * (left - 1):
            c, n = cost(q[0]); put(q.pop(0)); vb -= c; sl -= n
            if c >= 15: state[0] = 0
        else:
            n = 0 if not rd else (1 if len(rd) <= left else 2)
            for _ in range(n): put(rd.pop(0)); vb -= 4; sl -= 1
        while True:
            done = True
            for q in (hi, lo):
                if q and cost(q[0])[0] <= max(vb, 0) and cost(q[0])[1] <= sl:
                    c, n = cost(q[0]); vb -= c; sl -= n; put(q.pop(0)); done = False; break
            if done: break
    out += rd
    return out

def spread(main, units, start=0, end=None):
    end = len(main) if end is None else end
    out = list(main[:start]); n = len(units); seg = main[start:end]
    for k in range(n):
        out += seg[len(seg) * k // n: len(seg) * (k + 1) // n] if False else []
    pos = [len(seg) * k // n for k in range(n)] if n else []
    ui = 0
    for k, ins in enumerate(seg):
        while ui < n and pos[ui] == k:
            out += units[ui] if isinstance(units[ui], list) else [units[ui]]; ui += 1
        out.append(ins)
    for u in units[ui:]: out += u if isinstance(u, list) else [u]
    return out + list(main[end:])


def build_kernel():
    flat = lambda U: [i for u in U for i in (u if isinstance(u, list) else [u])]
    sa = Alloc('s', 16, 102)
    rX = sa(4); rW1 = sa(4); rW2 = sa(4); rWS = sa(4); rBI = rWR = sa(4); rGW = rWI = sa(4); rOUT = sa(4)
    sT, sT2, sT3, sSpin, sTag, sW, sM = 3, 4, 5, 6, 7, 8, 9
    sPC = 12; sEp = 14; sW8 = 15
    sI = sa(); sC = sa(); sN2 = sa(); sPar = sa(); sKS = sa(); sNB = sa(); sXc = sa(); sSig = sa(); sN2f = sa(); sM0x = sa()
    sInv448 = sa(); sM448 = sa(); sG = sa(); sG2 = sa(); sR0 = sa(4)
    va = Alloc('v', 1, NV)
    vST = va(); vL = va(); vQ = va(); vJ = va(); t0 = va(); t1 = va(); t2 = va(); t3 = va(); vL16 = va(); vZero = va(); vTag = va()
    vXr = va(2, 1); vPa = va(); vPv = va(); vLF = va(); vOne = va(); vQ8 = va()
    npoll = [0]; slow = []
    stamps = {'M': ['r0', 'start'], 'S': ['r0', 'start']}
    def mk_st(L, role):
        def st(name, real=False):
            if not STAMP: return
            if os.environ.get('STSEL') and name not in os.environ['STSEL'].split(','): return
            stamps[role].append(name)
            L.extend(['%s s[10:11]' % ('s_memrealtime' if real else 's_memtime'), 's_waitcnt lgkmcnt(0)',
                      'v_writelane_b32 %s, s10, %d' % (V(vST), len(stamps[role]) - 1)])
        return st
    def poll_issue(tag):
        return ['VM %s buffer_load_dword %s, %s, %s, 0 offen %s' % (tag, V(vPv), V(vPa), S(rWS, 4), SC)]
    def poll_check(tag):
        n = npoll[0]; npoll[0] += 1
        slow.extend(['slow%d:' % n, 's_mov_b32 %s, 0' % S(sSpin), 'slowl%d:' % n, 's_sleep %d' % P('SLP_' + tag, P('SLP', 6)),
                     'buffer_load_dword %s, %s, %s, 0 offen %s' % (V(vPv), V(vPa), S(rWS, 4), SC),
                     's_waitcnt vmcnt(0)', 'v_cmp_ne_u32 vcc, %s, %s' % (S(sTag), V(vPv)), 's_add_u32 %s, %s, 1' % (S(sSpin), S(sSpin)),
                     's_nop 0', 's_cbranch_vccz back%d' % n, 's_cmp_lt_u32 %s, %d' % (S(sSpin), SPIN_MAX),
                     's_cbranch_scc1 slowl%d' % n, 's_branch back%d' % n])
        return ['WAITVM %s' % tag, 'v_cmp_ne_u32 vcc, %s, %s' % (S(sTag), V(vPv)), 's_nop 1', 's_cbranch_vccnz slow%d' % n, 'back%d:' % n]
    sCk = sa(2); sCk2 = sa(2)
    def dcheck(tag, cmps, reload, pre=[]):
        n = npoll[0]; npoll[0] += 1
        test = list(pre)
        for k, (op, s0_, r) in enumerate(cmps):
            d = 'vcc' if k == 0 else S(sCk if k & 1 else sCk2, 2)
            test += ['%s %s, %s, %s' % (op, d, s0_, r)]
            if k >= 2: test += ['s_or_b64 vcc, vcc, %s' % S(sCk2 if k & 1 else sCk, 2)]
        last = len(cmps) - 1
        test += ['s_or_b64 vcc, vcc, %s' % (S(sCk if last & 1 else sCk2, 2) if last else 'vcc')]
        slow.extend(['slow%d:' % n, 's_mov_b32 %s, 0' % S(sSpin), 'slowl%d:' % n, 's_sleep %d' % P('SLP', 4)] + reload + ['s_waitcnt vmcnt(0)'] + test +
                    ['s_cbranch_scc0 back%d' % n, 's_add_u32 %s, %s, 1' % (S(sSpin), S(sSpin)), 's_cmp_lt_u32 %s, %d' % (S(sSpin), SPIN_MAX),
                     's_cbranch_scc1 slowl%d' % n, 's_branch back%d' % n])
        return [['WAITVM %s' % tag]] + [[i] for i in test[:-1]] + [[test[-1], 's_cbranch_scc1 slow%d' % n, 'back%d:' % n]]
    def spoll(name, locs, exp, first=0):
        n = npoll[0]; npoll[0] += 1
        rs = [sCk, sCk + 1, sCk2, sCk2 + 1]
        o = ['s_mov_b32 %s, 0' % S(sSpin), 'sp%d:' % n]
        o += ['s_load_dword %s, %s, %s offset:%d glc' % (S(rs[k]), S(rWS, 2), S(so), im) for k, (so, im) in enumerate(locs)]
        o += ['s_add_u32 %s, %s, 1' % (S(sSpin), S(sSpin)), 's_cmp_ge_u32 %s, %d' % (S(sSpin), SPIN_MAX), 's_cbranch_scc1 spd%d' % n, 's_waitcnt lgkmcnt(0)']
        for k in range(len(locs)):
            o += ['s_xor_b32 %s, %s, %s' % (S(rs[k]), S(rs[k]), S(exp))]
            if k: o += ['s_or_b32 %s, %s, %s' % (S(rs[0]), S(rs[0]), S(rs[k]))]
        o += ['s_cbranch_scc1 sp%d' % n, 'spd%d:' % n, 's_waitcnt lgkmcnt(0)']
        return o
    def apoll(name, locs, exp):
        n = npoll[0]; npoll[0] += 1
        rs = [sCk, sCk + 1, sCk2, sCk2 + 1]
        ld = ['s_load_dword %s, %s, %s offset:%d glc' % (S(rs[k]), S(rWS, 2), S(so), im) for k, (so, im) in enumerate(locs)]
        t = ['s_waitcnt lgkmcnt(0)']
        for k in range(len(locs)):
            t += ['s_xor_b32 %s, %s, %s' % (S(rs[k]), S(rs[k]), S(exp))]
            if k: t += ['s_or_b32 %s, %s, %s' % (S(rs[0]), S(rs[0]), S(rs[k]))]
        slow.extend(['slow%d:' % n, 's_mov_b32 %s, 0' % S(sSpin), 'slowl%d:' % n] + (['s_sleep %d' % P('SSL', 2)] if P('SSL', 2) else []) + ld + t +
                    ['s_cbranch_scc0 back%d' % n, 's_add_u32 %s, %s, 1' % (S(sSpin), S(sSpin)), 's_cmp_lt_u32 %s, %d' % (S(sSpin), SPIN_MAX),
                     's_cbranch_scc1 slowl%d' % n, 's_branch back%d' % n])
        return ld, t + ['s_cbranch_scc1 slow%d' % n, 'back%d:' % n]
    sflag = lambda so: ['s_atomic_swap %s, %s, %s' % (S(sTag), S(rWS, 2), S(so))]
    raw = lambda U: [i.split(' ', 2)[2] if i.startswith('VM ') else i for i in flat(U)]
    def setflag(sOff):
        return ['VM flag buffer_store_dword %s, %s, %s, %s offen %s' % (V(vTag), V(vZero), S(rWS, 4), S(sOff), SC)]
    def lsig(k, vtmp):
        return ['v_lshl_add_u32 %s, %s, 2, %s' % (V(vtmp), S(sW), V(vZero)), 'ds_write_b32 %s, %s offset:%d' % (V(vtmp), V(vOne), LF - 131072 + k * 16)] if False else \
               ['ds_write_b32 %s, %s offset:%d' % (V(vLW), V(vOne), k * 16)]
    def lwait(k, vtmp, reg=None):
        n = npoll[0]; npoll[0] += 1
        return ['lw%d:' % n, 'ds_read_b32 %s, %s offset:%d' % (V(vtmp), V(vLF if reg is None else reg), k * 16), 's_waitcnt lgkmcnt(0)',
                'v_cmp_ne_u32 vcc, 1, %s' % V(vtmp), 's_nop 1', 's_cbranch_vccnz lw%d' % n]
    vLW = va()
    def sx(dst, terms, const=0, tmp=None):
        tmp = sT if tmp is None else tmp
        o = []
        for k, (r, c) in enumerate(terms):
            d = dst if k == 0 else tmp
            if c == 1:
                o += ['s_mov_b32 %s, %s' % (S(d), S(r))] if k == 0 else ['s_add_u32 %s, %s, %s' % (S(dst), S(dst), S(r))]
                continue
            o += ['s_mul_i32 %s, %s, %d' % (S(d), S(r), c)]
            if k: o += ['s_add_u32 %s, %s, %s' % (S(dst), S(dst), S(tmp))]
        if const: o += ['s_add_u32 %s, %s, 0x%x' % (S(dst), S(dst), const)]
        return o
    def group_vm(U):
        out = []; cur = []
        for u in U:
            cur += u
            if any(i.startswith('VM ') for i in u): out.append(cur); cur = []
        if cur: out[-1] += cur
        return out
    def with_waits(tag, order, mk, step=3):
        o = []
        for n, T in enumerate(order):
            ms = mk(T)
            if n % step == 0: ms[0] = ['WAITLK %s_%d' % (tag, order[min(n + step - 1, len(order) - 1)]), ms[0]]
            o += ms
        return o
    tagc = ['s_mul_i32 %s, %s, 0x9e3779b1' % (S(sTag), S(sEp)), 's_add_u32 %s, %s, 0x7f4a7c15' % (S(sTag), S(sTag)), 'v_mov_b32 %s, %s' % (V(vTag), S(sTag))]
    epld = ['s_add_u32 %s, %s, 0x%x' % (S(sPC), S(rWS), EP_OFF), 's_addc_u32 %s, %s, 0' % (S(sPC + 1), S(rWS + 1)), 's_load_dword %s, %s, 0' % (S(sEp), S(sPC, 2))]
    def finish(L, st, role):
        PB = P('PROBE2', 0)
        if PB and role == 'S':
            L += ['s_cmp_lg_u32 s2, 120', 's_cbranch_scc1 L_np', 's_cmp_lg_u32 %s, 3' % S(sW), 's_cbranch_scc1 L_np', 's_mov_b32 s4, 0x%x' % TS_OFF, 's_memrealtime s[10:11]', 's_waitcnt lgkmcnt(0)',
                  's_mov_b32 s5, 0', 's_mov_b32 s6, -1']
            for k in range(16):
                L += ['s_load_dwordx16 s[48:63], %s, s4 offset:%d glc' % (S(rWS, 2), 64 * k), 's_waitcnt lgkmcnt(0)']
                for q in range(16): L += ['s_sub_u32 s3, s10, s%d' % (48 + q), 's_max_u32 s5, s5, s3', 's_min_u32 s6, s6, s3']
            if PB == 2: L += ['s_sub_u32 s5, s5, s6']
            if PB == 3: L += ['s_mov_b32 s5, 0']
            L += ['s_lshl_b32 s5, s5, 2', 's_min_u32 s5, s5, 50000', 's_memrealtime s[12:13]', 's_waitcnt lgkmcnt(0)', 'L_pl:', 's_memrealtime s[10:11]', 's_waitcnt lgkmcnt(0)',
                  's_sub_u32 s3, s10, s12', 's_cmp_lt_u32 s3, s5', 's_cbranch_scc1 L_pl', 'L_np:']
        if STAMP:
            st('end'); st('r1', True)
            L += ['s_add_u32 s4, %s, 0x%x' % (S(rWS), TS_OFF), 's_addc_u32 s5, %s, 0' % S(rWS + 1), 's_mov_b32 s6, 0x100000', 's_mov_b32 s7, 0x20000',
                  's_lshl_b32 s13, s2, 3', 's_add_u32 s13, s13, %s' % S(sW8), 's_lshl_b32 s13, s13, 8', 'v_lshlrev_b32 %s, 2, %s' % (V(t0), V(vL)),
                  'VM x buffer_store_dword %s, %s, s[4:7], s13 offen' % (V(vST), V(t0))]
        L += ['s_endpgm']

    H = ['.p2align 8', '.type %s,@function' % LABEL, '%s:' % LABEL, 's_cmp_ge_u32 s2, 256', 's_cbranch_scc1 L_end']
    for r_, off in ((rX, 0), (rW1, 32), (rWS, 80), (rW2, 48)):
        H += ['s_load_dwordx2 %s, s[0:1], %d' % (S(r_, 2), off)]
    if P('PROBE2', 0): H += ['s_memrealtime %s' % S(sR0, 2)]
    if STAMP: H += ['v_mov_b32 %s, 0' % V(vST), 's_memrealtime %s' % S(sR0, 2), 's_memtime %s' % S(sR0 + 2, 2)]
    H += ['v_and_b32 %s, 63, v0' % V(vL), 'v_lshrrev_b32 %s, 6, v0' % V(t0), 's_lshr_b32 %s, s2, 3' % S(sM), 's_and_b32 %s, s2, 7' % S(sXc),
          'v_readfirstlane_b32 %s, %s' % (S(sW8), V(t0)), 'v_lshrrev_b32 %s, 4, %s' % (V(vQ), V(vL)), 'v_and_b32 %s, 15, v0' % V(vJ),
          's_lshr_b32 %s, %s, 2' % (S(sI), S(sXc)), 's_lshl_b32 %s, %s, 3' % (S(sI), S(sI)),
          's_lshr_b32 %s, %s, 2' % (S(sT3), S(sM)), 's_add_u32 %s, %s, %s' % (S(sI), S(sI), S(sT3)),
          's_and_b32 %s, %s, 3' % (S(sW), S(sW8)),
          's_and_b32 %s, %s, 3' % (S(sKS), S(sXc)), 's_and_b32 %s, %s, 3' % (S(sNB), S(sM)),
          's_lshl_b32 %s, %s, 2' % (S(sC), S(sKS)), 's_add_u32 %s, %s, %s' % (S(sC), S(sC), S(sNB)),
          's_lshl_b32 %s, %s, 2' % (S(sN2f), S(sI)), 's_add_u32 %s, %s, %s' % (S(sN2), S(sN2f), S(sW)),
          's_and_b32 %s, %s, 1' % (S(sPar), S(sC))]
    H += {0: ['s_lshl_b32 %s, %s, 1' % (S(sSig), S(sNB)), 's_add_u32 %s, %s, %s' % (S(sSig), S(sSig), S(sT3)),
              's_sub_u32 %s, %s, 7' % (S(sT), S(sSig)), 's_min_u32 %s, %s, %s' % (S(sSig), S(sSig), S(sT))],
          1: ['s_mov_b32 %s, 0' % S(sSig)],
          2: ['s_add_u32 %s, %s, %s' % (S(sSig), S(sNB), S(sT3)), 's_and_b32 %s, %s, 1' % (S(sSig), S(sSig)), 's_lshl_b32 %s, %s, 2' % (S(sSig), S(sSig))],
          4: ['s_add_u32 %s, %s, %s' % (S(sSig), S(sNB), S(sT3)), 's_and_b32 %s, %s, 3' % (S(sSig), S(sSig)), 's_lshl_b32 %s, %s, 1' % (S(sSig), S(sSig))]}[P('ROT', 0)]
    H += ['s_xor_b32 %s, %s, %d' % (S(sNB), S(sNB), P('NBX', 1)), 's_lshl_b32 %s, %s, 12' % (S(sM0x), S(sW)),
          's_mov_b32 %s, 0x%x' % (S(rWS + 2), WS_END), 's_mov_b32 %s, 0x20000' % S(rWS + 3),
          's_cmp_ge_u32 %s, 4' % S(sW8), 's_cbranch_scc1 L_S']
    common2 = ['v_lshlrev_b32 %s, 4, %s' % (V(vL16), V(vL)), 'v_mov_b32 %s, 0' % V(vZero), 'v_mov_b32 %s, 1' % V(vOne), 'v_lshlrev_b32 %s, 3, %s' % (V(vQ8), V(vQ)),
               's_add_u32 %s, %s, %s' % (S(sN2f), S(sN2f), S(sKS)),
               's_mov_b32 %s, %s' % (S(sInv448), f2u(1.0 / 448)), 's_mov_b32 %s, %s' % (S(sM448), f2u(-448.0)),
               'v_lshrrev_b32 %s, 1, %s' % (V(t3), V(vJ)), 'v_xor_b32 %s, %s, %s' % (V(t3), V(t3), V(vQ)),
               'v_lshlrev_b32 %s, 4, %s' % (V(t3), V(t3)), 'v_lshl_add_u32 %s, %s, 7, %s' % (V(t3), V(vJ), V(t3)),
               'v_add_u32 %s, %s, %s' % (V(vXr), S(sM0x), V(t3)), 'v_xor_b32 %s, 64, %s' % (V(vXr + 1), V(vXr)),
               'v_and_b32 %s, 3, %s' % (V(vLF), V(vL)), 'v_lshlrev_b32 %s, 2, %s' % (V(vLF), V(vLF)), 'v_add_u32 %s, %d, %s' % (V(vLF), LF, V(vLF)),
               's_lshl_b32 %s, %s, 2' % (S(sG), S(sW)), 's_add_u32 %s, %s, %d' % (S(sG), S(sG), LF), 'v_mov_b32 %s, %s' % (V(vLW), S(sG))]
    wst = ['v_writelane_b32 %s, %s, 0' % (V(vST), S(sR0)), 'v_writelane_b32 %s, %s, 1' % (V(vST), S(sR0 + 2))] if STAMP else []
    if P('WSB', 0): wst += ['s_add_u32 %s, %s, 0x%x' % (S(rWS), S(rWS), P('WSB', 0) << 20), 's_addc_u32 %s, %s, 0' % (S(rWS + 1), S(rWS + 1))]
    sXb = sa(); sWb = sa(); sXs = sa(); sWs = sa(); sM0w = sa(); sW2b = sa()
    vXs = va(2, 1); vW1s = va(); vW2s = va()
    dmaddr = ['s_mul_i32 %s, %s, 896' % (S(sXb), S(sN2))] + sx(sWb, [(sC, 224), (sW, 8 * 3584)])
    dmaddr += ['s_mul_i32 %s, %s, 896' % (S(sM0w), S(sW)), 's_lshl_b32 %s, %s, 1' % (S(sT2), S(sPar)),
          'v_lshrrev_b32 %s, 3, %s' % (V(t0), V(vL)), 'v_mul_u32_u24 %s, 57344, %s' % (V(t0), V(t0)),
          'v_and_b32 %s, 7, %s' % (V(t1), V(vL)), 'v_xor_b32 %s, %s, %s' % (V(t1), V(t1), V(vQ)),
          'v_lshl_add_u32 %s, %s, 4, %s' % (V(vXs), V(t1), V(t0)),
          'v_xor_b32 %s, 64, %s' % (V(vXs + 1), V(vXs)), 'v_add_u32 %s, %d, %s' % (V(vXs + 1), 8 * 57344, V(vXs + 1)),
          'v_mul_u32_u24 %s, 4682, %s' % (V(t0), V(vL)), 'v_lshrrev_b32 %s, 16, %s' % (V(t0), V(t0)),
          'v_mul_u32_u24 %s, 14, %s' % (V(t1), V(t0)), 'v_sub_u32 %s, %s, %s' % (V(t1), V(vL), V(t1)),
          'v_mul_u32_u24 %s, 896, %s' % (V(t2), V(t0)), 'v_lshl_add_u32 %s, %s, 4, %s' % (V(vW2s), V(t1), V(t2)),
          'v_add_u32 %s, %s, %s' % (V(t1), S(sT2), V(t1)), 'v_subrev_u32 %s, 14, %s' % (V(t2), V(t1)), 'v_min_u32 %s, %s, %s' % (V(t1), V(t1), V(t2)),
          'v_mul_u32_u24 %s, 3584, %s' % (V(t2), V(t0)), 'v_lshl_add_u32 %s, %s, 4, %s' % (V(vW1s), V(t1), V(t2))]
    for r_, sz in ((rX, X_SZ), (rW1, W1_SZ), (rW2, W2_SZ)):
        dmaddr += ['s_mov_b32 %s, 0x%x' % (S(r_ + 2), sz), 's_mov_b32 %s, 0x20000' % S(r_ + 3)]
    def stage_loads(s):
        slot = s % 4
        U = [['s_lshl_b32 %s, %s, 7' % (S(sXs), S(sSig))], ['s_add_u32 %s, %s, %s' % (S(sXs), S(sXs), S(sXb))],
             ['s_mul_i32 %s, %s, %d' % (S(sWs), S(sSig), 64 * 3584)], ['s_add_u32 %s, %s, %s' % (S(sWs), S(sWs), S(sWb))]]
        for kk in range(2):
            for e in (2 * kk, 2 * kk + 1):
                if e == 2: U += [['s_add_u32 %s, %s, 917504' % (S(sXs), S(sXs))]]
                U += [['s_add_u32 m0, %s, %d' % (S(sM0x), XR + slot * 16384 + e * 1024)],
                      [('VM st%d buffer_load_dwordx4 %s, %s, %s offen' + NT + ' lds') % (s, V(vXs + (e & 1)), S(rX, 4), S(sXs))]]
            for b2 in range(2):
                if kk or b2: U += [['s_add_u32 %s, %s, %d' % (S(sWs), S(sWs), (4 if b2 else 28) * 3584)]]
                U += [['s_add_u32 m0, %s, %d' % (S(sM0w), W1R + slot * 14336 + (32 * kk + 16 * b2) * 224)],
                      ['s_mov_b32 exec_hi, 0xffffff', ('VM st%d buffer_load_dwordx4 %s, %s, %s offen' + NT + ' lds') % (s, V(vW1s), S(rW1, 4), S(sWs)), 's_mov_b32 exec_hi, -1']]
        U += [['s_add_u32 %s, %s, 1' % (S(sSig), S(sSig))], ['s_cmp_eq_u32 %s, 7' % S(sSig), 's_cselect_b32 %s, 0, %s' % (S(sSig), S(sSig))]]
        return U
    sWp = sa(4, 1); sWm = sa(4, 1); sC4 = sa()
    SLOT = [(0, 0), (0, 1), (0, 2), (1, 0), (1, 1), (1, 2), ('m', 0), (2, 0), (2, 1), (2, 2), (3, 0), ('m', 1), (3, 1), (3, 2)]
    w2tab = ['s_and_b32 %s, %s, 3' % (S(sC4), S(sC))] + sx(sW2b, [(sKS, 448 * 896), (sW, 4 * 896), (sNB, 224)])
    for d in range(4):
        w2tab += ['s_xor_b32 %s, %s, %d' % (S(sT), S(sC4), d), 's_mul_i32 %s, %s, 7' % (S(sT), S(sT)), 's_add_u32 %s, %s, 1' % (S(sT), S(sT)), 's_lshr_b32 %s, %s, 1' % (S(sT), S(sT)),
                  's_mul_i32 %s, %s, 28672' % (S(sT), S(sT)), 's_add_u32 %s, %s, %s' % (S(sWp + d), S(sT), S(sW2b))]
    for mm_ in range(2):
        w2tab += ['s_lshr_b32 %s, %s, 1' % (S(sT), S(sC4)), 's_xor_b32 %s, %s, %d' % (S(sT), S(sT), mm_), 's_mul_i32 %s, %s, %d' % (S(sT), S(sT), 7 * 28672),
                  's_add_u32 %s, %s, %s' % (S(sT), S(sT), S(sW2b)), 's_add_u32 %s, %s, %d' % (S(sT), S(sT), 3 * 28672),
                  's_mul_i32 %s, %s, %d' % (S(sT2), S(sPar), 16 * 896), 's_add_u32 %s, %s, %s' % (S(sWm + 2 * mm_), S(sT), S(sT2)),
                  's_sub_u32 %s, %s, %s' % (S(sT), S(sT), S(sT2)), 's_add_u32 %s, %s, %d' % (S(sWm + 2 * mm_ + 1), S(sT), 16 * 896)]
    def w2_loads(t):
        U = []
        for kk in range(2):
            d, Pp = SLOT[2 * t + kk]
            for b2 in range(2):
                if d == 'm': so = sWm + 2 * Pp + b2
                elif Pp == 0 and b2 == 0: so = sWp + d
                else: so = sWs; U += [['s_add_u32 %s, %s, %d' % (S(sWs), S(sWp + d), (32 * Pp + 16 * b2) * 896)]]
                U += [['s_add_u32 m0, %s, %d' % (S(sM0w), W2B[t] + (32 * kk + 16 * b2) * 224)],
                      ['s_mov_b32 exec_hi, 0xffffff', 'VM w2_%d buffer_load_dwordx4 %s, %s, %s offen lds' % (t, V(vW2s), S(rW2, 4), S(so)), 's_mov_b32 exec_hi, -1']]
        return U
    vbase = va.next; sbase = sa.next
    xread = lambda ks, XF: ['LK a%d_x ds_read_b128 %s, %s offset:%d' % (ks, A(XF[ks & 1][rt], 4), V(vXr + (ks & 1)), XR + ((ks // 2) % 4) * 16384 + rt * 2048) for rt in range(2)]

    L = []; st = mk_st(L, 'M')
    va = Alloc('v', vbase, NV); sa = Alloc('s', sbase, 102); aa = Alloc('a', 0, NA)
    sL2E = sa(2); sAct = sa(4, 1); sPTs = sa(); sJunk = sa(); sFG = sa(); sFP = sa(); sFGp = sa()
    vTr = va(2, 1)
    accb = va(56, 4)
    ACC = [[accb + 28 * rt + 4 * T for T in range(7)] for rt in range(2)]
    fr = va(56, 4)
    OWN = [[va(4) for rt in range(2)] for Pp in range(3)]
    assert OWN[0][0] == fr + 56
    RG = [fr + 8 * k for k in range(9)]
    U0 = [va(4) for d in range(4)]
    vB = [fr + 4 * T for T in range(7)]
    tmpA = fr + 32; c2 = fr + 48
    WF = [[aa(4) for T in range(7)] for b in range(2)]
    XF = [[aa(4) for rt in range(2)] for b in range(2)]
    vBraw = [accb + 2 * T for T in range(7)]; vCP = accb + 16
    L += ['s_load_dwordx2 %s, s[0:1], 40' % S(rBI, 2), 's_load_dwordx2 %s, s[0:1], 56' % S(rGW, 2)]
    L += ['s_getpc_b64 %s' % S(sPC, 2), 'L_pc:', 's_and_b32 %s, %s, 15' % (S(sT), S(sM)), 's_lshl_b32 %s, %s, 11' % (S(sT), S(sT)),
          'v_lshrrev_b32 %s, 4, v0' % V(t1), 'v_lshl_add_u32 %s, %s, 7, %s' % (V(t1), V(t1), S(sT)), 'v_min_u32 %s, L_end-L_pc, %s' % (V(t1), V(t1)),
          'v_mov_b32 %s, %s' % (V(vCP + 1), S(sPC + 1)), 'v_add_co_u32 %s, vcc, %s, %s' % (V(vCP), S(sPC), V(t1)),
          'v_addc_co_u32 %s, vcc, 0, %s, vcc' % (V(vCP + 1), V(vCP + 1)), 'VM pf global_load_dword %s, %s, off' % (V(vPv), V(vCP, 2))]
    L += [i for i in dmaddr if i != 'W2S'] + common2
    L += ['s_mov_b32 %s, 3584' % S(rBI + 2), 's_mov_b32 %s, 0x20000' % S(rBI + 3)]
    L += sx(sG, [(sC, 224), (sPar, 32)]) + sx(sG2, [(sC, 224), (sPar, -192)], 192)
    s0 = flat(stage_loads(0))
    L += s0[:4] + ['s_waitcnt lgkmcnt(0)'] + wst
    st('ka')
    if P('STLB', 1):
        for k, r_ in enumerate((rW1, rX, rBI, rW2)): L += ['s_load_dword %s, %s, 0' % (S(sJunk), S(r_, 2))]
    bl = ['VM bias buffer_load_dwordx2 %s, %s, %s, %s offen offset:%d' % (V(vBraw[T], 2), V(vQ8), S(rBI, 4), S(sG2 if T == 6 else sG), 32 * T if T < 6 else 0) for T in range(7)]
    gwl = ['s_cmp_lg_u32 %s, 15' % S(sC), 's_cbranch_scc1 L_nogw', 'OPT_BEGIN', 'v_lshlrev_b32 %s, 4, %s' % (V(t0), V(vQ)),
           's_mov_b32 %s, 896' % S(rGW + 2), 's_mov_b32 %s, 0x20000' % S(rGW + 3), 's_lshl_b32 %s, %s, 1' % (S(sT3), S(sSig)), 's_add_u32 %s, %s, %s' % (S(sT3), S(sT3), S(sW)),
           's_lshl_b32 %s, %s, 11' % (S(sSpin), S(sW))]
    for a2 in range(4):
        gwl += ['s_add_u32 %s, %s, %d' % (S(sT2), S(sT3), 4 * a2), 's_sub_u32 %s, %s, 14' % (S(sT), S(sT2)), 's_min_u32 %s, %s, %s' % (S(sT2), S(sT2), S(sT)),
                's_lshl_b32 %s, %s, 6' % (S(sT2), S(sT2)), 's_add_u32 m0, %s, %d' % (S(sSpin), FL + a2 * 8192),
                'VM gw buffer_load_dwordx4 %s, %s, %s offen lds' % (V(t0), S(rGW, 4), S(sT2))]
    gwl += ['OPT_END', 'L_nogw:']
    wst_ = []
    for k in range(4):
        wst_ += ['s_lshl_b32 %s, %s, 21' % (S(sT2), S(sW)), 's_add_u32 %s, %s, 0x%x' % (S(sT2), S(sT2), k << 23), 's_load_dword %s, %s, %s' % (S(sJunk), S(rWS, 2), S(sT2))]
    L += epld + gwl + (bl + s0[4:] if P('BFIRST', 0) else s0[4:] + bl)
    st('s0i')
    if P('WTLB', 1): L += wst_
    L += w2tab
    L += ['v_lshrrev_b32 %s, 2, %s' % (V(t3), V(vL)), 'v_mul_u32_u24 %s, 224, %s' % (V(vTr), V(t3)),
          'v_and_b32 %s, 3, %s' % (V(t3), V(vL)), 'v_lshl_add_u32 %s, %s, 3, %s' % (V(vTr), V(t3), V(vTr)), 'v_add_u32 %s, 65536, %s' % (V(vTr + 1), V(vTr)),
          's_mov_b32 %s, %s' % (S(sL2E), f2u(LOG2E)), 's_mov_b32 %s, %s' % (S(sL2E + 1), f2u(LOG2E))]
    for d in range(4):
        L += ['s_xor_b32 %s, %s, %d' % (S(sT2), S(sC), d)] + sx(sAct + d, [(sN2, ACT_N2), (sT2, ACT_C)], ACT_OFF)
    L += sx(sPTs, [(sN2, 16 * PART_B), (sNB, 4 * PART_B), (sKS, PART_B)], PART_OFF)
    L += sx(sFG, [(sN2, 16 * FS), (sC, FS)], FG_OFF) + sx(sFP, [(sN2, 16 * FS), (sNB, 4 * FS), (sKS, FS)], FP_OFF)
    L += sx(sFGp, [(sN2, 16 * FS), (sKS, 4 * FS)], FG_OFF)
    L += ['v_add_u32 %s, 4096, %s' % (V(t0), V(vL16)), 'v_add_u32 %s, 8192, %s' % (V(t1), V(vL16)), 'v_add_u32 %s, %d, %s' % (V(t2), OPL, V(vL16))]
    vU = [vL16, t0, t1]
    uaddr = lambda u: (V(vU[u // 4]), (u % 4) * 1024)
    cm2 = c2 + 2; c1 = c2 + 4
    L += ['v_mov_b32 %s, 2.0' % V(c2), 'v_mov_b32 %s, 2.0' % V(c2 + 1), 'v_mov_b32 %s, -2.0' % V(cm2), 'v_mov_b32 %s, -2.0' % V(cm2 + 1),
          'v_mov_b32 %s, 1.0' % V(c1), 'v_mov_b32 %s, 1.0' % V(c1 + 1)]
    L += flat(stage_loads(1)) + ['WAITVM bias']
    bcv = []
    for T in range(7):
        for hh in range(2):
            bcv += ['v_lshlrev_b32 %s, 16, %s' % (V(vB[T] + 2 * hh), V(vBraw[T] + hh)), 'v_and_b32 %s, 0xffff0000, %s' % (V(vB[T] + 2 * hh + 1), V(vBraw[T] + hh))]
    L += ['WAITVM st0 lgkmcnt(0)']
    st('pro')
    def tr_reads(tag, dst, base, order):
        reg = vTr + (base >= 65536); off = base - (65536 if base >= 65536 else 0)
        return ['LK %s_%d ds_read_b64_tr_b16 %s, %s offset:%d' % (tag, T, A(dst[T] + 2 * b, 2), V(reg), off + b * 3584 + T * 32) for T in order for b in range(2)]
    ORD = [6, 0, 1, 2, 3, 4, 5]
    readsA = lambda ks: xread(ks, XF) + tr_reads('a%d' % ks, WF[ks & 1], W1R + ((ks // 2) % 4) * 14336 + (ks & 1) * 7168, ORD)
    mfA = lambda ks: with_waits('a%d' % ks, ORD, lambda T: ['%s %s, %s, %s, %s' % (MFMA, V(ACC[rt][T], 4), A(WF[ks & 1][T], 4), A(XF[ks & 1][rt], 4),
                                                            V(ACC[rt][T], 4) if ks else V(vB[T], 4)) for rt in range(2)], 3)
    L += ['s_barrier']
    st('b0')
    L += readsA(0) + bcv + tagc
    if P('PROBE2', 0): L += ['s_lshl_b32 s4, s2, 2', 's_add_u32 s4, s4, 0x%x' % TS_OFF, 's_atomic_swap %s, %s, s4' % (S(sR0), S(rWS, 2))]
    for ks in range(14):
        if ks == 13: L += lsig(9, t3)
        elif ks & 1: L += (['WAITVM st1'] if ks == 1 else []) + ['s_barrier']
        if ks & 1: st('b%d' % ((ks + 1) // 2))
        L += sched(mfA(ks), readsA(ks + 1) if ks < 13 else [], [], [])
    L += ['s_setprio %d' % P('PRM', 0)]
    st('mainA')
    def mish(src, dst, E, Aa):
        nv = 4 * len(src)
        h = lambda k: src[k // 4] + (k % 4)
        o = []
        for k in range(0, nv, 2): o += ['v_pk_mul_f32 %s, %s, %s' % (V(E + k, 2), V(h(k), 2), S(sL2E, 2))]
        for k in range(nv): o += ['v_exp_f32 %s, %s' % (V(E + k), V(E + k))]
        for k in range(0, nv, 2): o += ['v_pk_add_f32 %s, %s, %s' % (V(Aa + k, 2), V(E + k, 2), V(c2, 2))]
        for k in range(0, nv, 2): o += ['v_pk_fma_f32 %s, %s, %s, %s' % (V(E + k, 2), V(E + k, 2), V(Aa + k, 2), V(c2, 2))]
        for k in range(nv): o += ['v_rcp_f32 %s, %s' % (V(E + k), V(E + k))]
        for k in range(0, nv, 2): o += ['v_pk_fma_f32 %s, %s, %s, %s' % (V(E + k, 2), V(E + k, 2), V(cm2, 2), V(c1, 2))]
        for k in range(0, nv, 2): o += ['v_pk_mul_f32 %s, %s, %s' % (V(E + k, 2), V(E + k, 2), V(h(k), 2))]
        for k in range(0, nv, 2): o += ['v_cvt_pk_bf16_f32 %s, %s, %s' % (V(dst[k // 2]), V(E + k), V(E + k + 1))]
        return o
    ust = lambda r, u: 'VM act%d buffer_store_dwordx4 %s, %s, %s, %s offen offset:%d %s' % (max(u - 1, 0) // 2, V(r, 4), uaddr(u)[0], S(rWS, 4), S(sAct), uaddr(u)[1], SC)
    L += mish([ACC[0][6], ACC[1][6]], [U0[0] + k for k in range(4)], tmpA, tmpA + 8) + [ust(U0[0], 0)]
    readsC = lambda sl: tr_reads('c%d' % sl, WF[sl & 1], W2B[sl // 2] + (sl & 1) * 7168, range(7))
    for Pp in range(3):
        for rt in range(2):
            o = OWN[Pp][rt]
            L += mish([ACC[rt][2 * Pp], ACC[rt][2 * Pp + 1]], [o + k for k in range(4)], tmpA, tmpA + 8) + [ust(o, 1 + 2 * Pp + rt)]
    st('mish')
    GR = [sl for sl in range(3, 14) if SLOT[sl][0] != 'm']
    greg = {sl: RG[k] for k, sl in enumerate(GR)}
    uld = lambda tag, r, d, u: ['VM %s buffer_load_dwordx4 %s, %s, %s, %s offen offset:%d %s' % (tag, V(r, 4), uaddr(u)[0], S(rWS, 4), S(sAct + d), uaddr(u)[1], SC)]
    def gload(sl):
        d, Pp = SLOT[sl]
        if d == 'm': return [uld('g%d' % sl, U0[dd], dd, 0) for dd in ((1,) if Pp == 0 else (2, 3))]
        return [uld('g%d' % sl, greg[sl] + 4 * k, d, 1 + 2 * Pp + k) for k in range(2)]
    def gfix(sl):
        d, Pp = SLOT[sl]
        if d != 'm': return []
        fa, fb_ = (0, 1) if Pp == 0 else (2, 3)
        return [['WAITVM g%d' % sl]] + [['v_accvgpr_write_b32 %s, %s' % (A(XF[Pp][rt] + k), V(U0[fb_ if k >= 2 else fa] + 2 * rt + (k & 1)))] for rt in range(2) for k in range(4)]
    def opC(sl, rt):
        if sl < 3: return V(OWN[sl][rt], 4)
        return A(XF[SLOT[sl][1]][rt], 4) if SLOT[sl][0] == 'm' else V(greg[sl] + 4 * rt, 4)
    mfC = lambda sl: with_waits('c%d' % sl, list(range(7)), lambda T: ['%s %s, %s, %s, %s' % (MFMA, V(ACC[rt][T], 4), A(WF[sl & 1][T], 4),
                                opC(sl, rt), V(ACC[rt][T], 4) if sl else '0') for rt in range(2)], 2)
    NS = P('W2SN', 0)
    L += lwait(6, t3) + lwait(9, t3) + readsC(0)
    W2L = P('W2L', 2)
    hi = [u for t in range(W2L + NS, 7) for u in w2_loads(t)]; pst = [99]
    hq = hi if P('OWNDMA', 0) else []
    for sl in range(3): L += sched(mfC(sl), readsC(sl + 1), hq, [], P('PACEO', 3), pst)
    st('own0')
    hg = group_vm(hi) if hi else []
    late = 4 * P('W2LATE', 0); hl = hg[len(hg) - late:]; hg = hg[:len(hg) - late]
    n0 = min(len(hg), P('FGPRE', 4)); n1 = max(n0, len(hg) - P('FGTAIL', 6))
    pl_, pc_ = apoll('fg', [(sFGp, k * FS) for k in range(4)], sTag)
    L += flat(hg[:n0]) + ['WAITVM act2'] + (sflag(sFG) if P('SFG', 1) else setflag(sFG)); st('ack')
    L += flat(hg[n0:n1]) + pl_ + flat(hg[n1:])
    st('w2i')
    tl = 6 - P('W2LATE', 0)
    L += ['WAITVM w2_%d' % tl] + lsig(0, t3) + pc_
    st('fg')
    hi = [u for sl in range(3, 14) for u in gload(sl)]
    k = P('AFPRE', 7); L += flat(hi[:k]) + lwait(0, t3); k2 = P('AFMID', 13)
    hi = hi[k:k2] + [u for t in range(tl + 1, 7) for u in w2_loads(t)] + hi[k2:]
    if NS: L += lwait(7, t3)
    TM = P('TMAJ', 0)
    for sl in range(3, 14 - TM):
        lo = gfix(sl + 1) if sl + 1 < 14 else []
        tg = 'g%d' % sl
        while any(i.startswith('VM %s ' % tg) or (lo and i.startswith('VM g%d ' % (sl + 1))) for i in flat(hi)): L += flat([hi.pop(0)])
        if late and sl == 2 * (tl + 1) - 2:
            while any(i.startswith('VM w2_') for i in flat(hi)): L += flat([hi.pop(0)])
            L += ['WAITVM w2_6'] + lsig(10, t3)
        if late and sl == 2 * (tl + 1) - 1: L += lwait(10, t3)
        if SLOT[sl][0] != 'm': L += ['WAITVM %s' % tg]
        mm = mfC(sl); rd = readsC(sl + 1) if sl < 13 else []
        L += sched(mm[:4], rd[:4], hi, [], P('PACEC', 2), pst) + sched(mm[4:], rd[4:], lo, hi, P('PACEC', 2), pst) + flat(lo)
        if sl == 3: st('c3')
    st('mainC')
    L += ['s_cmp_eq_u32 %s, %s' % (S(sW), S(sKS)), 's_cbranch_scc1 L_ownp']
    cvp = lambda T: ['v_cvt_pk_bf16_f32 %s, %s, %s' % (V(ACC[0][T] + 2 * rt + hh), V(ACC[rt][T] + 2 * hh), V(ACC[rt][T] + 2 * hh + 1)) for rt in range(2) for hh in range(2)]
    if PTAG:
        PU = [fr + 4 * k for k in range(11)]
        L += ['v_mov_b32 %s, %s' % (V(r + 3), S(sTag)) for r in PU]
        for u in range(11):
            g, k = u // 3, u % 3
            for e in range(3):
                D = 3 * k + e; T = 2 * g + D // 4
                if D < 8 and T < 7: L += ['v_cvt_pk_bf16_f32 %s, %s, %s' % (V(PU[u] + e), V(ACC[(D % 4) // 2][T] + 2 * (D % 2)), V(ACC[(D % 4) // 2][T] + 2 * (D % 2) + 1))]
            L += ['VM part buffer_store_dwordx4 %s, %s, %s, %s offen offset:%d %s' % (V(PU[u], 4), uaddr(u)[0], S(rWS, 4), S(sPTs), uaddr(u)[1], SC)]
        L += ['s_waitcnt vmcnt(%d)' % P('PGATE', 4)] + setflag(sFP)
    else:
        for T in range(7):
            L += cvp(T) + ['VM part buffer_store_dwordx4 %s, %s, %s, %s offen offset:%d %s' % (V(ACC[0][T], 4), uaddr(T)[0], S(rWS, 4), S(sPTs), uaddr(T)[1], SC)]
        L += ['s_waitcnt vmcnt(0)'] + setflag(sFP)
    L += ['s_branch L_partd', 'L_ownp:', 's_nop 7']
    for T in range(7): L += cvp(T) + ['ds_write_b128 %s, %s offset:%d' % (V(t2), V(ACC[0][T], 4), T * 1024)]
    L += ['L_partd:'] + lsig(5, t3)
    finish(L, st, 'M')
    LM = L; nvM = va.hi

    L = ['L_S:']; st = mk_st(L, 'S')
    va = Alloc('v', vbase, NV); sa = Alloc('s', sbase, 102); aa = Alloc('a', 0, NA)
    sCF = sa(); sK1 = sa(); sHF = sa(); sKP = sa(); sRot2 = sa()
    sA1o = sa(); sA1o2 = sa(); sFB = sa(); sA1x = sa(); sDFx = sa(); sPTl2 = sa(); sFA = sa(); sWo = sa(); sDFo = sa(); sB1s = sa(); sB1l = sa(); sGl = sa(); sPTl = sa(); sOut = sa()
    vAmp = va(); vFr = va(); vG = va(2); vG1 = va(2); vA1 = va()
    big = va(NV - ((va.next + 3) // 4 * 4), 4); NB = NV - big
    pa = Alloc('v', big, NV)
    MM = [[[pa(4) for u in range(4)] for t in range(2)] for e in range(2)]
    WRr = [pa(4) for t in range(2)]; WIr = [pa(4) for t in range(2)]
    fb = pa.next
    ACD = [[pa(4) for T in range(2)] for rt in range(2)]
    MR = [[pa(4) for t in range(2)] for kt in range(2)]; MI = [[pa(4) for t in range(2)] for kt in range(2)]
    tmpS = pa(24, 4)
    XF = [[aa(4) for rt in range(2)] for b in range(2)]; FF = [[aa(4) for T in range(2)] for b in range(2)]
    NR = [[aa(4) for u in range(2)] for tn in range(2)]; NI = [[aa(4) for u in range(2)] for tn in range(2)]
    BF = [[XF[0][0] + 8 * a + 4 * u for u in range(2)] for a in range(4)]
    L += ['s_load_dwordx2 %s, s[0:1], %d' % (S(r_, 2), off) for r_, off in ((rWR, 8), (rWI, 16), (rOUT, 64))]
    L += common2 + ['v_add_u32 %s, %d, %s' % (V(vFr), FL, V(vL16)),
          's_lshl_b32 %s, %s, 1' % (S(sRot2), S(sSig)), 's_add_u32 %s, %s, %s' % (S(sRot2), S(sRot2), S(sW)),
          'v_lshlrev_b32 %s, 2, %s' % (V(t0), V(vL)), 'v_add_u32 %s, %d, %s' % (V(t0), LF, V(t0)), 'ds_write_b32 %s, %s' % (V(t0), V(vZero))]
    ta = Alloc('v', big, big + 64)
    cs = ta(8); sn = ta(8); th = ta(8); pk0 = ta(4); pk1 = ta(4); vKdf = ta(); vU = ta(); vD0 = ta(); vFw = vG
    vGW = [ACD[0][0] + 4 * a for a in range(4)]
    def kact(dst, a, tmp):
        return ['s_add_u32 %s, %s, %d' % (S(dst), S(sRot2), 4 * a), 's_sub_u32 %s, %s, 14' % (S(tmp), S(dst)), 's_min_u32 %s, %s, %s' % (S(dst), S(dst), S(tmp))]
    L += ['s_cmp_eq_u32 %s, 15' % S(sC), 's_cbranch_scc1 L_nofg', 'v_lshl_add_u32 %s, %s, 4, %s' % (V(vKdf), S(sC), V(vJ)), 'v_mov_b32 %s, 1.0' % V(vG1),
          'v_cmp_eq_u32 vcc, 0, %s' % V(vKdf), 'v_cndmask_b32 %s, %s, 0.5, vcc' % (V(vG1), V(vG1)),
          'v_cmp_eq_u32 vcc, 224, %s' % V(vKdf), 'v_cndmask_b32 %s, %s, 0.5, vcc' % (V(vG1), V(vG1)),
          'v_cmp_lt_u32 vcc, 224, %s' % V(vKdf), 'v_cndmask_b32 %s, %s, 0, vcc' % (V(vG1), V(vG1)), 'v_cvt_f32_u32 %s, %s' % (V(vKdf), V(vKdf)), 'v_mul_f32 %s, %s, %s' % (V(vU), S(sInv448), V(vKdf)),
          's_lshl_b32 %s, %s, 11' % (S(sT2), S(sW)), 'v_add_u32 %s, %s, %s' % (V(vFw), S(sT2), V(vFr))]
    for a in range(4):
        L += kact(sT2, a, sT3) + [
              'v_lshl_add_u32 %s, %s, 5, %s' % (V(vD0), S(sT2), V(vQ8)), 'v_cvt_f32_u32 %s, %s' % (V(vD0), V(vD0)),
              'v_mul_f32 %s, %s, %s' % (V(t3), V(vKdf), V(vD0)), 'v_mul_f32 %s, %s, %s' % (V(th), S(sInv448), V(t3)),
              'v_floor_f32 %s, %s' % (V(th), V(th)), 'v_fma_f32 %s, %s, %s, %s' % (V(t3), V(th), S(sM448), V(t3)),
              'v_mul_f32 %s, %s, %s' % (V(th), S(sInv448), V(t3))]
        for e in range(1, 8): L += ['v_add_f32 %s, %s, %s' % (V(th + e), V(th + e - 1), V(vU))]
        for e in range(8): L += ['v_cos_f32 %s, %s' % (V(cs + e), V(th + e)), 'v_sin_f32 %s, %s' % (V(sn + e), V(th + e))]
        for e in range(0, 8, 2):
            L += ['v_pk_mul_f32 %s, %s, %s op_sel_hi:[1,0]' % (V(cs + e, 2), V(cs + e, 2), V(vG1, 2)), 'v_pk_mul_f32 %s, %s, %s op_sel_hi:[1,0]' % (V(sn + e, 2), V(sn + e, 2), V(vG1, 2))]
        for e in range(4):
            L += ['v_cvt_pk_bf16_f32 %s, %s, %s' % (V(pk0 + e), V(cs + 2 * e), V(cs + 2 * e + 1)),
                  'v_cvt_pk_bf16_f32 %s, -%s, -%s' % (V(pk1 + e), V(sn + 2 * e), V(sn + 2 * e + 1))]
        L += ['ds_write_b128 %s, %s offset:%d' % (V(vFw), V(pk0, 4), a * 8192), 'ds_write_b128 %s, %s offset:%d' % (V(vFw), V(pk1, 4), a * 8192 + 1024)]
    L += ['L_nofg:']
    L += dmaddr
    for r_, sz in ((rWR, W_SZ), (rWI, W_SZ), (rOUT, X_SZ)):
        L += ['s_mov_b32 %s, 0x%x' % (S(r_ + 2), sz), 's_mov_b32 %s, 0x20000' % S(r_ + 3)]
    L += ['s_add_u32 %s, %s, 2' % (S(sSig), S(sSig)), 's_sub_u32 %s, %s, 7' % (S(sT), S(sSig)), 's_min_u32 %s, %s, %s' % (S(sSig), S(sSig), S(sT))]
    gx = lambda dst, terms, const=0: sx(dst, terms, const, sG2)
    lo1 = ['s_lshr_b32 %s, %s, 1' % (S(sHF), S(sW)), 's_and_b32 %s, %s, 15' % (S(sCF), S(sM)),
           's_lshr_b32 %s, %s, 4' % (S(sKP), S(sM)), 's_lshl_b32 %s, %s, 1' % (S(sG), S(sXc)), 's_add_u32 %s, %s, %s' % (S(sKP), S(sKP), S(sG)),
           's_and_b32 %s, %s, 1' % (S(sK1), S(sW)), 's_lshl_b32 %s, %s, 1' % (S(sG), S(sKP)), 's_add_u32 %s, %s, %s' % (S(sK1), S(sK1), S(sG))]
    lo1 += w2tab + gx(sWo, [(sK1, 450), (sCF, 32), (sHF, 32 * 14400)])
    lo1 += gx(sA1o, [(sI, 16 * A1_B), (sC, A1_B), (sW, 1024)], A1_OFF) + gx(sG, [(sN2, 128)], GATE_OFF) + ['s_add_u32 %s, %s, 8192' % (S(sA1x), S(sA1o))]
    lo1 += ['s_cmp_eq_u32 %s, 15' % S(sC), 's_cselect_b32 %s, %s, %s' % (S(sA1o), S(sG), S(sA1o)), 's_cselect_b32 %s, 64, 4096' % S(sG), 's_cselect_b64 vcc, -1, 0',
            's_add_u32 %s, %s, %s' % (S(sA1o2), S(sA1o), S(sG)), 'v_lshlrev_b32 %s, 4, %s' % (V(vA1), V(vQ)), 'v_cndmask_b32 %s, %s, %s, vcc' % (V(vA1), V(vL16), V(vA1))]
    lo1 += gx(sFB, [(sW, 16 * 16 * FS), (sCF, FS)], FB_OFF) + gx(sPTl2, [(sN2, 16 * FS), (sC, FS)], FB_OFF)
    lo1 += gx(sFA, [(sC, 64 * FS), (sW, 16 * FS), (sI, FS)], FA_OFF)
    lo1 += ['s_min_u32 %s, %s, 14' % (S(sG), S(sCF))] + gx(sDFo, [(sG, A1_B), (sK1, 256)], A1_OFF)
    lo1 += ['s_lshr_b32 %s, %s, 4' % (S(sG), S(sK1))] + gx(sDFx, [(sG, -4096 + 8), (sDFo, 1)], 8192)
    lo1 += gx(sB1s, [(sCF, 64 * 2048), (sW, 16 * 2048), (sKP, 128)], B1_OFF) + gx(sB1l, [(sW, 4 * 64 * 2048), (sN2f, 2048)], B1_OFF)
    lo1 += gx(sGl, [(sN2f, 128)], GATE_OFF) + gx(sPTl, [(sN2f, 16 * PART_B), (sNB, 4 * PART_B), (sW, 3072 if PTAG else 2048)], PART_OFF) + gx(sOut, [(sN2f, 896), (sNB, 224), (sW, 64)])
    sJunk = sSpin
    L += ['s_waitcnt lgkmcnt(0)'] + wst + epld + ['s_load_dword %s, %s, 0' % (S(sJunk), S(r_, 2)) for r_ in (rWR, rWI, rOUT)] + lo1
    q_ = tmpS
    lo = [
          'v_mul_u32_u24 %s, %d, %s' % (V(t3), 4 * 14400, V(vQ)), 'v_lshl_add_u32 %s, %s, 1, %s' % (V(t3), V(vJ), V(t3))]
    for t in range(2):
        for r in range(4): lo += ['v_mov_b32 %s, 0' % V(WRr[t] + r), 'v_mov_b32 %s, 0' % V(WIr[t] + r)]
    nlo1 = len(lo)
    vK = [q_, q_ + 1]; vS0 = q_ + 2; vS = q_ + 3; vA = [q_ + 4, q_ + 5]; c_ = [q_ + 6, q_ + 7]; s_ = [q_ + 8, q_ + 9]
    lo += ['v_cvt_f32_u32 %s, %s' % (V(vK[0]), V(vJ)), 'v_mul_f32 %s, %s, %s' % (V(vK[0]), f2u(1.0 / 2048), V(vK[0])),
           'v_add_f32 %s, %s, %s' % (V(vK[1]), f2u(16.0 / 2048), V(vK[0])),
           'v_lshl_add_u32 %s, %s, 8, %s' % (V(vS0), V(vQ), S(sN2)), 'v_cvt_f32_u32 %s, %s' % (V(vS0), V(vS0))]
    for t in range(2):
        for r in range(4):
            lo += ['v_add_f32 %s, %s, %s' % (V(vS), f2u(64.0 * (16 * t + r)), V(vS0))]
            for kt in range(2): lo += ['v_mul_f32 %s, %s, %s' % (V(vA[kt]), V(vK[kt]), V(vS))]
            for kt in range(2): lo += ['v_cos_f32 %s, %s' % (V(c_[kt]), V(vA[kt])), 'v_sin_f32 %s, %s' % (V(s_[kt]), V(vA[kt]))]
            for kt in range(2):
                lo += ['v_cvt_pk_bf16_f32 %s, %s, %s' % (V(MR[kt][t] + r), V(c_[kt]), V(s_[kt])),
                       'v_cvt_pk_bf16_f32 %s, -%s, %s' % (V(MI[kt][t] + r), V(s_[kt]), V(c_[kt]))]
    vI = q_; vN0 = q_ + 1; vAn = q_ + 2; vc = q_ + 4; vs = q_ + 5
    lo += ['v_lshl_add_u32 %s, %s, 5, %s' % (V(vI), S(sHF), V(vJ)), 'v_cvt_f32_u32 %s, %s' % (V(vI), V(vI)), 'v_mul_f32 %s, %s, %s' % (V(vI), f2u(1.0 / 64), V(vI)),
           'v_lshlrev_b32 %s, 2, %s' % (V(vN0), V(vQ)), 'v_cvt_f32_u32 %s, %s' % (V(vN0), V(vN0))]
    prev = []
    for u in range(4):
        for r in range(4):
            k = (4 * u + r) & 1
            lo += ['v_add_f32 %s, %s, %s' % (V(vAn + k), f2u(16.0 * u + r), V(vN0)), 'v_mul_f32 %s, %s, %s' % (V(vAn + k), V(vAn + k), V(vI)),
                   'v_cos_f32 %s, %s' % (V(vc + 2 * k), V(vAn + k)), 'v_sin_f32 %s, %s' % (V(vs + 2 * k), V(vAn + k))] + prev
            cc, ss = V(vc + 2 * k), V(vs + 2 * k)
            rot = [(cc, ss), ('-' + ss, cc), ('-' + cc, '-' + ss), (ss, '-' + cc)]
            prev = ['v_cvt_pk_bf16_f32 %s, %s, %s' % ((V(MM[e][t][u] + r),) + rot[(t * r + e) % 4]) for e in range(2) for t in range(2)]
    lo += prev
    ngen = []
    vSs, vKk, nc, ns, pn = q_, q_ + 2, q_ + 3, q_ + 4, q_ + 5
    ngen += ['v_lshl_add_u32 %s, %s, 6, %s' % (V(vSs), V(vJ), S(sN2f)), 'v_cvt_f32_u32 %s, %s' % (V(vSs), V(vSs)), 'v_mul_f32 %s, %s, %s' % (V(vSs), f2u(1.0 / 2048), V(vSs))]
    for u in range(2):
        for r in range(4):
            ngen += ['v_add_f32 %s, %s, %s' % (V(vKk), f2u(16.0 * u + r), V(vN0)), 'v_mul_f32 %s, %s, %s' % (V(vKk), V(vKk), V(vSs)),
                   'v_cos_f32 %s, %s' % (V(nc), V(vKk)), 'v_sin_f32 %s, %s' % (V(ns), V(vKk))]
            for tn in range(2):
                ng = '-' if (tn and r & 1) else ''; ps = '' if (tn and r & 1) else '-'
                if tn == 0 or r & 1:
                    ngen += ['v_cvt_pk_bf16_f32 %s, %s%s, %s%s' % (V(pn), ng, V(nc), ps, V(ns)), 'v_cvt_pk_bf16_f32 %s, %s%s, %s%s' % (V(pn + 1), ng, V(ns), ng, V(nc))]
                ngen += ['v_accvgpr_write_b32 %s, %s' % (A(NR[tn][u] + r), V(pn)), 'v_accvgpr_write_b32 %s, %s' % (A(NI[tn][u] + r), V(pn + 1))]
    lo += ['s_lshl_b32 %s, %s, 2' % (S(sG), S(sW)), 's_add_u32 %s, %s, %d' % (S(sG), S(sG), XCH),
           'v_lshl_add_u32 %s, %s, 10, %s' % (V(t0), V(vQ), S(sG)), 'v_lshl_add_u32 %s, %s, 4, %s' % (V(t0), V(vJ), V(t0)),
           's_lshl_b32 %s, %s, 10' % (S(sG), S(sW)), 's_add_u32 %s, %s, %d' % (S(sG), S(sG), XCH), 'v_add_u32 %s, %s, %s' % (V(t1), S(sG), V(vL16))]
    pf = sx(sT2, [(sM, 12544), (sKS, 448 * 896), (sW, 25 * 128)]) + [
         'v_lshrrev_b32 %s, 1, %s' % (V(t2), V(vL)), 'v_min_u32 %s, 24, %s' % (V(t2), V(t2)), 'v_lshlrev_b32 %s, 7, %s' % (V(t2), V(t2)),
         'VM pf buffer_load_dword %s, %s, %s, %s offen%s' % (V(vPv), V(t2), S(rW2, 4), S(sT2), NT)]
    pf += sx(sT2, [(sM, 2 * 14400), (sHF, 14400), (sXc, 1800)]) + [
         'v_lshrrev_b32 %s, 3, %s' % (V(t2), V(vL)), 's_and_b32 %s, %s, 1' % (S(sT), S(sW)), 's_lshl_b32 %s, %s, 10' % (S(sT), S(sT)),
         'v_lshl_add_u32 %s, %s, 7, %s' % (V(t2), V(t2), S(sT)), 'v_min_u32 %s, 1796, %s' % (V(t2), V(t2)),
         'VM pf buffer_load_dword %s, %s, %s, %s offen%s' % (V(vPv), V(t2), S(rWR, 4), S(sT2), NT),
         'VM pf buffer_load_dword %s, %s, %s, %s offen%s' % (V(vPv), V(t2), S(rWI, 4), S(sT2), NT)]
    if P('PF2', 1):
        pf = ['s_lshr_b32 %s, %s, 2' % (S(sT3), S(sM)), 's_lshl_b32 %s, %s, 1' % (S(sT3), S(sT3)), 's_and_b32 %s, %s, 1' % (S(sT), S(sM)), 's_add_u32 %s, %s, %s' % (S(sT3), S(sT3), S(sT)),
              's_add_u32 %s, %s, 1' % (S(sG), S(sM)), 's_and_b32 %s, %s, 2' % (S(sG), S(sG)), 's_lshl_b32 %s, %s, 29' % (S(sG), S(sG))]
        pf += sx(sT2, [(sT3, 25088), (sKS, 448 * 896), (sW, 49 * 128), (sG, 1)]) + [
              'v_min_u32 %s, 48, %s' % (V(t2), V(vL)), 'v_lshlrev_b32 %s, 7, %s' % (V(t2), V(t2)),
              'VM pf buffer_load_dword %s, %s, %s, %s offen' % (V(vPv), V(t2), S(rW2, 4), S(sT2))]
        pf += sx(sT2, [(sT3, 4 * 14400), (sW, 14400), (sXc, 1800), (sG, 1)]) + [
              'v_lshrrev_b32 %s, 2, %s' % (V(t2), V(vL)), 'v_lshlrev_b32 %s, 7, %s' % (V(t2), V(t2)), 'v_min_u32 %s, 1796, %s' % (V(t2), V(t2)),
              'VM pf buffer_load_dword %s, %s, %s, %s offen' % (V(vPv), V(t2), S(rWR, 4), S(sT2)),
              'VM pf buffer_load_dword %s, %s, %s, %s offen' % (V(vPv), V(t2), S(rWI, 4), S(sT2))]
    wl = []
    for t in range(2):
        for r in range(4):
            wl += ['s_add_u32 %s, %s, %d' % (S(sT2), S(sWo), (16 * t + r) * 14400),
                   'VM W buffer_load_short_d16_hi %s, %s, %s, %s offen' % (V(WRr[t] + r), V(t3), S(rWR, 4), S(sT2)),
                   'VM W buffer_load_short_d16_hi %s, %s, %s, %s offen' % (V(WIr[t] + r), V(t3), S(rWI, 4), S(sT2))]
    readsS = lambda ks: xread(ks, XF) + ['LK a%d_f ds_read_b128 %s, %s offset:%d' % (ks, A(FF[ks & 1][T], 4), V(vFr), ks * 2048 + T * 1024) for T in range(2)]
    mfS = lambda ks: ['%s %s, %s, %s, %s' % (MFMA, V(ACD[rt][T], 4), A(XF[ks & 1][rt], 4), A(FF[ks & 1][T], 4), V(ACD[rt][T], 4) if ks else '0') for T in range(2) for rt in range(2)]
    L += lo
    if P('NGPRO', 0): L += ngen; ngen = []
    if P('PFS', 2) == -1: L += pf
    L += ['s_waitcnt lgkmcnt(0)', 's_setprio %d' % P('PRS', 1)] + tagc
    st('pro')
    L += ['s_barrier']
    L += readsS(0)
    ngl = []
    if not P('NGL', 0): ngl = ngen; ngen = []
    lo = ngen; per = (len(lo) + 5) // 6
    ld = []
    for ks in range(14):
        if ks == 0: ld = [setflag(sPTl2)] + group_vm(stage_loads(2)) + ([pf] if P('PFS', 2) == 0 else [])
        if ks & 1:
            s = (ks + 1) // 2
            if s < 7: L += flat(ld) + (['WAITVM st%d' % s] if 2 <= s else []) + ['s_barrier']; ld = []
            if s + 2 <= 6: ld = group_vm(stage_loads(s + 2))
            if s == P('PFS', 2): ld += [pf]
            if s == 6: w01 = group_vm(w2_loads(0) + w2_loads(1)); ld += w01[:P('W2E', 4)]; w01 = w01[P('W2E', 4):]
        if ks == P('WLK', 10): ld += [wl]
        L += ['WAITLK a%d_f' % ks] + weave(mfS(ks), readsS(ks + 1) if ks < 13 else [])
        h = (len(ld) + 1) // 2 if (ks & 1 and P('SPLITLD', 1)) else len(ld)
        L += flat(ld[:h]); ld = ld[h:]
        if ks % 2 == 0 and ks: L += lo[:per]; lo = lo[per:]
    assert not lo
    L += ['s_setprio %d' % P('PRS2', 1)]
    st('mainA')
    PX = [tmpS, tmpS + 4]; DR = [tmpS + 8, tmpS + 12]; DI = [tmpS + 16, tmpS + 20]; XO = [ACD[0][0], ACD[1][0]]
    L += ['s_nop 4', 's_cmp_eq_u32 %s, 15' % S(sC), 's_cbranch_scc1 L_gate']
    for t in range(2):
        for r in range(4): L += ['v_cvt_pk_bf16_f32 %s, %s, %s' % (V(PX[t] + r), V(ACD[t][0] + r), V(ACD[t][1] + r))]
    for t in range(2):
        for kt in range(2):
            L += ['%s %s, %s, %s, %s' % (MFMA, V(DR[kt], 4), V(MR[kt][t], 4), V(PX[t], 4), V(DR[kt], 4) if t else '0'),
                  '%s %s, %s, %s, %s' % (MFMA, V(DI[kt], 4), V(MI[kt][t], 4), V(PX[t], 4), V(DI[kt], 4) if t else '0')]
    for kt in range(2):
        for r in range(4):
            L += ['v_cvt_pk_bf16_f32 %s, %s, %s' % (V(DR[kt] + r), V(DR[kt] + r), V(DI[kt] + r)),
                  'ds_write_b32 %s, %s offset:%d' % (V(t0), V(DR[kt] + r), kt * 4096 + r * 256)]
    L += lsig(1, t0) + lwait(1, t0)
    L += ['ds_read_b128 %s, %s offset:%d' % (V(XO[k], 4), V(t1), k * 4096) for k in range(2)]
    XX = ACD[0][1]
    L += ['v_mov_b32 %s, %s' % (V(XX + 1), S(sTag)), 'v_mov_b32 %s, %s' % (V(XX + 3), S(sTag)), 's_waitcnt lgkmcnt(0)']
    for k in range(2): L += ['v_mov_b32 %s, %s' % (V(XX + 2 * k), V(XO[k] + 3)), 'v_mov_b32 %s, %s' % (V(XO[k] + 3), S(sTag))]
    L += ['OPT_BEGIN', 'VM a1x buffer_store_dwordx4 %s, %s, %s, %s offen %s' % (V(XX, 4), V(vL16), S(rWS, 4), S(sA1x), SC), 'OPT_END']
    L += ['s_branch L_a1st', 'L_gate:', 's_nop 3']
    for rt in range(2):
        o = XO[rt]
        for r in range(4): L += ['v_mul_f32 %s, %s, %s' % (V(o + r), f2u(LOG2E), V(o + r))]
        for r in range(4): L += ['v_exp_f32 %s, -%s' % (V(o + r), V(o + r))]
        for r in range(4): L += ['v_add_f32 %s, 1.0, %s' % (V(o + r), V(o + r))]
        for r in range(4): L += ['v_rcp_f32 %s, %s' % (V(o + r), V(o + r))]
    L += ['s_nop 0', 'L_a1st:']
    L += ['VM a1 buffer_store_dwordx4 %s, %s, %s, %s offen %s' % (V(XO[k], 4), V(vA1), S(rWS, 4), S(sA1o2 if k else sA1o), SC) for k in range(2)]
    L += ['s_cmp_lg_u32 %s, 15' % S(sC), 's_cbranch_scc1 L_fa', 's_waitcnt vmcnt(0)', 'L_fa:'] + (['WAITVM a1'] if P('FAACK', 0) else []) + setflag(sFA)
    st('a1st')
    L += ['s_setprio %d' % P('PRW', 1)] + flat(w01) + (wl if P('WLK', 10) == 99 else []) + ['s_setprio %d' % P('PRS2', 1), 'WAITVM w2_1'] + lsig(6, t3) + lwait(9, t3) + (lwait(6, t3) if P('W2SN', 0) >= 2 else [])
    NS = P('W2SN', 0)
    ws_ = group_vm([u for t in range(P('W2L', 2), P('W2L', 2) + NS) for u in w2_loads(t)]) if NS else []
    pb = Alloc('v', fb, NV)
    DF = [pb(4) for u in range(4)]; XRr = [pb(4) for t in range(2)]; XIr = [pb(4) for t in range(2)]; PF = [pb(4) for t in range(4)]
    if ngl: ngl = ['v_lshlrev_b32 %s, 2, %s' % (V(vN0), V(vQ)), 'v_cvt_f32_u32 %s, %s' % (V(vN0), V(vN0))] + ngl
    dfl = []
    for u in range(4):
        dfl += ['s_add_u32 %s, %s, 0x%x' % (S(sT2), S(sDFo), u * 4 * 16 * A1_B),
                'VM df buffer_load_dwordx4 %s, %s, %s, %s offen %s' % (V(DF[u], 4), V(vPa), S(rWS, 4), S(sT2), SC),
                's_add_u32 %s, %s, 0x%x' % (S(sT2), S(sDFx), u * 4 * 16 * A1_B),
                'VM df buffer_load_dwordx2 %s, %s, %s, %s offen %s' % (V(PF[0] + 2 * u, 2), V(vPa), S(rWS, 4), S(sT2), SC)]
    L += ['v_mul_u32_u24 %s, %d, %s' % (V(vPa), 16 * A1_B, V(vQ)), 'v_lshl_add_u32 %s, %s, 4, %s' % (V(vPa), V(vJ), V(vPa))]
    k1 = P('NGA', 0)
    L += ['s_min_u32 %s, %s, 14' % (S(sT3), S(sCF))] + sx(sT2, [(sT3, 64 * FS), (sKS, 16 * FS), (sW, 4 * FS)], FA_OFF)
    L += flat(ws_) + (['WAITVM a1'] if P('FAW', 1) else []) + flat(list(apoll('fa', [(sT2, k * FS) for k in range(4)], sTag))) + lsig(8, t3) + lwait(8, t3) + dfl
    st('fa')
    gp_, gc_ = apoll('gt', [(sG, 0)], sTag)
    gl = ['VM g buffer_load_dword %s, %s, %s, %s offen offset:%d %s' % (V(vG + rt), V(vAmp), S(rWS, 4), S(sGl), rt * 64, SC) for rt in range(2)]
    L += sx(sG, [(sKS, 16 * FS), (sI, FS)], FA_OFF + 60 * 16 * FS) + gp_ + ngl[k1:] + gc_ + ['v_lshlrev_b32 %s, 2, %s' % (V(vAmp), V(vJ))] + gl
    if NS: L += ['WAITVM w2_%d' % (P('W2L', 2) - 1 + NS)] + lsig(7, t3)
    L += ['s_and_b32 %s, %s, 1' % (S(sT2), S(sW)), 's_lshl_b32 %s, %s, 12' % (S(sT3), S(sT2)), 's_add_u32 %s, %s, %d' % (S(sT3), S(sT3), PXC),
          'v_add_u32 %s, %s, %s' % (V(t1), S(sT3), V(vL16)), 's_lshl_b32 %s, %s, 11' % (S(sT3), S(sHF)), 'v_add_u32 %s, %s, %s' % (V(t0), S(sT3), V(t1)),
          's_lshl_b32 %s, %s, 2' % (S(sT2), S(sT2)), 's_lshl_b32 %s, %s, 12' % (S(sT3), S(sHF)), 's_add_u32 %s, %s, %s' % (S(sT2), S(sT2), S(sT3)),
          's_add_u32 %s, %s, %d' % (S(sT2), S(sT2), BXC),
          'v_lshl_add_u32 %s, %s, 9, %s' % (V(t2), V(vQ), S(sT2)), 'v_lshl_add_u32 %s, %s, 3, %s' % (V(t2), V(vJ), V(t2))]
    L += flat(dcheck('df', [('v_cmp_ne_u32', S(sTag), V(r)) for u in range(4) for r in (DF[u] + 3, PF[0] + 2 * u + 1)], raw(dfl)))
    L += ['v_mov_b32 %s, %s' % (V(DF[u] + 3), V(PF[0] + 2 * u)) for u in range(4)]
    st('df')
    TR = PF[2]; TI = PF[3]
    def cmulpk(t):
        o = []
        for r in range(4):
            xr, xi, wr, wi = V(XRr[t] + r), V(XIr[t] + r), V(WRr[t] + r), V(WIr[t] + r)
            o += ['v_mul_f32 %s, %s, %s' % (V(TR + r), xr, wr), 'v_mul_f32 %s, %s, %s' % (V(TI + r), xr, wi),
                  'v_fma_f32 %s, -%s, %s, %s' % (V(TR + r), xi, wi, V(TR + r)), 'v_fma_f32 %s, %s, %s, %s' % (V(TI + r), xi, wr, V(TI + r)),
                  'v_cvt_pk_bf16_f32 %s, %s, %s' % (V(PF[t] + r), V(TI + r), V(TR + r))]
        return o + ['ds_write_b128 %s, %s offset:%d' % (V(t0), V(PF[t], 4), t * 1024)]
    stg = lambda t, e0: [x for u in range(4) for x in
                         ('%s %s, %s, %s, %s' % (MFMA, V(XRr[t], 4), V(MM[e0][t][u], 4), V(DF[u], 4), V(XRr[t], 4) if u else '0'),
                          '%s %s, %s, %s, %s' % (MFMA, V(XIr[t], 4), V(MM[1 - e0][t][u], 4), V(DF[u], 4), V(XIr[t], 4) if u else '0'))]
    cm0 = cmulpk(0); sg1 = stg(1, 0)
    L += stg(0, 0) + sg1[:3] + sched(sg1[3:], [], [], cm0) + cm0 + cmulpk(1) + lsig(2, t3); st('sta')
    L += lwait(2, t3); st('px')
    L += ['ds_read_b128 %s, %s offset:%d' % (V(DF[u], 4), V(t1), u * 1024) for u in range(4)]
    L += ['s_lshl_b32 %s, %s, 11' % (S(sT2), S(sW)), 's_add_u32 %s, %s, %d' % (S(sT2), S(sT2), BXC), 'v_add_u32 %s, %s, %s' % (V(t1), S(sT2), V(vL16)),
          'v_lshrrev_b32 %s, 3, %s' % (V(t0), V(vL)), 'v_and_b32 %s, 7, %s' % (V(t3), V(vL)), 'v_lshlrev_b32 %s, 11, %s' % (V(t0), V(t0)),
          'v_lshl_add_u32 %s, %s, 4, %s' % (V(t0), V(t3), V(t0)), 's_add_u32 %s, %s, %d' % (S(sT2), S(sB1s), 8 * 2048), 's_waitcnt lgkmcnt(0)']
    outb = lambda t: [x for r in range(4) for x in ('v_cvt_pk_bf16_f32 %s, %s, %s' % (V(PF[t] + r), V(XRr[t] + r), V(XIr[t] + r)),
                                                     'ds_write_b32 %s, %s offset:%d' % (V(t2), V(PF[t] + r), t * 2048 + r * 128))]
    ob0 = outb(0); sg1 = stg(1, 1)
    L += stg(0, 1) + sg1[:4] + sched(sg1[4:], [], [], ob0) + ob0 + outb(1) + lsig(3, t3); st('stb')
    L += lwait(3, t3); st('bx')
    L += ['LK bx%d ds_read_b128 %s, %s offset:%d' % (k, V(PF[2 + k], 4), V(t1), k * 1024) for k in range(2)]
    for k in range(2):
        L += ['WAITLK bx%d' % k, 'VM b1 buffer_store_dwordx4 %s, %s, %s, %s offen %s' % (V(PF[2 + k], 4), V(t0), S(rWS, 4), S(sT2 if k else sB1s), SC)]
    st('fft')

    pd = Alloc('v', big, NV)
    GF = [[pd(4) for ct in range(2)] for T in range(15)]
    yb0 = pd.next
    CS = [[pd(2) for r in range(4)] for a in range(2)]
    kR = pd(2); kA = pd(2); vDf = pd(); vUu = pd(); vK0 = pd(); an = pd(4, 1)
    if P('GPK', 0): cheb = lambda d, k, x1, x0: ['v_pk_fma_f32 %s, %s, %s, %s op_sel_hi:[0,1,1] neg_lo:[0,0,1] neg_hi:[0,0,1]' % (V(d, 2), V(k, 2), V(x1, 2), V(x0, 2))]
    else: cheb = lambda d, k, x1, x0: ['v_fma_f32 %s, %s, %s, -%s' % (V(d + hh), V(k), V(x1 + hh), V(x0 + hh)) for hh in range(2)]
    def gen_G(ct):
        o = []
        if ct == 0:
            o += sx(sG, [(sNB, 112), (sW, 32)], 0, sG2) + ['v_add_u32 %s, %s, %s' % (V(vDf), S(sG), V(vJ)), 'v_cvt_f32_u32 %s, %s' % (V(vDf), V(vDf)),
                  'v_lshlrev_b32 %s, 2, %s' % (V(vK0), V(vQ)), 'v_cvt_f32_u32 %s, %s' % (V(vK0), V(vK0))]
        else: o += ['v_add_f32 %s, %s, %s' % (V(vDf), f2u(16.0), V(vDf))]
        o += ['v_mul_f32 %s, %s, %s' % (V(vUu), S(sInv448), V(vDf)), 'v_mul_f32 %s, %s, %s' % (V(an), V(vK0), V(vUu)),
              'v_mul_f32 %s, %s, %s' % (V(t3), f2u(16.0), V(vUu)),
              'v_cos_f32 %s, %s' % (V(kR), V(vUu)), 'v_cos_f32 %s, %s' % (V(kA), V(t3)),
              'v_add_f32 %s, %s, %s' % (V(an + 1), V(an), V(vUu)), 'v_add_f32 %s, %s, %s' % (V(an + 2), V(an), V(t3)), 'v_add_f32 %s, %s, %s' % (V(an + 3), V(an + 1), V(t3)),
              'v_add_f32 %s, %s, %s' % (V(kR), V(kR), V(kR)), 'v_add_f32 %s, %s, %s' % (V(kA), V(kA), V(kA))]
        for a in range(2):
            for r in range(2):
                o += ['v_cos_f32 %s, %s' % (V(CS[a][r]), V(an + 2 * a + r)), 'v_sin_f32 %s, -%s' % (V(CS[a][r] + 1), V(an + 2 * a + r))]
        for r in (2, 3):
            for a in range(2): o += cheb(CS[a][r], kR, CS[a][r - 1], CS[a][r - 2])
        for T in range(15):
            a = T & 1
            if T >= 2: o += [x for r in range(4) for x in cheb(CS[a][r], kA, CS[1 - a][r], CS[a][r])]
            o += ['v_cvt_pk_bf16_f32 %s, %s, %s' % (V(GF[T][ct] + r), V(CS[a][r]), V(CS[a][r] + 1)) for r in range(4)]
        return o
    bfl = [['s_add_u32 %s, %s, 0x%x' % (S(sT2), S(sB1l), a * 64 * 2048)] +
           ['VM bf%d buffer_load_dwordx2 %s, %s, %s, %s offen offset:%d %s' % (a, A(BF[a][u] + 2 * hh, 2), V(t0), S(rWS, 4), S(sT2), u * 1024 + hh * 128, SC)
            for u in range(2) for hh in range(2)] for a in range(4)]
    gg = gen_G(0) + gen_G(1); k0_ = len(gg) * P('FBPOS', 30) // 100
    L += ['v_lshlrev_b32 %s, 8, %s' % (V(t0), V(vQ)), 'v_lshl_add_u32 %s, %s, 3, %s' % (V(t0), V(vJ), V(t0)),
          'v_mul_u32_u24 %s, %d, %s' % (V(vPa), 16 * FS, V(vJ)), 's_setprio %d' % P('PRG', 1)]
    L += gg[:k0_] + ['WAITVM b1', 's_mov_b64 exec, 0xffff', 'VM fb buffer_atomic_add %s, %s, %s, %s offen sc1' % (V(vOne), V(vPa), S(rWS, 4), S(sFB)), 's_mov_b64 exec, -1']
    k1_ = len(gg) * P('FBI', 65) // 100; k2_ = len(gg) * P('FBC', 85) // 100
    bp_, bc_ = apoll('fb', [(sFA, 0), (sFA, FS), (sFA, 2 * FS), (sT3, 0)], sDFx)
    L += sx(sFA, [(sN2f, 16 * FS), (sW, 4 * FS)], FB_OFF) + ['s_cmp_eq_u32 %s, 3' % S(sW), 's_cselect_b32 %s, %d, %d' % (S(sT3), 0, 1), 's_mul_i32 %s, %s, %d' % (S(sT3), S(sT3), 3 * FS),
          's_add_u32 %s, %s, %s' % (S(sT3), S(sT3), S(sFA)), 's_add_u32 %s, %s, 16' % (S(sDFx), S(sTag))]
    L += gg[k0_:k1_] + bp_ + gg[k1_:k2_] + bc_ + flat(bfl); st('fb')
    L += gg[k2_:] + ['s_setprio %d' % P('PRS2', 1)]
    st('gen')
    yb = Alloc('v', yb0, NV)
    YR = [[yb(4) for tn in range(2)] for a in range(2)]; YI = [[yb(4) for tn in range(2)] for a in range(2)]
    L += ['s_lshl_b32 %s, %s, 13' % (S(sT2), S(sW)), 'v_add_u32 %s, %s, %s' % (V(t1), S(sT2), V(vFr))]
    L += ['v_mul_u32_u24 %s, 57344, %s' % (V(t2), V(vJ)), 'v_add_u32 %s, %s, %s' % (V(t2), V(t2), V(vQ8)),
          's_lshl_b32 %s, %s, 11' % (S(sT2), S(sW)), 's_add_u32 %s, %s, %d' % (S(sT2), S(sT2), OPL), 'v_add_u32 %s, %s, %s' % (V(vA1), S(sT2), V(vL16))]
    bfck = lambda a: ['WAITVM bf%d' % a]
    step6 = lambda a: ['%s %s, %s, %s, %s' % (MFMA, V(Y[a & 1][tn], 4), A(BF[a][u], 4), A(N[tn][u], 4), V(Y[a & 1][tn], 4) if u else '0')
                       for u in range(2) for tn in range(2) for (Y, N) in ((YR, NR), (YI, NI))]
    def packY(a):
        o = []
        for tn in range(2):
            for r in range(4):
                o += ['v_cvt_pk_bf16_f32 %s, %s, %s' % (V(YR[a & 1][tn] + r), V(YR[a & 1][tn] + r), V(YI[a & 1][tn] + r))]
            o += ['ds_write_b128 %s, %s offset:%d' % (V(t1), V(YR[a & 1][tn], 4), a * 2048 + tn * 1024)]
        return o
    L += bfck(0); st('bf0')
    L += step6(0)
    for a in range(1, 4):
        pk_ = packY(a - 1)
        L += bfck(a) + sched(step6(a), [], [], pk_) + pk_
    L += packY(3) + lsig(4, t3); st('s6a')
    L += lwait(4, t3)
    st('s6')
    NY = 16
    YF = [4 * n for n in range(NY)]
    AC = [[yb0 + 16 + 8 * ct + 4 * rt for rt in range(2)] for ct in range(2)]
    seq = [(T, rt) for T in range(15) for rt in range(2)]
    rdY = lambda n: 'LK y%d ds_read_b128 %s, %s offset:%d' % (n, A(YF[n % NY], 4), V(vFr), seq[n][0] * 2048 + seq[n][1] * 1024)
    nu = 3 if PTAG else 2
    PT = [GF[0][0] + 4 * nu * k for k in range(3)]; PO = GF[5][0]; ub = GF[6][0]
    ptl = []
    for k in range(3):
        ptl += ['s_add_u32 %s, %s, %d' % (S(sT2), S(sKS), k + 1), 's_and_b32 %s, %s, 3' % (S(sT2), S(sT2)),
                's_mul_i32 %s, %s, %d' % (S(sT2), S(sT2), PART_B), 's_add_u32 %s, %s, %s' % (S(sT2), S(sT2), S(sPTl))]
        ptl += ['VM pt buffer_load_dwordx4 %s, %s, %s, %s offen offset:%d %s' % (V(PT[k] + 4 * u, 4), V(vL16), S(rWS, 4), S(sT2), u * 1024, SC) for u in range(nu - 1)]
        ptl += ['s_add_u32 %s, %s, %s' % (S(sT2), S(sT2), S(sPTl2)),
                'VM pt buffer_load_dwordx4 %s, %s, %s, %s offen %s' % (V(PT[k] + 4 * (nu - 1), 4), V(vL16), S(rWS, 4), S(sT2), SC)]
    L += ['s_cmp_eq_u32 %s, 3' % S(sW), 's_cselect_b32 %s, 0, %d' % (S(sPTl2), (nu - 1) * 1024)]
    L += sx(sG, [(sN2f, 16 * FS), (sNB, 4 * FS)], FP_OFF)
    for k, r_ in enumerate((sFA, sFB, sDFx)):
        L += ['s_add_u32 %s, %s, %d' % (S(r_), S(sKS), k + 1), 's_and_b32 %s, %s, 3' % (S(r_), S(r_)), 's_mul_i32 %s, %s, %d' % (S(r_), S(r_), FS), 's_add_u32 %s, %s, %s' % (S(r_), S(r_), S(sG))]
    fp_, fc_ = apoll('fp', [(sFA, 0), (sFB, 0), (sDFx, 0)], sTag)
    LA = 14
    L += [rdY(n) for n in range(LA)]
    for n, (T, rt) in enumerate(seq):
        if n == 17: L += ['s_waitcnt lgkmcnt(0)'] + fp_
        if n % 2 == 0 and n < 17: L += ['WAITLK y%d' % (n + 1)]
        L += ['%s %s, %s, %s, %s' % (MFMA, V(AC[0][rt], 4), V(GF[T][0], 4), A(YF[n % NY], 4), V(AC[0][rt], 4) if T else '0')]
        if n + LA < len(seq): L += [rdY(n + LA)]
        L += ['%s %s, %s, %s, %s' % (MFMA, V(AC[1][rt], 4), V(GF[T][1], 4), A(YF[n % NY], 4), V(AC[1][rt], 4) if T else '0')]
    st('mainD')
    L += ['WAITVM g']
    for rt in range(2):
        L += ['v_sub_f32 %s, 1.0, %s' % (V(vG1 + rt), V(vG + rt)), 'v_mul_f32 %s, %s, %s' % (V(vG + rt), f2u(2.0 / (2048 * 448)), V(vG + rt))]
    L += fc_ + ptl + lwait(5, t3)
    st('fp')
    L += ['ds_read_b128 %s, %s offset:%d' % (V(PO + 4 * a, 4), V(vA1), a * 1024) for a in range(2)]
    L += ['v_mul_f32 %s, %s, %s' % (V(AC[a][rt] + r), V(vG + rt), V(AC[a][rt] + r)) for a in range(2) for rt in range(2) for r in range(4)]
    L += ['s_add_u32 %s, %s, 917504' % (S(sT3), S(sOut)), 's_waitcnt lgkmcnt(0)']
    osel = lambda rt: 'op_sel:[0,1,0]' if rt else 'op_sel_hi:[1,0,1]'
    for a in range(2):
        for rt in range(2):
            for hh in range(2):
                src = V(PO + 4 * a + 2 * rt + hh); d = ub + 8 * a + 4 * rt + 2 * hh
                L += ['v_lshlrev_b32 %s, 16, %s' % (V(d), src), 'v_and_b32 %s, 0xffff0000, %s' % (V(d + 1), src),
                      'v_pk_fma_f32 %s, %s, %s, %s %s' % (V(AC[a][rt] + 2 * hh, 2), V(d, 2), V(vG1, 2), V(AC[a][rt] + 2 * hh, 2), osel(rt))]
    L += flat(dcheck('pt', [('v_cmp_ne_u32', S(sTag), V(PT[0] + 4 * u + 3)) for u in range(9)], raw(ptl))) if PTAG else ['WAITVM pt']
    st('ptl')
    for a in range(2):
        prs = [(rt, hh, ub + 4 * rt + 2 * hh) for rt in range(2) for hh in range(2)]
        for rt, hh, d in prs:
            for k in range(3):
                D = 4 * a + 2 * rt + hh
                src = V(PT[k] + 4 * (D // 3) + D % 3) if PTAG else V(PT[k] + D)
                L += ['v_lshlrev_b32 %s, 16, %s' % (V(d + 8 * k), src), 'v_and_b32 %s, 0xffff0000, %s' % (V(d + 8 * k + 1), src)]
        for rt, hh, d in prs: L += ['v_pk_add_f32 %s, %s, %s' % (V(d, 2), V(d, 2), V(d + 8, 2))]
        for rt, hh, d in prs: L += ['v_pk_add_f32 %s, %s, %s' % (V(d, 2), V(d, 2), V(d + 16, 2))]
        for rt, hh, d in prs: L += ['v_pk_fma_f32 %s, %s, %s, %s %s' % (V(d, 2), V(d, 2), V(vG1, 2), V(AC[a][rt] + 2 * hh, 2), osel(rt))]
        for rt, hh, d in prs: L += ['v_cvt_pk_bf16_f32 %s, %s, %s' % (V(AC[a][rt] + hh), V(d), V(d + 1))]
        for rt in range(2):
            L += ['VM out buffer_store_dwordx2 %s, %s, %s, %s offen offset:%d' % (V(AC[a][rt], 2), V(t2), S(rOUT, 4), S(sT3 if rt else sOut), a * 32)]
        if a == 0: L += ['s_cmp_eq_u32 %s, 3' % S(sW), 's_cbranch_scc1 L_w3']
    L += ['s_branch L_fin', 'L_w3:', 's_cmp_lg_u32 s2, 120', 's_cbranch_scc1 L_fin', 's_mov_b32 %s, 0x%x' % (S(sT2), FA_OFF + 60 * 16 * FS)] + spoll('ep', [(sT2, (3 + 4 * k) * FS) for k in range(4)], sTag) + ['s_mov_b32 %s, 0x%x' % (S(sT), EP_OFF)] + setflag(sT) + ['L_fin:']
    finish(L, st, 'S')
    LS = L
    if STAMP: open('stamps.txt', 'w').write(' '.join(stamps['M']) + ' / ' + ' '.join(stamps['S']))
    print('role M vgpr', nvM, 'instr', len(LM), ' role S big', NB, 'instr', len(LS), file=sys.stderr)
    if P('HACKACT', 0): LM = [l.replace(' sc1', '') if l.startswith('VM act') else l for l in LM]
    return H + resolve(LM) + resolve(LS) + slow + ['L_end:', 's_endpgm'], NV, NA

def build(path):
    hdr = open('cdna_kernels/%s.s.ref' % NAME).read().split('\n')
    top = [l for l in hdr if l.startswith(';') and '@launch' not in l]
    L, nv, na = build_kernel()
    Pd, nn = pad_hazards(L)
    print('lines', len(Pd), 'nops', nn, file=sys.stderr)
    out = top + ['; @launch grid=(256,1,1) block=(512,1,1) lds=%d' % LDS_SZ, '.amdgcn_target "amdgcn-amd-amdhsa--gfx950"', '.text', '.globl %s' % LABEL]
    out += [('    ' + l if not (l.endswith(':') or l.startswith('.')) else l) for l in Pd]
    out += ['.section .rodata,"a"', '.p2align 6', '.amdhsa_kernel %s' % LABEL,
            '  .amdhsa_next_free_vgpr %d' % (nv + na), '  .amdhsa_next_free_sgpr 102', '  .amdhsa_accum_offset %d' % nv,
            '  .amdhsa_group_segment_fixed_size 0', '  .amdhsa_kernarg_size 88', '  .amdhsa_user_sgpr_count 2',
            '  .amdhsa_user_sgpr_kernarg_segment_ptr 1', '  .amdhsa_system_sgpr_workgroup_id_x 1', '.end_amdhsa_kernel']
    open(path, 'w').write('\n'.join(out) + '\n')

if __name__ == '__main__':
    build(sys.argv[1] if len(sys.argv) > 1 else 'cdna_kernels/%s.s' % NAME)
```

```python
import sys, math, os
from dsl import *

NAME = 'gated_mix__spectral_gfnet__dense_activation_mish__prompt'
LABEL = NAME + '_kernel'
ACT_OFF = 0x0; ACT_C = 7168; ACT_N2 = 16 * ACT_C
PART_OFF = 0x800000; PTAG = int(os.environ.get('PTAG', 0)); PART_B = 12288 if PTAG else 7168
ATAG = int(os.environ.get('ATAG', 0)); A1_OFF = 0x1400000; A1_B = 12288 if ATAG else 8192
GATE_OFF = 0x1800000
FS = int(os.environ.get('FS', 128))
FSB = int(os.environ.get('FSB', 16)); FBL = max(128, 16 * FSB)
FG_OFF = 0x1810000; FP_OFF = 0x1850000; FB_OFF = 0x1890000; FA_OFF = 0x18d0000
EP_OFF = 0x1910000
B1_OFF = 0x1920000
WS_END = B1_OFF + 15 * 64 * 2048
OOB = 0x40000000
X_SZ = 2048 * 896; W_SZ = 2048 * 450; W1_SZ = 448 * 3584; W2_SZ = 1792 * 896
LOG2E = math.log2(math.e)
MFMA = 'v_mfma_f32_16x16x32_bf16'
SC = 'sc1'
NT = ' nt' if int(os.environ.get('LNT', 0)) else ''
XR = 0; W1R = 65536; FL = 122880; XCH = 0; PXC = 40960; BXC = 32768; YL = FL; OPL = 155648; LF = OPL + 7168; BSL = 65536; ASL = 32768; GSL = 30720; LDS_SZ = 163840
NV = 184; NA = 72
W2B = [W1R + 3 * 14336, 49152, W1R, 0, W1R + 14336, W1R + 2 * 14336, 16384]
sX, sWR, sWI, sW1, sB1, sW2, sGW, sOUT, sWS = 16, 18, 20, 24, 26, 28, 30, 32, 34
STAMP = os.environ.get('STAMP', '0') == '1'
TS_OFF = 0x2000000
SPIN_MAX = 20000
P = lambda k, d: int(os.environ.get(k, d))

def srd(L, d, base, size):
    L += ['s_mov_b32 %s, %s' % (S(d), S(base)), 's_mov_b32 %s, %s' % (S(d + 1), S(base + 1)),
          's_mov_b32 %s, 0x%x' % (S(d + 2), size), 's_mov_b32 %s, 0x20000' % S(d + 3)]

def resolve(L):
    out = []; ops = []; cur = None; nopt = 0; lks = []; waited = set()
    for l in L:
        if l == 'OPT_BEGIN': nopt += 1; cur = nopt; continue
        if l == 'OPT_END': cur = None; continue
        if l.startswith('LK '):
            _, tag, ins = l.split(' ', 2); lks.append(tag); out.append(ins); continue
        if l.startswith('ds_'): lks.append('_')
        if l.startswith('WAITLK '):
            tag = l.split(' ')[1]
            idx = max(k for k, o in enumerate(lks) if o == tag)
            out.append('s_waitcnt lgkmcnt(%d)' % min(len(lks) - 1 - idx, 15)); continue
        if l.startswith('VM '):
            _, tag, ins = l.split(' ', 2); assert tag not in waited, tag
            ops.append((tag, cur)); out.append(ins); continue
        if l.startswith('WAITVM '):
            parts = l.split(' ', 2); tag = parts[1]; extra = (' ' + parts[2]) if len(parts) > 2 else ''
            waited.add(tag)
            idx = max(k for k, o in enumerate(ops) if o[0] == tag)
            n = sum(1 for o in ops[idx + 1:] if (o[1] is None or o[1] == cur))
            out.append('s_waitcnt vmcnt(%d)%s' % (min(n, 63), extra)); continue
        assert not (l.startswith('buffer_') or l.startswith('global_')), l
        out.append(l[4:] if l.startswith('RAW ') else l)
    return out

def weave(mm, *streams):
    out = []; idx = [0] * len(streams)
    def put(u): out.extend(u if isinstance(u, list) else [u])
    for m in mm:
        put(m)
        for k, s in enumerate(streams):
            if idx[k] < len(s): put(s[idx[k]]); idx[k] += 1
    for k, s in enumerate(streams):
        for u in s[idx[k]:]: put(u)
    return out

TRANS_OPS = ('v_exp_f32', 'v_rcp_f32', 'v_sin_f32', 'v_cos_f32')
def cost(u):
    c = 0; n = 0
    for i in (u if isinstance(u, list) else [u]):
        if i.endswith(':') or i.startswith('OPT_'): continue
        n += 1
        if i.startswith('VM '): c += 15
        elif i.split()[0] in TRANS_OPS: c += 8
        elif i.startswith('s_') or i.startswith('WAIT'): pass
        else:
            assert not i.startswith('v_pk_'), i
            c += 4
    return c, n
VB = int(os.environ.get('VB', 8))
def sched(mm, rd, hi, lo, pace=1, state=None):
    out = []; rd = list(rd)
    state = state if state is not None else [99]
    def put(u): out.extend(u if isinstance(u, list) else [u])
    for k, m in enumerate(mm):
        put(m)
        state[0] += 1
        vb = VB; sl = 3
        if k + 1 < len(mm) and isinstance(mm[k + 1], list): sl -= len(mm[k + 1]) - 1
        left = len(mm) - k
        q = hi if (hi and (cost(hi[0])[0] < 15 or state[0] >= pace)) else lo
        if q and (cost(q[0])[0] > 4 or cost(q[0])[1] > 2) and len(rd) <= 2 * (left - 1):
            c, n = cost(q[0]); put(q.pop(0)); vb -= c; sl -= n
            if c >= 15: state[0] = 0
        else:
            n = 0 if not rd else (1 if len(rd) <= left else 2)
            for _ in range(n): put(rd.pop(0)); vb -= 4; sl -= 1
        while True:
            done = True
            for q in (hi, lo):
                if q and cost(q[0])[0] <= max(vb, 0) and cost(q[0])[1] <= sl:
                    c, n = cost(q[0]); vb -= c; sl -= n; put(q.pop(0)); done = False; break
            if done: break
    out += rd
    return out

def spread(main, units, start=0, end=None):
    end = len(main) if end is None else end
    out = list(main[:start]); n = len(units); seg = main[start:end]
    for k in range(n):
        out += seg[len(seg) * k // n: len(seg) * (k + 1) // n] if False else []
    pos = [len(seg) * k // n for k in range(n)] if n else []
    ui = 0
    for k, ins in enumerate(seg):
        while ui < n and pos[ui] == k:
            out += units[ui] if isinstance(units[ui], list) else [units[ui]]; ui += 1
        out.append(ins)
    for u in units[ui:]: out += u if isinstance(u, list) else [u]
    return out + list(main[end:])


def build_kernel():
    flat = lambda U: [i for u in U for i in (u if isinstance(u, list) else [u])]
    sa = Alloc('s', 16, 102)
    rX = sa(4); rW1 = sa(4); rW2 = sa(4); rWS = sa(4); rBI = rWR = sa(4); rGW = rWI = sa(4); rOUT = sa(4)
    sT, sT2, sT3, sSpin, sTag, sW, sM = 3, 4, 5, 6, 7, 8, 9
    sPC = 12; sEp = 14; sW8 = 15
    sI = sa(); sC = sa(); sN2 = sa(); sPar = sa(); sKS = sa(); sNB = sa(); sXc = sa(); sSig = sa(); sN2f = sa(); sM0x = sa()
    sInv448 = sa(); sM448 = sa(); sG = sa(); sG2 = sa(); sR0 = sa(4)
    va = Alloc('v', 1, NV)
    vST = va(); vL = va(); vQ = va(); vJ = va(); t0 = va(); t1 = va(); t2 = va(); t3 = va(); vL16 = va(); vZero = va(); vTag = va()
    vXr = va(2, 1); vPa = va(); vPv = va(); vLF = va(); vOne = va(); vQ8 = va()
    npoll = [0]; slow = []
    stamps = {'M': ['r0', 'start'], 'S': ['r0', 'start']}
    def mk_st(L, role):
        def st(name, real=False):
            if not STAMP: return
            if os.environ.get('STSEL') and name not in os.environ['STSEL'].split(','): return
            stamps[role].append(name)
            L.extend(['%s s[10:11]' % ('s_memrealtime' if real else 's_memtime'), 's_waitcnt lgkmcnt(0)',
                      'v_writelane_b32 %s, s10, %d' % (V(vST), len(stamps[role]) - 1)])
        return st
    def poll_issue(tag):
        return ['VM %s buffer_load_dword %s, %s, %s, 0 offen %s' % (tag, V(vPv), V(vPa), S(rWS, 4), SC)]
    def poll_check(tag):
        n = npoll[0]; npoll[0] += 1
        slow.extend(['slow%d:' % n, 's_mov_b32 %s, 0' % S(sSpin), 'slowl%d:' % n, 's_sleep %d' % P('SLP_' + tag, P('SLP', 6)),
                     'buffer_load_dword %s, %s, %s, 0 offen %s' % (V(vPv), V(vPa), S(rWS, 4), SC),
                     's_waitcnt vmcnt(0)', 'v_cmp_ne_u32 vcc, %s, %s' % (S(sTag), V(vPv)), 's_add_u32 %s, %s, 1' % (S(sSpin), S(sSpin)),
                     's_nop 0', 's_cbranch_vccz back%d' % n, 's_cmp_lt_u32 %s, %d' % (S(sSpin), SPIN_MAX),
                     's_cbranch_scc1 slowl%d' % n, 's_branch back%d' % n])
        return ['WAITVM %s' % tag, 'v_cmp_ne_u32 vcc, %s, %s' % (S(sTag), V(vPv)), 's_nop 1', 's_cbranch_vccnz slow%d' % n, 'back%d:' % n]
    sCk = sa(2); sCk2 = sa(2)
    def dcheck(tag, cmps, reload, pre=[]):
        n = npoll[0]; npoll[0] += 1
        test = list(pre)
        for k, (op, s0_, r) in enumerate(cmps):
            d = 'vcc' if k == 0 else S(sCk if k & 1 else sCk2, 2)
            test += ['%s %s, %s, %s' % (op, d, s0_, r)]
            if k >= 2: test += ['s_or_b64 vcc, vcc, %s' % S(sCk2 if k & 1 else sCk, 2)]
        last = len(cmps) - 1
        test += ['s_or_b64 vcc, vcc, %s' % (S(sCk if last & 1 else sCk2, 2) if last else 'vcc')]
        slow.extend(['slow%d:' % n, 's_mov_b32 %s, 0' % S(sSpin), 'slowl%d:' % n, 's_sleep %d' % P('SLP', 4)] + reload + ['s_waitcnt vmcnt(0)'] + test +
                    ['s_cbranch_scc0 back%d' % n, 's_add_u32 %s, %s, 1' % (S(sSpin), S(sSpin)), 's_cmp_lt_u32 %s, %d' % (S(sSpin), SPIN_MAX),
                     's_cbranch_scc1 slowl%d' % n, 's_branch back%d' % n])
        return [['WAITVM %s' % tag]] + [[i] for i in test[:-1]] + [[test[-1], 's_cbranch_scc1 slow%d' % n, 'back%d:' % n]]
    def spoll(name, locs, exp, first=0):
        n = npoll[0]; npoll[0] += 1
        rs = [sCk, sCk + 1, sCk2, sCk2 + 1]
        o = ['s_mov_b32 %s, 0' % S(sSpin), 'sp%d:' % n]
        o += ['s_load_dword %s, %s, %s offset:%d glc' % (S(rs[k]), S(rWS, 2), S(so), im) for k, (so, im) in enumerate(locs)]
        o += ['s_add_u32 %s, %s, 1' % (S(sSpin), S(sSpin)), 's_cmp_ge_u32 %s, %d' % (S(sSpin), SPIN_MAX), 's_cbranch_scc1 spd%d' % n, 's_waitcnt lgkmcnt(0)']
        for k in range(len(locs)):
            o += ['s_xor_b32 %s, %s, %s' % (S(rs[k]), S(rs[k]), S(exp))]
            if k: o += ['s_or_b32 %s, %s, %s' % (S(rs[0]), S(rs[0]), S(rs[k]))]
        o += ['s_cbranch_scc1 sp%d' % n, 'spd%d:' % n, 's_waitcnt lgkmcnt(0)']
        return o
    def apoll(name, locs, exp):
        n = npoll[0]; npoll[0] += 1
        rs = [sCk, sCk + 1, sCk2, sCk2 + 1]
        ld = ['s_load_dword %s, %s, %s offset:%d glc' % (S(rs[k]), S(rWS, 2), S(so), im) for k, (so, im) in enumerate(locs)]
        t = ['s_waitcnt lgkmcnt(0)']
        for k in range(len(locs)):
            t += ['s_xor_b32 %s, %s, %s' % (S(rs[k]), S(rs[k]), S(exp))]
            if k: t += ['s_or_b32 %s, %s, %s' % (S(rs[0]), S(rs[0]), S(rs[k]))]
        slow.extend(['slow%d:' % n, 's_mov_b32 %s, 0' % S(sSpin), 'slowl%d:' % n] + (['s_sleep %d' % P('SSL', 2)] if P('SSL', 2) else []) + ld + t +
                    ['s_cbranch_scc0 back%d' % n, 's_add_u32 %s, %s, 1' % (S(sSpin), S(sSpin)), 's_cmp_lt_u32 %s, %d' % (S(sSpin), SPIN_MAX),
                     's_cbranch_scc1 slowl%d' % n, 's_branch back%d' % n])
        return ld, t + ['s_cbranch_scc1 slow%d' % n, 'back%d:' % n]
    sflag = lambda so: ['s_atomic_swap %s, %s, %s' % (S(sTag), S(rWS, 2), S(so))]
    raw = lambda U: [i.split(' ', 2)[2] if i.startswith('VM ') else i for i in flat(U)]
    def setflag(sOff):
        return ['VM flag buffer_store_dword %s, %s, %s, %s offen %s' % (V(vTag), V(vZero), S(rWS, 4), S(sOff), SC)]
    def lsig(k, vtmp):
        return ['v_lshl_add_u32 %s, %s, 2, %s' % (V(vtmp), S(sW), V(vZero)), 'ds_write_b32 %s, %s offset:%d' % (V(vtmp), V(vOne), LF - 131072 + k * 16)] if False else \
               ['ds_write_b32 %s, %s offset:%d' % (V(vLW), V(vOne), k * 16)]
    def lwait(k, vtmp, reg=None):
        n = npoll[0]; npoll[0] += 1
        return ['lw%d:' % n, 'ds_read_b32 %s, %s offset:%d' % (V(vtmp), V(vLF if reg is None else reg), k * 16), 's_waitcnt lgkmcnt(0)',
                'v_cmp_ne_u32 vcc, 1, %s' % V(vtmp), 's_nop 1', 's_cbranch_vccnz lw%d' % n]
    vLW = va()
    def sx(dst, terms, const=0, tmp=None):
        tmp = sT if tmp is None else tmp
        o = []
        for k, (r, c) in enumerate(terms):
            d = dst if k == 0 else tmp
            if c == 1:
                o += ['s_mov_b32 %s, %s' % (S(d), S(r))] if k == 0 else ['s_add_u32 %s, %s, %s' % (S(dst), S(dst), S(r))]
                continue
            o += ['s_mul_i32 %s, %s, %d' % (S(d), S(r), c)]
            if k: o += ['s_add_u32 %s, %s, %s' % (S(dst), S(dst), S(tmp))]
        if const: o += ['s_add_u32 %s, %s, 0x%x' % (S(dst), S(dst), const)]
        return o
    def group_vm(U):
        out = []; cur = []
        for u in U:
            cur += u
            if any(i.startswith('VM ') for i in u): out.append(cur); cur = []
        if cur: out[-1] += cur
        return out
    def with_waits(tag, order, mk, step=3):
        o = []
        for n, T in enumerate(order):
            ms = mk(T)
            if n % step == 0: ms[0] = ['WAITLK %s_%d' % (tag, order[min(n + step - 1, len(order) - 1)]), ms[0]]
            o += ms
        return o
    tagc = ['s_mul_i32 %s, %s, 0x9e3779b1' % (S(sTag), S(sEp)), 's_add_u32 %s, %s, 0x7f4a7c15' % (S(sTag), S(sTag)), 'v_mov_b32 %s, %s' % (V(vTag), S(sTag))]
    epld = ['s_add_u32 %s, %s, 0x%x' % (S(sPC), S(rWS), EP_OFF), 's_addc_u32 %s, %s, 0' % (S(sPC + 1), S(rWS + 1)), 's_load_dword %s, %s, 0' % (S(sEp), S(sPC, 2))]
    def finish(L, st, role):
        if STAMP:
            st('end'); st('r1', True)
            L += ['s_add_u32 s4, %s, 0x%x' % (S(rWS), TS_OFF), 's_addc_u32 s5, %s, 0' % S(rWS + 1), 's_mov_b32 s6, 0x100000', 's_mov_b32 s7, 0x20000',
                  's_lshl_b32 s13, s2, 3', 's_add_u32 s13, s13, %s' % S(sW8), 's_lshl_b32 s13, s13, 8', 'v_lshlrev_b32 %s, 2, %s' % (V(t0), V(vL)),
                  'VM x buffer_store_dword %s, %s, s[4:7], s13 offen' % (V(vST), V(t0))]
            pb_ = os.environ.get('PROBE', '')
            if pb_.startswith(role + ':'):
                k = stamps[role].index(pb_[2:])
                L += ['s_cmp_lg_u32 s13, %d' % ((P('PWG', 45) * 8 + (0 if role == 'M' else 4)) * 256), 's_cbranch_scc1 L_noprobe', 'v_readlane_b32 s16, %s, %d' % (V(vST), k), 'v_readlane_b32 s17, %s, 1' % V(vST), 's_nop 3',
                      's_sub_u32 s16, s16, s17', 's_lshl_b32 s16, s16, 2', 's_add_u32 s16, s16, 10000', 'L_prl:', 's_memtime s[20:21]', 's_waitcnt lgkmcnt(0)',
                      's_sub_u32 s22, s20, s17', 's_cmp_lt_u32 s22, s16', 's_cbranch_scc1 L_prl', 'L_noprobe:']
        L += ['s_endpgm']

    H = ['.p2align 8', '.type %s,@function' % LABEL, '%s:' % LABEL, 's_cmp_ge_u32 s2, 256', 's_cbranch_scc1 L_end']
    for r_, off in ((rX, 0), (rW1, 32), (rWS, 80), (rW2, 48)):
        H += ['s_load_dwordx2 %s, s[0:1], %d' % (S(r_, 2), off)]
    if STAMP: H += ['v_mov_b32 %s, 0' % V(vST), 's_memrealtime %s' % S(sR0, 2), 's_memtime %s' % S(sR0 + 2, 2)]
    H += ['v_and_b32 %s, 63, v0' % V(vL), 'v_lshrrev_b32 %s, 6, v0' % V(t0), 's_lshr_b32 %s, s2, 3' % S(sM), 's_and_b32 %s, s2, 7' % S(sXc),
          'v_readfirstlane_b32 %s, %s' % (S(sW8), V(t0)), 'v_lshrrev_b32 %s, 4, %s' % (V(vQ), V(vL)), 'v_and_b32 %s, 15, v0' % V(vJ),
          's_lshr_b32 %s, %s, 2' % (S(sI), S(sXc)), 's_lshl_b32 %s, %s, 3' % (S(sI), S(sI)),
          's_lshr_b32 %s, %s, 2' % (S(sT3), S(sM)), 's_add_u32 %s, %s, %s' % (S(sI), S(sI), S(sT3)),
          's_and_b32 %s, %s, 3' % (S(sW), S(sW8)),
          's_and_b32 %s, %s, 3' % (S(sKS), S(sXc)), 's_and_b32 %s, %s, 3' % (S(sNB), S(sM)),
          's_lshl_b32 %s, %s, 2' % (S(sC), S(sKS)), 's_add_u32 %s, %s, %s' % (S(sC), S(sC), S(sNB)),
          's_lshl_b32 %s, %s, 2' % (S(sN2f), S(sI)), 's_add_u32 %s, %s, %s' % (S(sN2), S(sN2f), S(sW)),
          's_and_b32 %s, %s, 1' % (S(sPar), S(sC))]
    H += {0: ['s_lshl_b32 %s, %s, 1' % (S(sSig), S(sNB)), 's_add_u32 %s, %s, %s' % (S(sSig), S(sSig), S(sT3)),
              's_sub_u32 %s, %s, 7' % (S(sT), S(sSig)), 's_min_u32 %s, %s, %s' % (S(sSig), S(sSig), S(sT))],
          1: ['s_mov_b32 %s, 0' % S(sSig)],
          2: ['s_add_u32 %s, %s, %s' % (S(sSig), S(sNB), S(sT3)), 's_and_b32 %s, %s, 1' % (S(sSig), S(sSig)), 's_lshl_b32 %s, %s, 2' % (S(sSig), S(sSig))],
          4: ['s_add_u32 %s, %s, %s' % (S(sSig), S(sNB), S(sT3)), 's_and_b32 %s, %s, 3' % (S(sSig), S(sSig)), 's_lshl_b32 %s, %s, 1' % (S(sSig), S(sSig))]}[P('ROT', 0)]
    H += ['s_xor_b32 %s, %s, %d' % (S(sNB), S(sNB), P('NBX', 0)), 's_lshl_b32 %s, %s, 12' % (S(sM0x), S(sW)),
          's_mov_b32 %s, 0x%x' % (S(rWS + 2), WS_END), 's_mov_b32 %s, 0x20000' % S(rWS + 3),
          's_cmp_ge_u32 %s, 4' % S(sW8), 's_cbranch_scc1 L_S']
    common2 = ['v_lshlrev_b32 %s, 4, %s' % (V(vL16), V(vL)), 'v_mov_b32 %s, 0' % V(vZero), 'v_mov_b32 %s, 1' % V(vOne), 'v_lshlrev_b32 %s, 3, %s' % (V(vQ8), V(vQ)),
               's_add_u32 %s, %s, %s' % (S(sN2f), S(sN2f), S(sKS)),
               's_mov_b32 %s, %s' % (S(sInv448), f2u(1.0 / 448)), 's_mov_b32 %s, %s' % (S(sM448), f2u(-448.0)),
               'v_lshrrev_b32 %s, 1, %s' % (V(t3), V(vJ)), 'v_xor_b32 %s, %s, %s' % (V(t3), V(t3), V(vQ)),
               'v_lshlrev_b32 %s, 4, %s' % (V(t3), V(t3)), 'v_lshl_add_u32 %s, %s, 7, %s' % (V(t3), V(vJ), V(t3)),
               'v_add_u32 %s, %s, %s' % (V(vXr), S(sM0x), V(t3)), 'v_xor_b32 %s, 64, %s' % (V(vXr + 1), V(vXr)),
               'v_and_b32 %s, 3, %s' % (V(vLF), V(vL)), 'v_lshlrev_b32 %s, 2, %s' % (V(vLF), V(vLF)), 'v_add_u32 %s, %d, %s' % (V(vLF), LF, V(vLF)),
               's_lshl_b32 %s, %s, 2' % (S(sG), S(sW)), 's_add_u32 %s, %s, %d' % (S(sG), S(sG), LF), 'v_mov_b32 %s, %s' % (V(vLW), S(sG))]
    wst = ['v_writelane_b32 %s, %s, 0' % (V(vST), S(sR0)), 'v_writelane_b32 %s, %s, 1' % (V(vST), S(sR0 + 2))] if STAMP else []
    if P('WSB', 0): wst += ['s_add_u32 %s, %s, 0x%x' % (S(rWS), S(rWS), P('WSB', 0) << 20), 's_addc_u32 %s, %s, 0' % (S(rWS + 1), S(rWS + 1))]
    sXb = sa(); sWb = sa(); sXs = sa(); sWs = sa(); sM0w = sa(); sW2b = sa()
    vXs = va(2, 1); vW1s = va(); vW2s = va()
    dmaddr = ['s_mul_i32 %s, %s, 896' % (S(sXb), S(sN2))] + sx(sWb, [(sC, 224), (sW, 8 * 3584)])
    dmaddr += ['s_mul_i32 %s, %s, 896' % (S(sM0w), S(sW)), 's_lshl_b32 %s, %s, 1' % (S(sT2), S(sPar)),
          'v_lshrrev_b32 %s, 3, %s' % (V(t0), V(vL)), 'v_mul_u32_u24 %s, 57344, %s' % (V(t0), V(t0)),
          'v_and_b32 %s, 7, %s' % (V(t1), V(vL)), 'v_xor_b32 %s, %s, %s' % (V(t1), V(t1), V(vQ)),
          'v_lshl_add_u32 %s, %s, 4, %s' % (V(vXs), V(t1), V(t0)),
          'v_xor_b32 %s, 64, %s' % (V(vXs + 1), V(vXs)), 'v_add_u32 %s, %d, %s' % (V(vXs + 1), 8 * 57344, V(vXs + 1)),
          'v_mul_u32_u24 %s, 4682, %s' % (V(t0), V(vL)), 'v_lshrrev_b32 %s, 16, %s' % (V(t0), V(t0)),
          'v_mul_u32_u24 %s, 14, %s' % (V(t1), V(t0)), 'v_sub_u32 %s, %s, %s' % (V(t1), V(vL), V(t1)),
          'v_mul_u32_u24 %s, 896, %s' % (V(t2), V(t0)), 'v_lshl_add_u32 %s, %s, 4, %s' % (V(vW2s), V(t1), V(t2)),
          'v_add_u32 %s, %s, %s' % (V(t1), S(sT2), V(t1)), 'v_subrev_u32 %s, 14, %s' % (V(t2), V(t1)), 'v_min_u32 %s, %s, %s' % (V(t1), V(t1), V(t2)),
          'v_mul_u32_u24 %s, 3584, %s' % (V(t2), V(t0)), 'v_lshl_add_u32 %s, %s, 4, %s' % (V(vW1s), V(t1), V(t2))]
    for r_, sz in ((rX, X_SZ), (rW1, W1_SZ), (rW2, W2_SZ)):
        dmaddr += ['s_mov_b32 %s, 0x%x' % (S(r_ + 2), sz), 's_mov_b32 %s, 0x20000' % S(r_ + 3)]
    def stage_loads(s):
        slot = s % 4
        U = [['s_lshl_b32 %s, %s, 7' % (S(sXs), S(sSig))], ['s_add_u32 %s, %s, %s' % (S(sXs), S(sXs), S(sXb))],
             ['s_mul_i32 %s, %s, %d' % (S(sWs), S(sSig), 64 * 3584)], ['s_add_u32 %s, %s, %s' % (S(sWs), S(sWs), S(sWb))]]
        for kk in range(2):
            for e in (2 * kk, 2 * kk + 1):
                if e == 2: U += [['s_add_u32 %s, %s, 917504' % (S(sXs), S(sXs))]]
                U += [['s_add_u32 m0, %s, %d' % (S(sM0x), XR + slot * 16384 + e * 1024)],
                      [('VM st%d buffer_load_dwordx4 %s, %s, %s offen' + NT + ' lds') % (s, V(vXs + (e & 1)), S(rX, 4), S(sXs))]]
            for b2 in range(2):
                if kk or b2: U += [['s_add_u32 %s, %s, %d' % (S(sWs), S(sWs), (4 if b2 else 28) * 3584)]]
                U += [['s_add_u32 m0, %s, %d' % (S(sM0w), W1R + slot * 14336 + (32 * kk + 16 * b2) * 224)],
                      ['s_mov_b32 exec_hi, 0xffffff', ('VM st%d buffer_load_dwordx4 %s, %s, %s offen' + NT + ' lds') % (s, V(vW1s), S(rW1, 4), S(sWs)), 's_mov_b32 exec_hi, -1']]
        U += [['s_add_u32 %s, %s, 1' % (S(sSig), S(sSig))], ['s_cmp_eq_u32 %s, 7' % S(sSig), 's_cselect_b32 %s, 0, %s' % (S(sSig), S(sSig))]]
        return U
    sWp = sa(4, 1); sWm = sa(4, 1); sC4 = sa()
    SLOT = [(0, 0), (0, 1), (0, 2), (1, 0), (1, 1), (1, 2), ('m', 0), (2, 0), (2, 1), (2, 2), (3, 0), ('m', 1), (3, 1), (3, 2)]
    w2tab = ['s_and_b32 %s, %s, 3' % (S(sC4), S(sC))] + sx(sW2b, [(sKS, 448 * 896), (sW, 4 * 896), (sNB, 224)])
    for d in range(4):
        w2tab += ['s_xor_b32 %s, %s, %d' % (S(sT), S(sC4), d), 's_mul_i32 %s, %s, 7' % (S(sT), S(sT)), 's_add_u32 %s, %s, 1' % (S(sT), S(sT)), 's_lshr_b32 %s, %s, 1' % (S(sT), S(sT)),
                  's_mul_i32 %s, %s, 28672' % (S(sT), S(sT)), 's_add_u32 %s, %s, %s' % (S(sWp + d), S(sT), S(sW2b))]
    for mm_ in range(2):
        w2tab += ['s_lshr_b32 %s, %s, 1' % (S(sT), S(sC4)), 's_xor_b32 %s, %s, %d' % (S(sT), S(sT), mm_), 's_mul_i32 %s, %s, %d' % (S(sT), S(sT), 7 * 28672),
                  's_add_u32 %s, %s, %s' % (S(sT), S(sT), S(sW2b)), 's_add_u32 %s, %s, %d' % (S(sT), S(sT), 3 * 28672),
                  's_mul_i32 %s, %s, %d' % (S(sT2), S(sPar), 16 * 896), 's_add_u32 %s, %s, %s' % (S(sWm + 2 * mm_), S(sT), S(sT2)),
                  's_sub_u32 %s, %s, %s' % (S(sT), S(sT), S(sT2)), 's_add_u32 %s, %s, %d' % (S(sWm + 2 * mm_ + 1), S(sT), 16 * 896)]
    def w2_loads(t):
        U = []
        for kk in range(2):
            d, Pp = SLOT[2 * t + kk]
            for b2 in range(2):
                if d == 'm': so = sWm + 2 * Pp + b2
                elif Pp == 0 and b2 == 0: so = sWp + d
                else: so = sWs; U += [['s_add_u32 %s, %s, %d' % (S(sWs), S(sWp + d), (32 * Pp + 16 * b2) * 896)]]
                U += [['s_add_u32 m0, %s, %d' % (S(sM0w), W2B[t] + (32 * kk + 16 * b2) * 224)],
                      ['s_mov_b32 exec_hi, 0xffffff', 'VM w2_%d buffer_load_dwordx4 %s, %s, %s offen lds' % (t, V(vW2s), S(rW2, 4), S(so)), 's_mov_b32 exec_hi, -1']]
        return U
    vbase = va.next; sbase = sa.next
    xread = lambda ks, XF: ['LK a%d_x ds_read_b128 %s, %s offset:%d' % (ks, A(XF[ks & 1][rt], 4), V(vXr + (ks & 1)), XR + ((ks // 2) % 4) * 16384 + rt * 2048) for rt in range(2)]

    L = []; st = mk_st(L, 'M')
    va = Alloc('v', vbase, NV); sa = Alloc('s', sbase, 102); aa = Alloc('a', 0, NA)
    sL2E = sa(2); sAct = sa(4, 1); sPTs = sa(); sJunk = sa(); sFG = sa(); sFP = sa(); sFGp = sa()
    vTr = va(2, 1)
    accb = va(56, 4)
    ACC = [[accb + 28 * rt + 4 * T for T in range(7)] for rt in range(2)]
    fr = va(56, 4)
    OWN = [[va(4) for rt in range(2)] for Pp in range(3)]
    assert OWN[0][0] == fr + 56
    RG = [fr + 8 * k for k in range(9)]
    U0 = [va(4) for d in range(4)]
    vB = [fr + 4 * T for T in range(7)]
    tmpA = fr + 32; c2 = fr + 48
    WF = [[aa(4) for T in range(7)] for b in range(2)]
    XF = [[aa(4) for rt in range(2)] for b in range(2)]
    vBraw = [accb + 2 * T for T in range(7)]; vCP = accb + 16
    L += ['s_load_dwordx2 %s, s[0:1], 40' % S(rBI, 2), 's_load_dwordx2 %s, s[0:1], 56' % S(rGW, 2), 's_load_dwordx2 %s, s[0:1], 64' % S(rOUT, 2), 's_mov_b32 %s, 0x%x' % (S(rOUT + 2), X_SZ), 's_mov_b32 %s, 0x20000' % S(rOUT + 3)]
    L += ['s_getpc_b64 %s' % S(sPC, 2), 'L_pc:', 's_and_b32 %s, %s, 15' % (S(sT), S(sM)), 's_lshl_b32 %s, %s, 11' % (S(sT), S(sT)),
          'v_lshrrev_b32 %s, 4, v0' % V(t1), 'v_lshl_add_u32 %s, %s, 7, %s' % (V(t1), V(t1), S(sT)), 'v_min_u32 %s, L_end-L_pc, %s' % (V(t1), V(t1)),
          'v_mov_b32 %s, %s' % (V(vCP + 1), S(sPC + 1)), 'v_add_co_u32 %s, vcc, %s, %s' % (V(vCP), S(sPC), V(t1)),
          'v_addc_co_u32 %s, vcc, 0, %s, vcc' % (V(vCP + 1), V(vCP + 1)), 'VM pf global_load_dword %s, %s, off' % (V(vPv), V(vCP, 2))]
    if P('CPF', 0): cpf = L.pop()
    L += [i for i in dmaddr if i != 'W2S'] + common2
    L += ['s_mov_b32 %s, 3584' % S(rBI + 2), 's_mov_b32 %s, 0x20000' % S(rBI + 3)]
    L += sx(sG, [(sC, 224), (sPar, 32)]) + sx(sG2, [(sC, 224), (sPar, -192)], 192)
    s0 = flat(stage_loads(0))
    L += s0[:4] + ['s_waitcnt lgkmcnt(0)'] + wst
    st('ka')
    if P('STLB', 4):
        for k, r_ in enumerate((rW1, rX, rBI, rW2)[:P('STLB', 4)]): L += ['s_load_dword %s, %s, 0' % (S(sJunk), S(r_, 2))]
        if P('DIAGT', 0): L += ['s_waitcnt lgkmcnt(0)']; st('tl')
    bl = ['VM bias buffer_load_dwordx2 %s, %s, %s, %s offen offset:%d' % (V(vBraw[T], 2), V(vQ8), S(rBI, 4), S(sG2 if T == 6 else sG), 32 * T if T < 6 else 0) for T in range(7)]
    gwl = ['s_cmp_lg_u32 %s, 15' % S(sC), 's_cbranch_scc1 L_nogw', 'OPT_BEGIN', 'v_lshlrev_b32 %s, 4, %s' % (V(t0), V(vQ)),
           's_mov_b32 %s, 896' % S(rGW + 2), 's_mov_b32 %s, 0x20000' % S(rGW + 3), 's_lshl_b32 %s, %s, 1' % (S(sT3), S(sSig)), 's_add_u32 %s, %s, %s' % (S(sT3), S(sT3), S(sW)),
           's_lshl_b32 %s, %s, 11' % (S(sSpin), S(sW))]
    for a2 in range(4):
        gwl += ['s_add_u32 %s, %s, %d' % (S(sT2), S(sT3), 4 * a2), 's_sub_u32 %s, %s, 14' % (S(sT), S(sT2)), 's_min_u32 %s, %s, %s' % (S(sT2), S(sT2), S(sT)),
                's_lshl_b32 %s, %s, 6' % (S(sT2), S(sT2)), 's_add_u32 m0, %s, %d' % (S(sSpin), FL + a2 * 8192),
                'VM gw buffer_load_dwordx4 %s, %s, %s offen lds' % (V(t0), S(rGW, 4), S(sT2))]
    gwl += ['OPT_END', 'L_nogw:']
    wst_ = []
    for k in range(4):
        wst_ += ['s_lshl_b32 %s, %s, 21' % (S(sT2), S(sW)), 's_add_u32 %s, %s, 0x%x' % (S(sT2), S(sT2), k << 23), 's_load_dword %s, %s, %s' % (S(sJunk), S(rWS, 2), S(sT2))]
    if P('EPL', 0): L += gwl + s0[4:]; st('s0x'); L += bl + epld
    else: L += epld + gwl + s0[4:]; st('s0x'); L += bl
    if P('CPF', 0) == 1: L += [cpf]
    st('s0i')
    if P('WTLB', 1): L += wst_
    L += w2tab
    L += ['v_lshrrev_b32 %s, 2, %s' % (V(t3), V(vL)), 'v_mul_u32_u24 %s, 224, %s' % (V(vTr), V(t3)),
          'v_and_b32 %s, 3, %s' % (V(t3), V(vL)), 'v_lshl_add_u32 %s, %s, 3, %s' % (V(vTr), V(t3), V(vTr)), 'v_add_u32 %s, 65536, %s' % (V(vTr + 1), V(vTr)),
          's_mov_b32 %s, %s' % (S(sL2E), f2u(LOG2E)), 's_mov_b32 %s, %s' % (S(sL2E + 1), f2u(LOG2E))]
    for d in range(4):
        L += ['s_xor_b32 %s, %s, %d' % (S(sT2), S(sC), d)] + sx(sAct + d, [(sN2, ACT_N2), (sT2, ACT_C)], ACT_OFF)
    L += sx(sPTs, [(sN2, 16 * PART_B), (sNB, 4 * PART_B), (sKS, PART_B)], PART_OFF)
    L += sx(sFG, [(sN2, 16 * FS), (sC, FS)], FG_OFF) + sx(sFP, [(sN2, 16 * FS), (sNB, 4 * FS), (sKS, FS)], FP_OFF)
    L += sx(sFGp, [(sN2, 16 * FS), (sKS, 4 * FS)], FG_OFF)
    L += ['v_add_u32 %s, 4096, %s' % (V(t0), V(vL16)), 'v_add_u32 %s, 8192, %s' % (V(t1), V(vL16)), 'v_add_u32 %s, %d, %s' % (V(t2), OPL, V(vL16))]
    vU = [vL16, t0, t1]
    uaddr = lambda u: (V(vU[u // 4]), (u % 4) * 1024)
    cm2 = c2 + 2; c1 = c2 + 4
    L += ['v_mov_b32 %s, 2.0' % V(c2), 'v_mov_b32 %s, 2.0' % V(c2 + 1), 'v_mov_b32 %s, -2.0' % V(cm2), 'v_mov_b32 %s, -2.0' % V(cm2 + 1),
          'v_mov_b32 %s, 1.0' % V(c1), 'v_mov_b32 %s, 1.0' % V(c1 + 1)]
    L += flat(stage_loads(1)) + ['WAITVM bias']
    bcv = []
    for T in range(7):
        for hh in range(2):
            bcv += ['v_lshlrev_b32 %s, 16, %s' % (V(vB[T] + 2 * hh), V(vBraw[T] + hh)), 'v_and_b32 %s, 0xffff0000, %s' % (V(vB[T] + 2 * hh + 1), V(vBraw[T] + hh))]
    L += ['WAITVM st0 lgkmcnt(0)']
    st('pro')
    def tr_reads(tag, dst, base, order):
        reg = vTr + (base >= 65536); off = base - (65536 if base >= 65536 else 0)
        return ['LK %s_%d ds_read_b64_tr_b16 %s, %s offset:%d' % (tag, T, A(dst[T] + 2 * b, 2), V(reg), off + b * 3584 + T * 32) for T in order for b in range(2)]
    ORD = [6, 0, 1, 2, 3, 4, 5]
    readsA = lambda ks: xread(ks, XF) + tr_reads('a%d' % ks, WF[ks & 1], W1R + ((ks // 2) % 4) * 14336 + (ks & 1) * 7168, ORD)
    mfA = lambda ks: with_waits('a%d' % ks, ORD, lambda T: ['%s %s, %s, %s, %s' % (MFMA, V(ACC[rt][T], 4), A(WF[ks & 1][T], 4), A(XF[ks & 1][rt], 4),
                                                            V(ACC[rt][T], 4) if ks else V(vB[T], 4)) for rt in range(2)], 3)
    L += ['s_barrier']
    st('b0')
    L += readsA(0) + bcv + tagc
    ATM = P('ATM', 0)
    for ks in range(12 if ATM else 14):
        if ks == 13: L += lsig(9, t3)
        elif ks & 1: L += (['WAITVM st1'] if ks == 1 else []) + ['s_barrier']
        if ks & 1: st('b%d' % ((ks + 1) // 2))
        L += sched(mfA(ks), readsA(ks + 1) if ks < 13 else [], [], [])
    mft = lambda Ts: ['%s %s, %s, %s, %s' % (MFMA, V(ACC[rt][T], 4), A(WF[ks & 1][T], 4), A(XF[ks & 1][rt], 4), V(ACC[rt][T], 4)) for ks in (12, 13) for T in Ts for rt in range(2)]
    if ATM:
        r13 = readsA(13); m6 = mft([6]); m01 = mft([0, 1])
        L += r13[:8] + ['WAITLK a12_1'] + weave(m6[:2] + m01[:4], r13[8:]) + lsig(9, t3) + ['WAITLK a13_1'] + m6[2:] + m01[4:] + ['s_waitcnt lgkmcnt(0)']
    L += ['s_setprio %d' % P('PRM', 0)]
    st('mainA')
    def mish(src, dst, E, Aa):
        nv = 4 * len(src)
        h = lambda k: src[k // 4] + (k % 4)
        o = []
        for k in range(0, nv, 2): o += ['v_pk_mul_f32 %s, %s, %s' % (V(E + k, 2), V(h(k), 2), S(sL2E, 2))]
        for k in range(nv): o += ['v_exp_f32 %s, %s' % (V(E + k), V(E + k))]
        for k in range(0, nv, 2): o += ['v_pk_add_f32 %s, %s, %s' % (V(Aa + k, 2), V(E + k, 2), V(c2, 2))]
        for k in range(0, nv, 2): o += ['v_pk_fma_f32 %s, %s, %s, %s' % (V(E + k, 2), V(E + k, 2), V(Aa + k, 2), V(c2, 2))]
        for k in range(nv): o += ['v_rcp_f32 %s, %s' % (V(E + k), V(E + k))]
        for k in range(0, nv, 2): o += ['v_pk_fma_f32 %s, %s, %s, %s' % (V(E + k, 2), V(E + k, 2), V(cm2, 2), V(c1, 2))]
        for k in range(0, nv, 2): o += ['v_pk_mul_f32 %s, %s, %s' % (V(E + k, 2), V(E + k, 2), V(h(k), 2))]
        for k in range(0, nv, 2): o += ['v_cvt_pk_bf16_f32 %s, %s, %s' % (V(dst[k // 2]), V(E + k), V(E + k + 1))]
        return o
    ust = lambda r, u: 'VM act%d buffer_store_dwordx4 %s, %s, %s, %s offen offset:%d %s' % (max(u - 1, 0) // 2, V(r, 4), uaddr(u)[0], S(rWS, 4), S(sAct), uaddr(u)[1], SC)
    L += mish([ACC[0][6], ACC[1][6]], [U0[0] + k for k in range(4)], tmpA, tmpA + 8) + [ust(U0[0], 0)]
    readsC = lambda sl: tr_reads('c%d' % sl, WF[sl & 1], W2B[sl // 2] + (sl & 1) * 7168, range(7))
    for Pp in range(3):
        if ATM and Pp < 2: L += mft([2 * Pp + 2, 2 * Pp + 3])
        for rt in range(2):
            o = OWN[Pp][rt]
            L += mish([ACC[rt][2 * Pp], ACC[rt][2 * Pp + 1]], [o + k for k in range(4)], tmpA, tmpA + 8) + [ust(o, 1 + 2 * Pp + rt)]
    st('mish')
    GR = [sl for sl in range(3, 14) if SLOT[sl][0] != 'm']
    greg = {sl: RG[k] for k, sl in enumerate(GR)}
    uld = lambda tag, r, d, u: ['VM %s buffer_load_dwordx4 %s, %s, %s, %s offen offset:%d %s' % (tag, V(r, 4), uaddr(u)[0], S(rWS, 4), S(sAct + d), uaddr(u)[1], SC)]
    def gload(sl):
        d, Pp = SLOT[sl]
        if d == 'm': return [uld('g%d' % sl, U0[dd], dd, 0) for dd in ((1,) if Pp == 0 else (2, 3))]
        return [uld('g%d' % sl, greg[sl] + 4 * k, d, 1 + 2 * Pp + k) for k in range(2)]
    def gfix(sl):
        d, Pp = SLOT[sl]
        if d != 'm': return []
        fa, fb_ = (0, 1) if Pp == 0 else (2, 3)
        return [['WAITVM g%d' % sl]] + [['v_accvgpr_write_b32 %s, %s' % (A(XF[Pp][rt] + k), V(U0[fb_ if k >= 2 else fa] + 2 * rt + (k & 1)))] for rt in range(2) for k in range(4)]
    def opC(sl, rt):
        if sl < 3: return V(OWN[sl][rt], 4)
        return A(XF[SLOT[sl][1]][rt], 4) if SLOT[sl][0] == 'm' else V(greg[sl] + 4 * rt, 4)
    mfC = lambda sl: with_waits('c%d' % sl, list(range(7)), lambda T: ['%s %s, %s, %s, %s' % (MFMA, V(ACC[rt][T], 4), A(WF[sl & 1][T], 4),
                                opC(sl, rt), V(ACC[rt][T], 4) if sl else '0') for rt in range(2)], 2)
    NS = P('W2SN', 0)
    L += lwait(6, t3) + lwait(9, t3) + readsC(0)
    W2L = P('W2L', 2)
    hi = [u for t in range(W2L + NS, 7) for u in w2_loads(t)]; pst = [99]
    hq = hi if P('OWNDMA', 1) else []
    FGS = P('FGSL', 3)
    L += ['s_setprio %d' % P('PRM2', 0)]
    OL = P('OWNLATE', 0)
    for sl in range(3 - OL):
        if sl == FGS: L += ['WAITVM act2'] + setflag(sFG); st('ack')
        L += sched(mfC(sl), readsC(sl + 1), hq if sl >= P('OWNDMA', 1) - 1 else [], [], P('PACEO', 3), pst)
    st('own0')
    hg = group_vm(hi) if hi else []
    late = 4 * P('W2LATE', 0); hl = hg[len(hg) - late:]; hg = hg[:len(hg) - late]
    n0 = min(len(hg), P('FGPRE', 0)); n1 = max(n0, len(hg) - P('FGTAIL', 6))
    pl_, pc_ = apoll('fg', [(sFGp, k * FS) for k in range(4)], sTag)
    L += flat(hg[:n0])
    if FGS == 3: L += ['WAITVM act2'] + (sflag(sFG) if P('SFG', 1) else setflag(sFG)); st('ack')
    if P('VFG', 0):
        pl_ = ['v_mul_u32_u24 %s, %d, %s' % (V(vPa), FS, V(vQ)), 'v_add_u32 %s, %s, %s' % (V(vPa), S(sFGp), V(vPa))] + poll_issue('pfg'); pc_ = pc_[-1:] + poll_check('pfg')
    L += flat(hg[n0:n1]) + pl_ + flat(hg[n1:])
    st('w2i')
    tl = 6 - P('W2LATE', 0)
    L += pc_
    st('fg')
    hi = [u for sl in range(3, 14) for u in gload(sl)]
    k = P('AFPRE', 7); L += flat(hi[:k])
    for sl in range(3 - OL, 3): L += sched(mfC(sl), readsC(sl + 1), [], [])
    L += ((['WAITVM w2_%d' % tl] + lsig(0, t3) + lwait(0, t3)) if hg else []); k2 = P('AFMID', 13)
    hi = hi[k:k2] + [u for t in range(tl + 1, 7) for u in w2_loads(t)] + hi[k2:]
    if NS: L += lwait(7, t3)
    TM = P('TMAJ', 0)
    WR_ = WF[0] + WF[1]
    tuse = [(sl, T) for T in range(7) for sl in range(14 - TM, 14)]
    n0_ = ((14 - TM) & 1) * 7
    def tread(n):
        sl, T = tuse[n]; base = W2B[sl // 2] + (sl & 1) * 7168
        reg = vTr + (base >= 65536); off = base - (65536 if base >= 65536 else 0)
        return ['LK tm%d ds_read_b64_tr_b16 %s, %s offset:%d' % (n, A(WR_[(n0_ + n) % 14] + 2 * b_, 2), V(reg), off + b_ * 3584 + T * 32) for b_ in range(2)]
    for sl in range(3, 14 - TM):
        lo = gfix(sl + 1) if sl + 1 < 14 else []
        if sl == 13 - TM: lo = [u for q in range(sl + 1, 14) for u in gfix(q)]
        PU = [fr + 4 * k for k in range(11)]
        if PTAG and sl == 12: lo += [['v_mov_b32 %s, %s' % (V(r + 3), S(sTag))] for r in PU]
        tg = 'g%d' % sl
        need = ['g%d' % sl] + [i.split()[1] for i in flat(lo) if i.startswith('WAITVM')]
        while any(i.startswith('VM %s ' % t_) for i in flat(hi) for t_ in need): L += flat([hi.pop(0)])
        if SLOT[sl][0] != 'm': L += ['WAITVM %s' % tg]
        mm = mfC(sl)
        rd = readsC(sl + 1) if sl < 13 - TM else [x for n in range(min(7, len(tuse))) for x in tread(n)]
        L += sched(mm[:4], rd[:4], hi, [], P('PACEC', 2), pst) + sched(mm[4:], rd[4:], lo, hi, P('PACEC', 2), pst) + flat(lo)
        if sl == 3: st('c3')
    assert not hi
    cvp = lambda T: ['v_cvt_pk_bf16_f32 %s, %s, %s' % (V(ACC[0][T] + 2 * rt + hh), V(ACC[rt][T] + 2 * hh), V(ACC[rt][T] + 2 * hh + 1)) for rt in range(2) for hh in range(2)]
    pst_ = lambda T: cvp(T) + ['VM part buffer_store_dwordx4 %s, %s, %s, %s offen offset:%d %s' % (V(ACC[0][T], 4), uaddr(T)[0], S(rWS, 4), S(sPTs), uaddr(T)[1], SC)]
    L += ['s_cmp_eq_u32 %s, %s' % (S(sW), S(sKS)), 's_cselect_b32 %s, 0x%x, %s' % (S(sPTs), OOB, S(sPTs))]
    if TM:
        L += ['WAITVM g13']
        st('tm')
        for T in range(7):
            mm = []; rd = []
            for k in range(TM):
                n = T * TM + k; sl = tuse[n][0]
                pr = ['%s %s, %s, %s, %s' % (MFMA, V(ACC[rt][T], 4), A(WR_[(n0_ + n) % 14], 4), opC(sl, rt), V(ACC[rt][T], 4)) for rt in range(2)]
                if k % 2 == 0: pr[0] = ['WAITLK tm%d' % min(n + 1, T * TM + TM - 1), pr[0]]
                mm += pr
                if n + 7 < len(tuse): rd += tread(n + 7)
            q = pst_(T - 1) if T else []
            L += sched(mm[:3], rd[:3], [], []) + sched(mm[3:], rd[3:], [], q) + q
        L += pst_(6)
    elif not PTAG:
        for T in range(7): L += pst_(T)
    if PTAG:
        assert not TM
        L += ['s_cmp_eq_u32 %s, %s' % (S(sW), S(sKS)), 's_cbranch_scc1 L_ownp', 'OPT_BEGIN']
        for u in range(11):
            g, k = u // 3, u % 3
            for e in range(3):
                D = 3 * k + e; T = 2 * g + D // 4
                if D < 8 and T < 7: L += ['v_cvt_pk_bf16_f32 %s, %s, %s' % (V(PU[u] + e), V(ACC[(D % 4) // 2][T] + 2 * (D % 2)), V(ACC[(D % 4) // 2][T] + 2 * (D % 2) + 1))]
            L += ['VM part buffer_store_dwordx4 %s, %s, %s, %s offen offset:%d %s' % (V(PU[u], 4), uaddr(u)[0], S(rWS, 4), S(sPTs), uaddr(u)[1], SC)]
        L += ['OPT_END', 's_branch L_partd', 'L_ownp:', 's_nop 7']
        for T in range(7): L += cvp(T) + ['ds_write_b128 %s, %s offset:%d' % (V(t2), V(ACC[0][T], 4), T * 1024)]
        L += ['L_partd:']
        st('mainC')
    else:
        st('mainC')
        L += ['s_cmp_lg_u32 %s, %s' % (S(sW), S(sKS)), 's_cbranch_scc1 L_partd']
        L += ['ds_write_b128 %s, %s offset:%d' % (V(t2), V(ACC[0][T], 4), T * 1024) for T in range(7)]
        L += ['L_partd:'] + lsig(5, t3)
    fpo = [sAct, sAct + 1, sAct + 2]; pto = [sWp, sWp + 1, sWp + 2]
    nu = 3 if PTAG else 2
    L += sx(sG, [(sN2f, 16 * FS), (sNB, 4 * FS)], FP_OFF) + sx(sG2, [(sN2f, 16 * PART_B), (sNB, 4 * PART_B), (sW, nu * 1024)], PART_OFF)
    L += ['s_cmp_eq_u32 %s, 3' % S(sW), 's_cselect_b32 %s, 0, 2048' % S(sT3)]
    for k in range(3):
        L += ['s_add_u32 %s, %s, %d' % (S(sT2), S(sKS), k + 1), 's_and_b32 %s, %s, 3' % (S(sT2), S(sT2)),
              's_mul_i32 %s, %s, %d' % (S(pto[k]), S(sT2), PART_B), 's_add_u32 %s, %s, %s' % (S(pto[k]), S(pto[k]), S(sG2))]
        L += ['s_add_u32 %s, %s, %s' % (S(fpo[k]), S(pto[k]), S(sT3))] if PTAG else ['s_mul_i32 %s, %s, %d' % (S(fpo[k]), S(sT2), FS), 's_add_u32 %s, %s, %s' % (S(fpo[k]), S(fpo[k]), S(sG))]
    L += ['s_lshl_b32 %s, %s, 11' % (S(sT2), S(sW)), 'v_add_u32 %s, %s, %s' % (V(t2), S(sT2), V(t2)),
          's_add_u32 %s, %s, %d' % (S(sT2), S(sM0x), BSL), 'v_add_u32 %s, %s, %s' % (V(t1), S(sT2), V(vL16))]
    PT = [accb + 12 * k for k in range(3)] + [accb + 36]; SU = fr + 44; UT = fr + 60
    ptl = [['VM pt%d buffer_load_dwordx4 %s, %s, %s, %s offen offset:%d %s' % (k, V(PT[k] + 4 * a, 4), V(vL16), S(rWS, 4), S(pto[k]), a * 1024, SC) for a in range(2)] +
           (['VM pt%d buffer_load_dwordx4 %s, %s, %s, %s offen %s' % (k, V(PT[k] + 8, 4), V(vL16), S(rWS, 4), S(fpo[k]), SC)] if PTAG else []) for k in range(3)]
    if PTAG:
        L += ['s_waitcnt vmcnt(%d)' % P('PGATE', 0)] + lsig(5, t3); st('pack')
        L += lwait(5, t3) + flat(ptl) + ['ds_read_b128 %s, %s offset:%d' % (V(PT[3] + 4 * a, 4), V(t2), a * 1024) for a in range(2)] + ['s_waitcnt lgkmcnt(0)']; st('fp')
    else:
        L += ['WAITVM part'] + (sflag(sFP) if P('SFP', 0) else setflag(sFP)); st('pack')
        L += lwait(5, t3) + ['ds_read_b128 %s, %s offset:%d' % (V(PT[3] + 4 * a, 4), V(t2), a * 1024) for a in range(2)]
        if P('VFP', 0):
            L += ['v_mul_u32_u24 %s, %d, %s' % (V(vPa), FS, V(vQ)), 'v_add_u32 %s, %s, %s' % (V(vPa), S(sG), V(vPa))] + poll_issue('pfp') + poll_check('pfp') + ['s_waitcnt lgkmcnt(0)']
        else: L += flat(list(apoll('fp', [(r_, 0) for r_ in fpo], sTag)))
        st('fp')
        L += flat(ptl)
    for D in range(8): L += ['v_lshlrev_b32 %s, 16, %s' % (V(SU + 2 * D), V(PT[3] + D)), 'v_and_b32 %s, 0xffff0000, %s' % (V(SU + 2 * D + 1), V(PT[3] + D))]
    pD = lambda k, D: PT[k] + (4 * (D // 3) + D % 3 if PTAG else D)
    L += ['v_mov_b32 %s, 0x3f80' % V(UT), 'v_mov_b32 %s, 0x3f800000' % V(UT + 1)]
    MF = P('MFIN', 1); AG = fr
    if MF:
        L += sx(sT2, [(sN2f, 896), (sNB, 224), (sW, 64)]) + ['s_add_u32 %s, %s, 917504' % (S(sT3), S(sT2)),
              'v_mul_u32_u24 %s, 57344, %s' % (V(t0), V(vJ)), 'v_add_u32 %s, %s, %s' % (V(t0), V(t0), V(vQ8)),
              'v_add_u32 %s, %s, %s' % (V(t1), S(sM0x), V(vL16)), 's_lshl_b32 %s, %s, 9' % (S(sG), S(sW)), 'v_lshl_add_u32 %s, %s, 3, %s' % (V(t2), V(vL), S(sG))]
        L += lwait(11, t3, vLW) + ['ds_read_b128 %s, %s offset:%d' % (V(AG + 4 * k, 4), V(t1), ASL + k * 1024) for k in range(4)]
        L += ['ds_read_b64 %s, %s offset:%d' % (V(AG + 16, 2), V(t2), GSL)]
    for k in range(3):
        L += flat(dcheck('pt%d' % k, [('v_cmp_ne_u32', S(sTag), V(PT[k] + 4 * u + 3)) for u in range(3)], raw(ptl[k]))) if PTAG else ['WAITVM pt%d' % k]
        for D in range(8):
            if P('DOT', 1):
                L += ['v_dot2_f32_bf16 %s, %s, %s, %s' % (V(SU + 2 * D + e), V(pD(k, D)), V(UT + e), V(SU + 2 * D + e)) for e in range(2)]
            else:
                L += ['v_lshlrev_b32 %s, 16, %s' % (V(UT + 2), V(pD(k, D))), 'v_and_b32 %s, 0xffff0000, %s' % (V(UT + 3), V(pD(k, D))),
                      'v_add_f32 %s, %s, %s' % (V(SU + 2 * D), V(SU + 2 * D), V(UT + 2)), 'v_add_f32 %s, %s, %s' % (V(SU + 2 * D + 1), V(SU + 2 * D + 1), V(UT + 3))]
            if not MF and k == 2 and D in (3, 5, 7): L += ['ds_write_b128 %s, %s offset:%d' % (V(t1), V(SU + 2 * D - 6, 4), (D // 2 - 1) * 1024)]
    if MF:
        L += ['s_waitcnt lgkmcnt(0)']
        for a in range(2):
            if a: L += ['s_cmp_eq_u32 %s, 3' % S(sW), 's_cbranch_scc1 L_mfin']
            for rt in range(2):
                q = 8 * a + 4 * rt
                L += ['v_fma_f32 %s, %s, %s, %s' % (V(SU + q + r), V(SU + q + r), V(AG + 16 + rt), V(AG + q + r)) for r in range(4)]
                L += ['v_cvt_pk_bf16_f32 %s, %s, %s' % (V(SU + q + hh), V(SU + q + 2 * hh), V(SU + q + 2 * hh + 1)) for hh in range(2)]
                L += ['VM out buffer_store_dwordx2 %s, %s, %s, %s offen offset:%d' % (V(SU + q, 2), V(t0), S(rOUT, 4), S(sT3 if rt else sT2), a * 32)]
        L += ['L_mfin:']
    else:
        L += ['s_nop 2', 'ds_write_b128 %s, %s offset:%d' % (V(t1), V(SU + 12, 4), 3072)]
        L += lsig(11, t3)
    finish(L, st, 'M')
    LM = L; nvM = va.hi

    L = ['L_S:']; st = mk_st(L, 'S')
    va = Alloc('v', vbase, NV); sa = Alloc('s', sbase, 102); aa = Alloc('a', 0, NA)
    sCF = sa(); sK1 = sa(); sHF = sa(); sKP = sa(); sRot2 = sa()
    sA1o = sa(); sA1o2 = sa(); sFB = sa(); sA1x = sa(); sDFx = sa(); sPTl2 = sa(); sFA = sa(); sWo = sa(); sDFo = sa(); sB1s = sa(); sB1l = sa(); sGl = sa(); sPTl = sa(); sOut = sa()
    vAmp = va(); vFr = va(); vG = va(2); vG1 = va(2); vA1 = va()
    big = va(NV - ((va.next + 3) // 4 * 4), 4); NB = NV - big
    pa = Alloc('v', big, NV)
    MM = [[[pa(4) for u in range(4)] for t in range(2)] for e in range(2)]
    WRr = [pa(4) for t in range(2)]; WIr = [pa(4) for t in range(2)]
    fb = pa.next
    ACD = [[pa(4) for T in range(2)] for rt in range(2)]
    MR = [[pa(4) for t in range(2)] for kt in range(2)]; MI = [[pa(4) for t in range(2)] for kt in range(2)]
    tmpS = pa(24, 4)
    XF = [[aa(4) for rt in range(2)] for b in range(2)]; FF = [[aa(4) for T in range(2)] for b in range(2)]
    NR = [[aa(4) for u in range(2)] for tn in range(2)]; NI = [[aa(4) for u in range(2)] for tn in range(2)]
    BF = [[XF[0][0] + 8 * a + 4 * u for u in range(2)] for a in range(4)]
    L += ['s_load_dwordx2 %s, s[0:1], %d' % (S(r_, 2), off) for r_, off in ((rWR, 8), (rWI, 16), (rOUT, 64))]
    L += common2 + ['v_add_u32 %s, %d, %s' % (V(vFr), FL, V(vL16)),
          's_lshl_b32 %s, %s, 1' % (S(sRot2), S(sSig)), 's_add_u32 %s, %s, %s' % (S(sRot2), S(sRot2), S(sW)),
          'v_lshlrev_b32 %s, 2, %s' % (V(t0), V(vL)), 'v_add_u32 %s, %d, %s' % (V(t0), LF, V(t0)), 'ds_write_b32 %s, %s' % (V(t0), V(vZero))]
    ta = Alloc('v', big, big + 64)
    cs = ta(8); sn = ta(8); th = ta(8); pk0 = ta(4); pk1 = ta(4); vKdf = ta(); vU = ta(); vD0 = ta(); vFw = vG
    vGW = [ACD[0][0] + 4 * a for a in range(4)]
    def kact(dst, a, tmp):
        return ['s_add_u32 %s, %s, %d' % (S(dst), S(sRot2), 4 * a), 's_sub_u32 %s, %s, 14' % (S(tmp), S(dst)), 's_min_u32 %s, %s, %s' % (S(dst), S(dst), S(tmp))]
    L += ['s_cmp_eq_u32 %s, 15' % S(sC), 's_cbranch_scc1 L_nofg', 'v_lshl_add_u32 %s, %s, 4, %s' % (V(vKdf), S(sC), V(vJ)), 'v_mov_b32 %s, 1.0' % V(vG1),
          'v_cmp_eq_u32 vcc, 0, %s' % V(vKdf), 'v_cndmask_b32 %s, %s, 0.5, vcc' % (V(vG1), V(vG1)),
          'v_cmp_eq_u32 vcc, 224, %s' % V(vKdf), 'v_cndmask_b32 %s, %s, 0.5, vcc' % (V(vG1), V(vG1)),
          'v_cmp_lt_u32 vcc, 224, %s' % V(vKdf), 'v_cndmask_b32 %s, %s, 0, vcc' % (V(vG1), V(vG1)), 'v_cvt_f32_u32 %s, %s' % (V(vKdf), V(vKdf)), 'v_mul_f32 %s, %s, %s' % (V(vU), S(sInv448), V(vKdf)),
          's_lshl_b32 %s, %s, 11' % (S(sT2), S(sW)), 'v_add_u32 %s, %s, %s' % (V(vFw), S(sT2), V(vFr))]
    for a in range(4):
        L += kact(sT2, a, sT3) + [
              'v_lshl_add_u32 %s, %s, 5, %s' % (V(vD0), S(sT2), V(vQ8)), 'v_cvt_f32_u32 %s, %s' % (V(vD0), V(vD0)),
              'v_mul_f32 %s, %s, %s' % (V(t3), V(vKdf), V(vD0)), 'v_mul_f32 %s, %s, %s' % (V(th), S(sInv448), V(t3)),
              'v_floor_f32 %s, %s' % (V(th), V(th)), 'v_fma_f32 %s, %s, %s, %s' % (V(t3), V(th), S(sM448), V(t3)),
              'v_mul_f32 %s, %s, %s' % (V(th), S(sInv448), V(t3))]
        for e in range(1, 8): L += ['v_add_f32 %s, %s, %s' % (V(th + e), V(th + e - 1), V(vU))]
        for e in range(8): L += ['v_cos_f32 %s, %s' % (V(cs + e), V(th + e)), 'v_sin_f32 %s, %s' % (V(sn + e), V(th + e))]
        for e in range(0, 8, 2):
            L += ['v_pk_mul_f32 %s, %s, %s op_sel_hi:[1,0]' % (V(cs + e, 2), V(cs + e, 2), V(vG1, 2)), 'v_pk_mul_f32 %s, %s, %s op_sel_hi:[1,0]' % (V(sn + e, 2), V(sn + e, 2), V(vG1, 2))]
        for e in range(4):
            L += ['v_cvt_pk_bf16_f32 %s, %s, %s' % (V(pk0 + e), V(cs + 2 * e), V(cs + 2 * e + 1)),
                  'v_cvt_pk_bf16_f32 %s, -%s, -%s' % (V(pk1 + e), V(sn + 2 * e), V(sn + 2 * e + 1))]
        L += ['ds_write_b128 %s, %s offset:%d' % (V(vFw), V(pk0, 4), a * 8192), 'ds_write_b128 %s, %s offset:%d' % (V(vFw), V(pk1, 4), a * 8192 + 1024)]
    L += ['L_nofg:']
    L += dmaddr
    for r_, sz in ((rWR, W_SZ), (rWI, W_SZ), (rOUT, X_SZ)):
        L += ['s_mov_b32 %s, 0x%x' % (S(r_ + 2), sz), 's_mov_b32 %s, 0x20000' % S(r_ + 3)]
    L += ['s_add_u32 %s, %s, 2' % (S(sSig), S(sSig)), 's_sub_u32 %s, %s, 7' % (S(sT), S(sSig)), 's_min_u32 %s, %s, %s' % (S(sSig), S(sSig), S(sT))]
    gx = lambda dst, terms, const=0: sx(dst, terms, const, sG2)
    lo1 = ['s_lshr_b32 %s, %s, 1' % (S(sHF), S(sW)), 's_and_b32 %s, %s, 15' % (S(sCF), S(sM)),
           's_lshr_b32 %s, %s, 4' % (S(sKP), S(sM)), 's_lshl_b32 %s, %s, 1' % (S(sG), S(sXc)), 's_add_u32 %s, %s, %s' % (S(sKP), S(sKP), S(sG)),
           's_and_b32 %s, %s, 1' % (S(sK1), S(sW)), 's_lshl_b32 %s, %s, 1' % (S(sG), S(sKP)), 's_add_u32 %s, %s, %s' % (S(sK1), S(sK1), S(sG))]
    lo1 += w2tab + gx(sWo, [(sK1, 450), (sCF, 32), (sHF, 32 * 14400)])
    lo1 += gx(sA1o, [(sI, 16 * A1_B), (sC, A1_B), (sW, 1024)], A1_OFF) + gx(sG, [(sN2, 128)], GATE_OFF) + ['s_add_u32 %s, %s, 8192' % (S(sA1x), S(sA1o))]
    lo1 += ['s_cmp_eq_u32 %s, 15' % S(sC), 's_cselect_b32 %s, %s, %s' % (S(sA1o), S(sG), S(sA1o)), 's_cselect_b32 %s, 64, 4096' % S(sG), 's_cselect_b64 vcc, -1, 0',
            's_add_u32 %s, %s, %s' % (S(sA1o2), S(sA1o), S(sG)), 'v_lshlrev_b32 %s, 4, %s' % (V(vA1), V(vQ)), 'v_cndmask_b32 %s, %s, %s, vcc' % (V(vA1), V(vL16), V(vA1))]
    lo1 += gx(sFB, [(sW, 16 * 16 * FS), (sCF, FS)], FB_OFF) + gx(sPTl2, [(sN2, 16 * FS), (sC, FS)], FB_OFF)
    lo1 += gx(sFA, [(sC, 64 * FS), (sW, 16 * FS), (sI, FS)], FA_OFF)
    lo1 += ['s_min_u32 %s, %s, 14' % (S(sG), S(sCF))] + gx(sDFo, [(sG, A1_B), (sK1, 256)], A1_OFF)
    lo1 += ['s_lshr_b32 %s, %s, 4' % (S(sG), S(sK1))] + gx(sDFx, [(sG, -4096 + 8), (sDFo, 1)], 8192)
    lo1 += gx(sB1s, [(sCF, 64 * 2048), (sW, 16 * 2048), (sKP, 128)], B1_OFF) + gx(sB1l, [(sW, 4 * 64 * 2048), (sN2f, 2048)], B1_OFF)
    lo1 += gx(sGl, [(sN2f, 128)], GATE_OFF) + gx(sPTl, [(sN2f, 16 * PART_B), (sNB, 4 * PART_B), (sW, 3072 if PTAG else 2048)], PART_OFF) + gx(sOut, [(sN2f, 896), (sNB, 224), (sW, 64)])
    sJunk = sSpin
    L += ['s_waitcnt lgkmcnt(0)'] + wst + epld + ['s_load_dword %s, %s, 0' % (S(sJunk), S(r_, 2)) for r_ in (rWR, rWI, rOUT)] + lo1
    q_ = tmpS
    lo = [
          'v_mul_u32_u24 %s, %d, %s' % (V(t3), 4 * 14400, V(vQ)), 'v_lshl_add_u32 %s, %s, 1, %s' % (V(t3), V(vJ), V(t3))]
    for t in range(2):
        for r in range(4): lo += ['v_mov_b32 %s, 0' % V(WRr[t] + r), 'v_mov_b32 %s, 0' % V(WIr[t] + r)]
    nlo1 = len(lo)
    vK = [q_, q_ + 1]; vS0 = q_ + 2; vS = q_ + 3; vA = [q_ + 4, q_ + 5]; c_ = [q_ + 6, q_ + 7]; s_ = [q_ + 8, q_ + 9]
    lo += ['v_cvt_f32_u32 %s, %s' % (V(vK[0]), V(vJ)), 'v_mul_f32 %s, %s, %s' % (V(vK[0]), f2u(1.0 / 2048), V(vK[0])),
           'v_add_f32 %s, %s, %s' % (V(vK[1]), f2u(16.0 / 2048), V(vK[0])),
           'v_lshl_add_u32 %s, %s, 8, %s' % (V(vS0), V(vQ), S(sN2)), 'v_cvt_f32_u32 %s, %s' % (V(vS0), V(vS0))]
    for t in range(2):
        for r in range(4):
            lo += ['v_add_f32 %s, %s, %s' % (V(vS), f2u(64.0 * (16 * t + r)), V(vS0))]
            for kt in range(2): lo += ['v_mul_f32 %s, %s, %s' % (V(vA[kt]), V(vK[kt]), V(vS))]
            for kt in range(2): lo += ['v_cos_f32 %s, %s' % (V(c_[kt]), V(vA[kt])), 'v_sin_f32 %s, %s' % (V(s_[kt]), V(vA[kt]))]
            for kt in range(2):
                lo += ['v_cvt_pk_bf16_f32 %s, %s, %s' % (V(MR[kt][t] + r), V(c_[kt]), V(s_[kt])),
                       'v_cvt_pk_bf16_f32 %s, -%s, %s' % (V(MI[kt][t] + r), V(s_[kt]), V(c_[kt]))]
    vI = q_; vN0 = q_ + 1; vAn = q_ + 2; vc = q_ + 4; vs = q_ + 5
    lo += ['v_lshl_add_u32 %s, %s, 5, %s' % (V(vI), S(sHF), V(vJ)), 'v_cvt_f32_u32 %s, %s' % (V(vI), V(vI)), 'v_mul_f32 %s, %s, %s' % (V(vI), f2u(1.0 / 64), V(vI)),
           'v_lshlrev_b32 %s, 2, %s' % (V(vN0), V(vQ)), 'v_cvt_f32_u32 %s, %s' % (V(vN0), V(vN0))]
    prev = []
    for u in range(4):
        for r in range(4):
            k = (4 * u + r) & 1
            lo += ['v_add_f32 %s, %s, %s' % (V(vAn + k), f2u(16.0 * u + r), V(vN0)), 'v_mul_f32 %s, %s, %s' % (V(vAn + k), V(vAn + k), V(vI)),
                   'v_cos_f32 %s, %s' % (V(vc + 2 * k), V(vAn + k)), 'v_sin_f32 %s, %s' % (V(vs + 2 * k), V(vAn + k))] + prev
            cc, ss = V(vc + 2 * k), V(vs + 2 * k)
            rot = [(cc, ss), ('-' + ss, cc), ('-' + cc, '-' + ss), (ss, '-' + cc)]
            prev = ['v_cvt_pk_bf16_f32 %s, %s, %s' % ((V(MM[e][t][u] + r),) + rot[(t * r + e) % 4]) for e in range(2) for t in range(2)]
    lo += prev
    ngen = []
    vSs, vKk, nc, ns, pn = q_, q_ + 2, q_ + 3, q_ + 4, q_ + 5
    ngen += ['v_lshl_add_u32 %s, %s, 6, %s' % (V(vSs), V(vJ), S(sN2f)), 'v_cvt_f32_u32 %s, %s' % (V(vSs), V(vSs)), 'v_mul_f32 %s, %s, %s' % (V(vSs), f2u(1.0 / 2048), V(vSs))]
    for u in range(2):
        for r in range(4):
            ngen += ['v_add_f32 %s, %s, %s' % (V(vKk), f2u(16.0 * u + r), V(vN0)), 'v_mul_f32 %s, %s, %s' % (V(vKk), V(vKk), V(vSs)),
                   'v_cos_f32 %s, %s' % (V(nc), V(vKk)), 'v_sin_f32 %s, %s' % (V(ns), V(vKk))]
            for tn in range(2):
                ng = '-' if (tn and r & 1) else ''; ps = '' if (tn and r & 1) else '-'
                if tn == 0 or r & 1:
                    ngen += ['v_cvt_pk_bf16_f32 %s, %s%s, %s%s' % (V(pn), ng, V(nc), ps, V(ns)), 'v_cvt_pk_bf16_f32 %s, %s%s, %s%s' % (V(pn + 1), ng, V(ns), ng, V(nc))]
                ngen += ['v_accvgpr_write_b32 %s, %s' % (A(NR[tn][u] + r), V(pn)), 'v_accvgpr_write_b32 %s, %s' % (A(NI[tn][u] + r), V(pn + 1))]
    lo += ['s_lshl_b32 %s, %s, 2' % (S(sG), S(sW)), 's_add_u32 %s, %s, %d' % (S(sG), S(sG), XCH),
           'v_lshl_add_u32 %s, %s, 10, %s' % (V(t0), V(vQ), S(sG)), 'v_lshl_add_u32 %s, %s, 4, %s' % (V(t0), V(vJ), V(t0)),
           's_lshl_b32 %s, %s, 10' % (S(sG), S(sW)), 's_add_u32 %s, %s, %d' % (S(sG), S(sG), XCH), 'v_add_u32 %s, %s, %s' % (V(t1), S(sG), V(vL16))]
    pf = sx(sT2, [(sM, 12544), (sKS, 448 * 896), (sW, 25 * 128)]) + [
         'v_lshrrev_b32 %s, 1, %s' % (V(t2), V(vL)), 'v_min_u32 %s, 24, %s' % (V(t2), V(t2)), 'v_lshlrev_b32 %s, 7, %s' % (V(t2), V(t2)),
         'VM pf buffer_load_dword %s, %s, %s, %s offen%s' % (V(vPv), V(t2), S(rW2, 4), S(sT2), NT)]
    pf += sx(sT2, [(sM, 2 * 14400), (sHF, 14400), (sXc, 1800)]) + [
         'v_lshrrev_b32 %s, 3, %s' % (V(t2), V(vL)), 's_and_b32 %s, %s, 1' % (S(sT), S(sW)), 's_lshl_b32 %s, %s, 10' % (S(sT), S(sT)),
         'v_lshl_add_u32 %s, %s, 7, %s' % (V(t2), V(t2), S(sT)), 'v_min_u32 %s, 1796, %s' % (V(t2), V(t2)),
         'VM pf buffer_load_dword %s, %s, %s, %s offen%s' % (V(vPv), V(t2), S(rWR, 4), S(sT2), NT),
         'VM pf buffer_load_dword %s, %s, %s, %s offen%s' % (V(vPv), V(t2), S(rWI, 4), S(sT2), NT)]
    if P('PF2', 1):
        pf = ['s_lshr_b32 %s, %s, 2' % (S(sT3), S(sM)), 's_lshl_b32 %s, %s, 1' % (S(sT3), S(sT3)), 's_and_b32 %s, %s, 1' % (S(sT), S(sM)), 's_add_u32 %s, %s, %s' % (S(sT3), S(sT3), S(sT)),
              's_add_u32 %s, %s, 1' % (S(sG), S(sM)), 's_and_b32 %s, %s, 2' % (S(sG), S(sG)), 's_lshl_b32 %s, %s, 29' % (S(sG), S(sG))]
        pf += sx(sT2, [(sT3, 25088), (sKS, 448 * 896), (sW, 49 * 128), (sG, 1)]) + [
              'v_min_u32 %s, 48, %s' % (V(t2), V(vL)), 'v_lshlrev_b32 %s, 7, %s' % (V(t2), V(t2)),
              'VM pf buffer_load_dword %s, %s, %s, %s offen' % (V(vPv), V(t2), S(rW2, 4), S(sT2))]
        pf += sx(sT2, [(sT3, 4 * 14400), (sW, 14400), (sXc, 1800), (sG, 1)]) + [
              'v_lshrrev_b32 %s, 2, %s' % (V(t2), V(vL)), 'v_lshlrev_b32 %s, 7, %s' % (V(t2), V(t2)), 'v_min_u32 %s, 1796, %s' % (V(t2), V(t2)),
              'VM pf buffer_load_dword %s, %s, %s, %s offen' % (V(vPv), V(t2), S(rWR, 4), S(sT2)),
              'VM pf buffer_load_dword %s, %s, %s, %s offen' % (V(vPv), V(t2), S(rWI, 4), S(sT2))]
    wl = []
    for t in range(2):
        for r in range(4):
            wl += ['s_add_u32 %s, %s, %d' % (S(sT2), S(sWo), (16 * t + r) * 14400),
                   'VM W buffer_load_short_d16_hi %s, %s, %s, %s offen' % (V(WRr[t] + r), V(t3), S(rWR, 4), S(sT2)),
                   'VM W buffer_load_short_d16_hi %s, %s, %s, %s offen' % (V(WIr[t] + r), V(t3), S(rWI, 4), S(sT2))]
    readsS = lambda ks: xread(ks, XF) + ['LK a%d_f ds_read_b128 %s, %s offset:%d' % (ks, A(FF[ks & 1][T], 4), V(vFr), ks * 2048 + T * 1024) for T in range(2)]
    mfS = lambda ks: ['%s %s, %s, %s, %s' % (MFMA, V(ACD[rt][T], 4), A(XF[ks & 1][rt], 4), A(FF[ks & 1][T], 4), V(ACD[rt][T], 4) if ks else '0') for T in range(2) for rt in range(2)]
    L += lo
    if P('NGPRO', 0): L += ngen; ngen = []
    if P('PFS', 3) == -1: L += pf
    L += ['s_waitcnt lgkmcnt(0)', 's_setprio %d' % P('PRS', 1)] + tagc
    st('pro')
    L += ['s_barrier']
    L += readsS(0)
    ngl = []
    if not P('NGL', 0): ngl = ngen; ngen = []
    lo = ngen; per = (len(lo) + 5) // 6
    ld = []
    for ks in range(14):
        if ks == 0: ld = [setflag(sPTl2)] + group_vm(stage_loads(2)) + ([pf] if P('PFS', 3) == 0 else [])
        if ks & 1:
            s = (ks + 1) // 2
            if s < 7: L += flat(ld) + (['WAITVM st%d' % s] if 2 <= s else []) + ['s_barrier']; ld = []
            if s + 2 <= 6: ld = group_vm(stage_loads(s + 2))
            if s == P('PFS', 3): ld += [pf]
            if s == 6: w01 = group_vm(w2_loads(0) + w2_loads(1)); ld += w01[:P('W2E', 8)]; w01 = w01[P('W2E', 8):]
        if ks == P('WLK', 10): ld += [wl]
        L += ['WAITLK a%d_f' % ks] + weave(mfS(ks), readsS(ks + 1) if ks < 13 else [])
        h = (len(ld) + 1) // 2 if (ks & 1 and P('SPLITLD', 1)) else len(ld)
        L += flat(ld[:h]); ld = ld[h:]
        if ks % 2 == 0 and ks: L += lo[:per]; lo = lo[per:]
    assert not lo
    L += ['s_setprio %d' % P('PRS2', 1)]
    st('mainA')
    PX = [tmpS, tmpS + 4]; DR = [tmpS + 8, tmpS + 12]; DI = [tmpS + 16, tmpS + 20]; XO = [ACD[0][0], ACD[1][0]]
    L += ['s_nop 4', 's_cmp_eq_u32 %s, 15' % S(sC), 's_cbranch_scc1 L_gate']
    for t in range(2):
        for r in range(4): L += ['v_cvt_pk_bf16_f32 %s, %s, %s' % (V(PX[t] + r), V(ACD[t][0] + r), V(ACD[t][1] + r))]
    for t in range(2):
        for kt in range(2):
            L += ['%s %s, %s, %s, %s' % (MFMA, V(DR[kt], 4), V(MR[kt][t], 4), V(PX[t], 4), V(DR[kt], 4) if t else '0'),
                  '%s %s, %s, %s, %s' % (MFMA, V(DI[kt], 4), V(MI[kt][t], 4), V(PX[t], 4), V(DI[kt], 4) if t else '0')]
    for kt in range(2):
        for r in range(4):
            L += ['v_cvt_pk_bf16_f32 %s, %s, %s' % (V(DR[kt] + r), V(DR[kt] + r), V(DI[kt] + r)),
                  'ds_write_b32 %s, %s offset:%d' % (V(t0), V(DR[kt] + r), kt * 4096 + r * 256)]
    L += lsig(1, t0) + lwait(1, t0)
    L += ['ds_read_b128 %s, %s offset:%d' % (V(XO[k], 4), V(t1), k * 4096) for k in range(2)]
    if ATAG:
        XX = ACD[0][1]
        L += ['v_mov_b32 %s, %s' % (V(XX + 1), S(sTag)), 'v_mov_b32 %s, %s' % (V(XX + 3), S(sTag)), 's_waitcnt lgkmcnt(0)']
        for k in range(2): L += ['v_mov_b32 %s, %s' % (V(XX + 2 * k), V(XO[k] + 3)), 'v_mov_b32 %s, %s' % (V(XO[k] + 3), S(sTag))]
        L += ['OPT_BEGIN', 'VM a1x buffer_store_dwordx4 %s, %s, %s, %s offen %s' % (V(XX, 4), V(vL16), S(rWS, 4), S(sA1x), SC), 'OPT_END']
    else: L += ['s_waitcnt lgkmcnt(0)']
    L += ['s_branch L_a1st', 'L_gate:', 's_nop 3']
    for rt in range(2):
        o = XO[rt]
        for r in range(4): L += ['v_mul_f32 %s, %s, %s' % (V(o + r), f2u(LOG2E), V(o + r))]
        for r in range(4): L += ['v_exp_f32 %s, -%s' % (V(o + r), V(o + r))]
        for r in range(4): L += ['v_add_f32 %s, 1.0, %s' % (V(o + r), V(o + r))]
        for r in range(4): L += ['v_rcp_f32 %s, %s' % (V(o + r), V(o + r))]
    L += ['s_nop 0', 'L_a1st:']
    L += ['VM a1 buffer_store_dwordx4 %s, %s, %s, %s offen %s' % (V(XO[k], 4), V(vA1), S(rWS, 4), S(sA1o2 if k else sA1o), SC) for k in range(2)]
    L += ['s_cmp_lg_u32 %s, 15' % S(sC), 's_cbranch_scc1 L_fa', 's_waitcnt vmcnt(0)', 'L_fa:'] + (setflag(sFA) if ATAG else [])
    st('a1st')
    L += ['s_setprio %d' % P('PRW', 1)] + flat(w01) + (wl if P('WLK', 10) == 99 else []) + ['s_setprio %d' % P('PRS2', 1), 'WAITVM w2_1'] + lsig(6, t3) + ([] if ATAG else ['WAITVM a1'] + (sflag(sFA) if P('SFA', 1) else setflag(sFA))) + lwait(9, t3) + (lwait(6, t3) if P('W2SN', 0) >= 2 else [])
    NS = P('W2SN', 0)
    ws_ = group_vm([u for t in range(P('W2L', 2), P('W2L', 2) + NS) for u in w2_loads(t)]) if NS else []
    pb = Alloc('v', fb, NV)
    DF = [pb(4) for u in range(4)]; XRr = [pb(4) for t in range(2)]; XIr = [pb(4) for t in range(2)]; PF = [pb(4) for t in range(4)]
    if ngl: ngl = ['v_lshlrev_b32 %s, 2, %s' % (V(vN0), V(vQ)), 'v_cvt_f32_u32 %s, %s' % (V(vN0), V(vN0))] + ngl
    dfl = []
    for u in range(4):
        dfl += ['s_add_u32 %s, %s, 0x%x' % (S(sT2), S(sDFo), u * 4 * 16 * A1_B),
                'VM df buffer_load_dwordx4 %s, %s, %s, %s offen %s' % (V(DF[u], 4), V(vPa), S(rWS, 4), S(sT2), SC)]
        if ATAG: dfl += ['s_add_u32 %s, %s, 0x%x' % (S(sT2), S(sDFx), u * 4 * 16 * A1_B),
                'VM df buffer_load_dwordx2 %s, %s, %s, %s offen %s' % (V(PF[0] + 2 * u, 2), V(vPa), S(rWS, 4), S(sT2), SC)]
    L += ['v_mul_u32_u24 %s, %d, %s' % (V(vPa), 16 * A1_B, V(vQ)), 'v_lshl_add_u32 %s, %s, 4, %s' % (V(vPa), V(vJ), V(vPa))]
    k1 = P('NGA', 0)
    L += ['s_min_u32 %s, %s, 14' % (S(sT3), S(sCF))] + sx(sT2, [(sT3, 64 * FS), (sKS, 16 * FS), (sW, 4 * FS)], FA_OFF)
    L += ['s_setprio %d' % P('PRW', 1)] + flat(ws_) + ['s_setprio %d' % P('PRS2', 1)] + (['WAITVM a1'] if P('FAW', 1) else []) + flat(list(apoll('fa', [(sT2, k * FS) for k in range(4)], sTag))) + lsig(8, t3) + lwait(8, t3) + dfl
    st('fa')
    gp_, gc_ = apoll('gt', [(sG, 0)], sTag)
    gl = ['VM g buffer_load_dword %s, %s, %s, %s offen offset:%d %s' % (V(vG + rt), V(vAmp), S(rWS, 4), S(sGl), rt * 64, SC) for rt in range(2)]
    L += sx(sG, [(sKS, 16 * FS), (sI, FS)], FA_OFF + 60 * 16 * FS) + gp_ + ngl[k1:] + gc_ + ['v_lshlrev_b32 %s, 2, %s' % (V(vAmp), V(vJ))] + gl
    if NS: L += ['WAITVM w2_%d' % (P('W2L', 2) - 1 + NS)] + lsig(7, t3)
    L += ['s_and_b32 %s, %s, 1' % (S(sT2), S(sW)), 's_lshl_b32 %s, %s, 12' % (S(sT3), S(sT2)), 's_add_u32 %s, %s, %d' % (S(sT3), S(sT3), PXC),
          'v_add_u32 %s, %s, %s' % (V(t1), S(sT3), V(vL16)), 's_lshl_b32 %s, %s, 11' % (S(sT3), S(sHF)), 'v_add_u32 %s, %s, %s' % (V(t0), S(sT3), V(t1)),
          's_lshl_b32 %s, %s, 2' % (S(sT2), S(sT2)), 's_lshl_b32 %s, %s, 12' % (S(sT3), S(sHF)), 's_add_u32 %s, %s, %s' % (S(sT2), S(sT2), S(sT3)),
          's_add_u32 %s, %s, %d' % (S(sT2), S(sT2), BXC),
          'v_lshl_add_u32 %s, %s, 9, %s' % (V(t2), V(vQ), S(sT2)), 'v_lshl_add_u32 %s, %s, 3, %s' % (V(t2), V(vJ), V(t2))]
    if ATAG:
        L += flat(dcheck('df', [('v_cmp_ne_u32', S(sTag), V(r)) for u in range(4) for r in (DF[u] + 3, PF[0] + 2 * u + 1)], raw(dfl)))
        L += ['v_mov_b32 %s, %s' % (V(DF[u] + 3), V(PF[0] + 2 * u)) for u in range(4)]
    else: L += ['WAITVM df']
    st('df')
    TR = PF[2]; TI = PF[3]
    def cmulpk(t):
        o = []
        for r in range(4):
            xr, xi, wr, wi = V(XRr[t] + r), V(XIr[t] + r), V(WRr[t] + r), V(WIr[t] + r)
            o += ['v_mul_f32 %s, %s, %s' % (V(TR + r), xr, wr), 'v_mul_f32 %s, %s, %s' % (V(TI + r), xr, wi),
                  'v_fma_f32 %s, -%s, %s, %s' % (V(TR + r), xi, wi, V(TR + r)), 'v_fma_f32 %s, %s, %s, %s' % (V(TI + r), xi, wr, V(TI + r)),
                  'v_cvt_pk_bf16_f32 %s, %s, %s' % (V(PF[t] + r), V(TI + r), V(TR + r))]
        return o + ['ds_write_b128 %s, %s offset:%d' % (V(t0), V(PF[t], 4), t * 1024)]
    stg = lambda t, e0: [x for u in range(4) for x in
                         ('%s %s, %s, %s, %s' % (MFMA, V(XRr[t], 4), V(MM[e0][t][u], 4), V(DF[u], 4), V(XRr[t], 4) if u else '0'),
                          '%s %s, %s, %s, %s' % (MFMA, V(XIr[t], 4), V(MM[1 - e0][t][u], 4), V(DF[u], 4), V(XIr[t], 4) if u else '0'))]
    cm0 = cmulpk(0); sg1 = stg(1, 0)
    L += stg(0, 0) + sg1[:3] + sched(sg1[3:], [], [], cm0) + cm0 + cmulpk(1) + lsig(2, t3); st('sta')
    L += lwait(2, t3); st('px')
    L += ['ds_read_b128 %s, %s offset:%d' % (V(DF[u], 4), V(t1), u * 1024) for u in range(4)]
    L += ['s_lshl_b32 %s, %s, 11' % (S(sT2), S(sW)), 's_add_u32 %s, %s, %d' % (S(sT2), S(sT2), BXC), 'v_add_u32 %s, %s, %s' % (V(t1), S(sT2), V(vL16)),
          'v_lshrrev_b32 %s, 3, %s' % (V(t0), V(vL)), 'v_and_b32 %s, 7, %s' % (V(t3), V(vL)), 'v_lshlrev_b32 %s, 11, %s' % (V(t0), V(t0)),
          'v_lshl_add_u32 %s, %s, 4, %s' % (V(t0), V(t3), V(t0)), 's_add_u32 %s, %s, %d' % (S(sT2), S(sB1s), 8 * 2048), 's_waitcnt lgkmcnt(0)']
    outb = lambda t: [x for r in range(4) for x in ('v_cvt_pk_bf16_f32 %s, %s, %s' % (V(PF[t] + r), V(XRr[t] + r), V(XIr[t] + r)),
                                                     'ds_write_b32 %s, %s offset:%d' % (V(t2), V(PF[t] + r), t * 2048 + r * 128))]
    ob0 = outb(0); sg1 = stg(1, 1)
    L += stg(0, 1) + sg1[:4] + sched(sg1[4:], [], [], ob0) + ob0 + outb(1) + lsig(3, t3); st('stb')
    L += lwait(3, t3); st('bx')
    L += ['LK bx%d ds_read_b128 %s, %s offset:%d' % (k, V(PF[2 + k], 4), V(t1), k * 1024) for k in range(2)]
    for k in range(2):
        L += ['WAITLK bx%d' % k, 'VM b1 buffer_store_dwordx4 %s, %s, %s, %s offen %s' % (V(PF[2 + k], 4), V(t0), S(rWS, 4), S(sT2 if k else sB1s), SC)]
    st('fft')

    pd = Alloc('v', big, NV)
    GF = [[pd(4) for ct in range(2)] for T in range(15)]
    yb0 = pd.next
    CS = [[pd(2) for r in range(4)] for a in range(2)]
    kR = pd(2); kA = pd(2); vDf = pd(); vUu = pd(); vK0 = pd(); an = pd(4, 1)
    if P('GPK', 0): cheb = lambda d, k, x1, x0: ['v_pk_fma_f32 %s, %s, %s, %s op_sel_hi:[0,1,1] neg_lo:[0,0,1] neg_hi:[0,0,1]' % (V(d, 2), V(k, 2), V(x1, 2), V(x0, 2))]
    else: cheb = lambda d, k, x1, x0: ['v_fma_f32 %s, %s, %s, -%s' % (V(d + hh), V(k), V(x1 + hh), V(x0 + hh)) for hh in range(2)]
    def gen_G(ct):
        o = []
        if ct == 0:
            o += sx(sG, [(sNB, 112), (sW, 32)], 0, sG2) + ['v_add_u32 %s, %s, %s' % (V(vDf), S(sG), V(vJ)), 'v_cvt_f32_u32 %s, %s' % (V(vDf), V(vDf)),
                  'v_lshlrev_b32 %s, 2, %s' % (V(vK0), V(vQ)), 'v_cvt_f32_u32 %s, %s' % (V(vK0), V(vK0))]
        else: o += ['v_add_f32 %s, %s, %s' % (V(vDf), f2u(16.0), V(vDf))]
        o += ['v_mul_f32 %s, %s, %s' % (V(vUu), S(sInv448), V(vDf)), 'v_mul_f32 %s, %s, %s' % (V(an), V(vK0), V(vUu)),
              'v_mul_f32 %s, %s, %s' % (V(t3), f2u(16.0), V(vUu)),
              'v_cos_f32 %s, %s' % (V(kR), V(vUu)), 'v_cos_f32 %s, %s' % (V(kA), V(t3)),
              'v_add_f32 %s, %s, %s' % (V(an + 1), V(an), V(vUu)), 'v_add_f32 %s, %s, %s' % (V(an + 2), V(an), V(t3)), 'v_add_f32 %s, %s, %s' % (V(an + 3), V(an + 1), V(t3)),
              'v_add_f32 %s, %s, %s' % (V(kR), V(kR), V(kR)), 'v_add_f32 %s, %s, %s' % (V(kA), V(kA), V(kA))]
        for a in range(2):
            for r in range(2):
                o += ['v_cos_f32 %s, %s' % (V(CS[a][r]), V(an + 2 * a + r)), 'v_sin_f32 %s, -%s' % (V(CS[a][r] + 1), V(an + 2 * a + r))]
        for r in (2, 3):
            for a in range(2): o += cheb(CS[a][r], kR, CS[a][r - 1], CS[a][r - 2])
        for T in range(15):
            a = T & 1
            if T >= 2: o += [x for r in range(4) for x in cheb(CS[a][r], kA, CS[1 - a][r], CS[a][r])]
            o += ['v_cvt_pk_bf16_f32 %s, %s, %s' % (V(GF[T][ct] + r), V(CS[a][r]), V(CS[a][r] + 1)) for r in range(4)]
        return o
    bfl = [['s_add_u32 %s, %s, 0x%x' % (S(sT2), S(sB1l), a * 64 * 2048)] +
           ['VM bf%d buffer_load_dwordx2 %s, %s, %s, %s offen offset:%d %s' % (a, A(BF[a][u] + 2 * hh, 2), V(t0), S(rWS, 4), S(sT2), u * 1024 + hh * 128, SC)
            for u in range(2) for hh in range(2)] for a in range(4)]
    gg = gen_G(0) + gen_G(1); k0_ = len(gg) * P('FBPOS', 30) // 100
    L += ['v_lshlrev_b32 %s, 8, %s' % (V(t0), V(vQ)), 'v_lshl_add_u32 %s, %s, 3, %s' % (V(t0), V(vJ), V(t0)),
          'v_mul_u32_u24 %s, %d, %s' % (V(vPa), 16 * FS, V(vJ)), 's_setprio %d' % P('PRG', 0)]
    L += gg[:k0_] + ['WAITVM b1', 's_mov_b64 exec, 0xffff', 'VM fb buffer_atomic_add %s, %s, %s, %s offen sc1' % (V(vOne), V(vPa), S(rWS, 4), S(sFB)), 's_mov_b64 exec, -1']
    k1_ = len(gg) * P('FBI', 65) // 100; k2_ = len(gg) * P('FBC', 85) // 100
    bp_, bc_ = apoll('fb', [(sFA, 0), (sFA, FS), (sFA, 2 * FS), (sT3, 0)], sDFx)
    L += sx(sFA, [(sN2f, 16 * FS), (sW, 4 * FS)], FB_OFF) + ['s_cmp_eq_u32 %s, 3' % S(sW), 's_cselect_b32 %s, %d, %d' % (S(sT3), 0, 1), 's_mul_i32 %s, %s, %d' % (S(sT3), S(sT3), 3 * FS),
          's_add_u32 %s, %s, %s' % (S(sT3), S(sT3), S(sFA)), 's_add_u32 %s, %s, 16' % (S(sDFx), S(sTag))]
    L += gg[k0_:k1_] + bp_ + gg[k1_:k2_] + bc_ + flat(bfl); st('fb')
    L += gg[k2_:] + ['s_setprio %d' % P('PRS2', 1)]
    st('gen')
    yb = Alloc('v', yb0, NV)
    YR = [[yb(4) for tn in range(2)] for a in range(2)]; YI = [[yb(4) for tn in range(2)] for a in range(2)]
    L += ['s_lshl_b32 %s, %s, 13' % (S(sT2), S(sW)), 'v_add_u32 %s, %s, %s' % (V(t1), S(sT2), V(vFr))]
    L += ['v_mul_u32_u24 %s, 57344, %s' % (V(t2), V(vJ)), 'v_add_u32 %s, %s, %s' % (V(t2), V(t2), V(vQ8)),
          's_add_u32 %s, %s, %d' % (S(sT2), S(sM0x), BSL), 'v_add_u32 %s, %s, %s' % (V(vA1), S(sT2), V(vL16)), 's_add_u32 %s, %s, 917504' % (S(sT3), S(sOut)), 'WAITVM g']
    for rt in range(2):
        L += ['v_sub_f32 %s, 1.0, %s' % (V(vG1 + rt), V(vG + rt)), 'v_mul_f32 %s, %s, %s' % (V(vG + rt), f2u(2.0 / (2048 * 448)), V(vG + rt))]
    bfck = lambda a: ['WAITVM bf%d' % a]
    step6 = lambda a: ['%s %s, %s, %s, %s' % (MFMA, V(Y[a & 1][tn], 4), A(BF[a][u], 4), A(N[tn][u], 4), V(Y[a & 1][tn], 4) if u else '0')
                       for u in range(2) for tn in range(2) for (Y, N) in ((YR, NR), (YI, NI))]
    def packY(a):
        o = []
        for tn in range(2):
            for r in range(4):
                o += ['v_cvt_pk_bf16_f32 %s, %s, %s' % (V(YR[a & 1][tn] + r), V(YR[a & 1][tn] + r), V(YI[a & 1][tn] + r))]
            o += ['ds_write_b128 %s, %s offset:%d' % (V(t1), V(YR[a & 1][tn], 4), a * 2048 + tn * 1024)]
        return o
    L += bfck(0); st('bf0')
    L += step6(0)
    for a in range(1, 4):
        pk_ = packY(a - 1)
        L += bfck(a) + sched(step6(a), [], [], pk_) + pk_
    L += packY(3) + lsig(4, t3); st('s6a')
    L += lwait(4, t3)
    st('s6')
    NY = 16
    YF = [4 * n for n in range(NY)]
    AC = [[yb0 + 16 + 8 * ct + 4 * rt for rt in range(2)] for ct in range(2)]
    seq = [(T, rt) for T in range(15) for rt in range(2)]
    rdY = lambda n: 'LK y%d ds_read_b128 %s, %s offset:%d' % (n, A(YF[n % NY], 4), V(vFr), seq[n][0] * 2048 + seq[n][1] * 1024)
    LA = 14
    L += [rdY(n) for n in range(LA)]
    for n, (T, rt) in enumerate(seq):
        if n % 2 == 0: L += ['WAITLK y%d' % (n + 1)]
        L += ['%s %s, %s, %s, %s' % (MFMA, V(AC[0][rt], 4), V(GF[T][0], 4), A(YF[n % NY], 4), V(AC[0][rt], 4) if T else '0')]
        if n + LA < len(seq): L += [rdY(n + LA)]
        L += ['%s %s, %s, %s, %s' % (MFMA, V(AC[1][rt], 4), V(GF[T][1], 4), A(YF[n % NY], 4), V(AC[1][rt], 4) if T else '0')]
    st('mainD')
    BS = GF[0][0]
    L += ['v_mul_f32 %s, %s, %s' % (V(AC[a][rt] + r), V(vG + rt), V(AC[a][rt] + r)) for a in range(2) for rt in range(2) for r in range(4)]
    if P('MFIN', 1):
        L += ['v_add_u32 %s, %s, %s' % (V(t1), S(sM0x), V(vL16)), 's_lshl_b32 %s, %s, 9' % (S(sG), S(sW)), 'v_lshl_add_u32 %s, %s, 3, %s' % (V(t2), V(vL), S(sG))]
        L += ['ds_write_b128 %s, %s offset:%d' % (V(t1), V(AC[a][rt], 4), ASL + (2 * a + rt) * 1024) for a in range(2) for rt in range(2)]
        L += ['ds_write_b64 %s, %s offset:%d' % (V(t2), V(vG1, 2), GSL)] + lsig(11, t3) + ['s_cmp_eq_u32 %s, 3' % S(sW), 's_cbranch_scc1 L_w3']
    else:
        L += lwait(11, t3, vLW)
        st('fp')
        L += ['LK bs%d ds_read_b128 %s, %s offset:%d' % (k, V(BS + 4 * k, 4), V(vA1), k * 1024) for k in range(4)]
        for a in range(2):
            for rt in range(2):
                L += ['WAITLK bs%d' % (2 * a + rt)]
                L += ['v_fma_f32 %s, %s, %s, %s' % (V(AC[a][rt] + r), V(BS + 8 * a + 4 * rt + r), V(vG1 + rt), V(AC[a][rt] + r)) for r in range(4)]
                L += ['v_cvt_pk_bf16_f32 %s, %s, %s' % (V(AC[a][rt] + hh), V(AC[a][rt] + 2 * hh), V(AC[a][rt] + 2 * hh + 1)) for hh in range(2)]
                L += ['VM out buffer_store_dwordx2 %s, %s, %s, %s offen offset:%d' % (V(AC[a][rt], 2), V(t2), S(rOUT, 4), S(sT3 if rt else sOut), a * 32)]
            if a == 0: L += ['s_cmp_eq_u32 %s, 3' % S(sW), 's_cbranch_scc1 L_w3']
    L += ['s_branch L_fin', 'L_w3:', 's_cmp_lg_u32 s2, 120', 's_cbranch_scc1 L_fin', 's_mov_b32 %s, 0x%x' % (S(sT2), FA_OFF + 60 * 16 * FS)] + spoll('ep', [(sT2, (3 + 4 * k) * FS) for k in range(4)], sTag) + ['s_mov_b32 %s, 0x%x' % (S(sT), EP_OFF)] + setflag(sT) + ['L_fin:']
    finish(L, st, 'S')
    LS = L
    if STAMP: open('stamps.txt', 'w').write(' '.join(stamps['M']) + ' / ' + ' '.join(stamps['S']))
    print('role M vgpr', nvM, 'instr', len(LM), ' role S big', NB, 'instr', len(LS), file=sys.stderr)
    if P('HACKACT', 0): LM = [l.replace(' sc1', '') if l.startswith('VM act') else l for l in LM]
    of = os.environ.get('OUTF', '').replace('_', ' ')
    LM = [l + ' ' + of if l.startswith('VM out') else l for l in LM]; LS = [l + ' ' + of if l.startswith('VM out') else l for l in LS]
    return H + resolve(LM) + resolve(LS) + slow + ['L_end:', 's_endpgm'], NV, NA

def build(path):
    hdr = open('cdna_kernels/%s.s.ref' % NAME).read().split('\n')
    top = [l for l in hdr if l.startswith(';') and '@launch' not in l]
    L, nv, na = build_kernel()
    Pd, nn = pad_hazards(L)
    print('lines', len(Pd), 'nops', nn, file=sys.stderr)
    out = top + ['; @launch grid=(256,1,1) block=(512,1,1) lds=%d' % LDS_SZ, '.amdgcn_target "amdgcn-amd-amdhsa--gfx950"', '.text', '.globl %s' % LABEL]
    out += [('    ' + l if not (l.endswith(':') or l.startswith('.')) else l) for l in Pd]
    out += ['.section .rodata,"a"', '.p2align 6', '.amdhsa_kernel %s' % LABEL,
            '  .amdhsa_next_free_vgpr %d' % (nv + na), '  .amdhsa_next_free_sgpr 102', '  .amdhsa_accum_offset %d' % nv,
            '  .amdhsa_group_segment_fixed_size 0', '  .amdhsa_kernarg_size 88', '  .amdhsa_user_sgpr_count 2',
            '  .amdhsa_user_sgpr_kernarg_segment_ptr 1', '  .amdhsa_system_sgpr_workgroup_id_x 1', '.end_amdhsa_kernel']
    open(path, 'w').write('\n'.join(out) + '\n')

if __name__ == '__main__':
    build(sys.argv[1] if len(sys.argv) > 1 else 'cdna_kernels/%s.s' % NAME)
```

```python
import sys, math, os
from dsl import *

NAME = 'gated_mix__spectral_gfnet__dense_activation_mish__prompt'
LABEL = NAME + '_kernel'
ACT_OFF = 0x0; ACT_C = 7168 + 128; ACT_N2 = 16 * ACT_C
PART_OFF = 0x800000; PTAG = int(os.environ.get('PTAG', 0)); PART_B = 7168 + 128
ATAG = int(os.environ.get('ATAG', 0)); A1_OFF = 0x1400000; PAD = int(os.environ.get('PAD', 1))
A1_B = 8192 + 768; A1_I = 16 * A1_B + 4352 * PAD
B1_N = 2048 + 384 * PAD; B1_C = 64 * B1_N + 4352 * PAD
GATE_OFF = 0x1800000
FS = int(os.environ.get('FS', 128))
FSB = int(os.environ.get('FSB', 16)); FBL = max(128, 16 * FSB)
FG_OFF = 0x1810000; FP_OFF = 0x1850000; FB_OFF = 0x1890000; FA_OFF = 0x18d0000
EP_OFF = 0x1910000
B1_OFF = 0x1920000
WS_END = B1_OFF + 15 * B1_C
FBN = 16 * FS + 384 * PAD
OOB = 0x40000000
X_SZ = 2048 * 896; W_SZ = 2048 * 450; W1_SZ = 448 * 3584; W2_SZ = 1792 * 896
LOG2E = math.log2(math.e)
MFMA = 'v_mfma_f32_16x16x32_bf16'
SC = 'sc1'
NT = ' nt' if int(os.environ.get('LNT', 0)) else ''
XR = 0; W1R = 65536; FL = 122880; XCH = 0; PXC = 40960; BXC = 32768; YL = FL; OPL = 155648; LF = OPL + 7168; BSL = 65536; ASL = 32768; GSL = 30720; LDS_SZ = 163840
NV = 184; NA = 72
W2B = [W1R + 3 * 14336, 49152, W1R, 0, W1R + 14336, W1R + 2 * 14336, 16384]
sX, sWR, sWI, sW1, sB1, sW2, sGW, sOUT, sWS = 16, 18, 20, 24, 26, 28, 30, 32, 34
STAMP = os.environ.get('STAMP', '0') == '1'
TS_OFF = 0x2000000
SPIN_MAX = 20000
P = lambda k, d: int(os.environ.get(k, d))

def srd(L, d, base, size):
    L += ['s_mov_b32 %s, %s' % (S(d), S(base)), 's_mov_b32 %s, %s' % (S(d + 1), S(base + 1)),
          's_mov_b32 %s, 0x%x' % (S(d + 2), size), 's_mov_b32 %s, 0x20000' % S(d + 3)]

def resolve(L):
    out = []; ops = []; cur = None; nopt = 0; lks = []; waited = set()
    for l in L:
        if l == 'OPT_BEGIN': nopt += 1; cur = nopt; continue
        if l == 'OPT_END': cur = None; continue
        if l.startswith('LK '):
            _, tag, ins = l.split(' ', 2); lks.append(tag); out.append(ins); continue
        if l.startswith('ds_'): lks.append('_')
        if l.startswith('WAITLK '):
            tag = l.split(' ')[1]
            idx = max(k for k, o in enumerate(lks) if o == tag)
            out.append('s_waitcnt lgkmcnt(%d)' % min(len(lks) - 1 - idx, 15)); continue
        if l.startswith('VM '):
            _, tag, ins = l.split(' ', 2); assert tag not in waited, tag
            ops.append((tag, cur)); out.append(ins); continue
        if l.startswith('WAITVM '):
            parts = l.split(' ', 2); tag = parts[1]; extra = (' ' + parts[2]) if len(parts) > 2 else ''
            waited.add(tag)
            idx = max(k for k, o in enumerate(ops) if o[0] == tag)
            n = sum(1 for o in ops[idx + 1:] if (o[1] is None or o[1] == cur))
            out.append('s_waitcnt vmcnt(%d)%s' % (min(n, 63), extra)); continue
        assert not (l.startswith('buffer_') or l.startswith('global_')), l
        out.append(l[4:] if l.startswith('RAW ') else l)
    return out

def weave(mm, *streams):
    out = []; idx = [0] * len(streams)
    def put(u): out.extend(u if isinstance(u, list) else [u])
    for m in mm:
        put(m)
        for k, s in enumerate(streams):
            if idx[k] < len(s): put(s[idx[k]]); idx[k] += 1
    for k, s in enumerate(streams):
        for u in s[idx[k]:]: put(u)
    return out

TRANS_OPS = ('v_exp_f32', 'v_rcp_f32', 'v_sin_f32', 'v_cos_f32')
def cost(u):
    c = 0; n = 0
    for i in (u if isinstance(u, list) else [u]):
        if i.endswith(':') or i.startswith('OPT_'): continue
        n += 1
        if i.startswith('VM '): c += 15
        elif i.split()[0] in TRANS_OPS: c += 8
        elif i.startswith('s_') or i.startswith('WAIT'): pass
        else:
            assert not i.startswith('v_pk_'), i
            c += 4
    return c, n
VB = int(os.environ.get('VB', 8))
def sched(mm, rd, hi, lo, pace=1, state=None):
    out = []; rd = list(rd)
    state = state if state is not None else [99]
    def put(u): out.extend(u if isinstance(u, list) else [u])
    for k, m in enumerate(mm):
        put(m)
        state[0] += 1
        vb = VB; sl = 3
        if k + 1 < len(mm) and isinstance(mm[k + 1], list): sl -= len(mm[k + 1]) - 1
        left = len(mm) - k
        q = hi if (hi and (cost(hi[0])[0] < 15 or state[0] >= pace)) else lo
        if q and (cost(q[0])[0] > 4 or cost(q[0])[1] > 2) and len(rd) <= 2 * (left - 1):
            c, n = cost(q[0]); put(q.pop(0)); vb -= c; sl -= n
            if c >= 15: state[0] = 0
        else:
            n = 0 if not rd else (1 if len(rd) <= left else 2)
            for _ in range(n): put(rd.pop(0)); vb -= 4; sl -= 1
        while True:
            done = True
            for q in (hi, lo):
                if q and cost(q[0])[0] <= max(vb, 0) and cost(q[0])[1] <= sl:
                    c, n = cost(q[0]); vb -= c; sl -= n; put(q.pop(0)); done = False; break
            if done: break
    out += rd
    return out

def spread(main, units, start=0, end=None):
    end = len(main) if end is None else end
    out = list(main[:start]); n = len(units); seg = main[start:end]
    for k in range(n):
        out += seg[len(seg) * k // n: len(seg) * (k + 1) // n] if False else []
    pos = [len(seg) * k // n for k in range(n)] if n else []
    ui = 0
    for k, ins in enumerate(seg):
        while ui < n and pos[ui] == k:
            out += units[ui] if isinstance(units[ui], list) else [units[ui]]; ui += 1
        out.append(ins)
    for u in units[ui:]: out += u if isinstance(u, list) else [u]
    return out + list(main[end:])


def build_kernel():
    flat = lambda U: [i for u in U for i in (u if isinstance(u, list) else [u])]
    sa = Alloc('s', 16, 102)
    rX = sa(4); rW1 = sa(4); rW2 = sa(4); rWS = sa(4); rBI = rWR = sa(4); rGW = rWI = sa(4); rOUT = sa(4)
    sT, sT2, sT3, sSpin, sTag, sW, sM = 3, 4, 5, 6, 7, 8, 9
    sPC = 12; sEp = 14; sW8 = 15
    sI = sa(); sC = sa(); sN2 = sa(); sPar = sa(); sKS = sa(); sNB = sa(); sXc = sa(); sSig = sa(); sN2f = sa(); sM0x = sa()
    sInv448 = sa(); sM448 = sa(); sG = sa(); sG2 = sa(); sR0 = sa(4)
    va = Alloc('v', 1, NV)
    vST = va(); vL = va(); vQ = va(); vJ = va(); t0 = va(); t1 = va(); t2 = va(); t3 = va(); vL16 = va(); vZero = va(); vTag = va()
    vXr = va(2, 1); vPa = va(); vPv = va(); vLF = va(); vOne = va(); vQ8 = va()
    npoll = [0]; slow = []
    stamps = {'M': ['r0', 'start'], 'S': ['r0', 'start']}
    def mk_st(L, role):
        def st(name, real=False):
            if not STAMP: return
            if os.environ.get('STSEL') and name not in os.environ['STSEL'].split(','): return
            stamps[role].append(name)
            L.extend(['%s s[10:11]' % ('s_memrealtime' if real else 's_memtime'), 's_waitcnt lgkmcnt(0)',
                      'v_writelane_b32 %s, s10, %d' % (V(vST), len(stamps[role]) - 1)])
        return st
    def poll_issue(tag):
        return ['VM %s buffer_load_dword %s, %s, %s, 0 offen %s' % (tag, V(vPv), V(vPa), S(rWS, 4), SC)]
    def poll_check(tag):
        n = npoll[0]; npoll[0] += 1
        slow.extend(['slow%d:' % n, 's_mov_b32 %s, 0' % S(sSpin), 'slowl%d:' % n, 's_sleep %d' % P('SLP_' + tag, P('SLP', 6)),
                     'buffer_load_dword %s, %s, %s, 0 offen %s' % (V(vPv), V(vPa), S(rWS, 4), SC),
                     's_waitcnt vmcnt(0)', 'v_cmp_ne_u32 vcc, %s, %s' % (S(sTag), V(vPv)), 's_add_u32 %s, %s, 1' % (S(sSpin), S(sSpin)),
                     's_nop 0', 's_cbranch_vccz back%d' % n, 's_cmp_lt_u32 %s, %d' % (S(sSpin), SPIN_MAX),
                     's_cbranch_scc1 slowl%d' % n, 's_branch back%d' % n])
        return ['WAITVM %s' % tag, 'v_cmp_ne_u32 vcc, %s, %s' % (S(sTag), V(vPv)), 's_nop 1', 's_cbranch_vccnz slow%d' % n, 'back%d:' % n]
    sCk = sa(2); sCk2 = sa(2)
    def dcheck(tag, cmps, reload, pre=[]):
        n = npoll[0]; npoll[0] += 1
        test = list(pre)
        for k, (op, s0_, r) in enumerate(cmps):
            d = 'vcc' if k == 0 else S(sCk if k & 1 else sCk2, 2)
            test += ['%s %s, %s, %s' % (op, d, s0_, r)]
            if k >= 2: test += ['s_or_b64 vcc, vcc, %s' % S(sCk2 if k & 1 else sCk, 2)]
        last = len(cmps) - 1
        test += ['s_or_b64 vcc, vcc, %s' % (S(sCk if last & 1 else sCk2, 2) if last else 'vcc')]
        slow.extend(['slow%d:' % n, 's_mov_b32 %s, 0' % S(sSpin), 'slowl%d:' % n, 's_sleep %d' % P('SLP', 4)] + reload + ['s_waitcnt vmcnt(0)'] + test +
                    ['s_cbranch_scc0 back%d' % n, 's_add_u32 %s, %s, 1' % (S(sSpin), S(sSpin)), 's_cmp_lt_u32 %s, %d' % (S(sSpin), SPIN_MAX),
                     's_cbranch_scc1 slowl%d' % n, 's_branch back%d' % n])
        return [['WAITVM %s' % tag]] + [[i] for i in test[:-1]] + [[test[-1], 's_cbranch_scc1 slow%d' % n, 'back%d:' % n]]
    def spoll(name, locs, exp, first=0):
        n = npoll[0]; npoll[0] += 1
        rs = [sCk, sCk + 1, sCk2, sCk2 + 1]
        o = ['s_mov_b32 %s, 0' % S(sSpin), 'sp%d:' % n]
        o += ['s_load_dword %s, %s, %s offset:%d glc' % (S(rs[k]), S(rWS, 2), S(so), im) for k, (so, im) in enumerate(locs)]
        o += ['s_add_u32 %s, %s, 1' % (S(sSpin), S(sSpin)), 's_cmp_ge_u32 %s, %d' % (S(sSpin), SPIN_MAX), 's_cbranch_scc1 spd%d' % n, 's_waitcnt lgkmcnt(0)']
        for k in range(len(locs)):
            o += ['s_xor_b32 %s, %s, %s' % (S(rs[k]), S(rs[k]), S(exp))]
            if k: o += ['s_or_b32 %s, %s, %s' % (S(rs[0]), S(rs[0]), S(rs[k]))]
        o += ['s_cbranch_scc1 sp%d' % n, 'spd%d:' % n, 's_waitcnt lgkmcnt(0)']
        return o
    def apoll(name, locs, exp):
        n = npoll[0]; npoll[0] += 1
        rs = [sCk, sCk + 1, sCk2, sCk2 + 1]
        ld = ['s_load_dword %s, %s, %s offset:%d glc' % (S(rs[k]), S(rWS, 2), S(so), im) for k, (so, im) in enumerate(locs)]
        t = ['s_waitcnt lgkmcnt(0)']
        for k in range(len(locs)):
            t += ['s_xor_b32 %s, %s, %s' % (S(rs[k]), S(rs[k]), S(exp))]
            if k: t += ['s_or_b32 %s, %s, %s' % (S(rs[0]), S(rs[0]), S(rs[k]))]
        slow.extend(['slow%d:' % n, 's_mov_b32 %s, 0' % S(sSpin), 'slowl%d:' % n] + (['s_sleep %d' % P('SSL', 2)] if P('SSL', 2) else []) + ld + t +
                    ['s_cbranch_scc0 back%d' % n, 's_add_u32 %s, %s, 1' % (S(sSpin), S(sSpin)), 's_cmp_lt_u32 %s, %d' % (S(sSpin), SPIN_MAX),
                     's_cbranch_scc1 slowl%d' % n, 's_branch back%d' % n])
        return ld, t + ['s_cbranch_scc1 slow%d' % n, 'back%d:' % n]
    sflag = lambda so: ['s_atomic_swap %s, %s, %s' % (S(sTag), S(rWS, 2), S(so))]
    raw = lambda U: [i.split(' ', 2)[2] if i.startswith('VM ') else i for i in flat(U)]
    def setflag(sOff):
        return ['VM flag buffer_store_dword %s, %s, %s, %s offen %s' % (V(vTag), V(vZero), S(rWS, 4), S(sOff), SC)]
    def lsig(k, vtmp):
        return ['v_lshl_add_u32 %s, %s, 2, %s' % (V(vtmp), S(sW), V(vZero)), 'ds_write_b32 %s, %s offset:%d' % (V(vtmp), V(vOne), LF - 131072 + k * 16)] if False else \
               ['ds_write_b32 %s, %s offset:%d' % (V(vLW), V(vOne), k * 16)]
    def lwait(k, vtmp, reg=None):
        n = npoll[0]; npoll[0] += 1
        return ['lw%d:' % n, 'ds_read_b32 %s, %s offset:%d' % (V(vtmp), V(vLF if reg is None else reg), k * 16), 's_waitcnt lgkmcnt(0)',
                'v_cmp_ne_u32 vcc, 1, %s' % V(vtmp), 's_nop 1', 's_cbranch_vccnz lw%d' % n]
    vLW = va()
    def sx(dst, terms, const=0, tmp=None):
        tmp = sT if tmp is None else tmp
        o = []
        for k, (r, c) in enumerate(terms):
            d = dst if k == 0 else tmp
            if c == 1:
                o += ['s_mov_b32 %s, %s' % (S(d), S(r))] if k == 0 else ['s_add_u32 %s, %s, %s' % (S(dst), S(dst), S(r))]
                continue
            o += ['s_mul_i32 %s, %s, %d' % (S(d), S(r), c)]
            if k: o += ['s_add_u32 %s, %s, %s' % (S(dst), S(dst), S(tmp))]
        if const: o += ['s_add_u32 %s, %s, 0x%x' % (S(dst), S(dst), const)]
        return o
    def group_vm(U):
        out = []; cur = []
        for u in U:
            cur += u
            if any(i.startswith('VM ') for i in u): out.append(cur); cur = []
        if cur: out[-1] += cur
        return out
    def with_waits(tag, order, mk, step=3):
        o = []
        for n, T in enumerate(order):
            ms = mk(T)
            if n % step == 0: ms[0] = ['WAITLK %s_%d' % (tag, order[min(n + step - 1, len(order) - 1)]), ms[0]]
            o += ms
        return o
    tagc = ['s_mul_i32 %s, %s, 0x9e3779b1' % (S(sTag), S(sEp)), 's_add_u32 %s, %s, 0x7f4a7c15' % (S(sTag), S(sTag)), 'v_mov_b32 %s, %s' % (V(vTag), S(sTag))]
    if P('FULLF', 0): tagc += ['v_and_b32 %s, 31, %s' % (V(vZero), V(vL)), 'v_lshlrev_b32 %s, 2, %s' % (V(vZero), V(vZero))]
    epld = ['s_add_u32 %s, %s, 0x%x' % (S(sPC), S(rWS), EP_OFF), 's_addc_u32 %s, %s, 0' % (S(sPC + 1), S(rWS + 1)), 's_load_dword %s, %s, 0' % (S(sEp), S(sPC, 2))]
    def finish(L, st, role):
        if STAMP:
            st('end'); st('r1', True)
            L += ['s_add_u32 s4, %s, 0x%x' % (S(rWS), TS_OFF), 's_addc_u32 s5, %s, 0' % S(rWS + 1), 's_mov_b32 s6, 0x100000', 's_mov_b32 s7, 0x20000',
                  's_lshl_b32 s13, s2, 3', 's_add_u32 s13, s13, %s' % S(sW8), 's_lshl_b32 s13, s13, 8', 'v_lshlrev_b32 %s, 2, %s' % (V(t0), V(vL)),
                  'VM x buffer_store_dword %s, %s, s[4:7], s13 offen' % (V(vST), V(t0))]
            pb_ = os.environ.get('PROBE', '')
            if pb_.startswith(role + ':'):
                k = stamps[role].index(pb_[2:])
                L += ['s_cmp_lg_u32 s13, %d' % ((P('PWG', 45) * 8 + (0 if role == 'M' else 4)) * 256), 's_cbranch_scc1 L_noprobe', 'v_readlane_b32 s16, %s, %d' % (V(vST), k), 'v_readlane_b32 s17, %s, 1' % V(vST), 's_nop 3',
                      's_sub_u32 s16, s16, s17', 's_lshl_b32 s16, s16, 2', 's_add_u32 s16, s16, 10000', 'L_prl:', 's_memtime s[20:21]', 's_waitcnt lgkmcnt(0)',
                      's_sub_u32 s22, s20, s17', 's_cmp_lt_u32 s22, s16', 's_cbranch_scc1 L_prl', 'L_noprobe:']
        L += ['s_endpgm']

    H = ['.p2align 8', '.type %s,@function' % LABEL, '%s:' % LABEL, 's_cmp_ge_u32 s2, 256', 's_cbranch_scc1 L_end']
    for r_, off in ((rX, 0), (rW1, 32), (rWS, 80), (rW2, 48)):
        H += ['s_load_dwordx2 %s, s[0:1], %d' % (S(r_, 2), off)]
    if STAMP: H += ['v_mov_b32 %s, 0' % V(vST), 's_memrealtime %s' % S(sR0, 2), 's_memtime %s' % S(sR0 + 2, 2)]
    H += ['v_and_b32 %s, 63, v0' % V(vL), 'v_lshrrev_b32 %s, 6, v0' % V(t0), 's_lshr_b32 %s, s2, 3' % S(sM), 's_and_b32 %s, s2, 7' % S(sXc),
          'v_readfirstlane_b32 %s, %s' % (S(sW8), V(t0)), 'v_lshrrev_b32 %s, 4, %s' % (V(vQ), V(vL)), 'v_and_b32 %s, 15, v0' % V(vJ),
          's_lshr_b32 %s, %s, 2' % (S(sI), S(sXc)), 's_lshl_b32 %s, %s, 3' % (S(sI), S(sI)),
          's_lshr_b32 %s, %s, 2' % (S(sT3), S(sM)), 's_add_u32 %s, %s, %s' % (S(sI), S(sI), S(sT3)),
          's_and_b32 %s, %s, 3' % (S(sW), S(sW8)),
          's_and_b32 %s, %s, 3' % (S(sKS), S(sXc)), 's_and_b32 %s, %s, 3' % (S(sNB), S(sM)),
          's_lshl_b32 %s, %s, 2' % (S(sC), S(sKS)), 's_add_u32 %s, %s, %s' % (S(sC), S(sC), S(sNB)),
          's_lshl_b32 %s, %s, 2' % (S(sN2f), S(sI)), 's_add_u32 %s, %s, %s' % (S(sN2), S(sN2f), S(sW)),
          's_and_b32 %s, %s, 1' % (S(sPar), S(sC))]
    H += {0: ['s_lshl_b32 %s, %s, 1' % (S(sSig), S(sNB)), 's_add_u32 %s, %s, %s' % (S(sSig), S(sSig), S(sT3)),
              's_sub_u32 %s, %s, 7' % (S(sT), S(sSig)), 's_min_u32 %s, %s, %s' % (S(sSig), S(sSig), S(sT))],
          1: ['s_mov_b32 %s, 0' % S(sSig)],
          2: ['s_add_u32 %s, %s, %s' % (S(sSig), S(sNB), S(sT3)), 's_and_b32 %s, %s, 1' % (S(sSig), S(sSig)), 's_lshl_b32 %s, %s, 2' % (S(sSig), S(sSig))],
          4: ['s_add_u32 %s, %s, %s' % (S(sSig), S(sNB), S(sT3)), 's_and_b32 %s, %s, 3' % (S(sSig), S(sSig)), 's_lshl_b32 %s, %s, 1' % (S(sSig), S(sSig))]}[P('ROT', 0)]
    H += ['s_xor_b32 %s, %s, %d' % (S(sNB), S(sNB), P('NBX', 0)), 's_lshl_b32 %s, %s, 12' % (S(sM0x), S(sW)),
          's_mov_b32 %s, 0x%x' % (S(rWS + 2), WS_END), 's_mov_b32 %s, 0x20000' % S(rWS + 3),
          's_cmp_ge_u32 %s, 4' % S(sW8), 's_cbranch_scc1 L_S']
    common2 = ['v_lshlrev_b32 %s, 4, %s' % (V(vL16), V(vL)), 'v_mov_b32 %s, 0' % V(vZero), 'v_mov_b32 %s, 1' % V(vOne), 'v_lshlrev_b32 %s, 3, %s' % (V(vQ8), V(vQ)),
               's_add_u32 %s, %s, %s' % (S(sN2f), S(sN2f), S(sKS)),
               's_mov_b32 %s, %s' % (S(sInv448), f2u(1.0 / 448)), 's_mov_b32 %s, %s' % (S(sM448), f2u(-448.0)),
               'v_lshrrev_b32 %s, 1, %s' % (V(t3), V(vJ)), 'v_xor_b32 %s, %s, %s' % (V(t3), V(t3), V(vQ)),
               'v_lshlrev_b32 %s, 4, %s' % (V(t3), V(t3)), 'v_lshl_add_u32 %s, %s, 7, %s' % (V(t3), V(vJ), V(t3)),
               'v_add_u32 %s, %s, %s' % (V(vXr), S(sM0x), V(t3)), 'v_xor_b32 %s, 64, %s' % (V(vXr + 1), V(vXr)),
               'v_and_b32 %s, 3, %s' % (V(vLF), V(vL)), 'v_lshlrev_b32 %s, 2, %s' % (V(vLF), V(vLF)), 'v_add_u32 %s, %d, %s' % (V(vLF), LF, V(vLF)),
               's_lshl_b32 %s, %s, 2' % (S(sG), S(sW)), 's_add_u32 %s, %s, %d' % (S(sG), S(sG), LF), 'v_mov_b32 %s, %s' % (V(vLW), S(sG))]
    wst = ['v_writelane_b32 %s, %s, 0' % (V(vST), S(sR0)), 'v_writelane_b32 %s, %s, 1' % (V(vST), S(sR0 + 2))] if STAMP else []
    if P('WSB', 0): wst += ['s_add_u32 %s, %s, 0x%x' % (S(rWS), S(rWS), P('WSB', 0) << 20), 's_addc_u32 %s, %s, 0' % (S(rWS + 1), S(rWS + 1))]
    sXb = sa(); sWb = sa(); sXs = sa(); sWs = sa(); sM0w = sa(); sW2b = sa()
    vXs = va(2, 1); vW1s = va(); vW2s = va()
    dmaddr = ['s_mul_i32 %s, %s, 896' % (S(sXb), S(sN2))] + sx(sWb, [(sC, 224), (sW, 8 * 3584)])
    dmaddr += ['s_mul_i32 %s, %s, 896' % (S(sM0w), S(sW)), 's_lshl_b32 %s, %s, 1' % (S(sT2), S(sPar)),
          'v_lshrrev_b32 %s, 3, %s' % (V(t0), V(vL)), 'v_mul_u32_u24 %s, 57344, %s' % (V(t0), V(t0)),
          'v_and_b32 %s, 7, %s' % (V(t1), V(vL)), 'v_xor_b32 %s, %s, %s' % (V(t1), V(t1), V(vQ)),
          'v_lshl_add_u32 %s, %s, 4, %s' % (V(vXs), V(t1), V(t0)),
          'v_xor_b32 %s, 64, %s' % (V(vXs + 1), V(vXs)), 'v_add_u32 %s, %d, %s' % (V(vXs + 1), 8 * 57344, V(vXs + 1)),
          'v_mul_u32_u24 %s, 4682, %s' % (V(t0), V(vL)), 'v_lshrrev_b32 %s, 16, %s' % (V(t0), V(t0)),
          'v_mul_u32_u24 %s, 14, %s' % (V(t1), V(t0)), 'v_sub_u32 %s, %s, %s' % (V(t1), V(vL), V(t1)),
          'v_mul_u32_u24 %s, 896, %s' % (V(t2), V(t0)), 'v_lshl_add_u32 %s, %s, 4, %s' % (V(vW2s), V(t1), V(t2)),
          'v_add_u32 %s, %s, %s' % (V(t1), S(sT2), V(t1)), 'v_subrev_u32 %s, 14, %s' % (V(t2), V(t1)), 'v_min_u32 %s, %s, %s' % (V(t1), V(t1), V(t2)),
          'v_mul_u32_u24 %s, 3584, %s' % (V(t2), V(t0)), 'v_lshl_add_u32 %s, %s, 4, %s' % (V(vW1s), V(t1), V(t2))]
    for r_, sz in ((rX, X_SZ), (rW1, W1_SZ), (rW2, W2_SZ)):
        dmaddr += ['s_mov_b32 %s, 0x%x' % (S(r_ + 2), sz), 's_mov_b32 %s, 0x20000' % S(r_ + 3)]
    def stage_loads(s):
        slot = s % 4
        U = [['s_lshl_b32 %s, %s, 7' % (S(sXs), S(sSig))], ['s_add_u32 %s, %s, %s' % (S(sXs), S(sXs), S(sXb))],
             ['s_mul_i32 %s, %s, %d' % (S(sWs), S(sSig), 64 * 3584)], ['s_add_u32 %s, %s, %s' % (S(sWs), S(sWs), S(sWb))]]
        for kk in range(2):
            for e in (2 * kk, 2 * kk + 1):
                if e == 2: U += [['s_add_u32 %s, %s, 917504' % (S(sXs), S(sXs))]]
                U += [['s_add_u32 m0, %s, %d' % (S(sM0x), XR + slot * 16384 + e * 1024)],
                      [('VM st%d buffer_load_dwordx4 %s, %s, %s offen' + NT + ' lds') % (s, V(vXs + (e & 1)), S(rX, 4), S(sXs))]]
            for b2 in range(2):
                if kk or b2: U += [['s_add_u32 %s, %s, %d' % (S(sWs), S(sWs), (4 if b2 else 28) * 3584)]]
                U += [['s_add_u32 m0, %s, %d' % (S(sM0w), W1R + slot * 14336 + (32 * kk + 16 * b2) * 224)],
                      ['s_mov_b32 exec_hi, 0xffffff', ('VM st%d buffer_load_dwordx4 %s, %s, %s offen' + NT + ' lds') % (s, V(vW1s), S(rW1, 4), S(sWs)), 's_mov_b32 exec_hi, -1']]
        U += [['s_add_u32 %s, %s, 1' % (S(sSig), S(sSig))], ['s_cmp_eq_u32 %s, 7' % S(sSig), 's_cselect_b32 %s, 0, %s' % (S(sSig), S(sSig))]]
        return U
    sWp = sa(4, 1); sWm = sa(4, 1); sC4 = sa()
    SLOT = [(0, 0), (0, 1), (0, 2), (1, 0), (1, 1), (1, 2), ('m', 0), (2, 0), (2, 1), (2, 2), (3, 0), ('m', 1), (3, 1), (3, 2)]
    w2tab = ['s_and_b32 %s, %s, 3' % (S(sC4), S(sC))] + sx(sW2b, [(sKS, 448 * 896), (sW, 4 * 896), (sNB, 224)])
    for d in range(4):
        w2tab += ['s_xor_b32 %s, %s, %d' % (S(sT), S(sC4), d), 's_mul_i32 %s, %s, 7' % (S(sT), S(sT)), 's_add_u32 %s, %s, 1' % (S(sT), S(sT)), 's_lshr_b32 %s, %s, 1' % (S(sT), S(sT)),
                  's_mul_i32 %s, %s, 28672' % (S(sT), S(sT)), 's_add_u32 %s, %s, %s' % (S(sWp + d), S(sT), S(sW2b))]
    for mm_ in range(2):
        w2tab += ['s_lshr_b32 %s, %s, 1' % (S(sT), S(sC4)), 's_xor_b32 %s, %s, %d' % (S(sT), S(sT), mm_), 's_mul_i32 %s, %s, %d' % (S(sT), S(sT), 7 * 28672),
                  's_add_u32 %s, %s, %s' % (S(sT), S(sT), S(sW2b)), 's_add_u32 %s, %s, %d' % (S(sT), S(sT), 3 * 28672),
                  's_mul_i32 %s, %s, %d' % (S(sT2), S(sPar), 16 * 896), 's_add_u32 %s, %s, %s' % (S(sWm + 2 * mm_), S(sT), S(sT2)),
                  's_sub_u32 %s, %s, %s' % (S(sT), S(sT), S(sT2)), 's_add_u32 %s, %s, %d' % (S(sWm + 2 * mm_ + 1), S(sT), 16 * 896)]
    def w2_loads(t):
        U = []
        for kk in range(2):
            d, Pp = SLOT[2 * t + kk]
            for b2 in range(2):
                if d == 'm': so = sWm + 2 * Pp + b2
                elif Pp == 0 and b2 == 0: so = sWp + d
                else: so = sWs; U += [['s_add_u32 %s, %s, %d' % (S(sWs), S(sWp + d), (32 * Pp + 16 * b2) * 896)]]
                U += [['s_add_u32 m0, %s, %d' % (S(sM0w), W2B[t] + (32 * kk + 16 * b2) * 224)],
                      ['s_mov_b32 exec_hi, 0xffffff', 'VM w2_%d buffer_load_dwordx4 %s, %s, %s offen lds' % (t, V(vW2s), S(rW2, 4), S(so)), 's_mov_b32 exec_hi, -1']]
        return U
    vbase = va.next; sbase = sa.next
    xread = lambda ks, XF: ['LK a%d_x ds_read_b128 %s, %s offset:%d' % (ks, A(XF[ks & 1][rt], 4), V(vXr + (ks & 1)), XR + ((ks // 2) % 4) * 16384 + rt * 2048) for rt in range(2)]

    L = []; st = mk_st(L, 'M')
    va = Alloc('v', vbase, NV); sa = Alloc('s', sbase, 102); aa = Alloc('a', 0, NA)
    sL2E = sa(2); sAct = sa(4, 1); sPTs = sa(); sJunk = sa(); sFG = sa(); sFP = sa(); sFGp = sa()
    vTr = va(2, 1)
    accb = va(56, 4)
    ACC = [[accb + 28 * rt + 4 * T for T in range(7)] for rt in range(2)]
    fr = va(56, 4)
    OWN = [[va(4) for rt in range(2)] for Pp in range(3)]
    assert OWN[0][0] == fr + 56
    RG = [fr + 8 * k for k in range(9)]
    U0 = [va(4) for d in range(4)]
    vB = [fr + 4 * T for T in range(7)]
    tmpA = fr + 32; c2 = fr + 48
    WF = [[aa(4) for T in range(7)] for b in range(2)]
    XF = [[aa(4) for rt in range(2)] for b in range(2)]
    vBraw = [accb + 2 * T for T in range(7)]; vCP = accb + 16
    L += ['s_load_dwordx2 %s, s[0:1], 40' % S(rBI, 2), 's_load_dwordx2 %s, s[0:1], 56' % S(rGW, 2), 's_load_dwordx2 %s, s[0:1], 64' % S(rOUT, 2), 's_mov_b32 %s, 0x%x' % (S(rOUT + 2), X_SZ), 's_mov_b32 %s, 0x20000' % S(rOUT + 3)]
    L += ['s_getpc_b64 %s' % S(sPC, 2), 'L_pc:', 's_and_b32 %s, %s, 15' % (S(sT), S(sM)), 's_lshl_b32 %s, %s, 11' % (S(sT), S(sT)),
          'v_lshrrev_b32 %s, 4, v0' % V(t1), 'v_lshl_add_u32 %s, %s, 7, %s' % (V(t1), V(t1), S(sT)), 'v_min_u32 %s, L_end-L_pc, %s' % (V(t1), V(t1)),
          'v_mov_b32 %s, %s' % (V(vCP + 1), S(sPC + 1)), 'v_add_co_u32 %s, vcc, %s, %s' % (V(vCP), S(sPC), V(t1)),
          'v_addc_co_u32 %s, vcc, 0, %s, vcc' % (V(vCP + 1), V(vCP + 1)), 'VM pf global_load_dword %s, %s, off' % (V(vPv), V(vCP, 2))]
    if P('CPF', 0): cpf = L.pop()
    L += [i for i in dmaddr if i != 'W2S'] + common2
    L += ['s_mov_b32 %s, 3584' % S(rBI + 2), 's_mov_b32 %s, 0x20000' % S(rBI + 3)]
    L += sx(sG, [(sC, 224), (sPar, 32)]) + sx(sG2, [(sC, 224), (sPar, -192)], 192)
    s0 = flat(stage_loads(0))
    L += s0[:4] + ['s_waitcnt lgkmcnt(0)'] + wst
    st('ka')
    if P('STLB', 4):
        for k, r_ in enumerate((rW1, rX, rBI, rW2)[:P('STLB', 4)]): L += ['s_load_dword %s, %s, 0' % (S(sJunk), S(r_, 2))]
        if P('DIAGT', 0): L += ['s_waitcnt lgkmcnt(0)']; st('tl')
    bl = ['VM bias buffer_load_dwordx2 %s, %s, %s, %s offen offset:%d' % (V(vBraw[T], 2), V(vQ8), S(rBI, 4), S(sG2 if T == 6 else sG), 32 * T if T < 6 else 0) for T in range(7)]
    gwl = ['s_cmp_lg_u32 %s, 15' % S(sC), 's_cbranch_scc1 L_nogw', 'OPT_BEGIN', 'v_lshlrev_b32 %s, 4, %s' % (V(t0), V(vQ)),
           's_mov_b32 %s, 896' % S(rGW + 2), 's_mov_b32 %s, 0x20000' % S(rGW + 3), 's_lshl_b32 %s, %s, 1' % (S(sT3), S(sSig)), 's_add_u32 %s, %s, %s' % (S(sT3), S(sT3), S(sW)),
           's_lshl_b32 %s, %s, 11' % (S(sSpin), S(sW))]
    for a2 in range(4):
        gwl += ['s_add_u32 %s, %s, %d' % (S(sT2), S(sT3), 4 * a2), 's_sub_u32 %s, %s, 14' % (S(sT), S(sT2)), 's_min_u32 %s, %s, %s' % (S(sT2), S(sT2), S(sT)),
                's_lshl_b32 %s, %s, 6' % (S(sT2), S(sT2)), 's_add_u32 m0, %s, %d' % (S(sSpin), FL + a2 * 8192),
                'VM gw buffer_load_dwordx4 %s, %s, %s offen lds' % (V(t0), S(rGW, 4), S(sT2))]
    gwl += ['OPT_END', 'L_nogw:']
    wst_ = []
    for k in range(4):
        wst_ += ['s_lshl_b32 %s, %s, 21' % (S(sT2), S(sW)), 's_add_u32 %s, %s, 0x%x' % (S(sT2), S(sT2), k << 23), 's_load_dword %s, %s, %s' % (S(sJunk), S(rWS, 2), S(sT2))]
    if P('EPL', 0): L += gwl + s0[4:]; st('s0x'); L += bl + epld
    else: L += epld + gwl + s0[4:]; st('s0x'); L += bl
    if P('CPF', 0) == 1: L += [cpf]
    st('s0i')
    if P('WTLB', 0) == 2:
        wst_ = sx(sT2, [(sM, 16 << 16), (sW, 4 << 16)]) + ['s_load_dword %s, %s, %s offset:%d' % (S(sJunk), S(rWS, 2), S(sT2), k << 16) for k in range(4)]
    if P('WTLB', 0): L += wst_
    L += w2tab
    L += ['v_lshrrev_b32 %s, 2, %s' % (V(t3), V(vL)), 'v_mul_u32_u24 %s, 224, %s' % (V(vTr), V(t3)),
          'v_and_b32 %s, 3, %s' % (V(t3), V(vL)), 'v_lshl_add_u32 %s, %s, 3, %s' % (V(vTr), V(t3), V(vTr)), 'v_add_u32 %s, 65536, %s' % (V(vTr + 1), V(vTr)),
          's_mov_b32 %s, %s' % (S(sL2E), f2u(LOG2E)), 's_mov_b32 %s, %s' % (S(sL2E + 1), f2u(LOG2E))]
    for d in range(4):
        L += ['s_xor_b32 %s, %s, %d' % (S(sT2), S(sC), d)] + sx(sAct + d, [(sN2, ACT_N2), (sT2, ACT_C)], ACT_OFF)
    L += sx(sPTs, [(sN2, 16 * PART_B), (sNB, 4 * PART_B), (sKS, PART_B)], PART_OFF)
    L += ['s_add_u32 %s, %s, 7168' % (S(sFG), S(sAct)), 's_add_u32 %s, %s, 7168' % (S(sFP), S(sPTs))]
    if P('FTOUCH', 0): L += ['s_load_dword %s, %s, %s glc' % (S(sJunk), S(rWS, 2), S(r_)) for r_ in (sFG, sFP)]
    L += ['v_add_u32 %s, 4096, %s' % (V(t0), V(vL16)), 'v_add_u32 %s, 8192, %s' % (V(t1), V(vL16)), 'v_add_u32 %s, %d, %s' % (V(t2), OPL, V(vL16))]
    vU = [vL16, t0, t1]
    uaddr = lambda u: (V(vU[u // 4]), (u % 4) * 1024)
    cm2 = c2 + 2; c1 = c2 + 4
    L += ['v_mov_b32 %s, 2.0' % V(c2), 'v_mov_b32 %s, 2.0' % V(c2 + 1), 'v_mov_b32 %s, -2.0' % V(cm2), 'v_mov_b32 %s, -2.0' % V(cm2 + 1),
          'v_mov_b32 %s, 1.0' % V(c1), 'v_mov_b32 %s, 1.0' % V(c1 + 1)]
    L += flat(stage_loads(1)) + ['WAITVM bias']
    bcv = []
    for T in range(7):
        for hh in range(2):
            bcv += ['v_lshlrev_b32 %s, 16, %s' % (V(vB[T] + 2 * hh), V(vBraw[T] + hh)), 'v_and_b32 %s, 0xffff0000, %s' % (V(vB[T] + 2 * hh + 1), V(vBraw[T] + hh))]
    L += ['WAITVM st0 lgkmcnt(0)']
    st('pro')
    def tr_reads(tag, dst, base, order):
        reg = vTr + (base >= 65536); off = base - (65536 if base >= 65536 else 0)
        return ['LK %s_%d ds_read_b64_tr_b16 %s, %s offset:%d' % (tag, T, A(dst[T] + 2 * b, 2), V(reg), off + b * 3584 + T * 32) for T in order for b in range(2)]
    ORD = [6, 0, 1, 2, 3, 4, 5]
    readsA = lambda ks: xread(ks, XF) + tr_reads('a%d' % ks, WF[ks & 1], W1R + ((ks // 2) % 4) * 14336 + (ks & 1) * 7168, ORD)
    mfA = lambda ks: with_waits('a%d' % ks, ORD, lambda T: ['%s %s, %s, %s, %s' % (MFMA, V(ACC[rt][T], 4), A(WF[ks & 1][T], 4), A(XF[ks & 1][rt], 4),
                                                            V(ACC[rt][T], 4) if ks else V(vB[T], 4)) for rt in range(2)], 3)
    L += ['s_barrier']
    st('b0')
    L += readsA(0) + bcv + tagc
    ATM = P('ATM', 0)
    for ks in range(12 if ATM else 14):
        if ks == 13: L += lsig(9, t3)
        elif ks & 1: L += (['WAITVM st1'] if ks == 1 else []) + ['s_barrier']
        if ks & 1: st('b%d' % ((ks + 1) // 2))
        L += sched(mfA(ks), readsA(ks + 1) if ks < 13 else [], [], [])
    mft = lambda Ts: ['%s %s, %s, %s, %s' % (MFMA, V(ACC[rt][T], 4), A(WF[ks & 1][T], 4), A(XF[ks & 1][rt], 4), V(ACC[rt][T], 4)) for ks in (12, 13) for T in Ts for rt in range(2)]
    if ATM:
        r13 = readsA(13); m6 = mft([6]); m01 = mft([0, 1])
        L += r13[:8] + ['WAITLK a12_1'] + weave(m6[:2] + m01[:4], r13[8:]) + lsig(9, t3) + ['WAITLK a13_1'] + m6[2:] + m01[4:] + ['s_waitcnt lgkmcnt(0)']
    L += ['s_setprio %d' % P('PRM', 0)]
    st('mainA')
    def mish(src, dst, E, Aa):
        nv = 4 * len(src)
        h = lambda k: src[k // 4] + (k % 4)
        o = []
        for k in range(0, nv, 2): o += ['v_pk_mul_f32 %s, %s, %s' % (V(E + k, 2), V(h(k), 2), S(sL2E, 2))]
        for k in range(nv): o += ['v_exp_f32 %s, %s' % (V(E + k), V(E + k))]
        for k in range(0, nv, 2): o += ['v_pk_add_f32 %s, %s, %s' % (V(Aa + k, 2), V(E + k, 2), V(c2, 2))]
        for k in range(0, nv, 2): o += ['v_pk_fma_f32 %s, %s, %s, %s' % (V(E + k, 2), V(E + k, 2), V(Aa + k, 2), V(c2, 2))]
        for k in range(nv): o += ['v_rcp_f32 %s, %s' % (V(E + k), V(E + k))]
        for k in range(0, nv, 2): o += ['v_pk_fma_f32 %s, %s, %s, %s' % (V(E + k, 2), V(E + k, 2), V(cm2, 2), V(c1, 2))]
        for k in range(0, nv, 2): o += ['v_pk_mul_f32 %s, %s, %s' % (V(E + k, 2), V(E + k, 2), V(h(k), 2))]
        for k in range(0, nv, 2): o += ['v_cvt_pk_bf16_f32 %s, %s, %s' % (V(dst[k // 2]), V(E + k), V(E + k + 1))]
        return o
    ust = lambda r, u: 'VM act%d buffer_store_dwordx4 %s, %s, %s, %s offen offset:%d %s' % (max(u - 1, 0) // 2, V(r, 4), uaddr(u)[0], S(rWS, 4), S(sAct), uaddr(u)[1], SC)
    L += mish([ACC[0][6], ACC[1][6]], [U0[0] + k for k in range(4)], tmpA, tmpA + 8) + [ust(U0[0], 0)]
    readsC = lambda sl: tr_reads('c%d' % sl, WF[sl & 1], W2B[sl // 2] + (sl & 1) * 7168, range(7))
    for Pp in range(3):
        if ATM and Pp < 2: L += mft([2 * Pp + 2, 2 * Pp + 3])
        for rt in range(2):
            o = OWN[Pp][rt]
            L += mish([ACC[rt][2 * Pp], ACC[rt][2 * Pp + 1]], [o + k for k in range(4)], tmpA, tmpA + 8) + [ust(o, 1 + 2 * Pp + rt)]
    st('mish')
    GR = [sl for sl in range(3, 14) if SLOT[sl][0] != 'm']
    greg = {sl: RG[k] for k, sl in enumerate(GR)}
    uld = lambda tag, r, d, u: ['VM %s buffer_load_dwordx4 %s, %s, %s, %s offen offset:%d %s' % (tag, V(r, 4), uaddr(u)[0], S(rWS, 4), S(sAct + d), uaddr(u)[1], SC)]
    def gload(sl):
        d, Pp = SLOT[sl]
        if d == 'm': return [uld('g%d' % sl, U0[dd], dd, 0) for dd in ((1,) if Pp == 0 else (2, 3))]
        return [uld('g%d' % sl, greg[sl] + 4 * k, d, 1 + 2 * Pp + k) for k in range(2)]
    def gfix(sl):
        d, Pp = SLOT[sl]
        if d != 'm': return []
        fa, fb_ = (0, 1) if Pp == 0 else (2, 3)
        return [['WAITVM g%d' % sl]] + [['v_accvgpr_write_b32 %s, %s' % (A(XF[Pp][rt] + k), V(U0[fb_ if k >= 2 else fa] + 2 * rt + (k & 1)))] for rt in range(2) for k in range(4)]
    def opC(sl, rt):
        if sl < 3: return V(OWN[sl][rt], 4)
        return A(XF[SLOT[sl][1]][rt], 4) if SLOT[sl][0] == 'm' else V(greg[sl] + 4 * rt, 4)
    mfC = lambda sl: with_waits('c%d' % sl, list(range(7)), lambda T: ['%s %s, %s, %s, %s' % (MFMA, V(ACC[rt][T], 4), A(WF[sl & 1][T], 4),
                                opC(sl, rt), V(ACC[rt][T], 4) if sl else '0') for rt in range(2)], 2)
    NS = P('W2SN', 0)
    L += lwait(6, t3) + lwait(9, t3) + readsC(0)
    W2L = P('W2L', 2)
    hi = [u for t in range(W2L + NS, 7) for u in w2_loads(t)]; pst = [99]
    hq = hi if P('OWNDMA', 1) else []
    FGS = P('FGSL', 3)
    L += ['s_setprio %d' % P('PRM2', 0)]
    OL = P('OWNLATE', 0)
    for sl in range(3 - OL):
        if sl == FGS: L += ['WAITVM act2'] + setflag(sFG); st('ack')
        L += sched(mfC(sl), readsC(sl + 1), hq if sl >= P('OWNDMA', 1) - 1 else [], [], P('PACEO', 3), pst)
    st('own0')
    hg = group_vm(hi) if hi else []
    late = 4 * P('W2LATE', 0); hl = hg[len(hg) - late:]; hg = hg[:len(hg) - late]
    n0 = min(len(hg), P('FGPRE', 0)); n1 = max(n0, len(hg) - P('FGTAIL', 6))
    pl_, pc_ = apoll('fg', [(sAct + k, 7168) for k in range(1, 4)], sTag)
    L += flat(hg[:n0])
    if FGS == 3: L += ['WAITVM act2'] + (sflag(sFG) if P('SFG', 1) else setflag(sFG)); st('ack')
    if P('VFG', 0):
        pl_ = ['v_mul_u32_u24 %s, %d, %s' % (V(vPa), FS, V(vQ)), 'v_add_u32 %s, %s, %s' % (V(vPa), S(sFGp), V(vPa))] + poll_issue('pfg'); pc_ = pc_[-1:] + poll_check('pfg')
    L += flat(hg[n0:n1]) + pl_ + flat(hg[n1:])
    st('w2i')
    tl = 6 - P('W2LATE', 0)
    L += pc_
    st('fg')
    hi = [u for sl in range(3, 14) for u in gload(sl)]
    k = P('AFPRE', 7); L += flat(hi[:k])
    for sl in range(3 - OL, 3): L += sched(mfC(sl), readsC(sl + 1), [], [])
    L += ((['WAITVM w2_%d' % tl] + lsig(0, t3) + lwait(0, t3)) if hg else []); k2 = P('AFMID', 13)
    hi = hi[k:k2] + [u for t in range(tl + 1, 7) for u in w2_loads(t)] + hi[k2:]
    if NS: L += lwait(7, t3)
    TM = P('TMAJ', 0)
    WR_ = WF[0] + WF[1]
    tuse = [(sl, T) for T in range(7) for sl in range(14 - TM, 14)]
    n0_ = ((14 - TM) & 1) * 7
    def tread(n):
        sl, T = tuse[n]; base = W2B[sl // 2] + (sl & 1) * 7168
        reg = vTr + (base >= 65536); off = base - (65536 if base >= 65536 else 0)
        return ['LK tm%d ds_read_b64_tr_b16 %s, %s offset:%d' % (n, A(WR_[(n0_ + n) % 14] + 2 * b_, 2), V(reg), off + b_ * 3584 + T * 32) for b_ in range(2)]
    for sl in range(3, 14 - TM):
        lo = gfix(sl + 1) if sl + 1 < 14 else []
        if sl == 13 - TM: lo = [u for q in range(sl + 1, 14) for u in gfix(q)]
        PU = [fr + 4 * k for k in range(11)]
        if PTAG and sl == 12: lo += [['v_mov_b32 %s, %s' % (V(r + 3), S(sTag))] for r in PU]
        tg = 'g%d' % sl
        need = ['g%d' % sl] + [i.split()[1] for i in flat(lo) if i.startswith('WAITVM')]
        while any(i.startswith('VM %s ' % t_) for i in flat(hi) for t_ in need): L += flat([hi.pop(0)])
        if SLOT[sl][0] != 'm': L += ['WAITVM %s' % tg]
        mm = mfC(sl)
        rd = readsC(sl + 1) if sl < 13 - TM else [x for n in range(min(7, len(tuse))) for x in tread(n)]
        L += sched(mm[:4], rd[:4], hi, [], P('PACEC', 2), pst) + sched(mm[4:], rd[4:], lo, hi, P('PACEC', 2), pst) + flat(lo)
        if sl == 3: st('c3')
    assert not hi
    cvp = lambda T: ['v_cvt_pk_bf16_f32 %s, %s, %s' % (V(ACC[0][T] + 2 * rt + hh), V(ACC[rt][T] + 2 * hh), V(ACC[rt][T] + 2 * hh + 1)) for rt in range(2) for hh in range(2)]
    pst_ = lambda T: cvp(T) + ['VM part buffer_store_dwordx4 %s, %s, %s, %s offen offset:%d %s' % (V(ACC[0][T], 4), uaddr(T)[0], S(rWS, 4), S(sPTs), uaddr(T)[1], SC)]
    L += ['s_cmp_eq_u32 %s, %s' % (S(sW), S(sKS)), 's_cselect_b32 %s, 0x%x, %s' % (S(sPTs), OOB, S(sPTs))]
    if TM:
        L += ['WAITVM g13']
        st('tm')
        for T in range(7):
            mm = []; rd = []
            for k in range(TM):
                n = T * TM + k; sl = tuse[n][0]
                pr = ['%s %s, %s, %s, %s' % (MFMA, V(ACC[rt][T], 4), A(WR_[(n0_ + n) % 14], 4), opC(sl, rt), V(ACC[rt][T], 4)) for rt in range(2)]
                if k % 2 == 0: pr[0] = ['WAITLK tm%d' % min(n + 1, T * TM + TM - 1), pr[0]]
                mm += pr
                if n + 7 < len(tuse): rd += tread(n + 7)
            q = pst_(T - 1) if T else []
            L += sched(mm[:3], rd[:3], [], []) + sched(mm[3:], rd[3:], [], q) + q
        L += pst_(6)
    elif not PTAG:
        for T in range(7): L += pst_(T)
    if PTAG:
        assert not TM
        L += ['s_cmp_eq_u32 %s, %s' % (S(sW), S(sKS)), 's_cbranch_scc1 L_ownp', 'OPT_BEGIN']
        for u in range(11):
            g, k = u // 3, u % 3
            for e in range(3):
                D = 3 * k + e; T = 2 * g + D // 4
                if D < 8 and T < 7: L += ['v_cvt_pk_bf16_f32 %s, %s, %s' % (V(PU[u] + e), V(ACC[(D % 4) // 2][T] + 2 * (D % 2)), V(ACC[(D % 4) // 2][T] + 2 * (D % 2) + 1))]
            L += ['VM part buffer_store_dwordx4 %s, %s, %s, %s offen offset:%d %s' % (V(PU[u], 4), uaddr(u)[0], S(rWS, 4), S(sPTs), uaddr(u)[1], SC)]
        L += ['OPT_END', 's_branch L_partd', 'L_ownp:', 's_nop 7']
        for T in range(7): L += cvp(T) + ['ds_write_b128 %s, %s offset:%d' % (V(t2), V(ACC[0][T], 4), T * 1024)]
        L += ['L_partd:']
        st('mainC')
    else:
        st('mainC')
        L += ['s_cmp_lg_u32 %s, %s' % (S(sW), S(sKS)), 's_cbranch_scc1 L_partd']
        L += ['ds_write_b128 %s, %s offset:%d' % (V(t2), V(ACC[0][T], 4), T * 1024) for T in range(7)]
        L += ['L_partd:'] + lsig(5, t3)
    fpo = [sAct, sAct + 1, sAct + 2]; pto = [sWp, sWp + 1, sWp + 2]
    nu = 3 if PTAG else 2
    L += sx(sG, [(sN2f, 16 * PART_B), (sNB, 4 * PART_B)], PART_OFF + 7168) + sx(sG2, [(sN2f, 16 * PART_B), (sNB, 4 * PART_B), (sW, nu * 1024)], PART_OFF)
    L += ['s_cmp_eq_u32 %s, 3' % S(sW), 's_cselect_b32 %s, 0, 2048' % S(sT3)]
    for k in range(3):
        L += ['s_add_u32 %s, %s, %d' % (S(sT2), S(sKS), k + 1), 's_and_b32 %s, %s, 3' % (S(sT2), S(sT2)),
              's_mul_i32 %s, %s, %d' % (S(pto[k]), S(sT2), PART_B), 's_add_u32 %s, %s, %s' % (S(pto[k]), S(pto[k]), S(sG2))]
        L += ['s_add_u32 %s, %s, %s' % (S(fpo[k]), S(pto[k]), S(sT3))] if PTAG else ['s_mul_i32 %s, %s, %d' % (S(fpo[k]), S(sT2), PART_B), 's_add_u32 %s, %s, %s' % (S(fpo[k]), S(fpo[k]), S(sG))]
    L += ['s_lshl_b32 %s, %s, 11' % (S(sT2), S(sW)), 'v_add_u32 %s, %s, %s' % (V(t2), S(sT2), V(t2)),
          's_add_u32 %s, %s, %d' % (S(sT2), S(sM0x), BSL), 'v_add_u32 %s, %s, %s' % (V(t1), S(sT2), V(vL16))]
    PT = [accb + 12 * k for k in range(3)] + [accb + 36]; SU = fr + 44; UT = fr + 60
    ptl = [['VM pt%d buffer_load_dwordx4 %s, %s, %s, %s offen offset:%d %s' % (k, V(PT[k] + 4 * a, 4), V(vL16), S(rWS, 4), S(pto[k]), a * 1024, SC) for a in range(2)] +
           (['VM pt%d buffer_load_dwordx4 %s, %s, %s, %s offen %s' % (k, V(PT[k] + 8, 4), V(vL16), S(rWS, 4), S(fpo[k]), SC)] if PTAG else []) for k in range(3)]
    if PTAG:
        L += ['s_waitcnt vmcnt(%d)' % P('PGATE', 0)] + lsig(5, t3); st('pack')
        L += lwait(5, t3) + flat(ptl) + ['ds_read_b128 %s, %s offset:%d' % (V(PT[3] + 4 * a, 4), V(t2), a * 1024) for a in range(2)] + ['s_waitcnt lgkmcnt(0)']; st('fp')
    else:
        L += ['WAITVM part'] + (sflag(sFP) if P('SFP', 0) else setflag(sFP)); st('pack')
        L += lwait(5, t3) + ['ds_read_b128 %s, %s offset:%d' % (V(PT[3] + 4 * a, 4), V(t2), a * 1024) for a in range(2)]
        if P('VFP', 0):
            L += ['v_mul_u32_u24 %s, %d, %s' % (V(vPa), FS, V(vQ)), 'v_add_u32 %s, %s, %s' % (V(vPa), S(sG), V(vPa))] + poll_issue('pfp') + poll_check('pfp') + ['s_waitcnt lgkmcnt(0)']
        else: L += flat(list(apoll('fp', [(r_, 0) for r_ in fpo], sTag)))
        st('fp')
        L += flat(ptl)
    for D in range(8): L += ['v_lshlrev_b32 %s, 16, %s' % (V(SU + 2 * D), V(PT[3] + D)), 'v_and_b32 %s, 0xffff0000, %s' % (V(SU + 2 * D + 1), V(PT[3] + D))]
    pD = lambda k, D: PT[k] + (4 * (D // 3) + D % 3 if PTAG else D)
    L += ['v_mov_b32 %s, 0x3f80' % V(UT), 'v_mov_b32 %s, 0x3f800000' % V(UT + 1)]
    MF = P('MFIN', 1); AG = fr
    if MF:
        L += sx(sT2, [(sN2f, 896), (sNB, 224), (sW, 64)]) + ['s_add_u32 %s, %s, 917504' % (S(sT3), S(sT2)),
              'v_mul_u32_u24 %s, 57344, %s' % (V(t0), V(vJ)), 'v_add_u32 %s, %s, %s' % (V(t0), V(t0), V(vQ8)),
              'v_add_u32 %s, %s, %s' % (V(t1), S(sM0x), V(vL16)), 's_lshl_b32 %s, %s, 9' % (S(sG), S(sW)), 'v_lshl_add_u32 %s, %s, 3, %s' % (V(t2), V(vL), S(sG))]
        L += lwait(11, t3, vLW) + ['ds_read_b128 %s, %s offset:%d' % (V(AG + 4 * k, 4), V(t1), ASL + k * 1024) for k in range(4)]
        L += ['ds_read_b64 %s, %s offset:%d' % (V(AG + 16, 2), V(t2), GSL)]
    for k in range(3):
        L += flat(dcheck('pt%d' % k, [('v_cmp_ne_u32', S(sTag), V(PT[k] + 4 * u + 3)) for u in range(3)], raw(ptl[k]))) if PTAG else ['WAITVM pt%d' % k]
        for D in range(8):
            if P('DOT', 1):
                L += ['v_dot2_f32_bf16 %s, %s, %s, %s' % (V(SU + 2 * D + e), V(pD(k, D)), V(UT + e), V(SU + 2 * D + e)) for e in range(2)]
            else:
                L += ['v_lshlrev_b32 %s, 16, %s' % (V(UT + 2), V(pD(k, D))), 'v_and_b32 %s, 0xffff0000, %s' % (V(UT + 3), V(pD(k, D))),
                      'v_add_f32 %s, %s, %s' % (V(SU + 2 * D), V(SU + 2 * D), V(UT + 2)), 'v_add_f32 %s, %s, %s' % (V(SU + 2 * D + 1), V(SU + 2 * D + 1), V(UT + 3))]
            if not MF and k == 2 and D in (3, 5, 7): L += ['ds_write_b128 %s, %s offset:%d' % (V(t1), V(SU + 2 * D - 6, 4), (D // 2 - 1) * 1024)]
    if MF:
        L += ['s_waitcnt lgkmcnt(0)']
        for a in range(2):
            if a: L += ['s_cmp_eq_u32 %s, 3' % S(sW), 's_cbranch_scc1 L_mfin']
            for rt in range(2):
                q = 8 * a + 4 * rt
                L += ['v_fma_f32 %s, %s, %s, %s' % (V(SU + q + r), V(SU + q + r), V(AG + 16 + rt), V(AG + q + r)) for r in range(4)]
                L += ['v_cvt_pk_bf16_f32 %s, %s, %s' % (V(SU + q + hh), V(SU + q + 2 * hh), V(SU + q + 2 * hh + 1)) for hh in range(2)]
                L += ['VM out buffer_store_dwordx2 %s, %s, %s, %s offen offset:%d' % (V(SU + q, 2), V(t0), S(rOUT, 4), S(sT3 if rt else sT2), a * 32)]
        L += ['L_mfin:']
    else:
        L += ['s_nop 2', 'ds_write_b128 %s, %s offset:%d' % (V(t1), V(SU + 12, 4), 3072)]
        L += lsig(11, t3)
    finish(L, st, 'M')
    LM = L; nvM = va.hi

    L = ['L_S:']; st = mk_st(L, 'S')
    va = Alloc('v', vbase, NV); sa = Alloc('s', sbase, 102); aa = Alloc('a', 0, NA)
    sCF = sa(); sK1 = sa(); sHF = sa(); sKP = sa(); sRot2 = sa()
    sA1o = sa(); sA1o2 = sa(); sFB = sa(); sA1x = sa(); sDFx = sa(); sPTl2 = sa(); sFA = sa(); sWo = sa(); sDFo = sa(); sB1s = sa(); sB1l = sa(); sGl = sa(); sPTl = sa(); sOut = sa()
    vAmp = va(); vFr = va(); vG = va(2); vG1 = va(2); vA1 = va()
    big = va(NV - ((va.next + 3) // 4 * 4), 4); NB = NV - big
    pa = Alloc('v', big, NV)
    MM = [[[pa(4) for u in range(4)] for t in range(2)] for e in range(2)]
    WRr = [pa(4) for t in range(2)]; WIr = [pa(4) for t in range(2)]
    fb = pa.next
    ACD = [[pa(4) for T in range(2)] for rt in range(2)]
    MR = [[pa(4) for t in range(2)] for kt in range(2)]; MI = [[pa(4) for t in range(2)] for kt in range(2)]
    tmpS = pa(24, 4)
    XF = [[aa(4) for rt in range(2)] for b in range(2)]; FF = [[aa(4) for T in range(2)] for b in range(2)]
    NR = [[aa(4) for u in range(2)] for tn in range(2)]; NI = [[aa(4) for u in range(2)] for tn in range(2)]
    BF = [[XF[0][0] + 8 * a + 4 * u for u in range(2)] for a in range(4)]
    L += ['s_load_dwordx2 %s, s[0:1], %d' % (S(r_, 2), off) for r_, off in ((rWR, 8), (rWI, 16), (rOUT, 64))]
    L += common2 + ['v_add_u32 %s, %d, %s' % (V(vFr), FL, V(vL16)),
          's_lshl_b32 %s, %s, 1' % (S(sRot2), S(sSig)), 's_add_u32 %s, %s, %s' % (S(sRot2), S(sRot2), S(sW)),
          'v_lshlrev_b32 %s, 2, %s' % (V(t0), V(vL)), 'v_add_u32 %s, %d, %s' % (V(t0), LF, V(t0)), 'ds_write_b32 %s, %s' % (V(t0), V(vZero))]
    ta = Alloc('v', big, big + 64)
    cs = ta(8); sn = ta(8); th = ta(8); pk0 = ta(4); pk1 = ta(4); vKdf = ta(); vU = ta(); vD0 = ta(); vFw = vG
    vGW = [ACD[0][0] + 4 * a for a in range(4)]
    def kact(dst, a, tmp):
        return ['s_add_u32 %s, %s, %d' % (S(dst), S(sRot2), 4 * a), 's_sub_u32 %s, %s, 14' % (S(tmp), S(dst)), 's_min_u32 %s, %s, %s' % (S(dst), S(dst), S(tmp))]
    L += ['s_cmp_eq_u32 %s, 15' % S(sC), 's_cbranch_scc1 L_nofg', 'v_lshl_add_u32 %s, %s, 4, %s' % (V(vKdf), S(sC), V(vJ)), 'v_mov_b32 %s, 1.0' % V(vG1),
          'v_cmp_eq_u32 vcc, 0, %s' % V(vKdf), 'v_cndmask_b32 %s, %s, 0.5, vcc' % (V(vG1), V(vG1)),
          'v_cmp_eq_u32 vcc, 224, %s' % V(vKdf), 'v_cndmask_b32 %s, %s, 0.5, vcc' % (V(vG1), V(vG1)),
          'v_cmp_lt_u32 vcc, 224, %s' % V(vKdf), 'v_cndmask_b32 %s, %s, 0, vcc' % (V(vG1), V(vG1)), 'v_cvt_f32_u32 %s, %s' % (V(vKdf), V(vKdf)), 'v_mul_f32 %s, %s, %s' % (V(vU), S(sInv448), V(vKdf)),
          's_lshl_b32 %s, %s, 11' % (S(sT2), S(sW)), 'v_add_u32 %s, %s, %s' % (V(vFw), S(sT2), V(vFr))]
    for a in range(4):
        L += kact(sT2, a, sT3) + [
              'v_lshl_add_u32 %s, %s, 5, %s' % (V(vD0), S(sT2), V(vQ8)), 'v_cvt_f32_u32 %s, %s' % (V(vD0), V(vD0)),
              'v_mul_f32 %s, %s, %s' % (V(t3), V(vKdf), V(vD0)), 'v_mul_f32 %s, %s, %s' % (V(th), S(sInv448), V(t3)),
              'v_floor_f32 %s, %s' % (V(th), V(th)), 'v_fma_f32 %s, %s, %s, %s' % (V(t3), V(th), S(sM448), V(t3)),
              'v_mul_f32 %s, %s, %s' % (V(th), S(sInv448), V(t3))]
        for e in range(1, 8): L += ['v_add_f32 %s, %s, %s' % (V(th + e), V(th + e - 1), V(vU))]
        for e in range(8): L += ['v_cos_f32 %s, %s' % (V(cs + e), V(th + e)), 'v_sin_f32 %s, %s' % (V(sn + e), V(th + e))]
        for e in range(0, 8, 2):
            L += ['v_pk_mul_f32 %s, %s, %s op_sel_hi:[1,0]' % (V(cs + e, 2), V(cs + e, 2), V(vG1, 2)), 'v_pk_mul_f32 %s, %s, %s op_sel_hi:[1,0]' % (V(sn + e, 2), V(sn + e, 2), V(vG1, 2))]
        for e in range(4):
            L += ['v_cvt_pk_bf16_f32 %s, %s, %s' % (V(pk0 + e), V(cs + 2 * e), V(cs + 2 * e + 1)),
                  'v_cvt_pk_bf16_f32 %s, -%s, -%s' % (V(pk1 + e), V(sn + 2 * e), V(sn + 2 * e + 1))]
        L += ['ds_write_b128 %s, %s offset:%d' % (V(vFw), V(pk0, 4), a * 8192), 'ds_write_b128 %s, %s offset:%d' % (V(vFw), V(pk1, 4), a * 8192 + 1024)]
    L += ['L_nofg:']
    L += dmaddr
    for r_, sz in ((rWR, W_SZ), (rWI, W_SZ), (rOUT, X_SZ)):
        L += ['s_mov_b32 %s, 0x%x' % (S(r_ + 2), sz), 's_mov_b32 %s, 0x20000' % S(r_ + 3)]
    L += ['s_add_u32 %s, %s, 2' % (S(sSig), S(sSig)), 's_sub_u32 %s, %s, 7' % (S(sT), S(sSig)), 's_min_u32 %s, %s, %s' % (S(sSig), S(sSig), S(sT))]
    gx = lambda dst, terms, const=0: sx(dst, terms, const, sG2)
    lo1 = ['s_lshr_b32 %s, %s, 1' % (S(sHF), S(sW)), 's_and_b32 %s, %s, 15' % (S(sCF), S(sM)),
           's_lshr_b32 %s, %s, 4' % (S(sKP), S(sM)), 's_lshl_b32 %s, %s, 1' % (S(sG), S(sXc)), 's_add_u32 %s, %s, %s' % (S(sKP), S(sKP), S(sG)),
           's_and_b32 %s, %s, 1' % (S(sK1), S(sW)), 's_lshl_b32 %s, %s, 1' % (S(sG), S(sKP)), 's_add_u32 %s, %s, %s' % (S(sK1), S(sK1), S(sG))]
    lo1 += w2tab + gx(sWo, [(sK1, 450), (sCF, 32), (sHF, 32 * 14400)])
    lo1 += gx(sA1o, [(sI, A1_I), (sC, A1_B), (sW, 1024)], A1_OFF) + gx(sG, [(sN2, 128)], GATE_OFF) + ['s_add_u32 %s, %s, 8192' % (S(sA1x), S(sA1o))]
    lo1 += ['s_cmp_eq_u32 %s, 15' % S(sC), 's_cselect_b32 %s, %s, %s' % (S(sA1o), S(sG), S(sA1o)), 's_cselect_b32 %s, 64, 4096' % S(sG), 's_cselect_b64 vcc, -1, 0',
            's_add_u32 %s, %s, %s' % (S(sA1o2), S(sA1o), S(sG)), 'v_lshlrev_b32 %s, 4, %s' % (V(vA1), V(vQ)), 'v_cndmask_b32 %s, %s, %s, vcc' % (V(vA1), V(vL16), V(vA1))]
    lo1 += gx(sFB, [(sW, 16 * B1_N), (sCF, B1_C)], B1_OFF + 2048) + gx(sPTl2, [(sN2, B1_N), (sC, B1_C)], B1_OFF + 2048)
    lo1 += gx(sFA, [(sI, A1_I), (sC, A1_B), (sW, 128)], A1_OFF + 8192)
    lo1 += ['s_min_u32 %s, %s, 14' % (S(sG), S(sCF))] + gx(sDFo, [(sG, A1_B), (sK1, 256)], A1_OFF)
    lo1 += ['s_lshr_b32 %s, %s, 4' % (S(sG), S(sK1))] + gx(sDFx, [(sG, -4096 + 8), (sDFo, 1)], 8192)
    lo1 += gx(sB1s, [(sCF, B1_C), (sW, 16 * B1_N), (sKP, 128)], B1_OFF) + gx(sB1l, [(sW, 4 * B1_C), (sN2f, B1_N)], B1_OFF)
    lo1 += gx(sGl, [(sN2f, 128)], GATE_OFF) + gx(sPTl, [(sN2f, 16 * PART_B), (sNB, 4 * PART_B), (sW, 3072 if PTAG else 2048)], PART_OFF) + gx(sOut, [(sN2f, 896), (sNB, 224), (sW, 64)])
    sJunk = sSpin
    L += ['s_waitcnt lgkmcnt(0)'] + wst + epld + ['s_load_dword %s, %s, 0' % (S(sJunk), S(r_, 2)) for r_ in (rWR, rWI, rOUT)] + lo1
    if P('FTOUCH', 0): L += ['s_load_dword %s, %s, %s glc' % (S(sJunk), S(rWS, 2), S(r_)) for r_ in (sFA, sPTl2)]
    q_ = tmpS
    lo = [
          'v_mul_u32_u24 %s, %d, %s' % (V(t3), 4 * 14400, V(vQ)), 'v_lshl_add_u32 %s, %s, 1, %s' % (V(t3), V(vJ), V(t3))]
    for t in range(2):
        for r in range(4): lo += ['v_mov_b32 %s, 0' % V(WRr[t] + r), 'v_mov_b32 %s, 0' % V(WIr[t] + r)]
    nlo1 = len(lo)
    vK = [q_, q_ + 1]; vS0 = q_ + 2; vS = q_ + 3; vA = [q_ + 4, q_ + 5]; c_ = [q_ + 6, q_ + 7]; s_ = [q_ + 8, q_ + 9]
    lo += ['v_cvt_f32_u32 %s, %s' % (V(vK[0]), V(vJ)), 'v_mul_f32 %s, %s, %s' % (V(vK[0]), f2u(1.0 / 2048), V(vK[0])),
           'v_add_f32 %s, %s, %s' % (V(vK[1]), f2u(16.0 / 2048), V(vK[0])),
           'v_lshl_add_u32 %s, %s, 8, %s' % (V(vS0), V(vQ), S(sN2)), 'v_cvt_f32_u32 %s, %s' % (V(vS0), V(vS0))]
    for t in range(2):
        for r in range(4):
            lo += ['v_add_f32 %s, %s, %s' % (V(vS), f2u(64.0 * (16 * t + r)), V(vS0))]
            for kt in range(2): lo += ['v_mul_f32 %s, %s, %s' % (V(vA[kt]), V(vK[kt]), V(vS))]
            for kt in range(2): lo += ['v_cos_f32 %s, %s' % (V(c_[kt]), V(vA[kt])), 'v_sin_f32 %s, %s' % (V(s_[kt]), V(vA[kt]))]
            for kt in range(2):
                lo += ['v_cvt_pk_bf16_f32 %s, %s, %s' % (V(MR[kt][t] + r), V(c_[kt]), V(s_[kt])),
                       'v_cvt_pk_bf16_f32 %s, -%s, %s' % (V(MI[kt][t] + r), V(s_[kt]), V(c_[kt]))]
    vI = q_; vN0 = q_ + 1; vAn = q_ + 2; vc = q_ + 4; vs = q_ + 5
    lo += ['v_lshl_add_u32 %s, %s, 5, %s' % (V(vI), S(sHF), V(vJ)), 'v_cvt_f32_u32 %s, %s' % (V(vI), V(vI)), 'v_mul_f32 %s, %s, %s' % (V(vI), f2u(1.0 / 64), V(vI)),
           'v_lshlrev_b32 %s, 2, %s' % (V(vN0), V(vQ)), 'v_cvt_f32_u32 %s, %s' % (V(vN0), V(vN0))]
    prev = []
    for u in range(4):
        for r in range(4):
            k = (4 * u + r) & 1
            lo += ['v_add_f32 %s, %s, %s' % (V(vAn + k), f2u(16.0 * u + r), V(vN0)), 'v_mul_f32 %s, %s, %s' % (V(vAn + k), V(vAn + k), V(vI)),
                   'v_cos_f32 %s, %s' % (V(vc + 2 * k), V(vAn + k)), 'v_sin_f32 %s, %s' % (V(vs + 2 * k), V(vAn + k))] + prev
            cc, ss = V(vc + 2 * k), V(vs + 2 * k)
            rot = [(cc, ss), ('-' + ss, cc), ('-' + cc, '-' + ss), (ss, '-' + cc)]
            prev = ['v_cvt_pk_bf16_f32 %s, %s, %s' % ((V(MM[e][t][u] + r),) + rot[(t * r + e) % 4]) for e in range(2) for t in range(2)]
    lo += prev
    ngen = []
    vSs, vKk, nc, ns, pn = q_, q_ + 2, q_ + 3, q_ + 4, q_ + 5
    ngen += ['v_lshl_add_u32 %s, %s, 6, %s' % (V(vSs), V(vJ), S(sN2f)), 'v_cvt_f32_u32 %s, %s' % (V(vSs), V(vSs)), 'v_mul_f32 %s, %s, %s' % (V(vSs), f2u(1.0 / 2048), V(vSs))]
    for u in range(2):
        for r in range(4):
            ngen += ['v_add_f32 %s, %s, %s' % (V(vKk), f2u(16.0 * u + r), V(vN0)), 'v_mul_f32 %s, %s, %s' % (V(vKk), V(vKk), V(vSs)),
                   'v_cos_f32 %s, %s' % (V(nc), V(vKk)), 'v_sin_f32 %s, %s' % (V(ns), V(vKk))]
            for tn in range(2):
                ng = '-' if (tn and r & 1) else ''; ps = '' if (tn and r & 1) else '-'
                if tn == 0 or r & 1:
                    ngen += ['v_cvt_pk_bf16_f32 %s, %s%s, %s%s' % (V(pn), ng, V(nc), ps, V(ns)), 'v_cvt_pk_bf16_f32 %s, %s%s, %s%s' % (V(pn + 1), ng, V(ns), ng, V(nc))]
                ngen += ['v_accvgpr_write_b32 %s, %s' % (A(NR[tn][u] + r), V(pn)), 'v_accvgpr_write_b32 %s, %s' % (A(NI[tn][u] + r), V(pn + 1))]
    lo += ['s_lshl_b32 %s, %s, 2' % (S(sG), S(sW)), 's_add_u32 %s, %s, %d' % (S(sG), S(sG), XCH),
           'v_lshl_add_u32 %s, %s, 10, %s' % (V(t0), V(vQ), S(sG)), 'v_lshl_add_u32 %s, %s, 4, %s' % (V(t0), V(vJ), V(t0)),
           's_lshl_b32 %s, %s, 10' % (S(sG), S(sW)), 's_add_u32 %s, %s, %d' % (S(sG), S(sG), XCH), 'v_add_u32 %s, %s, %s' % (V(t1), S(sG), V(vL16))]
    pf = sx(sT2, [(sM, 12544), (sKS, 448 * 896), (sW, 25 * 128)]) + [
         'v_lshrrev_b32 %s, 1, %s' % (V(t2), V(vL)), 'v_min_u32 %s, 24, %s' % (V(t2), V(t2)), 'v_lshlrev_b32 %s, 7, %s' % (V(t2), V(t2)),
         'VM pf buffer_load_dword %s, %s, %s, %s offen%s' % (V(vPv), V(t2), S(rW2, 4), S(sT2), NT)]
    pf += sx(sT2, [(sM, 2 * 14400), (sHF, 14400), (sXc, 1800)]) + [
         'v_lshrrev_b32 %s, 3, %s' % (V(t2), V(vL)), 's_and_b32 %s, %s, 1' % (S(sT), S(sW)), 's_lshl_b32 %s, %s, 10' % (S(sT), S(sT)),
         'v_lshl_add_u32 %s, %s, 7, %s' % (V(t2), V(t2), S(sT)), 'v_min_u32 %s, 1796, %s' % (V(t2), V(t2)),
         'VM pf buffer_load_dword %s, %s, %s, %s offen%s' % (V(vPv), V(t2), S(rWR, 4), S(sT2), NT),
         'VM pf buffer_load_dword %s, %s, %s, %s offen%s' % (V(vPv), V(t2), S(rWI, 4), S(sT2), NT)]
    if P('PF2', 1):
        pf = ['s_lshr_b32 %s, %s, 2' % (S(sT3), S(sM)), 's_lshl_b32 %s, %s, 1' % (S(sT3), S(sT3)), 's_and_b32 %s, %s, 1' % (S(sT), S(sM)), 's_add_u32 %s, %s, %s' % (S(sT3), S(sT3), S(sT)),
              's_add_u32 %s, %s, 1' % (S(sG), S(sM)), 's_and_b32 %s, %s, 2' % (S(sG), S(sG)), 's_lshl_b32 %s, %s, 29' % (S(sG), S(sG))]
        pf += sx(sT2, [(sT3, 25088), (sKS, 448 * 896), (sW, 49 * 128), (sG, 1)]) + [
              'v_min_u32 %s, 48, %s' % (V(t2), V(vL)), 'v_lshlrev_b32 %s, 7, %s' % (V(t2), V(t2)),
              'VM pf buffer_load_dword %s, %s, %s, %s offen' % (V(vPv), V(t2), S(rW2, 4), S(sT2))]
        pf += sx(sT2, [(sT3, 4 * 14400), (sW, 14400), (sXc, 1800), (sG, 1)]) + [
              'v_lshrrev_b32 %s, 2, %s' % (V(t2), V(vL)), 'v_lshlrev_b32 %s, 7, %s' % (V(t2), V(t2)), 'v_min_u32 %s, 1796, %s' % (V(t2), V(t2)),
              'VM pf buffer_load_dword %s, %s, %s, %s offen' % (V(vPv), V(t2), S(rWR, 4), S(sT2)),
              'VM pf buffer_load_dword %s, %s, %s, %s offen' % (V(vPv), V(t2), S(rWI, 4), S(sT2))]
    if P('VT', 0):
        pf += ['v_min_u32 %s, 13, %s' % (V(t2), V(vJ)), 'v_lshlrev_b32 %s, 21, %s' % (V(t2), V(t2)), 'VM pf buffer_load_dword %s, %s, %s, 0 offen' % (V(vPv), V(t2), S(rWS, 4))]
    if P('FT2', 1):
        pf += ['s_andn2_b32 %s, %s, 1' % (S(sT3), S(sC)), 'v_bfe_u32 %s, %s, 3, 1' % (V(vG), V(vL))]
        pf += sx(sT2, [(sN2, ACT_N2), (sT3, ACT_C), (sG, 1)], ACT_OFF + 7168) + ['v_mul_u32_u24 %s, %d, %s' % (V(t2), ACT_C, V(vG)),
               'VM pf buffer_load_dword %s, %s, %s, %s offen sc1' % (V(vPv), V(t2), S(rWS, 4), S(sT2))]
        pf += sx(sT2, [(sI, A1_I), (sT3, A1_B), (sW, 128), (sG, 1)], A1_OFF + 8192) + ['v_mul_u32_u24 %s, %d, %s' % (V(t2), A1_B, V(vG)),
               'VM pf buffer_load_dword %s, %s, %s, %s offen sc1' % (V(vPv), V(t2), S(rWS, 4), S(sT2))]
        pf += ['s_andn2_b32 %s, %s, 1' % (S(sT3), S(sNB))] + sx(sT2, [(sN2, 16 * PART_B), (sT3, 4 * PART_B), (sKS, PART_B), (sG, 1)], PART_OFF + 7168) + [
               'v_mul_u32_u24 %s, %d, %s' % (V(t2), 4 * PART_B, V(vG)), 'VM pf buffer_load_dword %s, %s, %s, %s offen sc1' % (V(vPv), V(t2), S(rWS, 4), S(sT2))]
    wl = []
    for t in range(2):
        for r in range(4):
            wl += ['s_add_u32 %s, %s, %d' % (S(sT2), S(sWo), (16 * t + r) * 14400),
                   'VM W buffer_load_short_d16_hi %s, %s, %s, %s offen' % (V(WRr[t] + r), V(t3), S(rWR, 4), S(sT2)),
                   'VM W buffer_load_short_d16_hi %s, %s, %s, %s offen' % (V(WIr[t] + r), V(t3), S(rWI, 4), S(sT2))]
    readsS = lambda ks: xread(ks, XF) + ['LK a%d_f ds_read_b128 %s, %s offset:%d' % (ks, A(FF[ks & 1][T], 4), V(vFr), ks * 2048 + T * 1024) for T in range(2)]
    mfS = lambda ks: ['%s %s, %s, %s, %s' % (MFMA, V(ACD[rt][T], 4), A(XF[ks & 1][rt], 4), A(FF[ks & 1][T], 4), V(ACD[rt][T], 4) if ks else '0') for T in range(2) for rt in range(2)]
    L += lo
    if P('NGPRO', 0): L += ngen; ngen = []
    if P('PFS', 3) == -1: L += pf
    L += ['s_waitcnt lgkmcnt(0)', 's_setprio %d' % P('PRS', 1)] + tagc
    st('pro')
    L += ['s_barrier']
    L += readsS(0)
    ngl = []
    if not P('NGL', 0): ngl = ngen; ngen = []
    lo = ngen; per = (len(lo) + 5) // 6
    ld = []
    for ks in range(14):
        if ks == 0: ld = [setflag(sPTl2)] + group_vm(stage_loads(2)) + ([pf] if P('PFS', 3) == 0 else [])
        if ks & 1:
            s = (ks + 1) // 2
            if s < 7: L += flat(ld) + (['WAITVM st%d' % s] if 2 <= s else []) + ['s_barrier']; ld = []
            if s + 2 <= 6: ld = group_vm(stage_loads(s + 2))
            if s == P('PFS', 3): ld += [pf]
            if s == 6: w01 = group_vm(w2_loads(0) + w2_loads(1)); ld += w01[:P('W2E', 8)]; w01 = w01[P('W2E', 8):]
        if ks == P('WLK', 10): ld += [wl]
        L += ['WAITLK a%d_f' % ks] + weave(mfS(ks), readsS(ks + 1) if ks < 13 else [])
        h = (len(ld) + 1) // 2 if (ks & 1 and P('SPLITLD', 1)) else len(ld)
        L += flat(ld[:h]); ld = ld[h:]
        if ks % 2 == 0 and ks: L += lo[:per]; lo = lo[per:]
    assert not lo
    L += ['s_setprio %d' % P('PRS2', 1)]
    st('mainA')
    PX = [tmpS, tmpS + 4]; DR = [tmpS + 8, tmpS + 12]; DI = [tmpS + 16, tmpS + 20]; XO = [ACD[0][0], ACD[1][0]]
    L += ['s_nop 4', 's_cmp_eq_u32 %s, 15' % S(sC), 's_cbranch_scc1 L_gate']
    for t in range(2):
        for r in range(4): L += ['v_cvt_pk_bf16_f32 %s, %s, %s' % (V(PX[t] + r), V(ACD[t][0] + r), V(ACD[t][1] + r))]
    for t in range(2):
        for kt in range(2):
            L += ['%s %s, %s, %s, %s' % (MFMA, V(DR[kt], 4), V(MR[kt][t], 4), V(PX[t], 4), V(DR[kt], 4) if t else '0'),
                  '%s %s, %s, %s, %s' % (MFMA, V(DI[kt], 4), V(MI[kt][t], 4), V(PX[t], 4), V(DI[kt], 4) if t else '0')]
    for kt in range(2):
        for r in range(4):
            L += ['v_cvt_pk_bf16_f32 %s, %s, %s' % (V(DR[kt] + r), V(DR[kt] + r), V(DI[kt] + r)),
                  'ds_write_b32 %s, %s offset:%d' % (V(t0), V(DR[kt] + r), kt * 4096 + r * 256)]
    L += lsig(1, t0) + lwait(1, t0)
    L += ['ds_read_b128 %s, %s offset:%d' % (V(XO[k], 4), V(t1), k * 4096) for k in range(2)]
    if ATAG:
        XX = ACD[0][1]
        L += ['v_mov_b32 %s, %s' % (V(XX + 1), S(sTag)), 'v_mov_b32 %s, %s' % (V(XX + 3), S(sTag)), 's_waitcnt lgkmcnt(0)']
        for k in range(2): L += ['v_mov_b32 %s, %s' % (V(XX + 2 * k), V(XO[k] + 3)), 'v_mov_b32 %s, %s' % (V(XO[k] + 3), S(sTag))]
        L += ['OPT_BEGIN', 'VM a1x buffer_store_dwordx4 %s, %s, %s, %s offen %s' % (V(XX, 4), V(vL16), S(rWS, 4), S(sA1x), SC), 'OPT_END']
    else: L += ['s_waitcnt lgkmcnt(0)']
    L += ['s_branch L_a1st', 'L_gate:', 's_nop 3']
    for rt in range(2):
        o = XO[rt]
        for r in range(4): L += ['v_mul_f32 %s, %s, %s' % (V(o + r), f2u(LOG2E), V(o + r))]
        for r in range(4): L += ['v_exp_f32 %s, -%s' % (V(o + r), V(o + r))]
        for r in range(4): L += ['v_add_f32 %s, 1.0, %s' % (V(o + r), V(o + r))]
        for r in range(4): L += ['v_rcp_f32 %s, %s' % (V(o + r), V(o + r))]
    L += ['s_nop 0', 'L_a1st:']
    L += ['VM a1 buffer_store_dwordx4 %s, %s, %s, %s offen %s' % (V(XO[k], 4), V(vA1), S(rWS, 4), S(sA1o2 if k else sA1o), SC) for k in range(2)]
    L += ['s_cmp_lg_u32 %s, 15' % S(sC), 's_cbranch_scc1 L_fa', 's_waitcnt vmcnt(0)', 'L_fa:'] + (setflag(sFA) if ATAG else [])
    st('a1st')
    L += ['s_setprio %d' % P('PRW', 1)] + flat(w01) + (wl if P('WLK', 10) == 99 else []) + ['s_setprio %d' % P('PRS2', 1), 'WAITVM w2_1'] + lsig(6, t3) + ([] if ATAG else ['WAITVM a1'] + (sflag(sFA) if P('SFA', 1) else setflag(sFA))) + lwait(9, t3) + (lwait(6, t3) if P('W2SN', 0) >= 2 else [])
    NS = P('W2SN', 0)
    ws_ = group_vm([u for t in range(P('W2L', 2), P('W2L', 2) + NS) for u in w2_loads(t)]) if NS else []
    pb = Alloc('v', fb, NV)
    DF = [pb(4) for u in range(4)]; XRr = [pb(4) for t in range(2)]; XIr = [pb(4) for t in range(2)]; PF = [pb(4) for t in range(4)]
    if ngl: ngl = ['v_lshlrev_b32 %s, 2, %s' % (V(vN0), V(vQ)), 'v_cvt_f32_u32 %s, %s' % (V(vN0), V(vN0))] + ngl
    dfl = []
    for u in range(4):
        dfl += ['s_add_u32 %s, %s, 0x%x' % (S(sT2), S(sDFo), u * 4 * A1_I),
                'VM df buffer_load_dwordx4 %s, %s, %s, %s offen %s' % (V(DF[u], 4), V(vPa), S(rWS, 4), S(sT2), SC)]
        if ATAG: dfl += ['s_add_u32 %s, %s, 0x%x' % (S(sT2), S(sDFx), u * 4 * A1_I),
                'VM df buffer_load_dwordx2 %s, %s, %s, %s offen %s' % (V(PF[0] + 2 * u, 2), V(vPa), S(rWS, 4), S(sT2), SC)]
    L += ['v_mul_u32_u24 %s, %d, %s' % (V(vPa), A1_I, V(vQ)), 'v_lshl_add_u32 %s, %s, 4, %s' % (V(vPa), V(vJ), V(vPa))]
    k1 = P('NGA', 0)
    L += ['s_min_u32 %s, %s, 14' % (S(sT3), S(sCF))] + sx(sT2, [(sT3, A1_B), (sKS, 128), (sW, 4 * A1_I)], A1_OFF + 8192)
    L += ['s_setprio %d' % P('PRW', 1)] + flat(ws_) + ['s_setprio %d' % P('PRS2', 1)] + (['WAITVM a1'] if P('FAW', 1) else []) + flat(list(apoll('fa', [(sT2, k * A1_I) for k in range(4)], sTag))) + lsig(8, t3) + lwait(8, t3) + dfl
    st('fa')
    gp_, gc_ = apoll('gt', [(sG, 0)], sTag)
    gl = ['VM g buffer_load_dword %s, %s, %s, %s offen offset:%d %s' % (V(vG + rt), V(vAmp), S(rWS, 4), S(sGl), rt * 64, SC) for rt in range(2)]
    L += sx(sG, [(sKS, 128), (sI, A1_I)], A1_OFF + 8192 + 15 * A1_B) + gp_ + ngl[k1:] + gc_ + ['v_lshlrev_b32 %s, 2, %s' % (V(vAmp), V(vJ))] + gl
    if NS: L += ['WAITVM w2_%d' % (P('W2L', 2) - 1 + NS)] + lsig(7, t3)
    L += ['s_and_b32 %s, %s, 1' % (S(sT2), S(sW)), 's_lshl_b32 %s, %s, 12' % (S(sT3), S(sT2)), 's_add_u32 %s, %s, %d' % (S(sT3), S(sT3), PXC),
          'v_add_u32 %s, %s, %s' % (V(t1), S(sT3), V(vL16)), 's_lshl_b32 %s, %s, 11' % (S(sT3), S(sHF)), 'v_add_u32 %s, %s, %s' % (V(t0), S(sT3), V(t1)),
          's_lshl_b32 %s, %s, 2' % (S(sT2), S(sT2)), 's_lshl_b32 %s, %s, 12' % (S(sT3), S(sHF)), 's_add_u32 %s, %s, %s' % (S(sT2), S(sT2), S(sT3)),
          's_add_u32 %s, %s, %d' % (S(sT2), S(sT2), BXC),
          'v_lshl_add_u32 %s, %s, 9, %s' % (V(t2), V(vQ), S(sT2)), 'v_lshl_add_u32 %s, %s, 3, %s' % (V(t2), V(vJ), V(t2))]
    if ATAG:
        L += flat(dcheck('df', [('v_cmp_ne_u32', S(sTag), V(r)) for u in range(4) for r in (DF[u] + 3, PF[0] + 2 * u + 1)], raw(dfl)))
        L += ['v_mov_b32 %s, %s' % (V(DF[u] + 3), V(PF[0] + 2 * u)) for u in range(4)]
    else: L += ['WAITVM df']
    st('df')
    TR = PF[2]; TI = PF[3]
    def cmulpk(t):
        o = []
        for r in range(4):
            xr, xi, wr, wi = V(XRr[t] + r), V(XIr[t] + r), V(WRr[t] + r), V(WIr[t] + r)
            o += ['v_mul_f32 %s, %s, %s' % (V(TR + r), xr, wr), 'v_mul_f32 %s, %s, %s' % (V(TI + r), xr, wi),
                  'v_fma_f32 %s, -%s, %s, %s' % (V(TR + r), xi, wi, V(TR + r)), 'v_fma_f32 %s, %s, %s, %s' % (V(TI + r), xi, wr, V(TI + r)),
                  'v_cvt_pk_bf16_f32 %s, %s, %s' % (V(PF[t] + r), V(TI + r), V(TR + r))]
        return o + ['ds_write_b128 %s, %s offset:%d' % (V(t0), V(PF[t], 4), t * 1024)]
    stg = lambda t, e0: [x for u in range(4) for x in
                         ('%s %s, %s, %s, %s' % (MFMA, V(XRr[t], 4), V(MM[e0][t][u], 4), V(DF[u], 4), V(XRr[t], 4) if u else '0'),
                          '%s %s, %s, %s, %s' % (MFMA, V(XIr[t], 4), V(MM[1 - e0][t][u], 4), V(DF[u], 4), V(XIr[t], 4) if u else '0'))]
    cm0 = cmulpk(0); sg1 = stg(1, 0)
    L += stg(0, 0) + sg1[:3] + sched(sg1[3:], [], [], cm0) + cm0 + cmulpk(1) + lsig(2, t3); st('sta')
    L += lwait(2, t3); st('px')
    L += ['ds_read_b128 %s, %s offset:%d' % (V(DF[u], 4), V(t1), u * 1024) for u in range(4)]
    L += ['s_lshl_b32 %s, %s, 11' % (S(sT2), S(sW)), 's_add_u32 %s, %s, %d' % (S(sT2), S(sT2), BXC), 'v_add_u32 %s, %s, %s' % (V(t1), S(sT2), V(vL16)),
          'v_lshrrev_b32 %s, 3, %s' % (V(t0), V(vL)), 'v_and_b32 %s, 7, %s' % (V(t3), V(vL)), 'v_mul_u32_u24 %s, %d, %s' % (V(t0), B1_N, V(t0)),
          'v_lshl_add_u32 %s, %s, 4, %s' % (V(t0), V(t3), V(t0)), 's_add_u32 %s, %s, %d' % (S(sT2), S(sB1s), 8 * B1_N), 's_waitcnt lgkmcnt(0)']
    outb = lambda t: [x for r in range(4) for x in ('v_cvt_pk_bf16_f32 %s, %s, %s' % (V(PF[t] + r), V(XRr[t] + r), V(XIr[t] + r)),
                                                     'ds_write_b32 %s, %s offset:%d' % (V(t2), V(PF[t] + r), t * 2048 + r * 128))]
    ob0 = outb(0); sg1 = stg(1, 1)
    L += stg(0, 1) + sg1[:4] + sched(sg1[4:], [], [], ob0) + ob0 + outb(1) + lsig(3, t3); st('stb')
    L += lwait(3, t3); st('bx')
    L += ['LK bx%d ds_read_b128 %s, %s offset:%d' % (k, V(PF[2 + k], 4), V(t1), k * 1024) for k in range(2)]
    for k in range(2):
        L += ['WAITLK bx%d' % k, 'VM b1 buffer_store_dwordx4 %s, %s, %s, %s offen %s' % (V(PF[2 + k], 4), V(t0), S(rWS, 4), S(sT2 if k else sB1s), SC)]
    st('fft')

    pd = Alloc('v', big, NV)
    GF = [[pd(4) for ct in range(2)] for T in range(15)]
    yb0 = pd.next
    CS = [[pd(2) for r in range(4)] for a in range(2)]
    kR = pd(2); kA = pd(2); vDf = pd(); vUu = pd(); vK0 = pd(); an = pd(4, 1)
    if P('GPK', 0): cheb = lambda d, k, x1, x0: ['v_pk_fma_f32 %s, %s, %s, %s op_sel_hi:[0,1,1] neg_lo:[0,0,1] neg_hi:[0,0,1]' % (V(d, 2), V(k, 2), V(x1, 2), V(x0, 2))]
    else: cheb = lambda d, k, x1, x0: ['v_fma_f32 %s, %s, %s, -%s' % (V(d + hh), V(k), V(x1 + hh), V(x0 + hh)) for hh in range(2)]
    def gen_G(ct):
        o = []
        if ct == 0:
            o += sx(sG, [(sNB, 112), (sW, 32)], 0, sG2) + ['v_add_u32 %s, %s, %s' % (V(vDf), S(sG), V(vJ)), 'v_cvt_f32_u32 %s, %s' % (V(vDf), V(vDf)),
                  'v_lshlrev_b32 %s, 2, %s' % (V(vK0), V(vQ)), 'v_cvt_f32_u32 %s, %s' % (V(vK0), V(vK0))]
        else: o += ['v_add_f32 %s, %s, %s' % (V(vDf), f2u(16.0), V(vDf))]
        o += ['v_mul_f32 %s, %s, %s' % (V(vUu), S(sInv448), V(vDf)), 'v_mul_f32 %s, %s, %s' % (V(an), V(vK0), V(vUu)),
              'v_mul_f32 %s, %s, %s' % (V(t3), f2u(16.0), V(vUu)),
              'v_cos_f32 %s, %s' % (V(kR), V(vUu)), 'v_cos_f32 %s, %s' % (V(kA), V(t3)),
              'v_add_f32 %s, %s, %s' % (V(an + 1), V(an), V(vUu)), 'v_add_f32 %s, %s, %s' % (V(an + 2), V(an), V(t3)), 'v_add_f32 %s, %s, %s' % (V(an + 3), V(an + 1), V(t3)),
              'v_add_f32 %s, %s, %s' % (V(kR), V(kR), V(kR)), 'v_add_f32 %s, %s, %s' % (V(kA), V(kA), V(kA))]
        for a in range(2):
            for r in range(2):
                o += ['v_cos_f32 %s, %s' % (V(CS[a][r]), V(an + 2 * a + r)), 'v_sin_f32 %s, -%s' % (V(CS[a][r] + 1), V(an + 2 * a + r))]
        for r in (2, 3):
            for a in range(2): o += cheb(CS[a][r], kR, CS[a][r - 1], CS[a][r - 2])
        for T in range(15):
            a = T & 1
            if T >= 2: o += [x for r in range(4) for x in cheb(CS[a][r], kA, CS[1 - a][r], CS[a][r])]
            o += ['v_cvt_pk_bf16_f32 %s, %s, %s' % (V(GF[T][ct] + r), V(CS[a][r]), V(CS[a][r] + 1)) for r in range(4)]
        return o
    bfl = [['s_add_u32 %s, %s, 0x%x' % (S(sT2), S(sB1l), a * B1_C)] +
           ['VM bf%d buffer_load_dwordx2 %s, %s, %s, %s offen offset:%d %s' % (a, A(BF[a][u] + 2 * hh, 2), V(t0), S(rWS, 4), S(sT2), u * 1024 + hh * 128, SC)
            for u in range(2) for hh in range(2)] for a in range(4)]
    gg = gen_G(0) + gen_G(1); k0_ = len(gg) * P('FBPOS', 12) // 100
    L += ['v_lshlrev_b32 %s, 8, %s' % (V(t0), V(vQ)), 'v_lshl_add_u32 %s, %s, 3, %s' % (V(t0), V(vJ), V(t0)),
          'v_mul_u32_u24 %s, %d, %s' % (V(vPa), B1_N << P('FBG', 0), V(vJ)), 's_setprio %d' % P('PRG', 0)]
    L += gg[:k0_] + ['WAITVM b1', 's_mov_b64 exec, 0x%x' % ((1 << (16 >> P('FBG', 0))) - 1), 'VM fb buffer_atomic_add %s, %s, %s, %s offen sc1' % (V(vOne), V(vPa), S(rWS, 4), S(sFB)), 's_mov_b64 exec, -1']
    k1_ = len(gg) * P('FBI', 65) // 100; k2_ = len(gg) * P('FBC', 85) // 100
    bp_, bc_ = apoll('fb', [(sFA, 0), (sFA, B1_C), (sFA, 2 * B1_C), (sT3, 0)], sDFx)
    L += ['s_andn2_b32 %s, %s, %d' % (S(sT3), S(sN2f), (1 << P('FBG', 0)) - 1)] + sx(sFA, [(sT3, B1_N), (sW, 4 * B1_C)], B1_OFF + 2048) + ['s_cmp_eq_u32 %s, 3' % S(sW), 's_cselect_b32 %s, %d, %d' % (S(sT3), 0, 1), 's_mul_i32 %s, %s, %d' % (S(sT3), S(sT3), 3 * B1_C),
          's_add_u32 %s, %s, %s' % (S(sT3), S(sT3), S(sFA)), 's_add_u32 %s, %s, 16' % (S(sDFx), S(sTag))]
    st('b1d')
    if P('DIAGB', 0): L += ['s_waitcnt vmcnt(0)']; st('fba')
    L += gg[k0_:k1_] + bp_ + gg[k1_:k2_] + bc_ + flat(bfl); st('fb')
    L += gg[k2_:] + ['s_setprio %d' % P('PRS2', 1)]
    st('gen')
    yb = Alloc('v', yb0, NV)
    YR = [[yb(4) for tn in range(2)] for a in range(2)]; YI = [[yb(4) for tn in range(2)] for a in range(2)]
    L += ['s_lshl_b32 %s, %s, 13' % (S(sT2), S(sW)), 'v_add_u32 %s, %s, %s' % (V(t1), S(sT2), V(vFr))]
    L += ['v_mul_u32_u24 %s, 57344, %s' % (V(t2), V(vJ)), 'v_add_u32 %s, %s, %s' % (V(t2), V(t2), V(vQ8)),
          's_add_u32 %s, %s, %d' % (S(sT2), S(sM0x), BSL), 'v_add_u32 %s, %s, %s' % (V(vA1), S(sT2), V(vL16)), 's_add_u32 %s, %s, 917504' % (S(sT3), S(sOut)), 'WAITVM g']
    for rt in range(2):
        L += ['v_sub_f32 %s, 1.0, %s' % (V(vG1 + rt), V(vG + rt)), 'v_mul_f32 %s, %s, %s' % (V(vG + rt), f2u(2.0 / (2048 * 448)), V(vG + rt))]
    bfck = lambda a: ['WAITVM bf%d' % a]
    step6 = lambda a: ['%s %s, %s, %s, %s' % (MFMA, V(Y[a & 1][tn], 4), A(BF[a][u], 4), A(N[tn][u], 4), V(Y[a & 1][tn], 4) if u else '0')
                       for u in range(2) for tn in range(2) for (Y, N) in ((YR, NR), (YI, NI))]
    def packY(a):
        o = []
        for tn in range(2):
            for r in range(4):
                o += ['v_cvt_pk_bf16_f32 %s, %s, %s' % (V(YR[a & 1][tn] + r), V(YR[a & 1][tn] + r), V(YI[a & 1][tn] + r))]
            o += ['ds_write_b128 %s, %s offset:%d' % (V(t1), V(YR[a & 1][tn], 4), a * 2048 + tn * 1024)]
        return o
    L += bfck(0); st('bf0')
    L += step6(0)
    for a in range(1, 4):
        pk_ = packY(a - 1)
        L += bfck(a) + sched(step6(a), [], [], pk_) + pk_
    L += packY(3) + lsig(4, t3); st('s6a')
    L += lwait(4, t3)
    st('s6')
    NY = 16
    YF = [4 * n for n in range(NY)]
    AC = [[yb0 + 16 + 8 * ct + 4 * rt for rt in range(2)] for ct in range(2)]
    seq = [(T, rt) for T in range(15) for rt in range(2)]
    rdY = lambda n: 'LK y%d ds_read_b128 %s, %s offset:%d' % (n, A(YF[n % NY], 4), V(vFr), seq[n][0] * 2048 + seq[n][1] * 1024)
    LA = 14
    L += [rdY(n) for n in range(LA)]
    for n, (T, rt) in enumerate(seq):
        if n % 2 == 0: L += ['WAITLK y%d' % (n + 1)]
        L += ['%s %s, %s, %s, %s' % (MFMA, V(AC[0][rt], 4), V(GF[T][0], 4), A(YF[n % NY], 4), V(AC[0][rt], 4) if T else '0')]
        if n + LA < len(seq): L += [rdY(n + LA)]
        L += ['%s %s, %s, %s, %s' % (MFMA, V(AC[1][rt], 4), V(GF[T][1], 4), A(YF[n % NY], 4), V(AC[1][rt], 4) if T else '0')]
    st('mainD')
    BS = GF[0][0]
    L += ['v_mul_f32 %s, %s, %s' % (V(AC[a][rt] + r), V(vG + rt), V(AC[a][rt] + r)) for a in range(2) for rt in range(2) for r in range(4)]
    if P('MFIN', 1):
        L += ['v_add_u32 %s, %s, %s' % (V(t1), S(sM0x), V(vL16)), 's_lshl_b32 %s, %s, 9' % (S(sG), S(sW)), 'v_lshl_add_u32 %s, %s, 3, %s' % (V(t2), V(vL), S(sG))]
        L += ['ds_write_b128 %s, %s offset:%d' % (V(t1), V(AC[a][rt], 4), ASL + (2 * a + rt) * 1024) for a in range(2) for rt in range(2)]
        L += ['ds_write_b64 %s, %s offset:%d' % (V(t2), V(vG1, 2), GSL)] + lsig(11, t3) + ['s_cmp_eq_u32 %s, 3' % S(sW), 's_cbranch_scc1 L_w3']
    else:
        L += lwait(11, t3, vLW)
        st('fp')
        L += ['LK bs%d ds_read_b128 %s, %s offset:%d' % (k, V(BS + 4 * k, 4), V(vA1), k * 1024) for k in range(4)]
        for a in range(2):
            for rt in range(2):
                L += ['WAITLK bs%d' % (2 * a + rt)]
                L += ['v_fma_f32 %s, %s, %s, %s' % (V(AC[a][rt] + r), V(BS + 8 * a + 4 * rt + r), V(vG1 + rt), V(AC[a][rt] + r)) for r in range(4)]
                L += ['v_cvt_pk_bf16_f32 %s, %s, %s' % (V(AC[a][rt] + hh), V(AC[a][rt] + 2 * hh), V(AC[a][rt] + 2 * hh + 1)) for hh in range(2)]
                L += ['VM out buffer_store_dwordx2 %s, %s, %s, %s offen offset:%d' % (V(AC[a][rt], 2), V(t2), S(rOUT, 4), S(sT3 if rt else sOut), a * 32)]
            if a == 0: L += ['s_cmp_eq_u32 %s, 3' % S(sW), 's_cbranch_scc1 L_w3']
    L += ['s_branch L_fin', 'L_w3:', 's_cmp_lg_u32 s2, 120', 's_cbranch_scc1 L_fin', 's_mov_b32 %s, 0x%x' % (S(sT2), A1_OFF + 8192 + 15 * A1_B + 3 * A1_I), 's_add_u32 %s, %s, 0x%x' % (S(sT3), S(sT2), 8 * A1_I)] + spoll('ep', [(sT2, 0), (sT2, 4 * A1_I), (sT3, 0), (sT3, 4 * A1_I)], sTag) + ['s_mov_b32 %s, 0x%x' % (S(sT), EP_OFF)] + setflag(sT) + ['L_fin:']
    finish(L, st, 'S')
    LS = L
    if STAMP: open('stamps.txt', 'w').write(' '.join(stamps['M']) + ' / ' + ' '.join(stamps['S']))
    print('role M vgpr', nvM, 'instr', len(LM), ' role S big', NB, 'instr', len(LS), file=sys.stderr)
    if P('HACKACT', 0): LM = [l.replace(' sc1', '') if l.startswith('VM act') else l for l in LM]
    sf = os.environ.get('STF', '').replace('_', ' ')
    if sf:
        rp = lambda l: l.replace(' sc1', ' ' + sf) if (l.startswith('VM ') and 'store_dwordx4' in l) else l
        LM = [rp(l) for l in LM]; LS = [rp(l) for l in LS]
    of = os.environ.get('OUTF', '').replace('_', ' ')
    LM = [l + ' ' + of if l.startswith('VM out') else l for l in LM]; LS = [l + ' ' + of if l.startswith('VM out') else l for l in LS]
    return H + resolve(LM) + resolve(LS) + slow + ['L_end:', 's_endpgm'], NV, NA

def build(path):
    hdr = open('cdna_kernels/%s.s.ref' % NAME).read().split('\n')
    top = [l for l in hdr if l.startswith(';') and '@launch' not in l]
    L, nv, na = build_kernel()
    Pd, nn = pad_hazards(L)
    print('lines', len(Pd), 'nops', nn, file=sys.stderr)
    out = top + ['; @launch grid=(256,1,1) block=(512,1,1) lds=%d' % LDS_SZ, '.amdgcn_target "amdgcn-amd-amdhsa--gfx950"', '.text', '.globl %s' % LABEL]
    out += [('    ' + l if not (l.endswith(':') or l.startswith('.')) else l) for l in Pd]
    out += ['.section .rodata,"a"', '.p2align 6', '.amdhsa_kernel %s' % LABEL,
            '  .amdhsa_next_free_vgpr %d' % (nv + na), '  .amdhsa_next_free_sgpr 102', '  .amdhsa_accum_offset %d' % nv,
            '  .amdhsa_group_segment_fixed_size 0', '  .amdhsa_kernarg_size 88', '  .amdhsa_user_sgpr_count 2',
            '  .amdhsa_user_sgpr_kernarg_segment_ptr 1', '  .amdhsa_system_sgpr_workgroup_id_x 1', '.end_amdhsa_kernel']
    open(path, 'w').write('\n'.join(out) + '\n')

if __name__ == '__main__':
    build(sys.argv[1] if len(sys.argv) > 1 else 'cdna_kernels/%s.s' % NAME)
```

```python
import sys, math, os
from dsl import *

NAME = 'gated_mix__spectral_gfnet__dense_activation_mish__prompt'
LABEL = NAME + '_kernel'
ACT_OFF = 0x0; ACT_C = 7168 + 128; ACT_N2 = 16 * ACT_C
PART_OFF = 0x800000; PTAG = int(os.environ.get('PTAG', 0)); PART_B = 7168 + 128
ATAG = int(os.environ.get('ATAG', 0)); A1_OFF = 0x1400000; PAD = int(os.environ.get('PAD', 1))
A1_B = 8192 + 768; A1_I = 16 * A1_B + 4352 * PAD
B1_N = 2048 + 384 * PAD; B1_C = 64 * B1_N + 4352 * PAD
GATE_OFF = 0x1800000
FS = int(os.environ.get('FS', 128))
FSB = int(os.environ.get('FSB', 16)); FBL = max(128, 16 * FSB)
FG_OFF = 0x1810000; FP_OFF = 0x1850000; FB_OFF = 0x1890000; FA_OFF = 0x18d0000
EP_OFF = 0x1910000
B1_OFF = 0x1920000
WS_END = B1_OFF + 15 * B1_C
FBN = 16 * FS + 384 * PAD
OOB = 0x40000000
X_SZ = 2048 * 896; W_SZ = 2048 * 450; W1_SZ = 448 * 3584; W2_SZ = 1792 * 896
LOG2E = math.log2(math.e)
MFMA = 'v_mfma_f32_16x16x32_bf16'
SC = 'sc1'
NT = ' nt' if int(os.environ.get('LNT', 0)) else ''
XR = 0; W1R = 65536; FL = 122880; XCH = 0; PXC = 40960; BXC = 32768; YL = FL; OPL = 155648; LF = OPL + 7168; BSL = 65536; ASL = 32768; GSL = 30720; LDS_SZ = 163840
NV = 184; NA = 72
W2B = [W1R + 3 * 14336, 49152, W1R, 0, W1R + 14336, W1R + 2 * 14336, 16384]
sX, sWR, sWI, sW1, sB1, sW2, sGW, sOUT, sWS = 16, 18, 20, 24, 26, 28, 30, 32, 34
STAMP = os.environ.get('STAMP', '0') == '1'
TS_OFF = 0x2000000
SPIN_MAX = 500000
P = lambda k, d: int(os.environ.get(k, d))

def srd(L, d, base, size):
    L += ['s_mov_b32 %s, %s' % (S(d), S(base)), 's_mov_b32 %s, %s' % (S(d + 1), S(base + 1)),
          's_mov_b32 %s, 0x%x' % (S(d + 2), size), 's_mov_b32 %s, 0x20000' % S(d + 3)]

def resolve(L):
    out = []; ops = []; cur = None; nopt = 0; lks = []; waited = set()
    for l in L:
        if l == 'OPT_BEGIN': nopt += 1; cur = nopt; continue
        if l == 'OPT_END': cur = None; continue
        if l.startswith('LK '):
            _, tag, ins = l.split(' ', 2); lks.append(tag); out.append(ins); continue
        if l.startswith('ds_'): lks.append('_')
        if l.startswith('WAITLK '):
            tag = l.split(' ')[1]
            idx = max(k for k, o in enumerate(lks) if o == tag)
            out.append('s_waitcnt lgkmcnt(%d)' % min(len(lks) - 1 - idx, 15)); continue
        if l.startswith('VM '):
            _, tag, ins = l.split(' ', 2); assert tag not in waited, tag
            ops.append((tag, cur)); out.append(ins); continue
        if l.startswith('WAITVM '):
            parts = l.split(' ', 2); tag = parts[1]; extra = (' ' + parts[2]) if len(parts) > 2 else ''
            waited.add(tag)
            idx = max(k for k, o in enumerate(ops) if o[0] == tag)
            n = sum(1 for o in ops[idx + 1:] if (o[1] is None or o[1] == cur))
            out.append('s_waitcnt vmcnt(%d)%s' % (min(n, 63), extra)); continue
        assert not (l.startswith('buffer_') or l.startswith('global_')), l
        out.append(l[4:] if l.startswith('RAW ') else l)
    return out

def weave(mm, *streams):
    out = []; idx = [0] * len(streams)
    def put(u): out.extend(u if isinstance(u, list) else [u])
    for m in mm:
        put(m)
        for k, s in enumerate(streams):
            if idx[k] < len(s): put(s[idx[k]]); idx[k] += 1
    for k, s in enumerate(streams):
        for u in s[idx[k]:]: put(u)
    return out

TRANS_OPS = ('v_exp_f32', 'v_rcp_f32', 'v_sin_f32', 'v_cos_f32')
def cost(u):
    c = 0; n = 0
    for i in (u if isinstance(u, list) else [u]):
        if i.endswith(':') or i.startswith('OPT_'): continue
        n += 1
        if i.startswith('VM '): c += 15
        elif i.split()[0] in TRANS_OPS: c += 8
        elif i.startswith('s_') or i.startswith('WAIT'): pass
        else:
            assert not i.startswith('v_pk_'), i
            c += 4
    return c, n
VB = int(os.environ.get('VB', 8))
def sched(mm, rd, hi, lo, pace=1, state=None):
    out = []; rd = list(rd)
    state = state if state is not None else [99]
    def put(u): out.extend(u if isinstance(u, list) else [u])
    for k, m in enumerate(mm):
        put(m)
        state[0] += 1
        vb = VB; sl = 3
        if k + 1 < len(mm) and isinstance(mm[k + 1], list): sl -= len(mm[k + 1]) - 1
        left = len(mm) - k
        q = hi if (hi and (cost(hi[0])[0] < 15 or state[0] >= pace)) else lo
        if q and (cost(q[0])[0] > 4 or cost(q[0])[1] > 2) and len(rd) <= 2 * (left - 1):
            c, n = cost(q[0]); put(q.pop(0)); vb -= c; sl -= n
            if c >= 15: state[0] = 0
        else:
            n = 0 if not rd else (1 if len(rd) <= left else 2)
            for _ in range(n): put(rd.pop(0)); vb -= 4; sl -= 1
        while True:
            done = True
            for q in (hi, lo):
                if q and cost(q[0])[0] <= max(vb, 0) and cost(q[0])[1] <= sl:
                    c, n = cost(q[0]); vb -= c; sl -= n; put(q.pop(0)); done = False; break
            if done: break
    out += rd
    return out

def spread(main, units, start=0, end=None):
    end = len(main) if end is None else end
    out = list(main[:start]); n = len(units); seg = main[start:end]
    for k in range(n):
        out += seg[len(seg) * k // n: len(seg) * (k + 1) // n] if False else []
    pos = [len(seg) * k // n for k in range(n)] if n else []
    ui = 0
    for k, ins in enumerate(seg):
        while ui < n and pos[ui] == k:
            out += units[ui] if isinstance(units[ui], list) else [units[ui]]; ui += 1
        out.append(ins)
    for u in units[ui:]: out += u if isinstance(u, list) else [u]
    return out + list(main[end:])


def build_kernel():
    flat = lambda U: [i for u in U for i in (u if isinstance(u, list) else [u])]
    sa = Alloc('s', 16, 102)
    rX = sa(4); rW1 = sa(4); rW2 = sa(4); rWS = sa(4); rBI = rWR = sa(4); rGW = rWI = sa(4); rOUT = sa(4)
    sT, sT2, sT3, sSpin, sTag, sW, sM = 3, 4, 5, 6, 7, 8, 9
    sPC = 12; sEp = 14; sW8 = 15
    sI = sa(); sC = sa(); sN2 = sa(); sPar = sa(); sKS = sa(); sNB = sa(); sXc = sa(); sSig = sa(); sN2f = sa(); sM0x = sa()
    sInv448 = sa(); sM448 = sa(); sG = sa(); sG2 = sa(); sR0 = sa(4)
    va = Alloc('v', 1, NV)
    vST = va(); vL = va(); vQ = va(); vJ = va(); t0 = va(); t1 = va(); t2 = va(); t3 = va(); vL16 = va(); vZero = va(); vTag = va()
    vXr = va(2, 1); vPa = va(); vPv = va(); vLF = va(); vOne = va(); vQ8 = va()
    npoll = [0]; slow = []
    stamps = {'M': ['r0', 'start'], 'S': ['r0', 'start']}
    def mk_st(L, role):
        def st(name, real=False):
            if not STAMP: return
            if os.environ.get('STSEL') and name not in os.environ['STSEL'].split(','): return
            stamps[role].append(name)
            L.extend(['%s s[10:11]' % ('s_memrealtime' if real else 's_memtime'), 's_waitcnt lgkmcnt(0)',
                      'v_writelane_b32 %s, s10, %d' % (V(vST), len(stamps[role]) - 1)])
        return st
    def poll_issue(tag):
        return ['VM %s buffer_load_dword %s, %s, %s, 0 offen %s' % (tag, V(vPv), V(vPa), S(rWS, 4), SC)]
    def poll_check(tag):
        n = npoll[0]; npoll[0] += 1
        slow.extend(['slow%d:' % n, 's_mov_b32 %s, 0' % S(sSpin), 'slowl%d:' % n, 's_sleep %d' % P('SLP_' + tag, P('SLP', 6)),
                     'buffer_load_dword %s, %s, %s, 0 offen %s' % (V(vPv), V(vPa), S(rWS, 4), SC),
                     's_waitcnt vmcnt(0)', 'v_cmp_ne_u32 vcc, %s, %s' % (S(sTag), V(vPv)), 's_add_u32 %s, %s, 1' % (S(sSpin), S(sSpin)),
                     's_nop 0', 's_cbranch_vccz back%d' % n, 's_cmp_lt_u32 %s, %d' % (S(sSpin), SPIN_MAX),
                     's_cbranch_scc1 slowl%d' % n, 's_branch back%d' % n])
        return ['WAITVM %s' % tag, 'v_cmp_ne_u32 vcc, %s, %s' % (S(sTag), V(vPv)), 's_nop 1', 's_cbranch_vccnz slow%d' % n, 'back%d:' % n]
    sCk = sa(2); sCk2 = sa(2)
    def dcheck(tag, cmps, reload, pre=[]):
        n = npoll[0]; npoll[0] += 1
        test = list(pre)
        for k, (op, s0_, r) in enumerate(cmps):
            d = 'vcc' if k == 0 else S(sCk if k & 1 else sCk2, 2)
            test += ['%s %s, %s, %s' % (op, d, s0_, r)]
            if k >= 2: test += ['s_or_b64 vcc, vcc, %s' % S(sCk2 if k & 1 else sCk, 2)]
        last = len(cmps) - 1
        test += ['s_or_b64 vcc, vcc, %s' % (S(sCk if last & 1 else sCk2, 2) if last else 'vcc')]
        slow.extend(['slow%d:' % n, 's_mov_b32 %s, 0' % S(sSpin), 'slowl%d:' % n, 's_sleep %d' % P('SLP', 4)] + reload + ['s_waitcnt vmcnt(0)'] + test +
                    ['s_cbranch_scc0 back%d' % n, 's_add_u32 %s, %s, 1' % (S(sSpin), S(sSpin)), 's_cmp_lt_u32 %s, %d' % (S(sSpin), SPIN_MAX),
                     's_cbranch_scc1 slowl%d' % n, 's_branch back%d' % n])
        return [['WAITVM %s' % tag]] + [[i] for i in test[:-1]] + [[test[-1], 's_cbranch_scc1 slow%d' % n, 'back%d:' % n]]
    def spoll(name, locs, exp, first=0):
        n = npoll[0]; npoll[0] += 1
        rs = [sCk, sCk + 1, sCk2, sCk2 + 1]
        o = ['s_mov_b32 %s, 0' % S(sSpin), 'sp%d:' % n]
        o += ['s_load_dword %s, %s, %s offset:%d glc' % (S(rs[k]), S(rWS, 2), S(so), im) for k, (so, im) in enumerate(locs)]
        o += ['s_add_u32 %s, %s, 1' % (S(sSpin), S(sSpin)), 's_cmp_ge_u32 %s, %d' % (S(sSpin), SPIN_MAX), 's_cbranch_scc1 spd%d' % n, 's_waitcnt lgkmcnt(0)']
        for k in range(len(locs)):
            o += ['s_xor_b32 %s, %s, %s' % (S(rs[k]), S(rs[k]), S(exp))]
            if k: o += ['s_or_b32 %s, %s, %s' % (S(rs[0]), S(rs[0]), S(rs[k]))]
        o += ['s_cbranch_scc1 sp%d' % n, 'spd%d:' % n, 's_waitcnt lgkmcnt(0)']
        return o
    def apoll(name, locs, exp):
        n = npoll[0]; npoll[0] += 1
        rs = [sCk, sCk + 1, sCk2, sCk2 + 1]
        ld = ['s_load_dword %s, %s, %s offset:%d glc' % (S(rs[k]), S(rWS, 2), S(so), im) for k, (so, im) in enumerate(locs)]
        t = ['s_waitcnt lgkmcnt(0)']
        for k in range(len(locs)):
            t += ['s_xor_b32 %s, %s, %s' % (S(rs[k]), S(rs[k]), S(exp))]
            if k: t += ['s_or_b32 %s, %s, %s' % (S(rs[0]), S(rs[0]), S(rs[k]))]
        slow.extend(['slow%d:' % n, 's_mov_b32 %s, 0' % S(sSpin), 'slowl%d:' % n] + (['s_sleep %d' % P('SSL', 2)] if P('SSL', 2) else []) + ld + t +
                    ['s_cbranch_scc0 back%d' % n, 's_add_u32 %s, %s, 1' % (S(sSpin), S(sSpin)), 's_cmp_lt_u32 %s, %d' % (S(sSpin), SPIN_MAX),
                     's_cbranch_scc1 slowl%d' % n, 's_branch back%d' % n])
        return ld, t + ['s_cbranch_scc1 slow%d' % n, 'back%d:' % n]
    sflag = lambda so: ['s_atomic_swap %s, %s, %s' % (S(sTag), S(rWS, 2), S(so))]
    raw = lambda U: [i.split(' ', 2)[2] if i.startswith('VM ') else i for i in flat(U)]
    def setflag(sOff):
        return ['VM flag buffer_store_dword %s, %s, %s, %s offen %s' % (V(vTag), V(vZero), S(rWS, 4), S(sOff), SC)]
    def lsig(k, vtmp):
        return ['v_lshl_add_u32 %s, %s, 2, %s' % (V(vtmp), S(sW), V(vZero)), 'ds_write_b32 %s, %s offset:%d' % (V(vtmp), V(vOne), LF - 131072 + k * 16)] if False else \
               ['ds_write_b32 %s, %s offset:%d' % (V(vLW), V(vOne), k * 16)]
    def lwait(k, vtmp, reg=None):
        n = npoll[0]; npoll[0] += 1
        return ['lw%d:' % n, 'ds_read_b32 %s, %s offset:%d' % (V(vtmp), V(vLF if reg is None else reg), k * 16), 's_waitcnt lgkmcnt(0)',
                'v_cmp_ne_u32 vcc, 1, %s' % V(vtmp), 's_nop 1', 's_cbranch_vccnz lw%d' % n]
    vLW = va()
    def sx(dst, terms, const=0, tmp=None):
        tmp = sT if tmp is None else tmp
        o = []
        for k, (r, c) in enumerate(terms):
            d = dst if k == 0 else tmp
            if c == 1:
                o += ['s_mov_b32 %s, %s' % (S(d), S(r))] if k == 0 else ['s_add_u32 %s, %s, %s' % (S(dst), S(dst), S(r))]
                continue
            o += ['s_mul_i32 %s, %s, %d' % (S(d), S(r), c)]
            if k: o += ['s_add_u32 %s, %s, %s' % (S(dst), S(dst), S(tmp))]
        if const: o += ['s_add_u32 %s, %s, 0x%x' % (S(dst), S(dst), const)]
        return o
    def group_vm(U):
        out = []; cur = []
        for u in U:
            cur += u
            if any(i.startswith('VM ') for i in u): out.append(cur); cur = []
        if cur: out[-1] += cur
        return out
    def with_waits(tag, order, mk, step=3):
        o = []
        for n, T in enumerate(order):
            ms = mk(T)
            if n % step == 0: ms[0] = ['WAITLK %s_%d' % (tag, order[min(n + step - 1, len(order) - 1)]), ms[0]]
            o += ms
        return o
    tagc = ['s_mul_i32 %s, %s, 0x9e3779b1' % (S(sTag), S(sEp)), 's_add_u32 %s, %s, 0x7f4a7c15' % (S(sTag), S(sTag)), 'v_mov_b32 %s, %s' % (V(vTag), S(sTag))]
    if P('FULLF', 0): tagc += ['v_and_b32 %s, 31, %s' % (V(vZero), V(vL)), 'v_lshlrev_b32 %s, 2, %s' % (V(vZero), V(vZero))]
    epld = ['s_add_u32 %s, %s, 0x%x' % (S(sPC), S(rWS), EP_OFF), 's_addc_u32 %s, %s, 0' % (S(sPC + 1), S(rWS + 1)), 's_load_dword %s, %s, 0' % (S(sEp), S(sPC, 2))]
    def finish(L, st, role):
        if STAMP:
            st('end'); st('r1', True)
            L += ['s_add_u32 s4, %s, 0x%x' % (S(rWS), TS_OFF), 's_addc_u32 s5, %s, 0' % S(rWS + 1), 's_mov_b32 s6, 0x100000', 's_mov_b32 s7, 0x20000',
                  's_lshl_b32 s13, s2, 3', 's_add_u32 s13, s13, %s' % S(sW8), 's_lshl_b32 s13, s13, 8', 'v_lshlrev_b32 %s, 2, %s' % (V(t0), V(vL)),
                  'VM x buffer_store_dword %s, %s, s[4:7], s13 offen' % (V(vST), V(t0))]
            pb_ = os.environ.get('PROBE', '')
            if pb_.startswith(role + ':'):
                k = stamps[role].index(pb_[2:])
                L += ['s_cmp_lg_u32 s13, %d' % ((P('PWG', 45) * 8 + (0 if role == 'M' else 4)) * 256), 's_cbranch_scc1 L_noprobe', 'v_readlane_b32 s16, %s, %d' % (V(vST), k), 'v_readlane_b32 s17, %s, 1' % V(vST), 's_nop 3',
                      's_sub_u32 s16, s16, s17', 's_lshl_b32 s16, s16, 2', 's_add_u32 s16, s16, 10000', 'L_prl:', 's_memtime s[20:21]', 's_waitcnt lgkmcnt(0)',
                      's_sub_u32 s22, s20, s17', 's_cmp_lt_u32 s22, s16', 's_cbranch_scc1 L_prl', 'L_noprobe:']
        L += ['s_endpgm']

    H = ['.p2align 8', '.type %s,@function' % LABEL, '%s:' % LABEL, 's_cmp_ge_u32 s2, 256', 's_cbranch_scc1 L_end']
    for r_, off in ((rX, 0), (rW1, 32), (rWS, 80), (rW2, 48)):
        H += ['s_load_dwordx2 %s, s[0:1], %d' % (S(r_, 2), off)]
    if STAMP: H += ['v_mov_b32 %s, 0' % V(vST), 's_memrealtime %s' % S(sR0, 2), 's_memtime %s' % S(sR0 + 2, 2)]
    H += ['v_and_b32 %s, 63, v0' % V(vL), 'v_lshrrev_b32 %s, 6, v0' % V(t0), 's_lshr_b32 %s, s2, 3' % S(sM), 's_and_b32 %s, s2, 7' % S(sXc),
          'v_readfirstlane_b32 %s, %s' % (S(sW8), V(t0)), 'v_lshrrev_b32 %s, 4, %s' % (V(vQ), V(vL)), 'v_and_b32 %s, 15, v0' % V(vJ),
          's_lshr_b32 %s, %s, 2' % (S(sI), S(sXc)), 's_lshl_b32 %s, %s, 3' % (S(sI), S(sI)),
          's_lshr_b32 %s, %s, 2' % (S(sT3), S(sM)), 's_add_u32 %s, %s, %s' % (S(sI), S(sI), S(sT3)),
          's_and_b32 %s, %s, 3' % (S(sW), S(sW8)),
          's_and_b32 %s, %s, 3' % (S(sKS), S(sXc)), 's_and_b32 %s, %s, 3' % (S(sNB), S(sM)),
          's_lshl_b32 %s, %s, 2' % (S(sC), S(sKS)), 's_add_u32 %s, %s, %s' % (S(sC), S(sC), S(sNB)),
          's_lshl_b32 %s, %s, 2' % (S(sN2f), S(sI)), 's_add_u32 %s, %s, %s' % (S(sN2), S(sN2f), S(sW)),
          's_and_b32 %s, %s, 1' % (S(sPar), S(sC))]
    H += {0: ['s_lshl_b32 %s, %s, 1' % (S(sSig), S(sNB)), 's_add_u32 %s, %s, %s' % (S(sSig), S(sSig), S(sT3)),
              's_sub_u32 %s, %s, 7' % (S(sT), S(sSig)), 's_min_u32 %s, %s, %s' % (S(sSig), S(sSig), S(sT))],
          1: ['s_mov_b32 %s, 0' % S(sSig)],
          2: ['s_add_u32 %s, %s, %s' % (S(sSig), S(sNB), S(sT3)), 's_and_b32 %s, %s, 1' % (S(sSig), S(sSig)), 's_lshl_b32 %s, %s, 2' % (S(sSig), S(sSig))],
          4: ['s_add_u32 %s, %s, %s' % (S(sSig), S(sNB), S(sT3)), 's_and_b32 %s, %s, 3' % (S(sSig), S(sSig)), 's_lshl_b32 %s, %s, 1' % (S(sSig), S(sSig))]}[P('ROT', 0)]
    H += ['s_xor_b32 %s, %s, %d' % (S(sNB), S(sNB), P('NBX', 0)), 's_lshl_b32 %s, %s, 12' % (S(sM0x), S(sW)),
          's_mov_b32 %s, 0x%x' % (S(rWS + 2), WS_END), 's_mov_b32 %s, 0x20000' % S(rWS + 3),
          's_cmp_ge_u32 %s, 4' % S(sW8), 's_cbranch_scc1 L_S']
    common2 = ['v_lshlrev_b32 %s, 4, %s' % (V(vL16), V(vL)), 'v_mov_b32 %s, 0' % V(vZero), 'v_mov_b32 %s, 1' % V(vOne), 'v_lshlrev_b32 %s, 3, %s' % (V(vQ8), V(vQ)),
               's_add_u32 %s, %s, %s' % (S(sN2f), S(sN2f), S(sKS)),
               's_mov_b32 %s, %s' % (S(sInv448), f2u(1.0 / 448)), 's_mov_b32 %s, %s' % (S(sM448), f2u(-448.0)),
               'v_lshrrev_b32 %s, 1, %s' % (V(t3), V(vJ)), 'v_xor_b32 %s, %s, %s' % (V(t3), V(t3), V(vQ)),
               'v_lshlrev_b32 %s, 4, %s' % (V(t3), V(t3)), 'v_lshl_add_u32 %s, %s, 7, %s' % (V(t3), V(vJ), V(t3)),
               'v_add_u32 %s, %s, %s' % (V(vXr), S(sM0x), V(t3)), 'v_xor_b32 %s, 64, %s' % (V(vXr + 1), V(vXr)),
               'v_and_b32 %s, 3, %s' % (V(vLF), V(vL)), 'v_lshlrev_b32 %s, 2, %s' % (V(vLF), V(vLF)), 'v_add_u32 %s, %d, %s' % (V(vLF), LF, V(vLF)),
               's_lshl_b32 %s, %s, 2' % (S(sG), S(sW)), 's_add_u32 %s, %s, %d' % (S(sG), S(sG), LF), 'v_mov_b32 %s, %s' % (V(vLW), S(sG))]
    wst = ['v_writelane_b32 %s, %s, 0' % (V(vST), S(sR0)), 'v_writelane_b32 %s, %s, 1' % (V(vST), S(sR0 + 2))] if STAMP else []
    if P('WSB', 0): wst += ['s_add_u32 %s, %s, 0x%x' % (S(rWS), S(rWS), P('WSB', 0) << 20), 's_addc_u32 %s, %s, 0' % (S(rWS + 1), S(rWS + 1))]
    sXb = sa(); sWb = sa(); sXs = sa(); sWs = sa(); sM0w = sa(); sW2b = sa()
    vXs = va(2, 1); vW1s = va(); vW2s = va()
    dmaddr = ['s_mul_i32 %s, %s, 896' % (S(sXb), S(sN2))] + sx(sWb, [(sC, 224), (sW, 8 * 3584)])
    dmaddr += ['s_mul_i32 %s, %s, 896' % (S(sM0w), S(sW)), 's_lshl_b32 %s, %s, 1' % (S(sT2), S(sPar)),
          'v_lshrrev_b32 %s, 3, %s' % (V(t0), V(vL)), 'v_mul_u32_u24 %s, 57344, %s' % (V(t0), V(t0)),
          'v_and_b32 %s, 7, %s' % (V(t1), V(vL)), 'v_xor_b32 %s, %s, %s' % (V(t1), V(t1), V(vQ)),
          'v_lshl_add_u32 %s, %s, 4, %s' % (V(vXs), V(t1), V(t0)),
          'v_xor_b32 %s, 64, %s' % (V(vXs + 1), V(vXs)), 'v_add_u32 %s, %d, %s' % (V(vXs + 1), 8 * 57344, V(vXs + 1)),
          'v_mul_u32_u24 %s, 4682, %s' % (V(t0), V(vL)), 'v_lshrrev_b32 %s, 16, %s' % (V(t0), V(t0)),
          'v_mul_u32_u24 %s, 14, %s' % (V(t1), V(t0)), 'v_sub_u32 %s, %s, %s' % (V(t1), V(vL), V(t1)),
          'v_mul_u32_u24 %s, 896, %s' % (V(t2), V(t0)), 'v_lshl_add_u32 %s, %s, 4, %s' % (V(vW2s), V(t1), V(t2)),
          'v_add_u32 %s, %s, %s' % (V(t1), S(sT2), V(t1)), 'v_subrev_u32 %s, 14, %s' % (V(t2), V(t1)), 'v_min_u32 %s, %s, %s' % (V(t1), V(t1), V(t2)),
          'v_mul_u32_u24 %s, 3584, %s' % (V(t2), V(t0)), 'v_lshl_add_u32 %s, %s, 4, %s' % (V(vW1s), V(t1), V(t2))]
    for r_, sz in ((rX, X_SZ), (rW1, W1_SZ), (rW2, W2_SZ)):
        dmaddr += ['s_mov_b32 %s, 0x%x' % (S(r_ + 2), sz), 's_mov_b32 %s, 0x20000' % S(r_ + 3)]
    def stage_loads(s):
        slot = s % 4
        U = [['s_lshl_b32 %s, %s, 7' % (S(sXs), S(sSig))], ['s_add_u32 %s, %s, %s' % (S(sXs), S(sXs), S(sXb))],
             ['s_mul_i32 %s, %s, %d' % (S(sWs), S(sSig), 64 * 3584)], ['s_add_u32 %s, %s, %s' % (S(sWs), S(sWs), S(sWb))]]
        for kk in range(2):
            for e in (2 * kk, 2 * kk + 1):
                if e == 2: U += [['s_add_u32 %s, %s, 917504' % (S(sXs), S(sXs))]]
                U += [['s_add_u32 m0, %s, %d' % (S(sM0x), XR + slot * 16384 + e * 1024)],
                      [('VM st%d buffer_load_dwordx4 %s, %s, %s offen' + NT + ' lds') % (s, V(vXs + (e & 1)), S(rX, 4), S(sXs))]]
            for b2 in range(2):
                if kk or b2: U += [['s_add_u32 %s, %s, %d' % (S(sWs), S(sWs), (4 if b2 else 28) * 3584)]]
                U += [['s_add_u32 m0, %s, %d' % (S(sM0w), W1R + slot * 14336 + (32 * kk + 16 * b2) * 224)],
                      ['s_mov_b32 exec_hi, 0xffffff', ('VM st%d buffer_load_dwordx4 %s, %s, %s offen' + NT + ' lds') % (s, V(vW1s), S(rW1, 4), S(sWs)), 's_mov_b32 exec_hi, -1']]
        U += [['s_add_u32 %s, %s, 1' % (S(sSig), S(sSig))], ['s_cmp_eq_u32 %s, 7' % S(sSig), 's_cselect_b32 %s, 0, %s' % (S(sSig), S(sSig))]]
        return U
    sWp = sa(4, 1); sWm = sa(4, 1); sC4 = sa()
    SLOT = [(0, 0), (0, 1), (0, 2), (1, 0), (1, 1), (1, 2), ('m', 0), (2, 0), (2, 1), (2, 2), (3, 0), ('m', 1), (3, 1), (3, 2)]
    w2tab = ['s_and_b32 %s, %s, 3' % (S(sC4), S(sC))] + sx(sW2b, [(sKS, 448 * 896), (sW, 4 * 896), (sNB, 224)])
    for d in range(4):
        w2tab += ['s_xor_b32 %s, %s, %d' % (S(sT), S(sC4), d), 's_mul_i32 %s, %s, 7' % (S(sT), S(sT)), 's_add_u32 %s, %s, 1' % (S(sT), S(sT)), 's_lshr_b32 %s, %s, 1' % (S(sT), S(sT)),
                  's_mul_i32 %s, %s, 28672' % (S(sT), S(sT)), 's_add_u32 %s, %s, %s' % (S(sWp + d), S(sT), S(sW2b))]
    for mm_ in range(2):
        w2tab += ['s_lshr_b32 %s, %s, 1' % (S(sT), S(sC4)), 's_xor_b32 %s, %s, %d' % (S(sT), S(sT), mm_), 's_mul_i32 %s, %s, %d' % (S(sT), S(sT), 7 * 28672),
                  's_add_u32 %s, %s, %s' % (S(sT), S(sT), S(sW2b)), 's_add_u32 %s, %s, %d' % (S(sT), S(sT), 3 * 28672),
                  's_mul_i32 %s, %s, %d' % (S(sT2), S(sPar), 16 * 896), 's_add_u32 %s, %s, %s' % (S(sWm + 2 * mm_), S(sT), S(sT2)),
                  's_sub_u32 %s, %s, %s' % (S(sT), S(sT), S(sT2)), 's_add_u32 %s, %s, %d' % (S(sWm + 2 * mm_ + 1), S(sT), 16 * 896)]
    def w2_loads(t):
        U = []
        for kk in range(2):
            d, Pp = SLOT[2 * t + kk]
            for b2 in range(2):
                if d == 'm': so = sWm + 2 * Pp + b2
                elif Pp == 0 and b2 == 0: so = sWp + d
                else: so = sWs; U += [['s_add_u32 %s, %s, %d' % (S(sWs), S(sWp + d), (32 * Pp + 16 * b2) * 896)]]
                U += [['s_add_u32 m0, %s, %d' % (S(sM0w), W2B[t] + (32 * kk + 16 * b2) * 224)],
                      ['s_mov_b32 exec_hi, 0xffffff', 'VM w2_%d buffer_load_dwordx4 %s, %s, %s offen lds' % (t, V(vW2s), S(rW2, 4), S(so)), 's_mov_b32 exec_hi, -1']]
        return U
    vbase = va.next; sbase = sa.next
    xread = lambda ks, XF: ['LK a%d_x ds_read_b128 %s, %s offset:%d' % (ks, A(XF[ks & 1][rt], 4), V(vXr + (ks & 1)), XR + ((ks // 2) % 4) * 16384 + rt * 2048) for rt in range(2)]

    L = []; st = mk_st(L, 'M')
    va = Alloc('v', vbase, NV); sa = Alloc('s', sbase, 102); aa = Alloc('a', 0, NA)
    sL2E = sa(2); sAct = sa(4, 1); sPTs = sa(); sJunk = sa(); sFG = sa(); sFP = sa(); sFGp = sa()
    vTr = va(2, 1)
    accb = va(56, 4)
    ACC = [[accb + 28 * rt + 4 * T for T in range(7)] for rt in range(2)]
    fr = va(56, 4)
    OWN = [[va(4) for rt in range(2)] for Pp in range(3)]
    assert OWN[0][0] == fr + 56
    RG = [fr + 8 * k for k in range(9)]
    U0 = [va(4) for d in range(4)]
    vB = [fr + 4 * T for T in range(7)]
    tmpA = fr + 32; c2 = fr + 48
    WF = [[aa(4) for T in range(7)] for b in range(2)]
    XF = [[aa(4) for rt in range(2)] for b in range(2)]
    vBraw = [accb + 2 * T for T in range(7)]; vCP = accb + 16
    L += ['s_load_dwordx2 %s, s[0:1], 40' % S(rBI, 2), 's_load_dwordx2 %s, s[0:1], 56' % S(rGW, 2), 's_load_dwordx2 %s, s[0:1], 64' % S(rOUT, 2), 's_mov_b32 %s, 0x%x' % (S(rOUT + 2), X_SZ), 's_mov_b32 %s, 0x20000' % S(rOUT + 3)]
    L += ['s_getpc_b64 %s' % S(sPC, 2), 'L_pc:', 's_and_b32 %s, %s, 15' % (S(sT), S(sM)), 's_lshl_b32 %s, %s, 11' % (S(sT), S(sT)),
          'v_lshrrev_b32 %s, 4, v0' % V(t1), 'v_lshl_add_u32 %s, %s, 7, %s' % (V(t1), V(t1), S(sT)), 'v_min_u32 %s, L_end-L_pc, %s' % (V(t1), V(t1)),
          'v_mov_b32 %s, %s' % (V(vCP + 1), S(sPC + 1)), 'v_add_co_u32 %s, vcc, %s, %s' % (V(vCP), S(sPC), V(t1)),
          'v_addc_co_u32 %s, vcc, 0, %s, vcc' % (V(vCP + 1), V(vCP + 1)), 'VM pf global_load_dword %s, %s, off' % (V(vPv), V(vCP, 2))]
    if P('CPF', 0): cpf = L.pop()
    L += [i for i in dmaddr if i != 'W2S'] + common2
    L += ['s_mov_b32 %s, 3584' % S(rBI + 2), 's_mov_b32 %s, 0x20000' % S(rBI + 3)]
    L += sx(sG, [(sC, 224), (sPar, 32)]) + sx(sG2, [(sC, 224), (sPar, -192)], 192)
    s0 = flat(stage_loads(0))
    L += s0[:4] + ['s_waitcnt lgkmcnt(0)'] + wst
    st('ka')
    if P('STLB', 4):
        for k, r_ in enumerate((rW1, rX, rBI, rW2)[:P('STLB', 4)]): L += ['s_load_dword %s, %s, 0' % (S(sJunk), S(r_, 2))]
        if P('DIAGT', 0): L += ['s_waitcnt lgkmcnt(0)']; st('tl')
    bl = ['VM bias buffer_load_dwordx2 %s, %s, %s, %s offen offset:%d' % (V(vBraw[T], 2), V(vQ8), S(rBI, 4), S(sG2 if T == 6 else sG), 32 * T if T < 6 else 0) for T in range(7)]
    gwl = ['s_cmp_lg_u32 %s, 15' % S(sC), 's_cbranch_scc1 L_nogw', 'OPT_BEGIN', 'v_lshlrev_b32 %s, 4, %s' % (V(t0), V(vQ)),
           's_mov_b32 %s, 896' % S(rGW + 2), 's_mov_b32 %s, 0x20000' % S(rGW + 3), 's_lshl_b32 %s, %s, 1' % (S(sT3), S(sSig)), 's_add_u32 %s, %s, %s' % (S(sT3), S(sT3), S(sW)),
           's_lshl_b32 %s, %s, 11' % (S(sSpin), S(sW))]
    for a2 in range(4):
        gwl += ['s_add_u32 %s, %s, %d' % (S(sT2), S(sT3), 4 * a2), 's_sub_u32 %s, %s, 14' % (S(sT), S(sT2)), 's_min_u32 %s, %s, %s' % (S(sT2), S(sT2), S(sT)),
                's_lshl_b32 %s, %s, 6' % (S(sT2), S(sT2)), 's_add_u32 m0, %s, %d' % (S(sSpin), FL + a2 * 8192),
                'VM gw buffer_load_dwordx4 %s, %s, %s offen lds' % (V(t0), S(rGW, 4), S(sT2))]
    gwl += ['OPT_END', 'L_nogw:']
    wst_ = []
    for k in range(4):
        wst_ += ['s_lshl_b32 %s, %s, 21' % (S(sT2), S(sW)), 's_add_u32 %s, %s, 0x%x' % (S(sT2), S(sT2), k << 23), 's_load_dword %s, %s, %s' % (S(sJunk), S(rWS, 2), S(sT2))]
    if P('EPL', 0): L += gwl + s0[4:]; st('s0x'); L += bl + epld
    else: L += epld + gwl + s0[4:]; st('s0x'); L += bl
    if P('CPF', 0) == 1: L += [cpf]
    st('s0i')
    if P('WTLB', 0) == 2:
        wst_ = sx(sT2, [(sM, 16 << 16), (sW, 4 << 16)]) + ['s_load_dword %s, %s, %s offset:%d' % (S(sJunk), S(rWS, 2), S(sT2), k << 16) for k in range(4)]
    if P('WTLB', 0): L += wst_
    L += w2tab
    L += ['v_lshrrev_b32 %s, 2, %s' % (V(t3), V(vL)), 'v_mul_u32_u24 %s, 224, %s' % (V(vTr), V(t3)),
          'v_and_b32 %s, 3, %s' % (V(t3), V(vL)), 'v_lshl_add_u32 %s, %s, 3, %s' % (V(vTr), V(t3), V(vTr)), 'v_add_u32 %s, 65536, %s' % (V(vTr + 1), V(vTr)),
          's_mov_b32 %s, %s' % (S(sL2E), f2u(LOG2E)), 's_mov_b32 %s, %s' % (S(sL2E + 1), f2u(LOG2E))]
    for d in range(4):
        L += ['s_xor_b32 %s, %s, %d' % (S(sT2), S(sC), d)] + sx(sAct + d, [(sN2, ACT_N2), (sT2, ACT_C)], ACT_OFF)
    L += sx(sPTs, [(sN2, 16 * PART_B), (sNB, 4 * PART_B), (sKS, PART_B)], PART_OFF)
    L += ['s_add_u32 %s, %s, 7168' % (S(sFG), S(sAct)), 's_add_u32 %s, %s, 7168' % (S(sFP), S(sPTs))]
    if P('FTOUCH', 0): L += ['s_load_dword %s, %s, %s glc' % (S(sJunk), S(rWS, 2), S(r_)) for r_ in (sFG, sFP)]
    L += ['v_add_u32 %s, 4096, %s' % (V(t0), V(vL16)), 'v_add_u32 %s, 8192, %s' % (V(t1), V(vL16)), 'v_add_u32 %s, %d, %s' % (V(t2), OPL, V(vL16))]
    vU = [vL16, t0, t1]
    uaddr = lambda u: (V(vU[u // 4]), (u % 4) * 1024)
    cm2 = c2 + 2; c1 = c2 + 4
    L += ['v_mov_b32 %s, 2.0' % V(c2), 'v_mov_b32 %s, 2.0' % V(c2 + 1), 'v_mov_b32 %s, -2.0' % V(cm2), 'v_mov_b32 %s, -2.0' % V(cm2 + 1),
          'v_mov_b32 %s, 1.0' % V(c1), 'v_mov_b32 %s, 1.0' % V(c1 + 1)]
    L += flat(stage_loads(1)) + ['WAITVM bias']
    bcv = []
    for T in range(7):
        for hh in range(2):
            bcv += ['v_lshlrev_b32 %s, 16, %s' % (V(vB[T] + 2 * hh), V(vBraw[T] + hh)), 'v_and_b32 %s, 0xffff0000, %s' % (V(vB[T] + 2 * hh + 1), V(vBraw[T] + hh))]
    L += ['WAITVM st0 lgkmcnt(0)']
    st('pro')
    def tr_reads(tag, dst, base, order):
        reg = vTr + (base >= 65536); off = base - (65536 if base >= 65536 else 0)
        return ['LK %s_%d ds_read_b64_tr_b16 %s, %s offset:%d' % (tag, T, A(dst[T] + 2 * b, 2), V(reg), off + b * 3584 + T * 32) for T in order for b in range(2)]
    ORD = [6, 0, 1, 2, 3, 4, 5]
    readsA = lambda ks: xread(ks, XF) + tr_reads('a%d' % ks, WF[ks & 1], W1R + ((ks // 2) % 4) * 14336 + (ks & 1) * 7168, ORD)
    mfA = lambda ks: with_waits('a%d' % ks, ORD, lambda T: ['%s %s, %s, %s, %s' % (MFMA, V(ACC[rt][T], 4), A(WF[ks & 1][T], 4), A(XF[ks & 1][rt], 4),
                                                            V(ACC[rt][T], 4) if ks else V(vB[T], 4)) for rt in range(2)], 3)
    L += ['s_barrier']
    st('b0')
    L += readsA(0) + bcv + tagc
    ATM = P('ATM', 0)
    for ks in range(12 if ATM else 14):
        if ks == 13: L += lsig(9, t3)
        elif ks & 1: L += (['WAITVM st1'] if ks == 1 else []) + ['s_barrier']
        if ks & 1: st('b%d' % ((ks + 1) // 2))
        L += sched(mfA(ks), readsA(ks + 1) if ks < 13 else [], [], [])
    mft = lambda Ts: ['%s %s, %s, %s, %s' % (MFMA, V(ACC[rt][T], 4), A(WF[ks & 1][T], 4), A(XF[ks & 1][rt], 4), V(ACC[rt][T], 4)) for ks in (12, 13) for T in Ts for rt in range(2)]
    if ATM:
        r13 = readsA(13); m6 = mft([6]); m01 = mft([0, 1])
        L += r13[:8] + ['WAITLK a12_1'] + weave(m6[:2] + m01[:4], r13[8:]) + lsig(9, t3) + ['WAITLK a13_1'] + m6[2:] + m01[4:] + ['s_waitcnt lgkmcnt(0)']
    L += ['s_setprio %d' % P('PRM', 0)]
    st('mainA')
    def mish(src, dst, E, Aa):
        nv = 4 * len(src)
        h = lambda k: src[k // 4] + (k % 4)
        o = []
        for k in range(0, nv, 2): o += ['v_pk_mul_f32 %s, %s, %s' % (V(E + k, 2), V(h(k), 2), S(sL2E, 2))]
        for k in range(nv): o += ['v_exp_f32 %s, %s' % (V(E + k), V(E + k))]
        for k in range(0, nv, 2): o += ['v_pk_add_f32 %s, %s, %s' % (V(Aa + k, 2), V(E + k, 2), V(c2, 2))]
        for k in range(0, nv, 2): o += ['v_pk_fma_f32 %s, %s, %s, %s' % (V(E + k, 2), V(E + k, 2), V(Aa + k, 2), V(c2, 2))]
        for k in range(nv): o += ['v_rcp_f32 %s, %s' % (V(E + k), V(E + k))]
        for k in range(0, nv, 2): o += ['v_pk_fma_f32 %s, %s, %s, %s' % (V(E + k, 2), V(E + k, 2), V(cm2, 2), V(c1, 2))]
        for k in range(0, nv, 2): o += ['v_pk_mul_f32 %s, %s, %s' % (V(E + k, 2), V(E + k, 2), V(h(k), 2))]
        for k in range(0, nv, 2): o += ['v_cvt_pk_bf16_f32 %s, %s, %s' % (V(dst[k // 2]), V(E + k), V(E + k + 1))]
        return o
    ust = lambda r, u: 'VM act%d buffer_store_dwordx4 %s, %s, %s, %s offen offset:%d %s' % (max(u - 1, 0) // 2, V(r, 4), uaddr(u)[0], S(rWS, 4), S(sAct), uaddr(u)[1], SC)
    L += mish([ACC[0][6], ACC[1][6]], [U0[0] + k for k in range(4)], tmpA, tmpA + 8) + [ust(U0[0], 0)]
    readsC = lambda sl: tr_reads('c%d' % sl, WF[sl & 1], W2B[sl // 2] + (sl & 1) * 7168, range(7))
    for Pp in range(3):
        if ATM and Pp < 2: L += mft([2 * Pp + 2, 2 * Pp + 3])
        for rt in range(2):
            o = OWN[Pp][rt]
            L += mish([ACC[rt][2 * Pp], ACC[rt][2 * Pp + 1]], [o + k for k in range(4)], tmpA, tmpA + 8) + [ust(o, 1 + 2 * Pp + rt)]
    st('mish')
    GR = [sl for sl in range(3, 14) if SLOT[sl][0] != 'm']
    greg = {sl: RG[k] for k, sl in enumerate(GR)}
    uld = lambda tag, r, d, u: ['VM %s buffer_load_dwordx4 %s, %s, %s, %s offen offset:%d %s' % (tag, V(r, 4), uaddr(u)[0], S(rWS, 4), S(sAct + d), uaddr(u)[1], SC)]
    def gload(sl):
        d, Pp = SLOT[sl]
        if d == 'm': return [uld('g%d' % sl, U0[dd], dd, 0) for dd in ((1,) if Pp == 0 else (2, 3))]
        return [uld('g%d' % sl, greg[sl] + 4 * k, d, 1 + 2 * Pp + k) for k in range(2)]
    def gfix(sl):
        d, Pp = SLOT[sl]
        if d != 'm': return []
        fa, fb_ = (0, 1) if Pp == 0 else (2, 3)
        return [['WAITVM g%d' % sl]] + [['v_accvgpr_write_b32 %s, %s' % (A(XF[Pp][rt] + k), V(U0[fb_ if k >= 2 else fa] + 2 * rt + (k & 1)))] for rt in range(2) for k in range(4)]
    def opC(sl, rt):
        if sl < 3: return V(OWN[sl][rt], 4)
        return A(XF[SLOT[sl][1]][rt], 4) if SLOT[sl][0] == 'm' else V(greg[sl] + 4 * rt, 4)
    mfC = lambda sl: with_waits('c%d' % sl, list(range(7)), lambda T: ['%s %s, %s, %s, %s' % (MFMA, V(ACC[rt][T], 4), A(WF[sl & 1][T], 4),
                                opC(sl, rt), V(ACC[rt][T], 4) if sl else '0') for rt in range(2)], 2)
    NS = P('W2SN', 0)
    L += lwait(6, t3) + lwait(9, t3) + readsC(0)
    W2L = P('W2L', 2)
    hi = [u for t in range(W2L + NS, 7) for u in w2_loads(t)]; pst = [99]
    hq = hi if P('OWNDMA', 1) else []
    FGS = P('FGSL', 3)
    L += ['s_setprio %d' % P('PRM2', 0)]
    OL = P('OWNLATE', 0)
    for sl in range(3 - OL):
        if sl == FGS: L += ['WAITVM act2'] + setflag(sFG); st('ack')
        L += sched(mfC(sl), readsC(sl + 1), hq if sl >= P('OWNDMA', 1) - 1 else [], [], P('PACEO', 3), pst)
    st('own0')
    hg = group_vm(hi) if hi else []
    late = 4 * P('W2LATE', 0); hl = hg[len(hg) - late:]; hg = hg[:len(hg) - late]
    n0 = min(len(hg), P('FGPRE', 0)); n1 = max(n0, len(hg) - P('FGTAIL', 6))
    pl_, pc_ = apoll('fg', [(sAct + k, 7168) for k in range(1, 4)], sTag)
    L += flat(hg[:n0])
    if FGS == 3: L += ['WAITVM act2'] + (sflag(sFG) if P('SFG', 1) else setflag(sFG)); st('ack')
    if P('VFG', 0):
        pl_ = ['v_mul_u32_u24 %s, %d, %s' % (V(vPa), FS, V(vQ)), 'v_add_u32 %s, %s, %s' % (V(vPa), S(sFGp), V(vPa))] + poll_issue('pfg'); pc_ = pc_[-1:] + poll_check('pfg')
    L += flat(hg[n0:n1]) + pl_ + flat(hg[n1:])
    st('w2i')
    tl = 6 - P('W2LATE', 0)
    L += pc_
    st('fg')
    hi = [u for sl in range(3, 14) for u in gload(sl)]
    k = P('AFPRE', 9); L += flat(hi[:k])
    for sl in range(3 - OL, 3): L += sched(mfC(sl), readsC(sl + 1), [], [])
    L += ((['WAITVM w2_%d' % tl] + lsig(0, t3) + lwait(0, t3)) if hg else []); k2 = P('AFMID', 13)
    hi = hi[k:k2] + [u for t in range(tl + 1, 7) for u in w2_loads(t)] + hi[k2:]
    if NS: L += lwait(7, t3)
    TM = P('TMAJ', 4)
    WR_ = WF[0] + WF[1]
    tuse = [(sl, T) for T in range(7) for sl in range(14 - TM, 14)]
    n0_ = ((14 - TM) & 1) * 7
    def tread(n):
        sl, T = tuse[n]; base = W2B[sl // 2] + (sl & 1) * 7168
        reg = vTr + (base >= 65536); off = base - (65536 if base >= 65536 else 0)
        return ['LK tm%d ds_read_b64_tr_b16 %s, %s offset:%d' % (n, A(WR_[(n0_ + n) % 14] + 2 * b_, 2), V(reg), off + b_ * 3584 + T * 32) for b_ in range(2)]
    for sl in range(3, 14 - TM):
        lo = gfix(sl + 1) if sl + 1 < 14 else []
        if sl == 13 - TM: lo = [u for q in range(sl + 1, 14) for u in gfix(q)]
        PU = [fr + 4 * k for k in range(11)]
        if PTAG and sl == 12: lo += [['v_mov_b32 %s, %s' % (V(r + 3), S(sTag))] for r in PU]
        tg = 'g%d' % sl
        need = ['g%d' % sl] + [i.split()[1] for i in flat(lo) if i.startswith('WAITVM')]
        while any(i.startswith('VM %s ' % t_) for i in flat(hi) for t_ in need): L += flat([hi.pop(0)])
        if SLOT[sl][0] != 'm': L += ['WAITVM %s' % tg]
        mm = mfC(sl)
        rd = readsC(sl + 1) if sl < 13 - TM else [x for n in range(min(7, len(tuse))) for x in tread(n)]
        L += sched(mm[:4], rd[:4], hi, [], P('PACEC', 2), pst) + sched(mm[4:], rd[4:], lo, hi, P('PACEC', 2), pst) + flat(lo)
        if sl == 3: st('c3')
    assert not hi
    cvp = lambda T: ['v_cvt_pk_bf16_f32 %s, %s, %s' % (V(ACC[0][T] + 2 * rt + hh), V(ACC[rt][T] + 2 * hh), V(ACC[rt][T] + 2 * hh + 1)) for rt in range(2) for hh in range(2)]
    pst_ = lambda T: cvp(T) + ['VM part buffer_store_dwordx4 %s, %s, %s, %s offen offset:%d %s' % (V(ACC[0][T], 4), uaddr(T)[0], S(rWS, 4), S(sPTs), uaddr(T)[1], SC)]
    L += ['s_cmp_eq_u32 %s, %s' % (S(sW), S(sKS)), 's_cselect_b32 %s, 0x%x, %s' % (S(sPTs), OOB, S(sPTs))]
    if TM:
        L += ['WAITVM g13']
        st('tm')
        for T in range(7):
            mm = []; rd = []
            for k in range(TM):
                n = T * TM + k; sl = tuse[n][0]
                pr = ['%s %s, %s, %s, %s' % (MFMA, V(ACC[rt][T], 4), A(WR_[(n0_ + n) % 14], 4), opC(sl, rt), V(ACC[rt][T], 4)) for rt in range(2)]
                if k % 2 == 0: pr[0] = ['WAITLK tm%d' % min(n + 1, T * TM + TM - 1), pr[0]]
                mm += pr
                if n + 7 < len(tuse): rd += tread(n + 7)
            q = pst_(T - 1) if T else []
            L += sched(mm[:3], rd[:3], [], []) + sched(mm[3:], rd[3:], [], q) + q
        L += pst_(6)
    elif not PTAG:
        for T in range(7): L += pst_(T)
    if PTAG:
        assert not TM
        L += ['s_cmp_eq_u32 %s, %s' % (S(sW), S(sKS)), 's_cbranch_scc1 L_ownp', 'OPT_BEGIN']
        for u in range(11):
            g, k = u // 3, u % 3
            for e in range(3):
                D = 3 * k + e; T = 2 * g + D // 4
                if D < 8 and T < 7: L += ['v_cvt_pk_bf16_f32 %s, %s, %s' % (V(PU[u] + e), V(ACC[(D % 4) // 2][T] + 2 * (D % 2)), V(ACC[(D % 4) // 2][T] + 2 * (D % 2) + 1))]
            L += ['VM part buffer_store_dwordx4 %s, %s, %s, %s offen offset:%d %s' % (V(PU[u], 4), uaddr(u)[0], S(rWS, 4), S(sPTs), uaddr(u)[1], SC)]
        L += ['OPT_END', 's_branch L_partd', 'L_ownp:', 's_nop 7']
        for T in range(7): L += cvp(T) + ['ds_write_b128 %s, %s offset:%d' % (V(t2), V(ACC[0][T], 4), T * 1024)]
        L += ['L_partd:']
        st('mainC')
    else:
        st('mainC')
        L += ['s_cmp_lg_u32 %s, %s' % (S(sW), S(sKS)), 's_cbranch_scc1 L_partd']
        L += ['ds_write_b128 %s, %s offset:%d' % (V(t2), V(ACC[0][T], 4), T * 1024) for T in range(7)]
        L += ['L_partd:'] + lsig(5, t3)
    fpo = [sAct, sAct + 1, sAct + 2]; pto = [sWp, sWp + 1, sWp + 2]
    nu = 3 if PTAG else 2
    L += sx(sG, [(sN2f, 16 * PART_B), (sNB, 4 * PART_B)], PART_OFF + 7168) + sx(sG2, [(sN2f, 16 * PART_B), (sNB, 4 * PART_B), (sW, nu * 1024)], PART_OFF)
    L += ['s_cmp_eq_u32 %s, 3' % S(sW), 's_cselect_b32 %s, 0, 2048' % S(sT3)]
    for k in range(3):
        L += ['s_add_u32 %s, %s, %d' % (S(sT2), S(sKS), k + 1), 's_and_b32 %s, %s, 3' % (S(sT2), S(sT2)),
              's_mul_i32 %s, %s, %d' % (S(pto[k]), S(sT2), PART_B), 's_add_u32 %s, %s, %s' % (S(pto[k]), S(pto[k]), S(sG2))]
        L += ['s_add_u32 %s, %s, %s' % (S(fpo[k]), S(pto[k]), S(sT3))] if PTAG else ['s_mul_i32 %s, %s, %d' % (S(fpo[k]), S(sT2), PART_B), 's_add_u32 %s, %s, %s' % (S(fpo[k]), S(fpo[k]), S(sG))]
    L += ['s_lshl_b32 %s, %s, 11' % (S(sT2), S(sW)), 'v_add_u32 %s, %s, %s' % (V(t2), S(sT2), V(t2)),
          's_add_u32 %s, %s, %d' % (S(sT2), S(sM0x), BSL), 'v_add_u32 %s, %s, %s' % (V(t1), S(sT2), V(vL16))]
    PT = [accb + 12 * k for k in range(3)] + [accb + 36]; SU = fr + 44; UT = fr + 60
    ptl = [['VM pt%d buffer_load_dwordx4 %s, %s, %s, %s offen offset:%d %s' % (k, V(PT[k] + 4 * a, 4), V(vL16), S(rWS, 4), S(pto[k]), a * 1024, SC) for a in range(2)] +
           (['VM pt%d buffer_load_dwordx4 %s, %s, %s, %s offen %s' % (k, V(PT[k] + 8, 4), V(vL16), S(rWS, 4), S(fpo[k]), SC)] if PTAG else []) for k in range(3)]
    if PTAG:
        L += ['s_waitcnt vmcnt(%d)' % P('PGATE', 0)] + lsig(5, t3); st('pack')
        L += lwait(5, t3) + flat(ptl) + ['ds_read_b128 %s, %s offset:%d' % (V(PT[3] + 4 * a, 4), V(t2), a * 1024) for a in range(2)] + ['s_waitcnt lgkmcnt(0)']; st('fp')
    else:
        L += ['WAITVM part'] + (sflag(sFP) if P('SFP', 0) else setflag(sFP)); st('pack')
        L += lwait(5, t3) + ['ds_read_b128 %s, %s offset:%d' % (V(PT[3] + 4 * a, 4), V(t2), a * 1024) for a in range(2)]
        if P('VFP', 0):
            L += ['v_mul_u32_u24 %s, %d, %s' % (V(vPa), FS, V(vQ)), 'v_add_u32 %s, %s, %s' % (V(vPa), S(sG), V(vPa))] + poll_issue('pfp') + poll_check('pfp') + ['s_waitcnt lgkmcnt(0)']
        else: L += flat(list(apoll('fp', [(r_, 0) for r_ in fpo], sTag)))
        st('fp')
        L += flat(ptl)
    for D in range(8): L += ['v_lshlrev_b32 %s, 16, %s' % (V(SU + 2 * D), V(PT[3] + D)), 'v_and_b32 %s, 0xffff0000, %s' % (V(SU + 2 * D + 1), V(PT[3] + D))]
    pD = lambda k, D: PT[k] + (4 * (D // 3) + D % 3 if PTAG else D)
    L += ['v_mov_b32 %s, 0x3f80' % V(UT), 'v_mov_b32 %s, 0x3f800000' % V(UT + 1)]
    MF = P('MFIN', 1); AG = fr
    if MF:
        L += sx(sT2, [(sN2f, 896), (sNB, 224), (sW, 64)]) + ['s_add_u32 %s, %s, 917504' % (S(sT3), S(sT2)),
              'v_mul_u32_u24 %s, 57344, %s' % (V(t0), V(vJ)), 'v_add_u32 %s, %s, %s' % (V(t0), V(t0), V(vQ8)),
              'v_add_u32 %s, %s, %s' % (V(t1), S(sM0x), V(vL16)), 's_lshl_b32 %s, %s, 9' % (S(sG), S(sW)), 'v_lshl_add_u32 %s, %s, 3, %s' % (V(t2), V(vL), S(sG))]
        L += lwait(12, t3, vLW) + ['ds_read_b64 %s, %s offset:%d' % (V(AG + 16, 2), V(t2), GSL), 's_waitcnt lgkmcnt(0)']
        for rt in range(2):
            L += ['v_sub_f32 %s, 1.0, %s' % (V(AG + 18 + rt), V(AG + 16 + rt)), 'v_mul_f32 %s, %s, %s' % (V(AG + 16 + rt), f2u(2.0 / (2048 * 448)), V(AG + 16 + rt))]
    for k in range(3):
        L += flat(dcheck('pt%d' % k, [('v_cmp_ne_u32', S(sTag), V(PT[k] + 4 * u + 3)) for u in range(3)], raw(ptl[k]))) if PTAG else ['WAITVM pt%d' % k]
        for D in range(8):
            if P('DOT', 1):
                L += ['v_dot2_f32_bf16 %s, %s, %s, %s' % (V(SU + 2 * D + e), V(pD(k, D)), V(UT + e), V(SU + 2 * D + e)) for e in range(2)]
            else:
                L += ['v_lshlrev_b32 %s, 16, %s' % (V(UT + 2), V(pD(k, D))), 'v_and_b32 %s, 0xffff0000, %s' % (V(UT + 3), V(pD(k, D))),
                      'v_add_f32 %s, %s, %s' % (V(SU + 2 * D), V(SU + 2 * D), V(UT + 2)), 'v_add_f32 %s, %s, %s' % (V(SU + 2 * D + 1), V(SU + 2 * D + 1), V(UT + 3))]
            if not MF and k == 2 and D in (3, 5, 7): L += ['ds_write_b128 %s, %s offset:%d' % (V(t1), V(SU + 2 * D - 6, 4), (D // 2 - 1) * 1024)]
    if MF:
        lw = lwait(11, t3, vLW)
        L += ['s_nop 2', lw[1]] + ['v_mul_f32 %s, %s, %s' % (V(SU + q), V(AG + 18 + (q // 4) % 2), V(SU + q)) for q in range(16)]
        L += lw[2:5] + ['s_cbranch_vccz L_sok'] + lw + ['L_sok:']
        L += ['LK ag%d ds_read_b128 %s, %s offset:%d' % (k, V(AG + 4 * k, 4), V(t1), ASL + k * 1024) for k in range(4)]
        for a in range(2):
            if a: L += ['s_cmp_eq_u32 %s, 3' % S(sW), 's_cbranch_scc1 L_mfin']
            for rt in range(2):
                q = 8 * a + 4 * rt
                L += ['WAITLK ag%d' % (2 * a + rt)] + ['v_fma_f32 %s, %s, %s, %s' % (V(SU + q + r), V(AG + q + r), V(AG + 16 + rt), V(SU + q + r)) for r in range(4)]
                L += ['v_cvt_pk_bf16_f32 %s, %s, %s' % (V(SU + q + hh), V(SU + q + 2 * hh), V(SU + q + 2 * hh + 1)) for hh in range(2)]
                L += ['VM out buffer_store_dwordx2 %s, %s, %s, %s offen offset:%d' % (V(SU + q, 2), V(t0), S(rOUT, 4), S(sT3 if rt else sT2), a * 32)]
        L += ['L_mfin:']
    else:
        L += ['s_nop 2', 'ds_write_b128 %s, %s offset:%d' % (V(t1), V(SU + 12, 4), 3072)]
        L += lsig(11, t3)
    finish(L, st, 'M')
    LM = L; nvM = va.hi

    L = ['L_S:']; st = mk_st(L, 'S')
    va = Alloc('v', vbase, NV); sa = Alloc('s', sbase, 102); aa = Alloc('a', 0, NA)
    sCF = sa(); sK1 = sa(); sHF = sa(); sKP = sa(); sRot2 = sa()
    sA1o = sa(); sA1o2 = sa(); sFB = sa(); sA1x = sa(); sDFx = sa(); sPTl2 = sa(); sFA = sa(); sWo = sa(); sDFo = sa(); sB1s = sa(); sB1l = sa(); sGl = sa(); sPTl = sa(); sOut = sa()
    vAmp = va(); vFr = va(); vG = va(2); vG1 = va(2); vA1 = va()
    big = va(NV - ((va.next + 3) // 4 * 4), 4); NB = NV - big
    pa = Alloc('v', big, NV)
    MM = [[[pa(4) for u in range(4)] for t in range(2)] for e in range(2)]
    WRr = [pa(4) for t in range(2)]; WIr = [pa(4) for t in range(2)]
    fb = pa.next
    ACD = [[pa(4) for T in range(2)] for rt in range(2)]
    MR = [[pa(4) for t in range(2)] for kt in range(2)]; MI = [[pa(4) for t in range(2)] for kt in range(2)]
    tmpS = pa(24, 4)
    XF = [[aa(4) for rt in range(2)] for b in range(2)]; FF = [[aa(4) for T in range(2)] for b in range(2)]
    NR = [[aa(4) for u in range(2)] for tn in range(2)]; NI = [[aa(4) for u in range(2)] for tn in range(2)]
    BF = [[XF[0][0] + 8 * a + 4 * u for u in range(2)] for a in range(4)]
    L += ['s_load_dwordx2 %s, s[0:1], %d' % (S(r_, 2), off) for r_, off in ((rWR, 8), (rWI, 16), (rOUT, 64))]
    L += common2 + ['v_add_u32 %s, %d, %s' % (V(vFr), FL, V(vL16)),
          's_lshl_b32 %s, %s, 1' % (S(sRot2), S(sSig)), 's_add_u32 %s, %s, %s' % (S(sRot2), S(sRot2), S(sW)),
          'v_lshlrev_b32 %s, 2, %s' % (V(t0), V(vL)), 'v_add_u32 %s, %d, %s' % (V(t0), LF, V(t0)), 'ds_write_b32 %s, %s' % (V(t0), V(vZero))]
    ta = Alloc('v', big, big + 64)
    cs = ta(8); sn = ta(8); th = ta(8); pk0 = ta(4); pk1 = ta(4); vKdf = ta(); vU = ta(); vD0 = ta(); vFw = vG
    vGW = [ACD[0][0] + 4 * a for a in range(4)]
    def kact(dst, a, tmp):
        return ['s_add_u32 %s, %s, %d' % (S(dst), S(sRot2), 4 * a), 's_sub_u32 %s, %s, 14' % (S(tmp), S(dst)), 's_min_u32 %s, %s, %s' % (S(dst), S(dst), S(tmp))]
    L += ['s_cmp_eq_u32 %s, 15' % S(sC), 's_cbranch_scc1 L_nofg', 'v_lshl_add_u32 %s, %s, 4, %s' % (V(vKdf), S(sC), V(vJ)), 'v_mov_b32 %s, 1.0' % V(vG1),
          'v_cmp_eq_u32 vcc, 0, %s' % V(vKdf), 'v_cndmask_b32 %s, %s, 0.5, vcc' % (V(vG1), V(vG1)),
          'v_cmp_eq_u32 vcc, 224, %s' % V(vKdf), 'v_cndmask_b32 %s, %s, 0.5, vcc' % (V(vG1), V(vG1)),
          'v_cmp_lt_u32 vcc, 224, %s' % V(vKdf), 'v_cndmask_b32 %s, %s, 0, vcc' % (V(vG1), V(vG1)), 'v_cvt_f32_u32 %s, %s' % (V(vKdf), V(vKdf)), 'v_mul_f32 %s, %s, %s' % (V(vU), S(sInv448), V(vKdf)),
          's_lshl_b32 %s, %s, 11' % (S(sT2), S(sW)), 'v_add_u32 %s, %s, %s' % (V(vFw), S(sT2), V(vFr))]
    for a in range(4):
        L += kact(sT2, a, sT3) + [
              'v_lshl_add_u32 %s, %s, 5, %s' % (V(vD0), S(sT2), V(vQ8)), 'v_cvt_f32_u32 %s, %s' % (V(vD0), V(vD0)),
              'v_mul_f32 %s, %s, %s' % (V(t3), V(vKdf), V(vD0)), 'v_mul_f32 %s, %s, %s' % (V(th), S(sInv448), V(t3)),
              'v_floor_f32 %s, %s' % (V(th), V(th)), 'v_fma_f32 %s, %s, %s, %s' % (V(t3), V(th), S(sM448), V(t3)),
              'v_mul_f32 %s, %s, %s' % (V(th), S(sInv448), V(t3))]
        for e in range(1, 8): L += ['v_add_f32 %s, %s, %s' % (V(th + e), V(th + e - 1), V(vU))]
        for e in range(8): L += ['v_cos_f32 %s, %s' % (V(cs + e), V(th + e)), 'v_sin_f32 %s, %s' % (V(sn + e), V(th + e))]
        for e in range(0, 8, 2):
            L += ['v_pk_mul_f32 %s, %s, %s op_sel_hi:[1,0]' % (V(cs + e, 2), V(cs + e, 2), V(vG1, 2)), 'v_pk_mul_f32 %s, %s, %s op_sel_hi:[1,0]' % (V(sn + e, 2), V(sn + e, 2), V(vG1, 2))]
        for e in range(4):
            L += ['v_cvt_pk_bf16_f32 %s, %s, %s' % (V(pk0 + e), V(cs + 2 * e), V(cs + 2 * e + 1)),
                  'v_cvt_pk_bf16_f32 %s, -%s, -%s' % (V(pk1 + e), V(sn + 2 * e), V(sn + 2 * e + 1))]
        L += ['ds_write_b128 %s, %s offset:%d' % (V(vFw), V(pk0, 4), a * 8192), 'ds_write_b128 %s, %s offset:%d' % (V(vFw), V(pk1, 4), a * 8192 + 1024)]
    L += ['L_nofg:']
    L += dmaddr
    for r_, sz in ((rWR, W_SZ), (rWI, W_SZ), (rOUT, X_SZ)):
        L += ['s_mov_b32 %s, 0x%x' % (S(r_ + 2), sz), 's_mov_b32 %s, 0x20000' % S(r_ + 3)]
    L += ['s_add_u32 %s, %s, 2' % (S(sSig), S(sSig)), 's_sub_u32 %s, %s, 7' % (S(sT), S(sSig)), 's_min_u32 %s, %s, %s' % (S(sSig), S(sSig), S(sT))]
    gx = lambda dst, terms, const=0: sx(dst, terms, const, sG2)
    lo1 = ['s_lshr_b32 %s, %s, 1' % (S(sHF), S(sW)), 's_and_b32 %s, %s, 15' % (S(sCF), S(sM)),
           's_lshr_b32 %s, %s, 4' % (S(sKP), S(sM)), 's_lshl_b32 %s, %s, 1' % (S(sG), S(sXc)), 's_add_u32 %s, %s, %s' % (S(sKP), S(sKP), S(sG)),
           's_and_b32 %s, %s, 1' % (S(sK1), S(sW)), 's_lshl_b32 %s, %s, 1' % (S(sG), S(sKP)), 's_add_u32 %s, %s, %s' % (S(sK1), S(sK1), S(sG))]
    lo1 += w2tab + gx(sWo, [(sK1, 450), (sCF, 32), (sHF, 32 * 14400)])
    lo1 += gx(sA1o, [(sI, A1_I), (sC, A1_B), (sW, 1024)], A1_OFF) + gx(sG, [(sN2, 128)], GATE_OFF) + ['s_add_u32 %s, %s, 8192' % (S(sA1x), S(sA1o))]
    lo1 += ['s_cmp_eq_u32 %s, 15' % S(sC), 's_cselect_b32 %s, %s, %s' % (S(sA1o), S(sG), S(sA1o)), 's_cselect_b32 %s, 64, 4096' % S(sG), 's_cselect_b64 vcc, -1, 0',
            's_add_u32 %s, %s, %s' % (S(sA1o2), S(sA1o), S(sG)), 'v_lshlrev_b32 %s, 4, %s' % (V(vA1), V(vQ)), 'v_cndmask_b32 %s, %s, %s, vcc' % (V(vA1), V(vL16), V(vA1))]
    lo1 += gx(sFB, [(sW, 16 * B1_N), (sCF, B1_C)], B1_OFF + 2048) + gx(sPTl2, [(sN2, B1_N), (sC, B1_C)], B1_OFF + 2048)
    lo1 += gx(sFA, [(sI, A1_I), (sC, A1_B), (sW, 128)], A1_OFF + 8192)
    lo1 += ['s_min_u32 %s, %s, 14' % (S(sG), S(sCF))] + gx(sDFo, [(sG, A1_B), (sK1, 256)], A1_OFF)
    lo1 += ['s_lshr_b32 %s, %s, 4' % (S(sG), S(sK1))] + gx(sDFx, [(sG, -4096 + 8), (sDFo, 1)], 8192)
    lo1 += gx(sB1s, [(sCF, B1_C), (sW, 16 * B1_N), (sKP, 128)], B1_OFF) + gx(sB1l, [(sW, 4 * B1_C), (sN2f, B1_N)], B1_OFF)
    lo1 += gx(sGl, [(sN2f, 128)], GATE_OFF) + gx(sPTl, [(sN2f, 16 * PART_B), (sNB, 4 * PART_B), (sW, 3072 if PTAG else 2048)], PART_OFF) + gx(sOut, [(sN2f, 896), (sNB, 224), (sW, 64)])
    sJunk = sSpin
    L += ['s_waitcnt lgkmcnt(0)'] + wst + epld + ['s_load_dword %s, %s, 0' % (S(sJunk), S(r_, 2)) for r_ in (rWR, rWI, rOUT)] + lo1
    if P('FTOUCH', 0): L += ['s_load_dword %s, %s, %s glc' % (S(sJunk), S(rWS, 2), S(r_)) for r_ in (sFA, sPTl2)]
    q_ = tmpS
    lo = [
          'v_mul_u32_u24 %s, %d, %s' % (V(t3), 4 * 14400, V(vQ)), 'v_lshl_add_u32 %s, %s, 1, %s' % (V(t3), V(vJ), V(t3))]
    for t in range(2):
        for r in range(4): lo += ['v_mov_b32 %s, 0' % V(WRr[t] + r), 'v_mov_b32 %s, 0' % V(WIr[t] + r)]
    nlo1 = len(lo)
    vK = [q_, q_ + 1]; vS0 = q_ + 2; vS = q_ + 3; vA = [q_ + 4, q_ + 5]; c_ = [q_ + 6, q_ + 7]; s_ = [q_ + 8, q_ + 9]
    lo += ['v_cvt_f32_u32 %s, %s' % (V(vK[0]), V(vJ)), 'v_mul_f32 %s, %s, %s' % (V(vK[0]), f2u(1.0 / 2048), V(vK[0])),
           'v_add_f32 %s, %s, %s' % (V(vK[1]), f2u(16.0 / 2048), V(vK[0])),
           'v_lshl_add_u32 %s, %s, 8, %s' % (V(vS0), V(vQ), S(sN2)), 'v_cvt_f32_u32 %s, %s' % (V(vS0), V(vS0))]
    for t in range(2):
        for r in range(4):
            lo += ['v_add_f32 %s, %s, %s' % (V(vS), f2u(64.0 * (16 * t + r)), V(vS0))]
            for kt in range(2): lo += ['v_mul_f32 %s, %s, %s' % (V(vA[kt]), V(vK[kt]), V(vS))]
            for kt in range(2): lo += ['v_cos_f32 %s, %s' % (V(c_[kt]), V(vA[kt])), 'v_sin_f32 %s, %s' % (V(s_[kt]), V(vA[kt]))]
            for kt in range(2):
                lo += ['v_cvt_pk_bf16_f32 %s, %s, %s' % (V(MR[kt][t] + r), V(c_[kt]), V(s_[kt])),
                       'v_cvt_pk_bf16_f32 %s, -%s, %s' % (V(MI[kt][t] + r), V(s_[kt]), V(c_[kt]))]
    vI = q_; vN0 = q_ + 1; vAn = q_ + 2; vc = q_ + 4; vs = q_ + 5
    lo += ['v_lshl_add_u32 %s, %s, 5, %s' % (V(vI), S(sHF), V(vJ)), 'v_cvt_f32_u32 %s, %s' % (V(vI), V(vI)), 'v_mul_f32 %s, %s, %s' % (V(vI), f2u(1.0 / 64), V(vI)),
           'v_lshlrev_b32 %s, 2, %s' % (V(vN0), V(vQ)), 'v_cvt_f32_u32 %s, %s' % (V(vN0), V(vN0))]
    prev = []
    for u in range(4):
        for r in range(4):
            k = (4 * u + r) & 1
            lo += ['v_add_f32 %s, %s, %s' % (V(vAn + k), f2u(16.0 * u + r), V(vN0)), 'v_mul_f32 %s, %s, %s' % (V(vAn + k), V(vAn + k), V(vI)),
                   'v_cos_f32 %s, %s' % (V(vc + 2 * k), V(vAn + k)), 'v_sin_f32 %s, %s' % (V(vs + 2 * k), V(vAn + k))] + prev
            cc, ss = V(vc + 2 * k), V(vs + 2 * k)
            rot = [(cc, ss), ('-' + ss, cc), ('-' + cc, '-' + ss), (ss, '-' + cc)]
            prev = ['v_cvt_pk_bf16_f32 %s, %s, %s' % ((V(MM[e][t][u] + r),) + rot[(t * r + e) % 4]) for e in range(2) for t in range(2)]
    lo += prev
    ngen = []
    vSs, vKk, nc, ns, pn = q_, q_ + 2, q_ + 3, q_ + 4, q_ + 5
    ngen += ['v_lshl_add_u32 %s, %s, 6, %s' % (V(vSs), V(vJ), S(sN2f)), 'v_cvt_f32_u32 %s, %s' % (V(vSs), V(vSs)), 'v_mul_f32 %s, %s, %s' % (V(vSs), f2u(1.0 / 2048), V(vSs))]
    for u in range(2):
        for r in range(4):
            ngen += ['v_add_f32 %s, %s, %s' % (V(vKk), f2u(16.0 * u + r), V(vN0)), 'v_mul_f32 %s, %s, %s' % (V(vKk), V(vKk), V(vSs)),
                   'v_cos_f32 %s, %s' % (V(nc), V(vKk)), 'v_sin_f32 %s, %s' % (V(ns), V(vKk))]
            for tn in range(2):
                ng = '-' if (tn and r & 1) else ''; ps = '' if (tn and r & 1) else '-'
                if tn == 0 or r & 1:
                    ngen += ['v_cvt_pk_bf16_f32 %s, %s%s, %s%s' % (V(pn), ng, V(nc), ps, V(ns)), 'v_cvt_pk_bf16_f32 %s, %s%s, %s%s' % (V(pn + 1), ng, V(ns), ng, V(nc))]
                ngen += ['v_accvgpr_write_b32 %s, %s' % (A(NR[tn][u] + r), V(pn)), 'v_accvgpr_write_b32 %s, %s' % (A(NI[tn][u] + r), V(pn + 1))]
    lo += ['s_lshl_b32 %s, %s, 2' % (S(sG), S(sW)), 's_add_u32 %s, %s, %d' % (S(sG), S(sG), XCH),
           'v_lshl_add_u32 %s, %s, 10, %s' % (V(t0), V(vQ), S(sG)), 'v_lshl_add_u32 %s, %s, 4, %s' % (V(t0), V(vJ), V(t0)),
           's_lshl_b32 %s, %s, 10' % (S(sG), S(sW)), 's_add_u32 %s, %s, %d' % (S(sG), S(sG), XCH), 'v_add_u32 %s, %s, %s' % (V(t1), S(sG), V(vL16))]
    pf = sx(sT2, [(sM, 12544), (sKS, 448 * 896), (sW, 25 * 128)]) + [
         'v_lshrrev_b32 %s, 1, %s' % (V(t2), V(vL)), 'v_min_u32 %s, 24, %s' % (V(t2), V(t2)), 'v_lshlrev_b32 %s, 7, %s' % (V(t2), V(t2)),
         'VM pf buffer_load_dword %s, %s, %s, %s offen%s' % (V(vPv), V(t2), S(rW2, 4), S(sT2), NT)]
    pf += sx(sT2, [(sM, 2 * 14400), (sHF, 14400), (sXc, 1800)]) + [
         'v_lshrrev_b32 %s, 3, %s' % (V(t2), V(vL)), 's_and_b32 %s, %s, 1' % (S(sT), S(sW)), 's_lshl_b32 %s, %s, 10' % (S(sT), S(sT)),
         'v_lshl_add_u32 %s, %s, 7, %s' % (V(t2), V(t2), S(sT)), 'v_min_u32 %s, 1796, %s' % (V(t2), V(t2)),
         'VM pf buffer_load_dword %s, %s, %s, %s offen%s' % (V(vPv), V(t2), S(rWR, 4), S(sT2), NT),
         'VM pf buffer_load_dword %s, %s, %s, %s offen%s' % (V(vPv), V(t2), S(rWI, 4), S(sT2), NT)]
    if P('PF2', 1):
        pf = ['s_lshr_b32 %s, %s, 2' % (S(sT3), S(sM)), 's_lshl_b32 %s, %s, 1' % (S(sT3), S(sT3)), 's_and_b32 %s, %s, 1' % (S(sT), S(sM)), 's_add_u32 %s, %s, %s' % (S(sT3), S(sT3), S(sT)),
              's_add_u32 %s, %s, 1' % (S(sG), S(sM)), 's_and_b32 %s, %s, 2' % (S(sG), S(sG)), 's_lshl_b32 %s, %s, 29' % (S(sG), S(sG))]
        pf += sx(sT2, [(sT3, 25088), (sKS, 448 * 896), (sW, 49 * 128), (sG, 1)]) + [
              'v_min_u32 %s, 48, %s' % (V(t2), V(vL)), 'v_lshlrev_b32 %s, 7, %s' % (V(t2), V(t2)),
              'VM pf buffer_load_dword %s, %s, %s, %s offen' % (V(vPv), V(t2), S(rW2, 4), S(sT2))]
        pf += sx(sT2, [(sT3, 4 * 14400), (sW, 14400), (sXc, 1800), (sG, 1)]) + [
              'v_lshrrev_b32 %s, 2, %s' % (V(t2), V(vL)), 'v_lshlrev_b32 %s, 7, %s' % (V(t2), V(t2)), 'v_min_u32 %s, 1796, %s' % (V(t2), V(t2)),
              'VM pf buffer_load_dword %s, %s, %s, %s offen' % (V(vPv), V(t2), S(rWR, 4), S(sT2)),
              'VM pf buffer_load_dword %s, %s, %s, %s offen' % (V(vPv), V(t2), S(rWI, 4), S(sT2))]
    if P('VT', 0):
        pf += ['v_min_u32 %s, 13, %s' % (V(t2), V(vJ)), 'v_lshlrev_b32 %s, 21, %s' % (V(t2), V(t2)), 'VM pf buffer_load_dword %s, %s, %s, 0 offen' % (V(vPv), V(t2), S(rWS, 4))]
    if P('FT2', 1):
        pf += ['s_andn2_b32 %s, %s, 1' % (S(sT3), S(sC)), 'v_bfe_u32 %s, %s, 3, 1' % (V(vG), V(vL))]
        pf += sx(sT2, [(sN2, ACT_N2), (sT3, ACT_C), (sG, 1)], ACT_OFF + 7168) + ['v_mul_u32_u24 %s, %d, %s' % (V(t2), ACT_C, V(vG)),
               'VM pf buffer_load_dword %s, %s, %s, %s offen sc1' % (V(vPv), V(t2), S(rWS, 4), S(sT2))]
        pf += sx(sT2, [(sI, A1_I), (sT3, A1_B), (sW, 128), (sG, 1)], A1_OFF + 8192) + ['v_mul_u32_u24 %s, %d, %s' % (V(t2), A1_B, V(vG)),
               'VM pf buffer_load_dword %s, %s, %s, %s offen sc1' % (V(vPv), V(t2), S(rWS, 4), S(sT2))]
        pf += ['s_andn2_b32 %s, %s, 1' % (S(sT3), S(sNB))] + sx(sT2, [(sN2, 16 * PART_B), (sT3, 4 * PART_B), (sKS, PART_B), (sG, 1)], PART_OFF + 7168) + [
               'v_mul_u32_u24 %s, %d, %s' % (V(t2), 4 * PART_B, V(vG)), 'VM pf buffer_load_dword %s, %s, %s, %s offen sc1' % (V(vPv), V(t2), S(rWS, 4), S(sT2))]
    wl = []
    for t in range(2):
        for r in range(4):
            wl += ['s_add_u32 %s, %s, %d' % (S(sT2), S(sWo), (16 * t + r) * 14400),
                   'VM W buffer_load_short_d16_hi %s, %s, %s, %s offen' % (V(WRr[t] + r), V(t3), S(rWR, 4), S(sT2)),
                   'VM W buffer_load_short_d16_hi %s, %s, %s, %s offen' % (V(WIr[t] + r), V(t3), S(rWI, 4), S(sT2))]
    readsS = lambda ks: xread(ks, XF) + ['LK a%d_f ds_read_b128 %s, %s offset:%d' % (ks, A(FF[ks & 1][T], 4), V(vFr), ks * 2048 + T * 1024) for T in range(2)]
    mfS = lambda ks: ['%s %s, %s, %s, %s' % (MFMA, V(ACD[rt][T], 4), A(XF[ks & 1][rt], 4), A(FF[ks & 1][T], 4), V(ACD[rt][T], 4) if ks else '0') for T in range(2) for rt in range(2)]
    L += lo
    if P('NGPRO', 0): L += ngen; ngen = []
    if P('PFS', 3) == -1: L += pf
    L += ['s_waitcnt lgkmcnt(0)', 's_setprio %d' % P('PRS', 1)] + tagc
    st('pro')
    L += ['s_barrier']
    L += readsS(0)
    ngl = []
    if not P('NGL', 0): ngl = ngen; ngen = []
    lo = ngen; per = (len(lo) + 5) // 6
    ld = []
    for ks in range(14):
        if ks == 0: ld = [setflag(sPTl2)] + group_vm(stage_loads(2)) + ([pf] if P('PFS', 3) == 0 else [])
        if ks & 1:
            s = (ks + 1) // 2
            if s < 7: L += flat(ld) + (['WAITVM st%d' % s] if 2 <= s else []) + ['s_barrier']; ld = []
            if s + 2 <= 6: ld = group_vm(stage_loads(s + 2))
            if s == P('PFS', 3): ld += [pf]
            if s == 6: w01 = group_vm(w2_loads(0) + w2_loads(1)); ld += w01[:P('W2E', 8)]; w01 = w01[P('W2E', 8):]
        if ks == P('WLK', 10): ld += [wl]
        L += ['WAITLK a%d_f' % ks] + weave(mfS(ks), readsS(ks + 1) if ks < 13 else [])
        h = (len(ld) + 1) // 2 if (ks & 1 and P('SPLITLD', 1)) else len(ld)
        L += flat(ld[:h]); ld = ld[h:]
        if ks % 2 == 0 and ks: L += lo[:per]; lo = lo[per:]
    assert not lo
    L += ['s_setprio %d' % P('PRS2', 1)]
    st('mainA')
    PX = [tmpS, tmpS + 4]; DR = [tmpS + 8, tmpS + 12]; DI = [tmpS + 16, tmpS + 20]; XO = [ACD[0][0], ACD[1][0]]
    L += ['s_nop 4', 's_cmp_eq_u32 %s, 15' % S(sC), 's_cbranch_scc1 L_gate']
    for t in range(2):
        for r in range(4): L += ['v_cvt_pk_bf16_f32 %s, %s, %s' % (V(PX[t] + r), V(ACD[t][0] + r), V(ACD[t][1] + r))]
    for t in range(2):
        for kt in range(2):
            L += ['%s %s, %s, %s, %s' % (MFMA, V(DR[kt], 4), V(MR[kt][t], 4), V(PX[t], 4), V(DR[kt], 4) if t else '0'),
                  '%s %s, %s, %s, %s' % (MFMA, V(DI[kt], 4), V(MI[kt][t], 4), V(PX[t], 4), V(DI[kt], 4) if t else '0')]
    for kt in range(2):
        for r in range(4):
            L += ['v_cvt_pk_bf16_f32 %s, %s, %s' % (V(DR[kt] + r), V(DR[kt] + r), V(DI[kt] + r)),
                  'ds_write_b32 %s, %s offset:%d' % (V(t0), V(DR[kt] + r), kt * 4096 + r * 256)]
    L += lsig(1, t0) + lwait(1, t0)
    L += ['ds_read_b128 %s, %s offset:%d' % (V(XO[k], 4), V(t1), k * 4096) for k in range(2)]
    if ATAG:
        XX = ACD[0][1]
        L += ['v_mov_b32 %s, %s' % (V(XX + 1), S(sTag)), 'v_mov_b32 %s, %s' % (V(XX + 3), S(sTag)), 's_waitcnt lgkmcnt(0)']
        for k in range(2): L += ['v_mov_b32 %s, %s' % (V(XX + 2 * k), V(XO[k] + 3)), 'v_mov_b32 %s, %s' % (V(XO[k] + 3), S(sTag))]
        L += ['OPT_BEGIN', 'VM a1x buffer_store_dwordx4 %s, %s, %s, %s offen %s' % (V(XX, 4), V(vL16), S(rWS, 4), S(sA1x), SC), 'OPT_END']
    else: L += ['s_waitcnt lgkmcnt(0)']
    L += ['s_branch L_a1st', 'L_gate:', 's_nop 3']
    for rt in range(2):
        o = XO[rt]
        for r in range(4): L += ['v_mul_f32 %s, %s, %s' % (V(o + r), f2u(LOG2E), V(o + r))]
        for r in range(4): L += ['v_exp_f32 %s, -%s' % (V(o + r), V(o + r))]
        for r in range(4): L += ['v_add_f32 %s, 1.0, %s' % (V(o + r), V(o + r))]
        for r in range(4): L += ['v_rcp_f32 %s, %s' % (V(o + r), V(o + r))]
    L += ['s_nop 0', 'L_a1st:']
    L += ['VM a1 buffer_store_dwordx4 %s, %s, %s, %s offen %s' % (V(XO[k], 4), V(vA1), S(rWS, 4), S(sA1o2 if k else sA1o), SC) for k in range(2)]
    L += ['s_cmp_lg_u32 %s, 15' % S(sC), 's_cbranch_scc1 L_fa', 's_waitcnt vmcnt(0)', 'L_fa:'] + (setflag(sFA) if ATAG else [])
    st('a1st')
    L += ['s_setprio %d' % P('PRW', 1)] + flat(w01) + (wl if P('WLK', 10) == 99 else []) + ['s_setprio %d' % P('PRS2', 1), 'WAITVM w2_1'] + lsig(6, t3) + ([] if ATAG else ['WAITVM a1'] + (sflag(sFA) if P('SFA', 1) else setflag(sFA))) + lwait(9, t3) + (lwait(6, t3) if P('W2SN', 0) >= 2 else [])
    NS = P('W2SN', 0)
    ws_ = group_vm([u for t in range(P('W2L', 2), P('W2L', 2) + NS) for u in w2_loads(t)]) if NS else []
    pb = Alloc('v', fb, NV)
    DF = [pb(4) for u in range(4)]; XRr = [pb(4) for t in range(2)]; XIr = [pb(4) for t in range(2)]; PF = [pb(4) for t in range(4)]
    if ngl: ngl = ['v_lshlrev_b32 %s, 2, %s' % (V(vN0), V(vQ)), 'v_cvt_f32_u32 %s, %s' % (V(vN0), V(vN0))] + ngl
    dfl = []
    for u in range(4):
        dfl += ['s_add_u32 %s, %s, 0x%x' % (S(sT2), S(sDFo), u * 4 * A1_I),
                'VM df buffer_load_dwordx4 %s, %s, %s, %s offen %s' % (V(DF[u], 4), V(vPa), S(rWS, 4), S(sT2), SC)]
        if ATAG: dfl += ['s_add_u32 %s, %s, 0x%x' % (S(sT2), S(sDFx), u * 4 * A1_I),
                'VM df buffer_load_dwordx2 %s, %s, %s, %s offen %s' % (V(PF[0] + 2 * u, 2), V(vPa), S(rWS, 4), S(sT2), SC)]
    L += ['v_mul_u32_u24 %s, %d, %s' % (V(vPa), A1_I, V(vQ)), 'v_lshl_add_u32 %s, %s, 4, %s' % (V(vPa), V(vJ), V(vPa))]
    k1 = P('NGA', 0)
    L += ['s_min_u32 %s, %s, 14' % (S(sT3), S(sCF))] + sx(sT2, [(sT3, A1_B), (sKS, 128), (sW, 4 * A1_I)], A1_OFF + 8192)
    L += ['s_setprio %d' % P('PRW', 1)] + flat(ws_) + ['s_setprio %d' % P('PRS2', 1)] + (['WAITVM a1'] if P('FAW', 1) else []) + flat(list(apoll('fa', [(sT2, k * A1_I) for k in range(4)], sTag))) + lsig(8, t3) + lwait(8, t3) + dfl
    st('fa')
    gp_, gc_ = apoll('gt', [(sG, 0)], sTag)
    gl = ['VM g buffer_load_dword %s, %s, %s, %s offen offset:%d %s' % (V(vG + rt), V(vAmp), S(rWS, 4), S(sGl), rt * 64, SC) for rt in range(2)]
    L += sx(sG, [(sKS, 128), (sI, A1_I)], A1_OFF + 8192 + 15 * A1_B) + gp_ + ngl[k1:] + gc_ + ['v_lshlrev_b32 %s, 2, %s' % (V(vAmp), V(vJ))] + gl
    if NS: L += ['WAITVM w2_%d' % (P('W2L', 2) - 1 + NS)] + lsig(7, t3)
    L += ['s_and_b32 %s, %s, 1' % (S(sT2), S(sW)), 's_lshl_b32 %s, %s, 12' % (S(sT3), S(sT2)), 's_add_u32 %s, %s, %d' % (S(sT3), S(sT3), PXC),
          'v_add_u32 %s, %s, %s' % (V(t1), S(sT3), V(vL16)), 's_lshl_b32 %s, %s, 11' % (S(sT3), S(sHF)), 'v_add_u32 %s, %s, %s' % (V(t0), S(sT3), V(t1)),
          's_lshl_b32 %s, %s, 2' % (S(sT2), S(sT2)), 's_lshl_b32 %s, %s, 12' % (S(sT3), S(sHF)), 's_add_u32 %s, %s, %s' % (S(sT2), S(sT2), S(sT3)),
          's_add_u32 %s, %s, %d' % (S(sT2), S(sT2), BXC),
          'v_lshl_add_u32 %s, %s, 9, %s' % (V(t2), V(vQ), S(sT2)), 'v_lshl_add_u32 %s, %s, 3, %s' % (V(t2), V(vJ), V(t2))]
    if ATAG:
        L += flat(dcheck('df', [('v_cmp_ne_u32', S(sTag), V(r)) for u in range(4) for r in (DF[u] + 3, PF[0] + 2 * u + 1)], raw(dfl)))
        L += ['v_mov_b32 %s, %s' % (V(DF[u] + 3), V(PF[0] + 2 * u)) for u in range(4)]
    else: L += ['WAITVM df']
    st('df')
    TR = PF[2]; TI = PF[3]
    def cmulpk(t):
        o = []
        for r in range(4):
            xr, xi, wr, wi = V(XRr[t] + r), V(XIr[t] + r), V(WRr[t] + r), V(WIr[t] + r)
            o += ['v_mul_f32 %s, %s, %s' % (V(TR + r), xr, wr), 'v_mul_f32 %s, %s, %s' % (V(TI + r), xr, wi),
                  'v_fma_f32 %s, -%s, %s, %s' % (V(TR + r), xi, wi, V(TR + r)), 'v_fma_f32 %s, %s, %s, %s' % (V(TI + r), xi, wr, V(TI + r)),
                  'v_cvt_pk_bf16_f32 %s, %s, %s' % (V(PF[t] + r), V(TI + r), V(TR + r))]
        return o + ['ds_write_b128 %s, %s offset:%d' % (V(t0), V(PF[t], 4), t * 1024)]
    stg = lambda t, e0: [x for u in range(4) for x in
                         ('%s %s, %s, %s, %s' % (MFMA, V(XRr[t], 4), V(MM[e0][t][u], 4), V(DF[u], 4), V(XRr[t], 4) if u else '0'),
                          '%s %s, %s, %s, %s' % (MFMA, V(XIr[t], 4), V(MM[1 - e0][t][u], 4), V(DF[u], 4), V(XIr[t], 4) if u else '0'))]
    cm0 = cmulpk(0); sg1 = stg(1, 0)
    L += stg(0, 0) + sg1[:3] + sched(sg1[3:], [], [], cm0) + cm0 + cmulpk(1) + lsig(2, t3); st('sta')
    L += lwait(2, t3); st('px')
    L += ['ds_read_b128 %s, %s offset:%d' % (V(DF[u], 4), V(t1), u * 1024) for u in range(4)]
    L += ['s_lshl_b32 %s, %s, 11' % (S(sT2), S(sW)), 's_add_u32 %s, %s, %d' % (S(sT2), S(sT2), BXC), 'v_add_u32 %s, %s, %s' % (V(t1), S(sT2), V(vL16)),
          'v_lshrrev_b32 %s, 3, %s' % (V(t0), V(vL)), 'v_and_b32 %s, 7, %s' % (V(t3), V(vL)), 'v_mul_u32_u24 %s, %d, %s' % (V(t0), B1_N, V(t0)),
          'v_lshl_add_u32 %s, %s, 4, %s' % (V(t0), V(t3), V(t0)), 's_add_u32 %s, %s, %d' % (S(sT2), S(sB1s), 8 * B1_N), 's_waitcnt lgkmcnt(0)']
    outb = lambda t: [x for r in range(4) for x in ('v_cvt_pk_bf16_f32 %s, %s, %s' % (V(PF[t] + r), V(XRr[t] + r), V(XIr[t] + r)),
                                                     'ds_write_b32 %s, %s offset:%d' % (V(t2), V(PF[t] + r), t * 2048 + r * 128))]
    ob0 = outb(0); sg1 = stg(1, 1)
    L += stg(0, 1) + sg1[:4] + sched(sg1[4:], [], [], ob0) + ob0 + outb(1) + lsig(3, t3); st('stb')
    L += lwait(3, t3); st('bx')
    L += ['LK bx%d ds_read_b128 %s, %s offset:%d' % (k, V(PF[2 + k], 4), V(t1), k * 1024) for k in range(2)]
    for k in range(2):
        L += ['WAITLK bx%d' % k, 'VM b1 buffer_store_dwordx4 %s, %s, %s, %s offen %s' % (V(PF[2 + k], 4), V(t0), S(rWS, 4), S(sT2 if k else sB1s), SC)]
    st('fft')

    pd = Alloc('v', big, NV)
    GF = [[pd(4) for ct in range(2)] for T in range(15)]
    yb0 = pd.next
    CS = [[pd(2) for r in range(4)] for a in range(2)]
    kR = pd(2); kA = pd(2); vDf = pd(); vUu = pd(); vK0 = pd(); an = pd(4, 1)
    if P('GPK', 0): cheb = lambda d, k, x1, x0: ['v_pk_fma_f32 %s, %s, %s, %s op_sel_hi:[0,1,1] neg_lo:[0,0,1] neg_hi:[0,0,1]' % (V(d, 2), V(k, 2), V(x1, 2), V(x0, 2))]
    else: cheb = lambda d, k, x1, x0: ['v_fma_f32 %s, %s, %s, -%s' % (V(d + hh), V(k), V(x1 + hh), V(x0 + hh)) for hh in range(2)]
    def gen_G(ct):
        o = []
        if ct == 0:
            o += sx(sG, [(sNB, 112), (sW, 32)], 0, sG2) + ['v_add_u32 %s, %s, %s' % (V(vDf), S(sG), V(vJ)), 'v_cvt_f32_u32 %s, %s' % (V(vDf), V(vDf)),
                  'v_lshlrev_b32 %s, 2, %s' % (V(vK0), V(vQ)), 'v_cvt_f32_u32 %s, %s' % (V(vK0), V(vK0))]
        else: o += ['v_add_f32 %s, %s, %s' % (V(vDf), f2u(16.0), V(vDf))]
        o += ['v_mul_f32 %s, %s, %s' % (V(vUu), S(sInv448), V(vDf)), 'v_mul_f32 %s, %s, %s' % (V(an), V(vK0), V(vUu)),
              'v_mul_f32 %s, %s, %s' % (V(t3), f2u(16.0), V(vUu)),
              'v_cos_f32 %s, %s' % (V(kR), V(vUu)), 'v_cos_f32 %s, %s' % (V(kA), V(t3)),
              'v_add_f32 %s, %s, %s' % (V(an + 1), V(an), V(vUu)), 'v_add_f32 %s, %s, %s' % (V(an + 2), V(an), V(t3)), 'v_add_f32 %s, %s, %s' % (V(an + 3), V(an + 1), V(t3)),
              'v_add_f32 %s, %s, %s' % (V(kR), V(kR), V(kR)), 'v_add_f32 %s, %s, %s' % (V(kA), V(kA), V(kA))]
        for a in range(2):
            for r in range(2):
                o += ['v_cos_f32 %s, %s' % (V(CS[a][r]), V(an + 2 * a + r)), 'v_sin_f32 %s, -%s' % (V(CS[a][r] + 1), V(an + 2 * a + r))]
        for r in (2, 3):
            for a in range(2): o += cheb(CS[a][r], kR, CS[a][r - 1], CS[a][r - 2])
        for T in range(15):
            a = T & 1
            if T >= 2: o += [x for r in range(4) for x in cheb(CS[a][r], kA, CS[1 - a][r], CS[a][r])]
            o += ['v_cvt_pk_bf16_f32 %s, %s, %s' % (V(GF[T][ct] + r), V(CS[a][r]), V(CS[a][r] + 1)) for r in range(4)]
        return o
    bfl = [['s_add_u32 %s, %s, 0x%x' % (S(sT2), S(sB1l), a * B1_C)] +
           ['VM bf%d buffer_load_dwordx2 %s, %s, %s, %s offen offset:%d %s' % (a, A(BF[a][u] + 2 * hh, 2), V(t0), S(rWS, 4), S(sT2), u * 1024 + hh * 128, SC)
            for u in range(2) for hh in range(2)] for a in range(4)]
    gg = gen_G(0) + gen_G(1); k0_ = len(gg) * P('FBPOS', 12) // 100
    L += ['v_lshlrev_b32 %s, 8, %s' % (V(t0), V(vQ)), 'v_lshl_add_u32 %s, %s, 3, %s' % (V(t0), V(vJ), V(t0)),
          'v_mul_u32_u24 %s, %d, %s' % (V(vPa), B1_N << P('FBG', 0), V(vJ)), 's_setprio %d' % P('PRG', 0)]
    L += gg[:k0_] + ['WAITVM b1', 's_mov_b64 exec, 0x%x' % ((1 << (16 >> P('FBG', 0))) - 1), 'VM fb buffer_atomic_add %s, %s, %s, %s offen sc1' % (V(vOne), V(vPa), S(rWS, 4), S(sFB)), 's_mov_b64 exec, -1']
    k1_ = len(gg) * P('FBI', 50) // 100; k2_ = len(gg) * P('FBC', 75) // 100
    bp_, bc_ = apoll('fb', [(sFA, 0), (sFA, B1_C), (sFA, 2 * B1_C), (sT3, 0)], sDFx)
    L += ['s_andn2_b32 %s, %s, %d' % (S(sT3), S(sN2f), (1 << P('FBG', 0)) - 1)] + sx(sFA, [(sT3, B1_N), (sW, 4 * B1_C)], B1_OFF + 2048) + ['s_cmp_eq_u32 %s, 3' % S(sW), 's_cselect_b32 %s, %d, %d' % (S(sT3), 0, 1), 's_mul_i32 %s, %s, %d' % (S(sT3), S(sT3), 3 * B1_C),
          's_add_u32 %s, %s, %s' % (S(sT3), S(sT3), S(sFA)), 's_add_u32 %s, %s, 16' % (S(sDFx), S(sTag))]
    st('b1d')
    if P('DIAGB', 0): L += ['s_waitcnt vmcnt(0)']; st('fba')
    L += gg[k0_:k1_] + bp_ + gg[k1_:k2_] + bc_ + flat(bfl); st('fb')
    L += gg[k2_:] + ['s_setprio %d' % P('PRS2', 1)]
    st('gen')
    yb = Alloc('v', yb0, NV)
    YR = [[yb(4) for tn in range(2)] for a in range(2)]; YI = [[yb(4) for tn in range(2)] for a in range(2)]
    L += ['s_lshl_b32 %s, %s, 13' % (S(sT2), S(sW)), 'v_add_u32 %s, %s, %s' % (V(t1), S(sT2), V(vFr))]
    L += ['v_mul_u32_u24 %s, 57344, %s' % (V(t2), V(vJ)), 'v_add_u32 %s, %s, %s' % (V(t2), V(t2), V(vQ8)),
          's_add_u32 %s, %s, %d' % (S(sT2), S(sM0x), BSL), 'v_add_u32 %s, %s, %s' % (V(vA1), S(sT2), V(vL16)), 'WAITVM g',
          's_lshl_b32 %s, %s, 9' % (S(sG), S(sW)), 'v_lshl_add_u32 %s, %s, 3, %s' % (V(t2), V(vL), S(sG)), 'ds_write_b64 %s, %s offset:%d' % (V(t2), V(vG, 2), GSL),
          'v_add_u32 %s, %s, %s' % (V(vA1), S(sM0x), V(vL16))] + lsig(12, t3)
    bfck = lambda a: ['WAITVM bf%d' % a]
    step6 = lambda a: ['%s %s, %s, %s, %s' % (MFMA, V(Y[a & 1][tn], 4), A(BF[a][u], 4), A(N[tn][u], 4), V(Y[a & 1][tn], 4) if u else '0')
                       for u in range(2) for tn in range(2) for (Y, N) in ((YR, NR), (YI, NI))]
    def packY(a):
        o = []
        for tn in range(2):
            for r in range(4):
                o += ['v_cvt_pk_bf16_f32 %s, %s, %s' % (V(YR[a & 1][tn] + r), V(YR[a & 1][tn] + r), V(YI[a & 1][tn] + r))]
            o += ['ds_write_b128 %s, %s offset:%d' % (V(t1), V(YR[a & 1][tn], 4), a * 2048 + tn * 1024)]
        return o
    L += bfck(0); st('bf0')
    L += step6(0)
    for a in range(1, 4):
        pk_ = packY(a - 1)
        L += bfck(a) + sched(step6(a), [], [], pk_) + pk_
    L += packY(3) + lsig(4, t3); st('s6a')
    L += lwait(4, t3)
    st('s6')
    NY = 16
    YF = [4 * n for n in range(NY)]
    AC = [[yb0 + 16 + 8 * ct + 4 * rt for rt in range(2)] for ct in range(2)]
    seq = [(T, rt) for T in range(15) for rt in range(2)]
    rdY = lambda n: 'LK y%d ds_read_b128 %s, %s offset:%d' % (n, A(YF[n % NY], 4), V(vFr), seq[n][0] * 2048 + seq[n][1] * 1024)
    LA = 14
    L += [rdY(n) for n in range(LA)]
    for n, (T, rt) in enumerate(seq):
        if n % 2 == 0: L += ['WAITLK y%d' % (n + 1)]
        L += ['%s %s, %s, %s, %s' % (MFMA, V(AC[0][rt], 4), V(GF[T][0], 4), A(YF[n % NY], 4), V(AC[0][rt], 4) if T else '0')]
        if n + LA < len(seq): L += [rdY(n + LA)]
        L += ['%s %s, %s, %s, %s' % (MFMA, V(AC[1][rt], 4), V(GF[T][1], 4), A(YF[n % NY], 4), V(AC[1][rt], 4) if T else '0')]
    st('mainD')
    L += ['ds_write_b128 %s, %s offset:%d' % (V(vA1), V(AC[a][rt], 4), ASL + (2 * a + rt) * 1024) for rt in range(2) for a in range(2)]
    L += lsig(11, t3) + ['s_cmp_eq_u32 %s, 3' % S(sW), 's_cbranch_scc1 L_w3']
    L += ['s_branch L_fin', 'L_w3:', 's_cmp_lg_u32 s2, 120', 's_cbranch_scc1 L_fin', 's_mov_b32 %s, 0x%x' % (S(sT2), A1_OFF + 8192 + 15 * A1_B + 3 * A1_I), 's_add_u32 %s, %s, 0x%x' % (S(sT3), S(sT2), 8 * A1_I)] + spoll('ep', [(sT2, 0), (sT2, 4 * A1_I), (sT3, 0), (sT3, 4 * A1_I)], sTag) + ['s_mov_b32 %s, 0x%x' % (S(sT), EP_OFF)] + setflag(sT) + ['L_fin:']
    finish(L, st, 'S')
    LS = L
    if STAMP: open('stamps.txt', 'w').write(' '.join(stamps['M']) + ' / ' + ' '.join(stamps['S']))
    print('role M vgpr', nvM, 'instr', len(LM), ' role S big', NB, 'instr', len(LS), file=sys.stderr)
    if P('HACKACT', 0): LM = [l.replace(' sc1', '') if l.startswith('VM act') else l for l in LM]
    sf = os.environ.get('STF', '').replace('_', ' ')
    if sf:
        rp = lambda l: l.replace(' sc1', ' ' + sf) if (l.startswith('VM ') and 'store_dwordx4' in l) else l
        LM = [rp(l) for l in LM]; LS = [rp(l) for l in LS]
    of = os.environ.get('OUTF', '').replace('_', ' ')
    LM = [l + ' ' + of if l.startswith('VM out') else l for l in LM]; LS = [l + ' ' + of if l.startswith('VM out') else l for l in LS]
    return H + resolve(LM) + resolve(LS) + slow + ['L_end:', 's_endpgm'], NV, NA

def build(path):
    hdr = open('cdna_kernels/%s.s.ref' % NAME).read().split('\n')
    top = [l for l in hdr if l.startswith(';') and '@launch' not in l]
    L, nv, na = build_kernel()
    Pd, nn = pad_hazards(L)
    print('lines', len(Pd), 'nops', nn, file=sys.stderr)
    out = top + ['; @launch grid=(256,1,1) block=(512,1,1) lds=%d' % LDS_SZ, '.amdgcn_target "amdgcn-amd-amdhsa--gfx950"', '.text', '.globl %s' % LABEL]
    out += [('    ' + l if not (l.endswith(':') or l.startswith('.')) else l) for l in Pd]
    out += ['.section .rodata,"a"', '.p2align 6', '.amdhsa_kernel %s' % LABEL,
            '  .amdhsa_next_free_vgpr %d' % (nv + na), '  .amdhsa_next_free_sgpr 102', '  .amdhsa_accum_offset %d' % nv,
            '  .amdhsa_group_segment_fixed_size 0', '  .amdhsa_kernarg_size 88', '  .amdhsa_user_sgpr_count 2',
            '  .amdhsa_user_sgpr_kernarg_segment_ptr 1', '  .amdhsa_system_sgpr_workgroup_id_x 1', '.end_amdhsa_kernel']
    open(path, 'w').write('\n'.join(out) + '\n')

if __name__ == '__main__':
    build(sys.argv[1] if len(sys.argv) > 1 else 'cdna_kernels/%s.s' % NAME)
```

```python
import sys, math, os
from dsl import *

NAME = 'gated_mix__spectral_gfnet__dense_activation_mish__prompt'
LABEL = NAME + '_kernel'
ACT_OFF = 0x0; ACT_C = 7168 + 128; ACT_N2 = 16 * ACT_C
PART_OFF = 0x800000; PTAG = int(os.environ.get('PTAG', 0)); PART_B = 7168 + 128
ATAG = int(os.environ.get('ATAG', 0)); A1_OFF = 0x1400000; PAD = int(os.environ.get('PAD', 1))
A1_B = 8192 + 768; A1_I = 16 * A1_B + 4352 * PAD
B1_N = 2048 + 384 * PAD; B1_C = 64 * B1_N + 4352 * PAD
GATE_OFF = 0x1800000
FS = int(os.environ.get('FS', 128))
FSB = int(os.environ.get('FSB', 16)); FBL = max(128, 16 * FSB)
FG_OFF = 0x1810000; FP_OFF = 0x1850000; FB_OFF = 0x1890000; FA_OFF = 0x18d0000
EP_OFF = 0x1910000
B1_OFF = 0x1920000
WS_END = B1_OFF + 15 * B1_C
FBN = 16 * FS + 384 * PAD
OOB = 0x40000000
X_SZ = 2048 * 896; W_SZ = 2048 * 450; W1_SZ = 448 * 3584; W2_SZ = 1792 * 896
LOG2E = math.log2(math.e)
MFMA = 'v_mfma_f32_16x16x32_bf16'
SC = 'sc1'
NT = ' nt' if int(os.environ.get('LNT', 0)) else ''
XR = 0; W1R = 65536; FL = 122880; XCH = 0; PXC = 40960; BXC = 32768; YL = FL; OPL = 155648; LF = OPL + 7168; BSL = 65536; ASL = 32768; GSL = 30720; LDS_SZ = 163840
NV = 184; NA = 72
W2B = [W1R + 3 * 14336, 49152, W1R, 0, W1R + 14336, W1R + 2 * 14336, 16384]
sX, sWR, sWI, sW1, sB1, sW2, sGW, sOUT, sWS = 16, 18, 20, 24, 26, 28, 30, 32, 34
STAMP = os.environ.get('STAMP', '0') == '1'
TS_OFF = 0x2000000
SPIN_MAX = 500000
P = lambda k, d: int(os.environ.get(k, d))

def srd(L, d, base, size):
    L += ['s_mov_b32 %s, %s' % (S(d), S(base)), 's_mov_b32 %s, %s' % (S(d + 1), S(base + 1)),
          's_mov_b32 %s, 0x%x' % (S(d + 2), size), 's_mov_b32 %s, 0x20000' % S(d + 3)]

def resolve(L):
    out = []; ops = []; cur = None; nopt = 0; lks = []; waited = set()
    for l in L:
        if l == 'OPT_BEGIN': nopt += 1; cur = nopt; continue
        if l == 'OPT_END': cur = None; continue
        if l.startswith('LK '):
            _, tag, ins = l.split(' ', 2); lks.append(tag); out.append(ins); continue
        if l.startswith('ds_'): lks.append('_')
        if l.startswith('WAITLK '):
            tag = l.split(' ')[1]
            idx = max(k for k, o in enumerate(lks) if o == tag)
            out.append('s_waitcnt lgkmcnt(%d)' % min(len(lks) - 1 - idx, 15)); continue
        if l.startswith('VM '):
            _, tag, ins = l.split(' ', 2); assert tag not in waited, tag
            ops.append((tag, cur)); out.append(ins); continue
        if l.startswith('WAITVM '):
            parts = l.split(' ', 2); tag = parts[1]; extra = (' ' + parts[2]) if len(parts) > 2 else ''
            waited.add(tag)
            idx = max(k for k, o in enumerate(ops) if o[0] == tag)
            n = sum(1 for o in ops[idx + 1:] if (o[1] is None or o[1] == cur))
            out.append('s_waitcnt vmcnt(%d)%s' % (min(n, 63), extra)); continue
        assert not (l.startswith('buffer_') or l.startswith('global_')), l
        out.append(l[4:] if l.startswith('RAW ') else l)
    return out

def weave(mm, *streams):
    out = []; idx = [0] * len(streams)
    def put(u): out.extend(u if isinstance(u, list) else [u])
    for m in mm:
        put(m)
        for k, s in enumerate(streams):
            if idx[k] < len(s): put(s[idx[k]]); idx[k] += 1
    for k, s in enumerate(streams):
        for u in s[idx[k]:]: put(u)
    return out

TRANS_OPS = ('v_exp_f32', 'v_rcp_f32', 'v_sin_f32', 'v_cos_f32')
def cost(u):
    c = 0; n = 0
    for i in (u if isinstance(u, list) else [u]):
        if i.endswith(':') or i.startswith('OPT_'): continue
        n += 1
        if i.startswith('VM '): c += 15
        elif i.split()[0] in TRANS_OPS: c += 8
        elif i.startswith('s_') or i.startswith('WAIT'): pass
        else:
            assert not i.startswith('v_pk_'), i
            c += 4
    return c, n
VB = int(os.environ.get('VB', 8))
def sched(mm, rd, hi, lo, pace=1, state=None):
    out = []; rd = list(rd)
    state = state if state is not None else [99]
    def put(u): out.extend(u if isinstance(u, list) else [u])
    for k, m in enumerate(mm):
        put(m)
        state[0] += 1
        vb = VB; sl = 3
        if k + 1 < len(mm) and isinstance(mm[k + 1], list): sl -= len(mm[k + 1]) - 1
        left = len(mm) - k
        q = hi if (hi and (cost(hi[0])[0] < 15 or state[0] >= pace)) else lo
        if q and (cost(q[0])[0] > 4 or cost(q[0])[1] > 2) and len(rd) <= 2 * (left - 1):
            c, n = cost(q[0]); put(q.pop(0)); vb -= c; sl -= n
            if c >= 15: state[0] = 0
        else:
            n = 0 if not rd else (1 if len(rd) <= left else 2)
            for _ in range(n): put(rd.pop(0)); vb -= 4; sl -= 1
        while True:
            done = True
            for q in (hi, lo):
                if q and cost(q[0])[0] <= max(vb, 0) and cost(q[0])[1] <= sl:
                    c, n = cost(q[0]); vb -= c; sl -= n; put(q.pop(0)); done = False; break
            if done: break
    out += rd
    return out

def spread(main, units, start=0, end=None):
    end = len(main) if end is None else end
    out = list(main[:start]); n = len(units); seg = main[start:end]
    for k in range(n):
        out += seg[len(seg) * k // n: len(seg) * (k + 1) // n] if False else []
    pos = [len(seg) * k // n for k in range(n)] if n else []
    ui = 0
    for k, ins in enumerate(seg):
        while ui < n and pos[ui] == k:
            out += units[ui] if isinstance(units[ui], list) else [units[ui]]; ui += 1
        out.append(ins)
    for u in units[ui:]: out += u if isinstance(u, list) else [u]
    return out + list(main[end:])


def build_kernel():
    flat = lambda U: [i for u in U for i in (u if isinstance(u, list) else [u])]
    sa = Alloc('s', 16, 102)
    rX = sa(4); rW1 = sa(4); rW2 = sa(4); rWS = sa(4); rBI = rWR = sa(4); rGW = rWI = sa(4); rOUT = sa(4)
    sT, sT2, sT3, sSpin, sTag, sW, sM = 3, 4, 5, 6, 7, 8, 9
    sPC = 12; sEp = 14; sW8 = 15
    sI = sa(); sC = sa(); sN2 = sa(); sPar = sa(); sKS = sa(); sNB = sa(); sXc = sa(); sSig = sa(); sN2f = sa(); sM0x = sa()
    sInv448 = sa(); sM448 = sa(); sG = sa(); sG2 = sa(); sR0 = sa(4)
    va = Alloc('v', 1, NV)
    vST = va(); vL = va(); vQ = va(); vJ = va(); t0 = va(); t1 = va(); t2 = va(); t3 = va(); vL16 = va(); vZero = va(); vTag = va()
    vXr = va(2, 1); vPa = va(); vPv = va(); vLF = va(); vOne = va(); vQ8 = va()
    npoll = [0]; slow = []
    stamps = {'M': ['r0', 'start'], 'S': ['r0', 'start']}
    def mk_st(L, role):
        def st(name, real=False):
            if not STAMP: return
            if os.environ.get('STSEL') and name not in os.environ['STSEL'].split(','): return
            stamps[role].append(name)
            L.extend(['%s s[10:11]' % ('s_memrealtime' if (real or P('REAL', 0)) else 's_memtime'), 's_waitcnt lgkmcnt(0)',
                      'v_writelane_b32 %s, s10, %d' % (V(vST), len(stamps[role]) - 1)])
        return st
    def poll_issue(tag):
        return ['VM %s buffer_load_dword %s, %s, %s, 0 offen %s' % (tag, V(vPv), V(vPa), S(rWS, 4), SC)]
    def poll_check(tag):
        n = npoll[0]; npoll[0] += 1
        slow.extend(['slow%d:' % n, 's_mov_b32 %s, 0' % S(sSpin), 'slowl%d:' % n, 's_sleep %d' % P('SLP_' + tag, P('SLP', 6)),
                     'buffer_load_dword %s, %s, %s, 0 offen %s' % (V(vPv), V(vPa), S(rWS, 4), SC),
                     's_waitcnt vmcnt(0)', 'v_cmp_ne_u32 vcc, %s, %s' % (S(sTag), V(vPv)), 's_add_u32 %s, %s, 1' % (S(sSpin), S(sSpin)),
                     's_nop 0', 's_cbranch_vccz back%d' % n, 's_cmp_lt_u32 %s, %d' % (S(sSpin), SPIN_MAX),
                     's_cbranch_scc1 slowl%d' % n, 's_branch back%d' % n])
        return ['WAITVM %s' % tag, 'v_cmp_ne_u32 vcc, %s, %s' % (S(sTag), V(vPv)), 's_nop 1', 's_cbranch_vccnz slow%d' % n, 'back%d:' % n]
    sCk = sa(2); sCk2 = sa(2)
    def dcheck(tag, cmps, reload, pre=[]):
        n = npoll[0]; npoll[0] += 1
        test = list(pre)
        for k, (op, s0_, r) in enumerate(cmps):
            d = 'vcc' if k == 0 else S(sCk if k & 1 else sCk2, 2)
            test += ['%s %s, %s, %s' % (op, d, s0_, r)]
            if k >= 2: test += ['s_or_b64 vcc, vcc, %s' % S(sCk2 if k & 1 else sCk, 2)]
        last = len(cmps) - 1
        test += ['s_or_b64 vcc, vcc, %s' % (S(sCk if last & 1 else sCk2, 2) if last else 'vcc')]
        slow.extend(['slow%d:' % n, 's_mov_b32 %s, 0' % S(sSpin), 'slowl%d:' % n, 's_sleep %d' % P('SLP', 4)] + reload + ['s_waitcnt vmcnt(0)'] + test +
                    ['s_cbranch_scc0 back%d' % n, 's_add_u32 %s, %s, 1' % (S(sSpin), S(sSpin)), 's_cmp_lt_u32 %s, %d' % (S(sSpin), SPIN_MAX),
                     's_cbranch_scc1 slowl%d' % n, 's_branch back%d' % n])
        return [['WAITVM %s' % tag]] + [[i] for i in test[:-1]] + [[test[-1], 's_cbranch_scc1 slow%d' % n, 'back%d:' % n]]
    def spoll(name, locs, exp, first=0):
        n = npoll[0]; npoll[0] += 1
        rs = [sCk, sCk + 1, sCk2, sCk2 + 1]
        o = ['s_mov_b32 %s, 0' % S(sSpin), 'sp%d:' % n]
        o += ['s_load_dword %s, %s, %s offset:%d glc' % (S(rs[k]), S(rWS, 2), S(so), im) for k, (so, im) in enumerate(locs)]
        o += ['s_add_u32 %s, %s, 1' % (S(sSpin), S(sSpin)), 's_cmp_ge_u32 %s, %d' % (S(sSpin), SPIN_MAX), 's_cbranch_scc1 spd%d' % n, 's_waitcnt lgkmcnt(0)']
        for k in range(len(locs)):
            o += ['s_xor_b32 %s, %s, %s' % (S(rs[k]), S(rs[k]), S(exp))]
            if k: o += ['s_or_b32 %s, %s, %s' % (S(rs[0]), S(rs[0]), S(rs[k]))]
        o += ['s_cbranch_scc1 sp%d' % n, 'spd%d:' % n, 's_waitcnt lgkmcnt(0)']
        return o
    def apoll(name, locs, exp):
        n = npoll[0]; npoll[0] += 1
        rs = [sCk, sCk + 1, sCk2, sCk2 + 1]
        ld = ['s_load_dword %s, %s, %s offset:%d glc' % (S(rs[k]), S(rWS, 2), S(so), im) for k, (so, im) in enumerate(locs)]
        t = ['s_waitcnt lgkmcnt(0)']
        for k in range(len(locs)):
            t += ['s_xor_b32 %s, %s, %s' % (S(rs[k]), S(rs[k]), S(exp))]
            if k: t += ['s_or_b32 %s, %s, %s' % (S(rs[0]), S(rs[0]), S(rs[k]))]
        slow.extend(['slow%d:' % n, 's_mov_b32 %s, 0' % S(sSpin), 'slowl%d:' % n] + ['s_sleep %d' % P('SSL_' + name, P('SSL', 2))] + ld + t +
                    ['s_cbranch_scc0 back%d' % n, 's_add_u32 %s, %s, 1' % (S(sSpin), S(sSpin)), 's_cmp_lt_u32 %s, %d' % (S(sSpin), SPIN_MAX),
                     's_cbranch_scc1 slowl%d' % n, 's_branch back%d' % n])
        return ld, t + ['s_cbranch_scc1 slow%d' % n, 'back%d:' % n]
    sflag = lambda so: ['s_atomic_swap %s, %s, %s' % (S(sTag), S(rWS, 2), S(so))]
    raw = lambda U: [i.split(' ', 2)[2] if i.startswith('VM ') else i for i in flat(U)]
    def setflag(sOff):
        return ['VM flag buffer_store_dword %s, %s, %s, %s offen %s' % (V(vTag), V(vZero), S(rWS, 4), S(sOff), SC)]
    def lsig(k, vtmp):
        return ['v_lshl_add_u32 %s, %s, 2, %s' % (V(vtmp), S(sW), V(vZero)), 'ds_write_b32 %s, %s offset:%d' % (V(vtmp), V(vOne), LF - 131072 + k * 16)] if False else \
               ['ds_write_b32 %s, %s offset:%d' % (V(vLW), V(vOne), k * 16)]
    def lwait(k, vtmp, reg=None):
        n = npoll[0]; npoll[0] += 1
        return ['lw%d:' % n, 'ds_read_b32 %s, %s offset:%d' % (V(vtmp), V(vLF if reg is None else reg), k * 16), 's_waitcnt lgkmcnt(0)',
                'v_cmp_ne_u32 vcc, 1, %s' % V(vtmp), 's_nop 1', 's_cbranch_vccnz lw%d' % n]
    vLW = va()
    def sx(dst, terms, const=0, tmp=None):
        tmp = sT if tmp is None else tmp
        o = []
        for k, (r, c) in enumerate(terms):
            d = dst if k == 0 else tmp
            if c == 1:
                o += ['s_mov_b32 %s, %s' % (S(d), S(r))] if k == 0 else ['s_add_u32 %s, %s, %s' % (S(dst), S(dst), S(r))]
                continue
            o += ['s_mul_i32 %s, %s, %d' % (S(d), S(r), c)]
            if k: o += ['s_add_u32 %s, %s, %s' % (S(dst), S(dst), S(tmp))]
        if const: o += ['s_add_u32 %s, %s, 0x%x' % (S(dst), S(dst), const)]
        return o
    def group_vm(U):
        out = []; cur = []
        for u in U:
            cur += u
            if any(i.startswith('VM ') for i in u): out.append(cur); cur = []
        if cur: out[-1] += cur
        return out
    def with_waits(tag, order, mk, step=3):
        o = []
        for n, T in enumerate(order):
            ms = mk(T)
            if n % step == 0: ms[0] = ['WAITLK %s_%d' % (tag, order[min(n + step - 1, len(order) - 1)]), ms[0]]
            o += ms
        return o
    tagc = ['s_mul_i32 %s, %s, 0x9e3779b1' % (S(sTag), S(sEp)), 's_add_u32 %s, %s, 0x7f4a7c15' % (S(sTag), S(sTag)), 'v_mov_b32 %s, %s' % (V(vTag), S(sTag))]
    if P('FULLF', 0): tagc += ['v_and_b32 %s, 31, %s' % (V(vZero), V(vL)), 'v_lshlrev_b32 %s, 2, %s' % (V(vZero), V(vZero))]
    epld = ['s_add_u32 %s, %s, 0x%x' % (S(sPC), S(rWS), EP_OFF), 's_addc_u32 %s, %s, 0' % (S(sPC + 1), S(rWS + 1)), 's_load_dword %s, %s, 0' % (S(sEp), S(sPC, 2))]
    def finish(L, st, role):
        if STAMP:
            st('end'); st('r1', True)
            L += ['s_add_u32 s4, %s, 0x%x' % (S(rWS), TS_OFF), 's_addc_u32 s5, %s, 0' % S(rWS + 1), 's_mov_b32 s6, 0x100000', 's_mov_b32 s7, 0x20000',
                  's_lshl_b32 s13, s2, 3', 's_add_u32 s13, s13, %s' % S(sW8), 's_lshl_b32 s13, s13, 8', 'v_lshlrev_b32 %s, 2, %s' % (V(t0), V(vL)),
                  'VM x buffer_store_dword %s, %s, s[4:7], s13 offen' % (V(vST), V(t0))]
            pb_ = os.environ.get('PROBE', '')
            if pb_.startswith(role + ':'):
                k = stamps[role].index(pb_[2:])
                L += ['s_cmp_lg_u32 s13, %d' % ((P('PWG', 45) * 8 + (0 if role == 'M' else 4)) * 256), 's_cbranch_scc1 L_noprobe', 'v_readlane_b32 s16, %s, %d' % (V(vST), k), 'v_readlane_b32 s17, %s, 1' % V(vST), 's_nop 3',
                      's_sub_u32 s16, s16, s17', 's_lshl_b32 s16, s16, 2', 's_add_u32 s16, s16, 10000', 'L_prl:', 's_memtime s[20:21]', 's_waitcnt lgkmcnt(0)',
                      's_sub_u32 s22, s20, s17', 's_cmp_lt_u32 s22, s16', 's_cbranch_scc1 L_prl', 'L_noprobe:']
        L += ['s_endpgm']

    H = ['.p2align 8', '.type %s,@function' % LABEL, '%s:' % LABEL, 's_cmp_ge_u32 s2, 256', 's_cbranch_scc1 L_end']
    for r_, off in ((rX, 0), (rW1, 32), (rWS, 80), (rW2, 48)):
        H += ['s_load_dwordx2 %s, s[0:1], %d' % (S(r_, 2), off)]
    if STAMP: H += ['v_mov_b32 %s, 0' % V(vST), 's_memrealtime %s' % S(sR0, 2), ('s_memrealtime %s' if P('REAL', 0) else 's_memtime %s') % S(sR0 + 2, 2)]
    H += ['v_and_b32 %s, 63, v0' % V(vL), 'v_lshrrev_b32 %s, 6, v0' % V(t0), 's_lshr_b32 %s, s2, 3' % S(sM), 's_and_b32 %s, s2, 7' % S(sXc),
          'v_readfirstlane_b32 %s, %s' % (S(sW8), V(t0)), 'v_lshrrev_b32 %s, 4, %s' % (V(vQ), V(vL)), 'v_and_b32 %s, 15, v0' % V(vJ),
          's_lshr_b32 %s, %s, 2' % (S(sI), S(sXc)), 's_lshl_b32 %s, %s, 3' % (S(sI), S(sI)),
          's_lshr_b32 %s, %s, 2' % (S(sT3), S(sM)), 's_add_u32 %s, %s, %s' % (S(sI), S(sI), S(sT3)),
          's_and_b32 %s, %s, 3' % (S(sW), S(sW8)),
          's_and_b32 %s, %s, 3' % (S(sKS), S(sXc)), 's_and_b32 %s, %s, 3' % (S(sNB), S(sM)),
          's_lshl_b32 %s, %s, 2' % (S(sC), S(sKS)), 's_add_u32 %s, %s, %s' % (S(sC), S(sC), S(sNB)),
          's_lshl_b32 %s, %s, 2' % (S(sN2f), S(sI)), 's_add_u32 %s, %s, %s' % (S(sN2), S(sN2f), S(sW)),
          's_and_b32 %s, %s, 1' % (S(sPar), S(sC))]
    H += {0: ['s_lshl_b32 %s, %s, 1' % (S(sSig), S(sNB)), 's_add_u32 %s, %s, %s' % (S(sSig), S(sSig), S(sT3)),
              's_sub_u32 %s, %s, 7' % (S(sT), S(sSig)), 's_min_u32 %s, %s, %s' % (S(sSig), S(sSig), S(sT))],
          1: ['s_mov_b32 %s, 0' % S(sSig)],
          2: ['s_add_u32 %s, %s, %s' % (S(sSig), S(sNB), S(sT3)), 's_and_b32 %s, %s, 1' % (S(sSig), S(sSig)), 's_lshl_b32 %s, %s, 2' % (S(sSig), S(sSig))],
          4: ['s_add_u32 %s, %s, %s' % (S(sSig), S(sNB), S(sT3)), 's_and_b32 %s, %s, 3' % (S(sSig), S(sSig)), 's_lshl_b32 %s, %s, 1' % (S(sSig), S(sSig))]}[P('ROT', 0)]
    H += ['s_xor_b32 %s, %s, %d' % (S(sNB), S(sNB), P('NBX', 0)), 's_lshl_b32 %s, %s, 12' % (S(sM0x), S(sW)),
          's_mov_b32 %s, 0x%x' % (S(rWS + 2), WS_END), 's_mov_b32 %s, 0x20000' % S(rWS + 3),
          's_cmp_ge_u32 %s, 4' % S(sW8), 's_cbranch_scc1 L_S']
    common2 = ['v_lshlrev_b32 %s, 4, %s' % (V(vL16), V(vL)), 'v_mov_b32 %s, 0' % V(vZero), 'v_mov_b32 %s, 1' % V(vOne), 'v_lshlrev_b32 %s, 3, %s' % (V(vQ8), V(vQ)),
               's_add_u32 %s, %s, %s' % (S(sN2f), S(sN2f), S(sKS)),
               's_mov_b32 %s, %s' % (S(sInv448), f2u(1.0 / 448)), 's_mov_b32 %s, %s' % (S(sM448), f2u(-448.0)),
               'v_lshrrev_b32 %s, 1, %s' % (V(t3), V(vJ)), 'v_xor_b32 %s, %s, %s' % (V(t3), V(t3), V(vQ)),
               'v_lshlrev_b32 %s, 4, %s' % (V(t3), V(t3)), 'v_lshl_add_u32 %s, %s, 7, %s' % (V(t3), V(vJ), V(t3)),
               'v_add_u32 %s, %s, %s' % (V(vXr), S(sM0x), V(t3)), 'v_xor_b32 %s, 64, %s' % (V(vXr + 1), V(vXr)),
               'v_and_b32 %s, 3, %s' % (V(vLF), V(vL)), 'v_lshlrev_b32 %s, 2, %s' % (V(vLF), V(vLF)), 'v_add_u32 %s, %d, %s' % (V(vLF), LF, V(vLF)),
               's_lshl_b32 %s, %s, 2' % (S(sG), S(sW)), 's_add_u32 %s, %s, %d' % (S(sG), S(sG), LF), 'v_mov_b32 %s, %s' % (V(vLW), S(sG))]
    wst = ['v_writelane_b32 %s, %s, 0' % (V(vST), S(sR0)), 'v_writelane_b32 %s, %s, 1' % (V(vST), S(sR0 + 2))] if STAMP else []
    if P('WSB', 0): wst += ['s_add_u32 %s, %s, 0x%x' % (S(rWS), S(rWS), P('WSB', 0) << 20), 's_addc_u32 %s, %s, 0' % (S(rWS + 1), S(rWS + 1))]
    sXb = sa(); sWb = sa(); sXs = sa(); sWs = sa(); sM0w = sa(); sW2b = sa()
    vXs = va(2, 1); vW1s = va(); vW2s = va()
    dmaddr = ['s_mul_i32 %s, %s, 896' % (S(sXb), S(sN2))] + sx(sWb, [(sC, 224), (sW, 8 * 3584)])
    dmaddr += ['s_mul_i32 %s, %s, 896' % (S(sM0w), S(sW)), 's_lshl_b32 %s, %s, 1' % (S(sT2), S(sPar)),
          'v_lshrrev_b32 %s, 3, %s' % (V(t0), V(vL)), 'v_mul_u32_u24 %s, 57344, %s' % (V(t0), V(t0)),
          'v_and_b32 %s, 7, %s' % (V(t1), V(vL)), 'v_xor_b32 %s, %s, %s' % (V(t1), V(t1), V(vQ)),
          'v_lshl_add_u32 %s, %s, 4, %s' % (V(vXs), V(t1), V(t0)),
          'v_xor_b32 %s, 64, %s' % (V(vXs + 1), V(vXs)), 'v_add_u32 %s, %d, %s' % (V(vXs + 1), 8 * 57344, V(vXs + 1)),
          'v_mul_u32_u24 %s, 4682, %s' % (V(t0), V(vL)), 'v_lshrrev_b32 %s, 16, %s' % (V(t0), V(t0)),
          'v_mul_u32_u24 %s, 14, %s' % (V(t1), V(t0)), 'v_sub_u32 %s, %s, %s' % (V(t1), V(vL), V(t1)),
          'v_mul_u32_u24 %s, 896, %s' % (V(t2), V(t0)), 'v_lshl_add_u32 %s, %s, 4, %s' % (V(vW2s), V(t1), V(t2)),
          'v_add_u32 %s, %s, %s' % (V(t1), S(sT2), V(t1)), 'v_subrev_u32 %s, 14, %s' % (V(t2), V(t1)), 'v_min_u32 %s, %s, %s' % (V(t1), V(t1), V(t2)),
          'v_mul_u32_u24 %s, 3584, %s' % (V(t2), V(t0)), 'v_lshl_add_u32 %s, %s, 4, %s' % (V(vW1s), V(t1), V(t2))]
    for r_, sz in ((rX, X_SZ), (rW1, W1_SZ), (rW2, W2_SZ)):
        dmaddr += ['s_mov_b32 %s, 0x%x' % (S(r_ + 2), sz), 's_mov_b32 %s, 0x20000' % S(r_ + 3)]
    def stage_loads(s):
        slot = s % 4
        U = [['s_lshl_b32 %s, %s, 7' % (S(sXs), S(sSig))], ['s_add_u32 %s, %s, %s' % (S(sXs), S(sXs), S(sXb))],
             ['s_mul_i32 %s, %s, %d' % (S(sWs), S(sSig), 64 * 3584)], ['s_add_u32 %s, %s, %s' % (S(sWs), S(sWs), S(sWb))]]
        for kk in range(2):
            for e in (2 * kk, 2 * kk + 1):
                if e == 2: U += [['s_add_u32 %s, %s, 917504' % (S(sXs), S(sXs))]]
                U += [['s_add_u32 m0, %s, %d' % (S(sM0x), XR + slot * 16384 + e * 1024)],
                      [('VM st%d buffer_load_dwordx4 %s, %s, %s offen' + NT + ' lds') % (s, V(vXs + (e & 1)), S(rX, 4), S(sXs))]]
            for b2 in range(2):
                if kk or b2: U += [['s_add_u32 %s, %s, %d' % (S(sWs), S(sWs), (4 if b2 else 28) * 3584)]]
                U += [['s_add_u32 m0, %s, %d' % (S(sM0w), W1R + slot * 14336 + (32 * kk + 16 * b2) * 224)],
                      ['s_mov_b32 exec_hi, 0xffffff', ('VM st%d buffer_load_dwordx4 %s, %s, %s offen' + NT + ' lds') % (s, V(vW1s), S(rW1, 4), S(sWs)), 's_mov_b32 exec_hi, -1']]
        U += [['s_add_u32 %s, %s, 1' % (S(sSig), S(sSig))], ['s_cmp_eq_u32 %s, 7' % S(sSig), 's_cselect_b32 %s, 0, %s' % (S(sSig), S(sSig))]]
        return U
    sWp = sa(4, 1); sWm = sa(4, 1); sC4 = sa()
    SLOT = [(0, 0), (0, 1), (0, 2), (1, 0), (1, 1), (1, 2), ('m', 0), (2, 0), (2, 1), (2, 2), (3, 0), ('m', 1), (3, 1), (3, 2)]
    w2tab = ['s_and_b32 %s, %s, 3' % (S(sC4), S(sC))] + sx(sW2b, [(sKS, 448 * 896), (sW, 4 * 896), (sNB, 224)])
    for d in range(4):
        w2tab += ['s_xor_b32 %s, %s, %d' % (S(sT), S(sC4), d), 's_mul_i32 %s, %s, 7' % (S(sT), S(sT)), 's_add_u32 %s, %s, 1' % (S(sT), S(sT)), 's_lshr_b32 %s, %s, 1' % (S(sT), S(sT)),
                  's_mul_i32 %s, %s, 28672' % (S(sT), S(sT)), 's_add_u32 %s, %s, %s' % (S(sWp + d), S(sT), S(sW2b))]
    for mm_ in range(2):
        w2tab += ['s_lshr_b32 %s, %s, 1' % (S(sT), S(sC4)), 's_xor_b32 %s, %s, %d' % (S(sT), S(sT), mm_), 's_mul_i32 %s, %s, %d' % (S(sT), S(sT), 7 * 28672),
                  's_add_u32 %s, %s, %s' % (S(sT), S(sT), S(sW2b)), 's_add_u32 %s, %s, %d' % (S(sT), S(sT), 3 * 28672),
                  's_mul_i32 %s, %s, %d' % (S(sT2), S(sPar), 16 * 896), 's_add_u32 %s, %s, %s' % (S(sWm + 2 * mm_), S(sT), S(sT2)),
                  's_sub_u32 %s, %s, %s' % (S(sT), S(sT), S(sT2)), 's_add_u32 %s, %s, %d' % (S(sWm + 2 * mm_ + 1), S(sT), 16 * 896)]
    def w2_loads(t):
        U = []
        for kk in range(2):
            d, Pp = SLOT[2 * t + kk]
            for b2 in range(2):
                if d == 'm': so = sWm + 2 * Pp + b2
                elif Pp == 0 and b2 == 0: so = sWp + d
                else: so = sWs; U += [['s_add_u32 %s, %s, %d' % (S(sWs), S(sWp + d), (32 * Pp + 16 * b2) * 896)]]
                U += [['s_add_u32 m0, %s, %d' % (S(sM0w), W2B[t] + (32 * kk + 16 * b2) * 224)],
                      ['s_mov_b32 exec_hi, 0xffffff', 'VM w2_%d buffer_load_dwordx4 %s, %s, %s offen lds' % (t, V(vW2s), S(rW2, 4), S(so)), 's_mov_b32 exec_hi, -1']]
        return U
    vbase = va.next; sbase = sa.next
    xread = lambda ks, XF: ['LK a%d_x ds_read_b128 %s, %s offset:%d' % (ks, A(XF[ks & 1][rt], 4), V(vXr + (ks & 1)), XR + ((ks // 2) % 4) * 16384 + rt * 2048) for rt in range(2)]

    L = []; st = mk_st(L, 'M')
    va = Alloc('v', vbase, NV); sa = Alloc('s', sbase, 102); aa = Alloc('a', 0, NA)
    sL2E = sa(2); sAct = sa(4, 1); sPTs = sa(); sJunk = sa(); sFG = sa(); sFP = sa(); sFGp = sa()
    vTr = va(2, 1)
    accb = va(56, 4)
    ACC = [[accb + 28 * rt + 4 * T for T in range(7)] for rt in range(2)]
    fr = va(56, 4)
    OWN = [[va(4) for rt in range(2)] for Pp in range(3)]
    assert OWN[0][0] == fr + 56
    RG = [fr + 8 * k for k in range(9)]
    U0 = [va(4) for d in range(4)]
    vB = [fr + 4 * T for T in range(7)]
    tmpA = fr + 32; c2 = fr + 48
    WF = [[aa(4) for T in range(7)] for b in range(2)]
    XF = [[aa(4) for rt in range(2)] for b in range(2)]
    vBraw = [accb + 2 * T for T in range(7)]; vCP = accb + 16
    L += ['s_load_dwordx2 %s, s[0:1], 40' % S(rBI, 2), 's_load_dwordx2 %s, s[0:1], 56' % S(rGW, 2), 's_load_dwordx2 %s, s[0:1], 64' % S(rOUT, 2), 's_mov_b32 %s, 0x%x' % (S(rOUT + 2), X_SZ), 's_mov_b32 %s, 0x20000' % S(rOUT + 3)]
    L += ['s_getpc_b64 %s' % S(sPC, 2), 'L_pc:', 's_and_b32 %s, %s, 15' % (S(sT), S(sM)), 's_lshl_b32 %s, %s, 11' % (S(sT), S(sT)),
          'v_lshrrev_b32 %s, 4, v0' % V(t1), 'v_lshl_add_u32 %s, %s, 7, %s' % (V(t1), V(t1), S(sT)), 'v_min_u32 %s, L_end-L_pc, %s' % (V(t1), V(t1)),
          'v_mov_b32 %s, %s' % (V(vCP + 1), S(sPC + 1)), 'v_add_co_u32 %s, vcc, %s, %s' % (V(vCP), S(sPC), V(t1)),
          'v_addc_co_u32 %s, vcc, 0, %s, vcc' % (V(vCP + 1), V(vCP + 1)), 'VM pf global_load_dword %s, %s, off' % (V(vPv), V(vCP, 2))]
    if P('CPF', 0): cpf = L.pop()
    L += [i for i in dmaddr if i != 'W2S'] + common2
    L += ['s_mov_b32 %s, 3584' % S(rBI + 2), 's_mov_b32 %s, 0x20000' % S(rBI + 3)]
    L += sx(sG, [(sC, 224), (sPar, 32)]) + sx(sG2, [(sC, 224), (sPar, -192)], 192)
    s0 = flat(stage_loads(0))
    L += s0[:4] + ['s_waitcnt lgkmcnt(0)'] + wst
    st('ka')
    if P('STLB', 4):
        for k, r_ in enumerate((rW1, rX, rBI, rW2, rOUT)[:P('STLB', 4)]): L += ['s_load_dword %s, %s, 0' % (S(sJunk), S(r_, 2))]
        if P('DIAGT', 0): L += ['s_waitcnt lgkmcnt(0)']; st('tl')
    bl = ['VM bias buffer_load_dwordx2 %s, %s, %s, %s offen offset:%d' % (V(vBraw[T], 2), V(vQ8), S(rBI, 4), S(sG2 if T == 6 else sG), 32 * T if T < 6 else 0) for T in range(7)]
    gwl = ['s_cmp_lg_u32 %s, 15' % S(sC), 's_cbranch_scc1 L_nogw', 'OPT_BEGIN', 'v_lshlrev_b32 %s, 4, %s' % (V(t0), V(vQ)),
           's_mov_b32 %s, 896' % S(rGW + 2), 's_mov_b32 %s, 0x20000' % S(rGW + 3), 's_lshl_b32 %s, %s, 1' % (S(sT3), S(sSig)), 's_add_u32 %s, %s, %s' % (S(sT3), S(sT3), S(sW)),
           's_lshl_b32 %s, %s, 11' % (S(sSpin), S(sW))]
    for a2 in range(4):
        gwl += ['s_add_u32 %s, %s, %d' % (S(sT2), S(sT3), 4 * a2), 's_sub_u32 %s, %s, 14' % (S(sT), S(sT2)), 's_min_u32 %s, %s, %s' % (S(sT2), S(sT2), S(sT)),
                's_lshl_b32 %s, %s, 6' % (S(sT2), S(sT2)), 's_add_u32 m0, %s, %d' % (S(sSpin), FL + a2 * 8192),
                'VM gw buffer_load_dwordx4 %s, %s, %s offen lds' % (V(t0), S(rGW, 4), S(sT2))]
    gwl += ['OPT_END', 'L_nogw:']
    wst_ = []
    for k in range(4):
        wst_ += ['s_lshl_b32 %s, %s, 21' % (S(sT2), S(sW)), 's_add_u32 %s, %s, 0x%x' % (S(sT2), S(sT2), k << 23), 's_load_dword %s, %s, %s' % (S(sJunk), S(rWS, 2), S(sT2))]
    if P('EPL', 0): L += gwl + s0[4:]; st('s0x'); L += bl + epld
    else: L += epld + gwl + s0[4:]; st('s0x'); L += bl
    if P('CPF', 0) == 1: L += [cpf]
    st('s0i')
    if P('WTLB', 0) == 2:
        wst_ = sx(sT2, [(sM, 16 << 16), (sW, 4 << 16)]) + ['s_load_dword %s, %s, %s offset:%d' % (S(sJunk), S(rWS, 2), S(sT2), k << 16) for k in range(4)]
    if P('WTLB', 0): L += wst_
    L += w2tab
    L += ['v_lshrrev_b32 %s, 2, %s' % (V(t3), V(vL)), 'v_mul_u32_u24 %s, 224, %s' % (V(vTr), V(t3)),
          'v_and_b32 %s, 3, %s' % (V(t3), V(vL)), 'v_lshl_add_u32 %s, %s, 3, %s' % (V(vTr), V(t3), V(vTr)), 'v_add_u32 %s, 65536, %s' % (V(vTr + 1), V(vTr)),
          's_mov_b32 %s, %s' % (S(sL2E), f2u(LOG2E)), 's_mov_b32 %s, %s' % (S(sL2E + 1), f2u(LOG2E))]
    for d in range(4):
        L += ['s_xor_b32 %s, %s, %d' % (S(sT2), S(sC), d)] + sx(sAct + d, [(sN2, ACT_N2), (sT2, ACT_C)], ACT_OFF)
    L += sx(sPTs, [(sN2, 16 * PART_B), (sNB, 4 * PART_B), (sKS, PART_B)], PART_OFF)
    L += ['s_add_u32 %s, %s, 7168' % (S(sFG), S(sAct)), 's_add_u32 %s, %s, 7168' % (S(sFP), S(sPTs))]
    if P('FTOUCH', 0): L += ['s_load_dword %s, %s, %s glc' % (S(sJunk), S(rWS, 2), S(r_)) for r_ in (sFG, sFP)]
    L += ['v_add_u32 %s, 4096, %s' % (V(t0), V(vL16)), 'v_add_u32 %s, 8192, %s' % (V(t1), V(vL16)), 'v_add_u32 %s, %d, %s' % (V(t2), OPL, V(vL16))]
    vU = [vL16, t0, t1]
    uaddr = lambda u: (V(vU[u // 4]), (u % 4) * 1024)
    cm2 = c2 + 2; c1 = c2 + 4
    L += ['v_mov_b32 %s, 2.0' % V(c2), 'v_mov_b32 %s, 2.0' % V(c2 + 1), 'v_mov_b32 %s, -2.0' % V(cm2), 'v_mov_b32 %s, -2.0' % V(cm2 + 1),
          'v_mov_b32 %s, 1.0' % V(c1), 'v_mov_b32 %s, 1.0' % V(c1 + 1)]
    L += flat(stage_loads(1)) + ['WAITVM bias']
    bcv = []
    for T in range(7):
        for hh in range(2):
            bcv += ['v_lshlrev_b32 %s, 16, %s' % (V(vB[T] + 2 * hh), V(vBraw[T] + hh)), 'v_and_b32 %s, 0xffff0000, %s' % (V(vB[T] + 2 * hh + 1), V(vBraw[T] + hh))]
    L += ['WAITVM st0 lgkmcnt(0)']
    st('pro')
    def tr_reads(tag, dst, base, order):
        reg = vTr + (base >= 65536); off = base - (65536 if base >= 65536 else 0)
        return ['LK %s_%d ds_read_b64_tr_b16 %s, %s offset:%d' % (tag, T, A(dst[T] + 2 * b, 2), V(reg), off + b * 3584 + T * 32) for T in order for b in range(2)]
    ORD = [6, 0, 1, 2, 3, 4, 5]
    readsA = lambda ks: xread(ks, XF) + tr_reads('a%d' % ks, WF[ks & 1], W1R + ((ks // 2) % 4) * 14336 + (ks & 1) * 7168, ORD)
    mfA = lambda ks: with_waits('a%d' % ks, ORD, lambda T: ['%s %s, %s, %s, %s' % (MFMA, V(ACC[rt][T], 4), A(WF[ks & 1][T], 4), A(XF[ks & 1][rt], 4),
                                                            V(ACC[rt][T], 4) if ks else V(vB[T], 4)) for rt in range(2)], 3)
    L += ['s_barrier']
    st('b0')
    L += readsA(0) + bcv + tagc
    ATM = P('ATM', 0)
    for ks in range(12 if ATM else 14):
        if ks == 13: L += lsig(9, t3)
        elif ks & 1: L += (['WAITVM st1'] if ks == 1 else []) + ['s_barrier']
        if ks & 1: st('b%d' % ((ks + 1) // 2))
        L += sched(mfA(ks), readsA(ks + 1) if ks < 13 else [], [], [])
    mft = lambda Ts: ['%s %s, %s, %s, %s' % (MFMA, V(ACC[rt][T], 4), A(WF[ks & 1][T], 4), A(XF[ks & 1][rt], 4), V(ACC[rt][T], 4)) for ks in (12, 13) for T in Ts for rt in range(2)]
    if ATM:
        r13 = readsA(13); m6 = mft([6]); m01 = mft([0, 1])
        L += r13[:8] + ['WAITLK a12_1'] + weave(m6[:2] + m01[:4], r13[8:]) + lsig(9, t3) + ['WAITLK a13_1'] + m6[2:] + m01[4:] + ['s_waitcnt lgkmcnt(0)']
    L += ['s_setprio %d' % P('PRM', 0)]
    st('mainA')
    def mish(src, dst, E, Aa):
        nv = 4 * len(src)
        h = lambda k: src[k // 4] + (k % 4)
        o = []
        for k in range(0, nv, 2): o += ['v_pk_mul_f32 %s, %s, %s' % (V(E + k, 2), V(h(k), 2), S(sL2E, 2))]
        for k in range(nv): o += ['v_exp_f32 %s, %s' % (V(E + k), V(E + k))]
        for k in range(0, nv, 2): o += ['v_pk_add_f32 %s, %s, %s' % (V(Aa + k, 2), V(E + k, 2), V(c2, 2))]
        for k in range(0, nv, 2): o += ['v_pk_fma_f32 %s, %s, %s, %s' % (V(E + k, 2), V(E + k, 2), V(Aa + k, 2), V(c2, 2))]
        for k in range(nv): o += ['v_rcp_f32 %s, %s' % (V(E + k), V(E + k))]
        for k in range(0, nv, 2): o += ['v_pk_fma_f32 %s, %s, %s, %s' % (V(E + k, 2), V(E + k, 2), V(cm2, 2), V(c1, 2))]
        for k in range(0, nv, 2): o += ['v_pk_mul_f32 %s, %s, %s' % (V(E + k, 2), V(E + k, 2), V(h(k), 2))]
        for k in range(0, nv, 2): o += ['v_cvt_pk_bf16_f32 %s, %s, %s' % (V(dst[k // 2]), V(E + k), V(E + k + 1))]
        return o
    ust = lambda r, u: 'VM act%d buffer_store_dwordx4 %s, %s, %s, %s offen offset:%d %s' % (max(u - 1, 0) // 2, V(r, 4), uaddr(u)[0], S(rWS, 4), S(sAct), uaddr(u)[1], SC)
    L += mish([ACC[0][6], ACC[1][6]], [U0[0] + k for k in range(4)], tmpA, tmpA + 8) + [ust(U0[0], 0)]
    readsC = lambda sl: tr_reads('c%d' % sl, WF[sl & 1], W2B[sl // 2] + (sl & 1) * 7168, range(7))
    for Pp in range(3):
        if ATM and Pp < 2: L += mft([2 * Pp + 2, 2 * Pp + 3])
        for rt in range(2):
            o = OWN[Pp][rt]
            L += mish([ACC[rt][2 * Pp], ACC[rt][2 * Pp + 1]], [o + k for k in range(4)], tmpA, tmpA + 8) + [ust(o, 1 + 2 * Pp + rt)]
    st('mish')
    GR = [sl for sl in range(3, 14) if SLOT[sl][0] != 'm']
    greg = {sl: RG[k] for k, sl in enumerate(GR)}
    uld = lambda tag, r, d, u: ['VM %s buffer_load_dwordx4 %s, %s, %s, %s offen offset:%d %s' % (tag, V(r, 4), uaddr(u)[0], S(rWS, 4), S(sAct + d), uaddr(u)[1], SC)]
    def gload(sl):
        d, Pp = SLOT[sl]
        if d == 'm': return [uld('g%d' % sl, U0[dd], dd, 0) for dd in ((1,) if Pp == 0 else (2, 3))]
        return [uld('g%d' % sl, greg[sl] + 4 * k, d, 1 + 2 * Pp + k) for k in range(2)]
    def gfix(sl):
        d, Pp = SLOT[sl]
        if d != 'm': return []
        fa, fb_ = (0, 1) if Pp == 0 else (2, 3)
        return [['WAITVM g%d' % sl]] + [['v_accvgpr_write_b32 %s, %s' % (A(XF[Pp][rt] + k), V(U0[fb_ if k >= 2 else fa] + 2 * rt + (k & 1)))] for rt in range(2) for k in range(4)]
    def opC(sl, rt):
        if sl < 3: return V(OWN[sl][rt], 4)
        return A(XF[SLOT[sl][1]][rt], 4) if SLOT[sl][0] == 'm' else V(greg[sl] + 4 * rt, 4)
    mfC = lambda sl: with_waits('c%d' % sl, list(range(7)), lambda T: ['%s %s, %s, %s, %s' % (MFMA, V(ACC[rt][T], 4), A(WF[sl & 1][T], 4),
                                opC(sl, rt), V(ACC[rt][T], 4) if sl else '0') for rt in range(2)], 2)
    NS = P('W2SN', 0)
    L += lwait(6, t3) + lwait(9, t3) + readsC(0)
    W2L = P('W2L', 2)
    hi = [u for t in range(W2L + NS, 7) for u in w2_loads(t)]; pst = [99]
    hq = hi if P('OWNDMA', 1) else []
    FGS = P('FGSL', 3)
    L += ['s_setprio %d' % P('PRM2', 0)]
    OL = P('OWNLATE', 0)
    for sl in range(3 - OL):
        if sl == FGS: L += ['WAITVM act2'] + setflag(sFG); st('ack')
        L += sched(mfC(sl), readsC(sl + 1), hq if sl >= P('OWNDMA', 1) - 1 else [], [], P('PACEO', 3), pst)
    st('own0')
    hg = group_vm(hi) if hi else []
    late = 4 * P('W2LATE', 0); hl = hg[len(hg) - late:]; hg = hg[:len(hg) - late]
    n0 = min(len(hg), P('FGPRE', 0)); n1 = max(n0, len(hg) - P('FGTAIL', 6))
    pl_, pc_ = apoll('fg', [(sAct + k, 7168) for k in range(1, 4)], sTag)
    L += flat(hg[:n0])
    if FGS == 3: L += ['WAITVM act2'] + (sflag(sFG) if P('SFG', 1) else setflag(sFG)); st('ack')
    if P('VFG', 0):
        pl_ = ['v_mul_u32_u24 %s, %d, %s' % (V(vPa), FS, V(vQ)), 'v_add_u32 %s, %s, %s' % (V(vPa), S(sFGp), V(vPa))] + poll_issue('pfg'); pc_ = pc_[-1:] + poll_check('pfg')
    L += flat(hg[n0:n1]) + pl_ + flat(hg[n1:])
    st('w2i')
    tl = 6 - P('W2LATE', 0)
    L += pc_
    st('fg')
    hi = [u for sl in range(3, 14) for u in gload(sl)]
    k = P('AFPRE', 9); L += flat(hi[:k])
    for sl in range(3 - OL, 3): L += sched(mfC(sl), readsC(sl + 1), [], [])
    L += ((['WAITVM w2_%d' % tl] + lsig(0, t3) + lwait(0, t3)) if hg else []); k2 = P('AFMID', 13)
    hi = hi[k:k2] + [u for t in range(tl + 1, 7) for u in w2_loads(t)] + hi[k2:]
    if NS: L += lwait(7, t3)
    TM = P('TMAJ', 4)
    WR_ = WF[0] + WF[1]
    tuse = [(sl, T) for T in range(7) for sl in range(14 - TM, 14)]
    n0_ = ((14 - TM) & 1) * 7
    def tread(n):
        sl, T = tuse[n]; base = W2B[sl // 2] + (sl & 1) * 7168
        reg = vTr + (base >= 65536); off = base - (65536 if base >= 65536 else 0)
        return ['LK tm%d ds_read_b64_tr_b16 %s, %s offset:%d' % (n, A(WR_[(n0_ + n) % 14] + 2 * b_, 2), V(reg), off + b_ * 3584 + T * 32) for b_ in range(2)]
    for sl in range(3, 14 - TM):
        lo = gfix(sl + 1) if sl + 1 < 14 else []
        if sl == 13 - TM: lo = [u for q in range(sl + 1, 14) for u in gfix(q)]
        PU = [fr + 4 * k for k in range(11)]
        if PTAG and sl == 12: lo += [['v_mov_b32 %s, %s' % (V(r + 3), S(sTag))] for r in PU]
        tg = 'g%d' % sl
        need = ['g%d' % sl] + [i.split()[1] for i in flat(lo) if i.startswith('WAITVM')]
        while any(i.startswith('VM %s ' % t_) for i in flat(hi) for t_ in need): L += flat([hi.pop(0)])
        if SLOT[sl][0] != 'm': L += ['WAITVM %s' % tg]
        mm = mfC(sl)
        rd = readsC(sl + 1) if sl < 13 - TM else [x for n in range(min(7, len(tuse))) for x in tread(n)]
        L += sched(mm[:4], rd[:4], hi, [], P('PACEC', 2), pst) + sched(mm[4:], rd[4:], lo, hi, P('PACEC', 2), pst) + flat(lo)
        if sl == 3: st('c3')
    assert not hi
    cvp = lambda T: ['v_cvt_pk_bf16_f32 %s, %s, %s' % (V(ACC[0][T] + 2 * rt + hh), V(ACC[rt][T] + 2 * hh), V(ACC[rt][T] + 2 * hh + 1)) for rt in range(2) for hh in range(2)]
    pst_ = lambda T: cvp(T) + ['VM part buffer_store_dwordx4 %s, %s, %s, %s offen offset:%d %s' % (V(ACC[0][T], 4), uaddr(T)[0], S(rWS, 4), S(sPTs), uaddr(T)[1], SC)]
    L += ['s_cmp_eq_u32 %s, %s' % (S(sW), S(sKS)), 's_cselect_b32 %s, 0x%x, %s' % (S(sPTs), OOB, S(sPTs))]
    if TM:
        L += ['WAITVM g13']
        st('tm')
        for T in range(7):
            mm = []; rd = []
            for k in range(TM):
                n = T * TM + k; sl = tuse[n][0]
                pr = ['%s %s, %s, %s, %s' % (MFMA, V(ACC[rt][T], 4), A(WR_[(n0_ + n) % 14], 4), opC(sl, rt), V(ACC[rt][T], 4)) for rt in range(2)]
                if k % 2 == 0: pr[0] = ['WAITLK tm%d' % min(n + 1, T * TM + TM - 1), pr[0]]
                mm += pr
                if n + 7 < len(tuse): rd += tread(n + 7)
            q = pst_(T - 1) if T else []
            L += sched(mm[:3], rd[:3], [], []) + sched(mm[3:], rd[3:], [], q) + q
        L += pst_(6)
    elif not PTAG:
        for T in range(7): L += pst_(T)
    if PTAG:
        assert not TM
        L += ['s_cmp_eq_u32 %s, %s' % (S(sW), S(sKS)), 's_cbranch_scc1 L_ownp', 'OPT_BEGIN']
        for u in range(11):
            g, k = u // 3, u % 3
            for e in range(3):
                D = 3 * k + e; T = 2 * g + D // 4
                if D < 8 and T < 7: L += ['v_cvt_pk_bf16_f32 %s, %s, %s' % (V(PU[u] + e), V(ACC[(D % 4) // 2][T] + 2 * (D % 2)), V(ACC[(D % 4) // 2][T] + 2 * (D % 2) + 1))]
            L += ['VM part buffer_store_dwordx4 %s, %s, %s, %s offen offset:%d %s' % (V(PU[u], 4), uaddr(u)[0], S(rWS, 4), S(sPTs), uaddr(u)[1], SC)]
        L += ['OPT_END', 's_branch L_partd', 'L_ownp:', 's_nop 7']
        for T in range(7): L += cvp(T) + ['ds_write_b128 %s, %s offset:%d' % (V(t2), V(ACC[0][T], 4), T * 1024)]
        L += ['L_partd:']
        st('mainC')
    else:
        st('mainC')
        L += ['s_cmp_lg_u32 %s, %s' % (S(sW), S(sKS)), 's_cbranch_scc1 L_partd']
        L += ['ds_write_b128 %s, %s offset:%d' % (V(t2), V(ACC[0][T], 4), T * 1024) for T in range(7)]
        L += ['L_partd:'] + lsig(5, t3)
    fpo = [sAct, sAct + 1, sAct + 2]; pto = [sWp, sWp + 1, sWp + 2]
    nu = 3 if PTAG else 2
    L += sx(sG, [(sN2f, 16 * PART_B), (sNB, 4 * PART_B)], PART_OFF + 7168) + sx(sG2, [(sN2f, 16 * PART_B), (sNB, 4 * PART_B), (sW, nu * 1024)], PART_OFF)
    L += ['s_cmp_eq_u32 %s, 3' % S(sW), 's_cselect_b32 %s, 0, 2048' % S(sT3)]
    for k in range(3):
        L += ['s_add_u32 %s, %s, %d' % (S(sT2), S(sKS), k + 1), 's_and_b32 %s, %s, 3' % (S(sT2), S(sT2)),
              's_mul_i32 %s, %s, %d' % (S(pto[k]), S(sT2), PART_B), 's_add_u32 %s, %s, %s' % (S(pto[k]), S(pto[k]), S(sG2))]
        L += ['s_add_u32 %s, %s, %s' % (S(fpo[k]), S(pto[k]), S(sT3))] if PTAG else ['s_mul_i32 %s, %s, %d' % (S(fpo[k]), S(sT2), PART_B), 's_add_u32 %s, %s, %s' % (S(fpo[k]), S(fpo[k]), S(sG))]
    L += ['s_lshl_b32 %s, %s, 11' % (S(sT2), S(sW)), 'v_add_u32 %s, %s, %s' % (V(t2), S(sT2), V(t2)),
          's_add_u32 %s, %s, %d' % (S(sT2), S(sM0x), BSL), 'v_add_u32 %s, %s, %s' % (V(t1), S(sT2), V(vL16))]
    PT = [accb + 12 * k for k in range(3)] + [accb + 36]; SU = fr + 44; UT = fr + 60
    ptl = [['VM pt%d buffer_load_dwordx4 %s, %s, %s, %s offen offset:%d %s' % (k, V(PT[k] + 4 * a, 4), V(vL16), S(rWS, 4), S(pto[k]), a * 1024, SC) for a in range(2)] +
           (['VM pt%d buffer_load_dwordx4 %s, %s, %s, %s offen %s' % (k, V(PT[k] + 8, 4), V(vL16), S(rWS, 4), S(fpo[k]), SC)] if PTAG else []) for k in range(3)]
    if PTAG:
        L += ['s_waitcnt vmcnt(%d)' % P('PGATE', 0)] + lsig(5, t3); st('pack')
        L += lwait(5, t3) + flat(ptl) + ['ds_read_b128 %s, %s offset:%d' % (V(PT[3] + 4 * a, 4), V(t2), a * 1024) for a in range(2)] + ['s_waitcnt lgkmcnt(0)']; st('fp')
    else:
        L += ['WAITVM part'] + (sflag(sFP) if P('SFP', 0) else setflag(sFP)); st('pack')
        L += lwait(5, t3) + ['ds_read_b128 %s, %s offset:%d' % (V(PT[3] + 4 * a, 4), V(t2), a * 1024) for a in range(2)]
        if P('VFP', 0):
            L += ['v_mul_u32_u24 %s, %d, %s' % (V(vPa), FS, V(vQ)), 'v_add_u32 %s, %s, %s' % (V(vPa), S(sG), V(vPa))] + poll_issue('pfp') + poll_check('pfp') + ['s_waitcnt lgkmcnt(0)']
        else: L += (['s_sleep %d' % P('FPD', 0)] if P('FPD', 0) else []) + flat(list(apoll('fp', [(r_, 0) for r_ in fpo], sTag)))
        st('fp')
        L += flat(ptl)
    for D in range(8): L += ['v_lshlrev_b32 %s, 16, %s' % (V(SU + 2 * D), V(PT[3] + D)), 'v_and_b32 %s, 0xffff0000, %s' % (V(SU + 2 * D + 1), V(PT[3] + D))]
    pD = lambda k, D: PT[k] + (4 * (D // 3) + D % 3 if PTAG else D)
    L += ['v_mov_b32 %s, 0x3f80' % V(UT), 'v_mov_b32 %s, 0x3f800000' % V(UT + 1)]
    MF = P('MFIN', 1); AG = fr
    if MF:
        L += sx(sT2, [(sN2f, 896), (sNB, 224), (sW, 64)]) + ['s_add_u32 %s, %s, 917504' % (S(sT3), S(sT2)),
              'v_mul_u32_u24 %s, 57344, %s' % (V(t0), V(vJ)), 'v_add_u32 %s, %s, %s' % (V(t0), V(t0), V(vQ8)),
              'v_add_u32 %s, %s, %s' % (V(t1), S(sM0x), V(vL16)), 's_lshl_b32 %s, %s, 9' % (S(sG), S(sW)), 'v_lshl_add_u32 %s, %s, 3, %s' % (V(t2), V(vL), S(sG))]
        L += lwait(12, t3, vLW) + ['ds_read_b64 %s, %s offset:%d' % (V(AG + 16, 2), V(t2), GSL), 's_waitcnt lgkmcnt(0)']
        for rt in range(2):
            L += ['v_sub_f32 %s, 1.0, %s' % (V(AG + 18 + rt), V(AG + 16 + rt)), 'v_mul_f32 %s, %s, %s' % (V(AG + 16 + rt), f2u(2.0 / (2048 * 448)), V(AG + 16 + rt))]
    for k in range(3):
        L += flat(dcheck('pt%d' % k, [('v_cmp_ne_u32', S(sTag), V(PT[k] + 4 * u + 3)) for u in range(3)], raw(ptl[k]))) if PTAG else ['WAITVM pt%d' % k]
        for D in range(8):
            if P('DOT', 1):
                L += ['v_dot2_f32_bf16 %s, %s, %s, %s' % (V(SU + 2 * D + e), V(pD(k, D)), V(UT + e), V(SU + 2 * D + e)) for e in range(2)]
            else:
                L += ['v_lshlrev_b32 %s, 16, %s' % (V(UT + 2), V(pD(k, D))), 'v_and_b32 %s, 0xffff0000, %s' % (V(UT + 3), V(pD(k, D))),
                      'v_add_f32 %s, %s, %s' % (V(SU + 2 * D), V(SU + 2 * D), V(UT + 2)), 'v_add_f32 %s, %s, %s' % (V(SU + 2 * D + 1), V(SU + 2 * D + 1), V(UT + 3))]
            if not MF and k == 2 and D in (3, 5, 7): L += ['ds_write_b128 %s, %s offset:%d' % (V(t1), V(SU + 2 * D - 6, 4), (D // 2 - 1) * 1024)]
    if MF:
        lw = lwait(11, t3, vLW)
        L += ['s_nop 2', lw[1]] + ['v_mul_f32 %s, %s, %s' % (V(SU + q), V(AG + 18 + (q // 4) % 2), V(SU + q)) for q in range(16)]
        L += lw[2:5] + ['s_cbranch_vccz L_sok'] + lw + ['L_sok:']
        L += ['LK ag%d ds_read_b128 %s, %s offset:%d' % (k, V(AG + 4 * k, 4), V(t1), ASL + k * 1024) for k in range(4)]
        for a in range(2):
            if a: L += ['s_cmp_eq_u32 %s, 3' % S(sW), 's_cbranch_scc1 L_mfin']
            for rt in range(2):
                q = 8 * a + 4 * rt
                L += ['WAITLK ag%d' % (2 * a + rt)] + ['v_fma_f32 %s, %s, %s, %s' % (V(SU + q + r), V(AG + q + r), V(AG + 16 + rt), V(SU + q + r)) for r in range(4)]
                L += ['v_cvt_pk_bf16_f32 %s, %s, %s' % (V(SU + q + hh), V(SU + q + 2 * hh), V(SU + q + 2 * hh + 1)) for hh in range(2)]
                L += ['VM out buffer_store_dwordx2 %s, %s, %s, %s offen offset:%d' % (V(SU + q, 2), V(t0), S(rOUT, 4), S(sT3 if rt else sT2), a * 32)]
        L += ['L_mfin:']
    else:
        L += ['s_nop 2', 'ds_write_b128 %s, %s offset:%d' % (V(t1), V(SU + 12, 4), 3072)]
        L += lsig(11, t3)
    finish(L, st, 'M')
    LM = L; nvM = va.hi

    L = ['L_S:']; st = mk_st(L, 'S')
    va = Alloc('v', vbase, NV); sa = Alloc('s', sbase, 102); aa = Alloc('a', 0, NA)
    sCF = sa(); sK1 = sa(); sHF = sa(); sKP = sa(); sRot2 = sa()
    sA1o = sa(); sA1o2 = sa(); sFB = sa(); sA1x = sa(); sDFx = sa(); sPTl2 = sa(); sFA = sa(); sWo = sa(); sDFo = sa(); sB1s = sa(); sB1l = sa(); sGl = sa(); sPTl = sa(); sOut = sa()
    vAmp = va(); vFr = va(); vG = va(2); vG1 = va(2); vA1 = va()
    big = va(NV - ((va.next + 3) // 4 * 4), 4); NB = NV - big
    pa = Alloc('v', big, NV)
    MM = [[[pa(4) for u in range(4)] for t in range(2)] for e in range(2)]
    WRr = [pa(4) for t in range(2)]; WIr = [pa(4) for t in range(2)]
    fb = pa.next
    ACD = [[pa(4) for T in range(2)] for rt in range(2)]
    MR = [[pa(4) for t in range(2)] for kt in range(2)]; MI = [[pa(4) for t in range(2)] for kt in range(2)]
    tmpS = pa(24, 4)
    XF = [[aa(4) for rt in range(2)] for b in range(2)]; FF = [[aa(4) for T in range(2)] for b in range(2)]
    NR = [[aa(4) for u in range(2)] for tn in range(2)]; NI = [[aa(4) for u in range(2)] for tn in range(2)]
    BF = [[XF[0][0] + 8 * a + 4 * u for u in range(2)] for a in range(4)]
    L += ['s_load_dwordx2 %s, s[0:1], %d' % (S(r_, 2), off) for r_, off in ((rWR, 8), (rWI, 16))]
    L += common2 + ['v_add_u32 %s, %d, %s' % (V(vFr), FL, V(vL16)),
          's_lshl_b32 %s, %s, 1' % (S(sRot2), S(sSig)), 's_add_u32 %s, %s, %s' % (S(sRot2), S(sRot2), S(sW)),
          'v_lshlrev_b32 %s, 2, %s' % (V(t0), V(vL)), 'v_add_u32 %s, %d, %s' % (V(t0), LF, V(t0)), 'ds_write_b32 %s, %s' % (V(t0), V(vZero))]
    ta = Alloc('v', big, big + 64)
    cs = ta(8); sn = ta(8); th = ta(8); pk0 = ta(4); pk1 = ta(4); vKdf = ta(); vU = ta(); vD0 = ta(); vFw = vG
    vGW = [ACD[0][0] + 4 * a for a in range(4)]
    def kact(dst, a, tmp):
        return ['s_add_u32 %s, %s, %d' % (S(dst), S(sRot2), 4 * a), 's_sub_u32 %s, %s, 14' % (S(tmp), S(dst)), 's_min_u32 %s, %s, %s' % (S(dst), S(dst), S(tmp))]
    L += ['s_cmp_eq_u32 %s, 15' % S(sC), 's_cbranch_scc1 L_nofg', 'v_lshl_add_u32 %s, %s, 4, %s' % (V(vKdf), S(sC), V(vJ)), 'v_mov_b32 %s, 1.0' % V(vG1),
          'v_cmp_eq_u32 vcc, 0, %s' % V(vKdf), 'v_cndmask_b32 %s, %s, 0.5, vcc' % (V(vG1), V(vG1)),
          'v_cmp_eq_u32 vcc, 224, %s' % V(vKdf), 'v_cndmask_b32 %s, %s, 0.5, vcc' % (V(vG1), V(vG1)),
          'v_cmp_lt_u32 vcc, 224, %s' % V(vKdf), 'v_cndmask_b32 %s, %s, 0, vcc' % (V(vG1), V(vG1)), 'v_cvt_f32_u32 %s, %s' % (V(vKdf), V(vKdf)), 'v_mul_f32 %s, %s, %s' % (V(vU), S(sInv448), V(vKdf)),
          's_lshl_b32 %s, %s, 11' % (S(sT2), S(sW)), 'v_add_u32 %s, %s, %s' % (V(vFw), S(sT2), V(vFr))]
    for a in range(4):
        L += kact(sT2, a, sT3) + [
              'v_lshl_add_u32 %s, %s, 5, %s' % (V(vD0), S(sT2), V(vQ8)), 'v_cvt_f32_u32 %s, %s' % (V(vD0), V(vD0)),
              'v_mul_f32 %s, %s, %s' % (V(t3), V(vKdf), V(vD0)), 'v_mul_f32 %s, %s, %s' % (V(th), S(sInv448), V(t3)),
              'v_floor_f32 %s, %s' % (V(th), V(th)), 'v_fma_f32 %s, %s, %s, %s' % (V(t3), V(th), S(sM448), V(t3)),
              'v_mul_f32 %s, %s, %s' % (V(th), S(sInv448), V(t3))]
        for e in range(1, 8): L += ['v_add_f32 %s, %s, %s' % (V(th + e), V(th + e - 1), V(vU))]
        for e in range(8): L += ['v_cos_f32 %s, %s' % (V(cs + e), V(th + e)), 'v_sin_f32 %s, %s' % (V(sn + e), V(th + e))]
        for e in range(0, 8, 2):
            L += ['v_pk_mul_f32 %s, %s, %s op_sel_hi:[1,0]' % (V(cs + e, 2), V(cs + e, 2), V(vG1, 2)), 'v_pk_mul_f32 %s, %s, %s op_sel_hi:[1,0]' % (V(sn + e, 2), V(sn + e, 2), V(vG1, 2))]
        for e in range(4):
            L += ['v_cvt_pk_bf16_f32 %s, %s, %s' % (V(pk0 + e), V(cs + 2 * e), V(cs + 2 * e + 1)),
                  'v_cvt_pk_bf16_f32 %s, -%s, -%s' % (V(pk1 + e), V(sn + 2 * e), V(sn + 2 * e + 1))]
        L += ['ds_write_b128 %s, %s offset:%d' % (V(vFw), V(pk0, 4), a * 8192), 'ds_write_b128 %s, %s offset:%d' % (V(vFw), V(pk1, 4), a * 8192 + 1024)]
    L += ['L_nofg:']
    L += dmaddr
    for r_, sz in ((rWR, W_SZ), (rWI, W_SZ)):
        L += ['s_mov_b32 %s, 0x%x' % (S(r_ + 2), sz), 's_mov_b32 %s, 0x20000' % S(r_ + 3)]
    L += ['s_add_u32 %s, %s, 2' % (S(sSig), S(sSig)), 's_sub_u32 %s, %s, 7' % (S(sT), S(sSig)), 's_min_u32 %s, %s, %s' % (S(sSig), S(sSig), S(sT))]
    gx = lambda dst, terms, const=0: sx(dst, terms, const, sG2)
    lo1 = ['s_lshr_b32 %s, %s, 1' % (S(sHF), S(sW)), 's_and_b32 %s, %s, 15' % (S(sCF), S(sM)),
           's_lshr_b32 %s, %s, 4' % (S(sKP), S(sM)), 's_lshl_b32 %s, %s, 1' % (S(sG), S(sXc)), 's_add_u32 %s, %s, %s' % (S(sKP), S(sKP), S(sG)),
           's_and_b32 %s, %s, 1' % (S(sK1), S(sW)), 's_lshl_b32 %s, %s, 1' % (S(sG), S(sKP)), 's_add_u32 %s, %s, %s' % (S(sK1), S(sK1), S(sG))]
    lo1 += w2tab + gx(sWo, [(sK1, 450), (sCF, 32), (sHF, 32 * 14400)])
    lo1 += gx(sA1o, [(sI, A1_I), (sC, A1_B), (sW, 1024)], A1_OFF) + gx(sG, [(sN2, 128)], GATE_OFF) + ['s_add_u32 %s, %s, 8192' % (S(sA1x), S(sA1o))]
    lo1 += ['s_cmp_eq_u32 %s, 15' % S(sC), 's_cselect_b32 %s, %s, %s' % (S(sA1o), S(sG), S(sA1o)), 's_cselect_b32 %s, 64, 4096' % S(sG), 's_cselect_b64 vcc, -1, 0',
            's_add_u32 %s, %s, %s' % (S(sA1o2), S(sA1o), S(sG)), 'v_lshlrev_b32 %s, 4, %s' % (V(vA1), V(vQ)), 'v_cndmask_b32 %s, %s, %s, vcc' % (V(vA1), V(vL16), V(vA1))]
    lo1 += gx(sFB, [(sW, 16 * B1_N), (sCF, B1_C)], B1_OFF + 2048) + gx(sPTl2, [(sN2, B1_N), (sC, B1_C)], B1_OFF + 2048)
    lo1 += gx(sFA, [(sI, A1_I), (sC, A1_B), (sW, 128)], A1_OFF + 8192)
    lo1 += ['s_min_u32 %s, %s, 14' % (S(sG), S(sCF))] + gx(sDFo, [(sG, A1_B), (sK1, 256)], A1_OFF)
    lo1 += ['s_lshr_b32 %s, %s, 4' % (S(sG), S(sK1))] + gx(sDFx, [(sG, -4096 + 8), (sDFo, 1)], 8192)
    lo1 += gx(sB1s, [(sCF, B1_C), (sW, 16 * B1_N), (sKP, 128)], B1_OFF) + gx(sB1l, [(sW, 4 * B1_C), (sN2f, B1_N)], B1_OFF)
    lo1 += gx(sGl, [(sN2f, 128)], GATE_OFF) + gx(sPTl, [(sN2f, 16 * PART_B), (sNB, 4 * PART_B), (sW, 3072 if PTAG else 2048)], PART_OFF) + gx(sOut, [(sN2f, 896), (sNB, 224), (sW, 64)])
    sJunk = sSpin
    L += ['s_waitcnt lgkmcnt(0)'] + wst + epld + ['s_load_dword %s, %s, 0' % (S(sJunk), S(r_, 2)) for r_ in (rWR, rWI)] + lo1
    if P('FTOUCH', 0): L += ['s_load_dword %s, %s, %s glc' % (S(sJunk), S(rWS, 2), S(r_)) for r_ in (sFA, sPTl2)]
    q_ = tmpS
    lo = [
          'v_mul_u32_u24 %s, %d, %s' % (V(t3), 4 * 14400, V(vQ)), 'v_lshl_add_u32 %s, %s, 1, %s' % (V(t3), V(vJ), V(t3))]
    for t in range(2):
        for r in range(4): lo += ['v_mov_b32 %s, 0' % V(WRr[t] + r), 'v_mov_b32 %s, 0' % V(WIr[t] + r)]
    nlo1 = len(lo)
    vK = [q_, q_ + 1]; vS0 = q_ + 2; vS = q_ + 3; vA = [q_ + 4, q_ + 5]; c_ = [q_ + 6, q_ + 7]; s_ = [q_ + 8, q_ + 9]
    lo += ['v_cvt_f32_u32 %s, %s' % (V(vK[0]), V(vJ)), 'v_mul_f32 %s, %s, %s' % (V(vK[0]), f2u(1.0 / 2048), V(vK[0])),
           'v_add_f32 %s, %s, %s' % (V(vK[1]), f2u(16.0 / 2048), V(vK[0])),
           'v_lshl_add_u32 %s, %s, 8, %s' % (V(vS0), V(vQ), S(sN2)), 'v_cvt_f32_u32 %s, %s' % (V(vS0), V(vS0))]
    for t in range(2):
        for r in range(4):
            lo += ['v_add_f32 %s, %s, %s' % (V(vS), f2u(64.0 * (16 * t + r)), V(vS0))]
            for kt in range(2): lo += ['v_mul_f32 %s, %s, %s' % (V(vA[kt]), V(vK[kt]), V(vS))]
            for kt in range(2): lo += ['v_cos_f32 %s, %s' % (V(c_[kt]), V(vA[kt])), 'v_sin_f32 %s, %s' % (V(s_[kt]), V(vA[kt]))]
            for kt in range(2):
                lo += ['v_cvt_pk_bf16_f32 %s, %s, %s' % (V(MR[kt][t] + r), V(c_[kt]), V(s_[kt])),
                       'v_cvt_pk_bf16_f32 %s, -%s, %s' % (V(MI[kt][t] + r), V(s_[kt]), V(c_[kt]))]
    nmp = len(lo)
    vI = q_; vN0 = q_ + 1; vAn = q_ + 2; vc = q_ + 4; vs = q_ + 5
    lo += ['v_lshl_add_u32 %s, %s, 5, %s' % (V(vI), S(sHF), V(vJ)), 'v_cvt_f32_u32 %s, %s' % (V(vI), V(vI)), 'v_mul_f32 %s, %s, %s' % (V(vI), f2u(1.0 / 64), V(vI)),
           'v_lshlrev_b32 %s, 2, %s' % (V(vN0), V(vQ)), 'v_cvt_f32_u32 %s, %s' % (V(vN0), V(vN0))]
    prev = []
    for u in range(4):
        for r in range(4):
            k = (4 * u + r) & 1
            lo += ['v_add_f32 %s, %s, %s' % (V(vAn + k), f2u(16.0 * u + r), V(vN0)), 'v_mul_f32 %s, %s, %s' % (V(vAn + k), V(vAn + k), V(vI)),
                   'v_cos_f32 %s, %s' % (V(vc + 2 * k), V(vAn + k)), 'v_sin_f32 %s, %s' % (V(vs + 2 * k), V(vAn + k))] + prev
            cc, ss = V(vc + 2 * k), V(vs + 2 * k)
            rot = [(cc, ss), ('-' + ss, cc), ('-' + cc, '-' + ss), (ss, '-' + cc)]
            prev = ['v_cvt_pk_bf16_f32 %s, %s, %s' % ((V(MM[e][t][u] + r),) + rot[(t * r + e) % 4]) for e in range(2) for t in range(2)]
    lo += prev
    mml = []
    if P('MML', 0) >= 1: mml = lo[nmp:]; lo = lo[:nmp]
    if P('MML', 0) == 2: mml = lo[nlo1:] + mml; lo = lo[:nlo1]
    ngen = []
    vSs, vKk, nc, ns, pn = q_, q_ + 2, q_ + 3, q_ + 4, q_ + 5
    ngen += ['v_lshl_add_u32 %s, %s, 6, %s' % (V(vSs), V(vJ), S(sN2f)), 'v_cvt_f32_u32 %s, %s' % (V(vSs), V(vSs)), 'v_mul_f32 %s, %s, %s' % (V(vSs), f2u(1.0 / 2048), V(vSs))]
    for u in range(2):
        for r in range(4):
            ngen += ['v_add_f32 %s, %s, %s' % (V(vKk), f2u(16.0 * u + r), V(vN0)), 'v_mul_f32 %s, %s, %s' % (V(vKk), V(vKk), V(vSs)),
                   'v_cos_f32 %s, %s' % (V(nc), V(vKk)), 'v_sin_f32 %s, %s' % (V(ns), V(vKk))]
            for tn in range(2):
                ng = '-' if (tn and r & 1) else ''; ps = '' if (tn and r & 1) else '-'
                if tn == 0 or r & 1:
                    ngen += ['v_cvt_pk_bf16_f32 %s, %s%s, %s%s' % (V(pn), ng, V(nc), ps, V(ns)), 'v_cvt_pk_bf16_f32 %s, %s%s, %s%s' % (V(pn + 1), ng, V(ns), ng, V(nc))]
                ngen += ['v_accvgpr_write_b32 %s, %s' % (A(NR[tn][u] + r), V(pn)), 'v_accvgpr_write_b32 %s, %s' % (A(NI[tn][u] + r), V(pn + 1))]
    lo += ['s_lshl_b32 %s, %s, 2' % (S(sG), S(sW)), 's_add_u32 %s, %s, %d' % (S(sG), S(sG), XCH),
           'v_lshl_add_u32 %s, %s, 10, %s' % (V(t0), V(vQ), S(sG)), 'v_lshl_add_u32 %s, %s, 4, %s' % (V(t0), V(vJ), V(t0)),
           's_lshl_b32 %s, %s, 10' % (S(sG), S(sW)), 's_add_u32 %s, %s, %d' % (S(sG), S(sG), XCH), 'v_add_u32 %s, %s, %s' % (V(t1), S(sG), V(vL16))]
    pf = sx(sT2, [(sM, 12544), (sKS, 448 * 896), (sW, 25 * 128)]) + [
         'v_lshrrev_b32 %s, 1, %s' % (V(t2), V(vL)), 'v_min_u32 %s, 24, %s' % (V(t2), V(t2)), 'v_lshlrev_b32 %s, 7, %s' % (V(t2), V(t2)),
         'VM pf buffer_load_dword %s, %s, %s, %s offen%s' % (V(vPv), V(t2), S(rW2, 4), S(sT2), NT)]
    pf += sx(sT2, [(sM, 2 * 14400), (sHF, 14400), (sXc, 1800)]) + [
         'v_lshrrev_b32 %s, 3, %s' % (V(t2), V(vL)), 's_and_b32 %s, %s, 1' % (S(sT), S(sW)), 's_lshl_b32 %s, %s, 10' % (S(sT), S(sT)),
         'v_lshl_add_u32 %s, %s, 7, %s' % (V(t2), V(t2), S(sT)), 'v_min_u32 %s, 1796, %s' % (V(t2), V(t2)),
         'VM pf buffer_load_dword %s, %s, %s, %s offen%s' % (V(vPv), V(t2), S(rWR, 4), S(sT2), NT),
         'VM pf buffer_load_dword %s, %s, %s, %s offen%s' % (V(vPv), V(t2), S(rWI, 4), S(sT2), NT)]
    if P('PF2', 1):
        pf = ['s_lshr_b32 %s, %s, 2' % (S(sT3), S(sM)), 's_lshl_b32 %s, %s, 1' % (S(sT3), S(sT3)), 's_and_b32 %s, %s, 1' % (S(sT), S(sM)), 's_add_u32 %s, %s, %s' % (S(sT3), S(sT3), S(sT)),
              's_add_u32 %s, %s, 1' % (S(sG), S(sM)), 's_and_b32 %s, %s, 2' % (S(sG), S(sG)), 's_lshl_b32 %s, %s, 29' % (S(sG), S(sG))]
        if P('PF2', 1) == 2:
            pf = ['s_lshr_b32 %s, %s, 3' % (S(sT3), S(sM)), 's_lshl_b32 %s, %s, 2' % (S(sT3), S(sT3)), 's_and_b32 %s, %s, 3' % (S(sT), S(sM)), 's_add_u32 %s, %s, %s' % (S(sT3), S(sT3), S(sT)),
                  's_and_b32 %s, %s, 4' % (S(sG), S(sM)), 's_lshl_b32 %s, %s, 28' % (S(sG), S(sG))]
        pf += sx(sT2, [(sT3, 25088), (sKS, 448 * 896), (sW, 49 * 128), (sG, 1)]) + [
              'v_min_u32 %s, 48, %s' % (V(t2), V(vL)), 'v_lshlrev_b32 %s, 7, %s' % (V(t2), V(t2)),
              'VM pf buffer_load_dword %s, %s, %s, %s offen' % (V(vPv), V(t2), S(rW2, 4), S(sT2))]
        pf += sx(sT2, [(sT3, 4 * 14400), (sW, 14400), (sXc, 1800), (sG, 1)]) + [
              'v_lshrrev_b32 %s, 2, %s' % (V(t2), V(vL)), 'v_lshlrev_b32 %s, 7, %s' % (V(t2), V(t2)), 'v_min_u32 %s, 1796, %s' % (V(t2), V(t2)),
              'VM pf buffer_load_dword %s, %s, %s, %s offen' % (V(vPv), V(t2), S(rWR, 4), S(sT2)),
              'VM pf buffer_load_dword %s, %s, %s, %s offen' % (V(vPv), V(t2), S(rWI, 4), S(sT2))]
    if P('VT', 0):
        pf += ['v_min_u32 %s, 13, %s' % (V(t2), V(vJ)), 'v_lshlrev_b32 %s, 21, %s' % (V(t2), V(t2)), 'VM pf buffer_load_dword %s, %s, %s, 0 offen' % (V(vPv), V(t2), S(rWS, 4))]
    if P('FT2', 1):
        pf += ['s_andn2_b32 %s, %s, 1' % (S(sT3), S(sC)), 'v_bfe_u32 %s, %s, 3, 1' % (V(vG), V(vL))]
        pf += sx(sT2, [(sN2, ACT_N2), (sT3, ACT_C), (sG, 1)], ACT_OFF + 7168) + ['v_mul_u32_u24 %s, %d, %s' % (V(t2), ACT_C, V(vG)),
               'VM pf buffer_load_dword %s, %s, %s, %s offen sc1' % (V(vPv), V(t2), S(rWS, 4), S(sT2))]
        pf += sx(sT2, [(sI, A1_I), (sT3, A1_B), (sW, 128), (sG, 1)], A1_OFF + 8192) + ['v_mul_u32_u24 %s, %d, %s' % (V(t2), A1_B, V(vG)),
               'VM pf buffer_load_dword %s, %s, %s, %s offen sc1' % (V(vPv), V(t2), S(rWS, 4), S(sT2))]
        pf += ['s_andn2_b32 %s, %s, 1' % (S(sT3), S(sNB))] + sx(sT2, [(sN2, 16 * PART_B), (sT3, 4 * PART_B), (sKS, PART_B), (sG, 1)], PART_OFF + 7168) + [
               'v_mul_u32_u24 %s, %d, %s' % (V(t2), 4 * PART_B, V(vG)), 'VM pf buffer_load_dword %s, %s, %s, %s offen sc1' % (V(vPv), V(t2), S(rWS, 4), S(sT2))]
    wl = []
    for t in range(2):
        for r in range(4):
            wl += ['s_add_u32 %s, %s, %d' % (S(sT2), S(sWo), (16 * t + r) * 14400),
                   'VM W buffer_load_short_d16_hi %s, %s, %s, %s offen' % (V(WRr[t] + r), V(t3), S(rWR, 4), S(sT2)),
                   'VM W buffer_load_short_d16_hi %s, %s, %s, %s offen' % (V(WIr[t] + r), V(t3), S(rWI, 4), S(sT2))]
    readsS = lambda ks: xread(ks, XF) + ['LK a%d_f ds_read_b128 %s, %s offset:%d' % (ks, A(FF[ks & 1][T], 4), V(vFr), ks * 2048 + T * 1024) for T in range(2)]
    mfS = lambda ks: ['%s %s, %s, %s, %s' % (MFMA, V(ACD[rt][T], 4), A(XF[ks & 1][rt], 4), A(FF[ks & 1][T], 4), V(ACD[rt][T], 4) if ks else '0') for T in range(2) for rt in range(2)]
    L += lo
    if P('NGPRO', 0): L += ngen; ngen = []
    if P('PFS', 3) == -1: L += pf
    L += ['s_waitcnt lgkmcnt(0)', 's_setprio %d' % P('PRS', 1)] + tagc
    st('pro')
    L += ['s_barrier']
    L += readsS(0)
    ngl = []
    if not P('NGL', 0): ngl = ngen; ngen = []
    lo = mml + ngen; per = (len(lo) + 4) // 5
    ld = []
    for ks in range(14):
        if ks == 0: ld = [setflag(sPTl2)] + group_vm(stage_loads(2)) + ([pf] if P('PFS', 3) == 0 else [])
        if ks & 1:
            s = (ks + 1) // 2
            if s < 7: L += flat(ld) + (['WAITVM st%d' % s] if 2 <= s else []) + ['s_barrier']; ld = []
            if s + 2 <= 6: ld = group_vm(stage_loads(s + 2))
            if s == P('PFS', 3): ld += [pf]
            if s == 6: w01 = group_vm(w2_loads(0) + w2_loads(1)); ld += w01[:P('W2E', 8)]; w01 = w01[P('W2E', 8):]
        if ks == P('WLK', 10): ld += [wl]
        L += ['WAITLK a%d_f' % ks] + weave(mfS(ks), readsS(ks + 1) if ks < 13 else [])
        h = (len(ld) + 1) // 2 if (ks & 1 and P('SPLITLD', 1)) else len(ld)
        L += flat(ld[:h]); ld = ld[h:]
        if ks % 2 == 0 and ks: L += lo[:per]; lo = lo[per:]
    assert not lo
    L += ['s_setprio %d' % P('PRS2', 1)]
    st('mainA')
    PX = [tmpS, tmpS + 4]; DR = [tmpS + 8, tmpS + 12]; DI = [tmpS + 16, tmpS + 20]; XO = [ACD[0][0], ACD[1][0]]
    L += ['s_nop 4', 's_cmp_eq_u32 %s, 15' % S(sC), 's_cbranch_scc1 L_gate']
    for t in range(2):
        for r in range(4): L += ['v_cvt_pk_bf16_f32 %s, %s, %s' % (V(PX[t] + r), V(ACD[t][0] + r), V(ACD[t][1] + r))]
    for t in range(2):
        for kt in range(2):
            L += ['%s %s, %s, %s, %s' % (MFMA, V(DR[kt], 4), V(MR[kt][t], 4), V(PX[t], 4), V(DR[kt], 4) if t else '0'),
                  '%s %s, %s, %s, %s' % (MFMA, V(DI[kt], 4), V(MI[kt][t], 4), V(PX[t], 4), V(DI[kt], 4) if t else '0')]
    for kt in range(2):
        for r in range(4):
            L += ['v_cvt_pk_bf16_f32 %s, %s, %s' % (V(DR[kt] + r), V(DR[kt] + r), V(DI[kt] + r)),
                  'ds_write_b32 %s, %s offset:%d' % (V(t0), V(DR[kt] + r), kt * 4096 + r * 256)]
    L += lsig(1, t0) + lwait(1, t0)
    L += ['ds_read_b128 %s, %s offset:%d' % (V(XO[k], 4), V(t1), k * 4096) for k in range(2)]
    if ATAG:
        XX = ACD[0][1]
        L += ['v_mov_b32 %s, %s' % (V(XX + 1), S(sTag)), 'v_mov_b32 %s, %s' % (V(XX + 3), S(sTag)), 's_waitcnt lgkmcnt(0)']
        for k in range(2): L += ['v_mov_b32 %s, %s' % (V(XX + 2 * k), V(XO[k] + 3)), 'v_mov_b32 %s, %s' % (V(XO[k] + 3), S(sTag))]
        L += ['OPT_BEGIN', 'VM a1x buffer_store_dwordx4 %s, %s, %s, %s offen %s' % (V(XX, 4), V(vL16), S(rWS, 4), S(sA1x), SC), 'OPT_END']
    else: L += ['s_waitcnt lgkmcnt(0)']
    L += ['s_branch L_a1st', 'L_gate:', 's_nop 3']
    for rt in range(2):
        o = XO[rt]
        for r in range(4): L += ['v_mul_f32 %s, %s, %s' % (V(o + r), f2u(LOG2E), V(o + r))]
        for r in range(4): L += ['v_exp_f32 %s, -%s' % (V(o + r), V(o + r))]
        for r in range(4): L += ['v_add_f32 %s, 1.0, %s' % (V(o + r), V(o + r))]
        for r in range(4): L += ['v_rcp_f32 %s, %s' % (V(o + r), V(o + r))]
    L += ['s_nop 0', 'L_a1st:']
    L += ['VM a1 buffer_store_dwordx4 %s, %s, %s, %s offen %s' % (V(XO[k], 4), V(vA1), S(rWS, 4), S(sA1o2 if k else sA1o), SC) for k in range(2)]
    L += ['s_cmp_lg_u32 %s, 15' % S(sC), 's_cbranch_scc1 L_fa', 's_waitcnt vmcnt(0)', 'L_fa:'] + (setflag(sFA) if ATAG else [])
    st('a1st')
    L += ['s_setprio %d' % P('PRW', 1)] + flat(w01) + (wl if P('WLK', 10) == 99 else []) + ['s_setprio %d' % P('PRS2', 1)] + ((['WAITVM w2_1'] + lsig(6, t3)) if not w01 else []) + ['WAITVM a1'] + (sflag(sFA) if P('SFA', 1) else setflag(sFA)) + ((['WAITVM w2_1'] + lsig(6, t3)) if w01 else []) + lwait(9, t3) + (lwait(6, t3) if P('W2SN', 0) >= 2 else [])
    NS = P('W2SN', 0)
    ws_ = group_vm([u for t in range(P('W2L', 2), P('W2L', 2) + NS) for u in w2_loads(t)]) if NS else []
    pb = Alloc('v', fb, NV)
    DF = [pb(4) for u in range(4)]; XRr = [pb(4) for t in range(2)]; XIr = [pb(4) for t in range(2)]; PF = [pb(4) for t in range(4)]
    if ngl: ngl = ['v_lshlrev_b32 %s, 2, %s' % (V(vN0), V(vQ)), 'v_cvt_f32_u32 %s, %s' % (V(vN0), V(vN0))] + ngl
    dfl = []
    for u in range(4):
        dfl += ['s_add_u32 %s, %s, 0x%x' % (S(sT2), S(sDFo), u * 4 * A1_I),
                'VM df buffer_load_dwordx4 %s, %s, %s, %s offen %s' % (V(DF[u], 4), V(vPa), S(rWS, 4), S(sT2), SC)]
        if ATAG: dfl += ['s_add_u32 %s, %s, 0x%x' % (S(sT2), S(sDFx), u * 4 * A1_I),
                'VM df buffer_load_dwordx2 %s, %s, %s, %s offen %s' % (V(PF[0] + 2 * u, 2), V(vPa), S(rWS, 4), S(sT2), SC)]
    L += ['v_mul_u32_u24 %s, %d, %s' % (V(vPa), A1_I, V(vQ)), 'v_lshl_add_u32 %s, %s, 4, %s' % (V(vPa), V(vJ), V(vPa))]
    k1 = P('NGA', 0)
    L += ['s_min_u32 %s, %s, 14' % (S(sT3), S(sCF))] + sx(sT2, [(sT3, A1_B), (sKS, 128), (sW, 4 * A1_I)], A1_OFF + 8192)
    L += ['s_setprio %d' % P('PRW', 1)] + flat(ws_) + ['s_setprio %d' % P('PRS2', 1)] + ngl[:k1] + (['s_sleep %d' % P('FAD', 0)] if P('FAD', 0) else []) + flat(list(apoll('fa', [(sT2, k * A1_I) for k in range(4)], sTag))) + lsig(8, t3) + lwait(8, t3) + dfl
    st('fa')
    gp_, gc_ = apoll('gt', [(sG, 0)], sTag)
    gl = ['VM g buffer_load_dword %s, %s, %s, %s offen offset:%d %s' % (V(vG + rt), V(vAmp), S(rWS, 4), S(sGl), rt * 64, SC) for rt in range(2)]
    L += sx(sG, [(sKS, 128), (sI, A1_I)], A1_OFF + 8192 + 15 * A1_B) + gp_ + ngl[k1:] + gc_ + ['v_lshlrev_b32 %s, 2, %s' % (V(vAmp), V(vJ))] + gl
    if NS: L += ['WAITVM w2_%d' % (P('W2L', 2) - 1 + NS)] + lsig(7, t3)
    L += ['s_and_b32 %s, %s, 1' % (S(sT2), S(sW)), 's_lshl_b32 %s, %s, 12' % (S(sT3), S(sT2)), 's_add_u32 %s, %s, %d' % (S(sT3), S(sT3), PXC),
          'v_add_u32 %s, %s, %s' % (V(t1), S(sT3), V(vL16)), 's_lshl_b32 %s, %s, 11' % (S(sT3), S(sHF)), 'v_add_u32 %s, %s, %s' % (V(t0), S(sT3), V(t1)),
          's_lshl_b32 %s, %s, 2' % (S(sT2), S(sT2)), 's_lshl_b32 %s, %s, 12' % (S(sT3), S(sHF)), 's_add_u32 %s, %s, %s' % (S(sT2), S(sT2), S(sT3)),
          's_add_u32 %s, %s, %d' % (S(sT2), S(sT2), BXC),
          'v_lshl_add_u32 %s, %s, 9, %s' % (V(t2), V(vQ), S(sT2)), 'v_lshl_add_u32 %s, %s, 3, %s' % (V(t2), V(vJ), V(t2))]
    if ATAG:
        L += flat(dcheck('df', [('v_cmp_ne_u32', S(sTag), V(r)) for u in range(4) for r in (DF[u] + 3, PF[0] + 2 * u + 1)], raw(dfl)))
        L += ['v_mov_b32 %s, %s' % (V(DF[u] + 3), V(PF[0] + 2 * u)) for u in range(4)]
    else: L += ['WAITVM df']
    st('df')
    TR = PF[2]; TI = PF[3]
    def cmulpk(t):
        o = []
        for r in range(4):
            xr, xi, wr, wi = V(XRr[t] + r), V(XIr[t] + r), V(WRr[t] + r), V(WIr[t] + r)
            o += ['v_mul_f32 %s, %s, %s' % (V(TR + r), xr, wr), 'v_mul_f32 %s, %s, %s' % (V(TI + r), xr, wi),
                  'v_fma_f32 %s, -%s, %s, %s' % (V(TR + r), xi, wi, V(TR + r)), 'v_fma_f32 %s, %s, %s, %s' % (V(TI + r), xi, wr, V(TI + r)),
                  'v_cvt_pk_bf16_f32 %s, %s, %s' % (V(PF[t] + r), V(TI + r), V(TR + r))]
        return o + ['ds_write_b128 %s, %s offset:%d' % (V(t0), V(PF[t], 4), t * 1024)]
    stg = lambda t, e0: [x for u in range(4) for x in
                         ('%s %s, %s, %s, %s' % (MFMA, V(XRr[t], 4), V(MM[e0][t][u], 4), V(DF[u], 4), V(XRr[t], 4) if u else '0'),
                          '%s %s, %s, %s, %s' % (MFMA, V(XIr[t], 4), V(MM[1 - e0][t][u], 4), V(DF[u], 4), V(XIr[t], 4) if u else '0'))]
    cm0 = cmulpk(0); sg1 = stg(1, 0)
    L += stg(0, 0) + sg1[:3] + sched(sg1[3:], [], [], cm0) + cm0 + cmulpk(1) + lsig(2, t3); st('sta')
    L += (['v_xor_b32 %s, 8, %s' % (V(vPv), V(vLW))] + lwait(2, t3, vPv)) if P('PAIR', 1) else lwait(2, t3); st('px')
    L += ['ds_read_b128 %s, %s offset:%d' % (V(DF[u], 4), V(t1), u * 1024) for u in range(4)]
    L += ['s_lshl_b32 %s, %s, 11' % (S(sT2), S(sW)), 's_add_u32 %s, %s, %d' % (S(sT2), S(sT2), BXC), 'v_add_u32 %s, %s, %s' % (V(t1), S(sT2), V(vL16)),
          'v_lshrrev_b32 %s, 3, %s' % (V(t0), V(vL)), 'v_and_b32 %s, 7, %s' % (V(t3), V(vL)), 'v_mul_u32_u24 %s, %d, %s' % (V(t0), B1_N, V(t0)),
          'v_lshl_add_u32 %s, %s, 4, %s' % (V(t0), V(t3), V(t0)), 's_add_u32 %s, %s, %d' % (S(sT2), S(sB1s), 8 * B1_N), 's_waitcnt lgkmcnt(0)']
    outb = lambda t: [x for r in range(4) for x in ('v_cvt_pk_bf16_f32 %s, %s, %s' % (V(PF[t] + r), V(XRr[t] + r), V(XIr[t] + r)),
                                                     'ds_write_b32 %s, %s offset:%d' % (V(t2), V(PF[t] + r), t * 2048 + r * 128))]
    ob0 = outb(0); sg1 = stg(1, 1)
    L += stg(0, 1) + sg1[:4] + sched(sg1[4:], [], [], ob0) + ob0 + outb(1) + lsig(3, t3); st('stb')
    L += lwait(3, t3); st('bx')
    L += ['LK bx%d ds_read_b128 %s, %s offset:%d' % (k, V(PF[2 + k], 4), V(t1), k * 1024) for k in range(2)]
    for k in range(2):
        L += ['WAITLK bx%d' % k, 'VM b1 buffer_store_dwordx4 %s, %s, %s, %s offen %s' % (V(PF[2 + k], 4), V(t0), S(rWS, 4), S(sT2 if k else sB1s), SC)]
    st('fft')

    pd = Alloc('v', big, NV)
    GF = [[pd(4) for ct in range(2)] for T in range(15)]
    yb0 = pd.next
    CS = [[pd(2) for r in range(4)] for a in range(2)]
    kR = pd(2); kA = pd(2); vDf = pd(); vUu = pd(); vK0 = pd(); an = pd(4, 1)
    if P('GPK', 0): cheb = lambda d, k, x1, x0: ['v_pk_fma_f32 %s, %s, %s, %s op_sel_hi:[0,1,1] neg_lo:[0,0,1] neg_hi:[0,0,1]' % (V(d, 2), V(k, 2), V(x1, 2), V(x0, 2))]
    else: cheb = lambda d, k, x1, x0: ['v_fma_f32 %s, %s, %s, -%s' % (V(d + hh), V(k), V(x1 + hh), V(x0 + hh)) for hh in range(2)]
    def gen_G(ct):
        o = []
        if ct == 0:
            o += sx(sG, [(sNB, 112), (sW, 32)], 0, sG2) + ['v_add_u32 %s, %s, %s' % (V(vDf), S(sG), V(vJ)), 'v_cvt_f32_u32 %s, %s' % (V(vDf), V(vDf)),
                  'v_lshlrev_b32 %s, 2, %s' % (V(vK0), V(vQ)), 'v_cvt_f32_u32 %s, %s' % (V(vK0), V(vK0))]
        else: o += ['v_add_f32 %s, %s, %s' % (V(vDf), f2u(16.0), V(vDf))]
        o += ['v_mul_f32 %s, %s, %s' % (V(vUu), S(sInv448), V(vDf)), 'v_mul_f32 %s, %s, %s' % (V(an), V(vK0), V(vUu)),
              'v_mul_f32 %s, %s, %s' % (V(t3), f2u(16.0), V(vUu)),
              'v_cos_f32 %s, %s' % (V(kR), V(vUu)), 'v_cos_f32 %s, %s' % (V(kA), V(t3)),
              'v_add_f32 %s, %s, %s' % (V(an + 1), V(an), V(vUu)), 'v_add_f32 %s, %s, %s' % (V(an + 2), V(an), V(t3)), 'v_add_f32 %s, %s, %s' % (V(an + 3), V(an + 1), V(t3)),
              'v_add_f32 %s, %s, %s' % (V(kR), V(kR), V(kR)), 'v_add_f32 %s, %s, %s' % (V(kA), V(kA), V(kA))]
        for a in range(2):
            for r in range(2):
                o += ['v_cos_f32 %s, %s' % (V(CS[a][r]), V(an + 2 * a + r)), 'v_sin_f32 %s, -%s' % (V(CS[a][r] + 1), V(an + 2 * a + r))]
        for r in (2, 3):
            for a in range(2): o += cheb(CS[a][r], kR, CS[a][r - 1], CS[a][r - 2])
        for T in range(15):
            a = T & 1
            if T >= 2: o += [x for r in range(4) for x in cheb(CS[a][r], kA, CS[1 - a][r], CS[a][r])]
            o += ['v_cvt_pk_bf16_f32 %s, %s, %s' % (V(GF[T][ct] + r), V(CS[a][r]), V(CS[a][r] + 1)) for r in range(4)]
        return o
    bfl = [['s_add_u32 %s, %s, 0x%x' % (S(sT2), S(sB1l), a * B1_C)] +
           ['VM bf%d buffer_load_dwordx2 %s, %s, %s, %s offen offset:%d %s' % (a, A(BF[a][u] + 2 * hh, 2), V(t0), S(rWS, 4), S(sT2), u * 1024 + hh * 128, SC)
            for u in range(2) for hh in range(2)] for a in range(4)]
    gg = gen_G(0) + gen_G(1); k0_ = len(gg) * P('FBPOS', 12) // 100
    L += ['v_lshlrev_b32 %s, 8, %s' % (V(t0), V(vQ)), 'v_lshl_add_u32 %s, %s, 3, %s' % (V(t0), V(vJ), V(t0)),
          'v_mul_u32_u24 %s, %d, %s' % (V(vPa), B1_N << P('FBG', 0), V(vJ)), 's_setprio %d' % P('PRG', 0)]
    L += gg[:k0_] + ['WAITVM b1', 's_mov_b64 exec, 0x%x' % ((1 << (16 >> P('FBG', 0))) - 1), 'VM fb buffer_atomic_add %s, %s, %s, %s offen sc1' % (V(vOne), V(vPa), S(rWS, 4), S(sFB)), 's_mov_b64 exec, -1']
    k1_ = len(gg) * P('FBI', 50) // 100; k2_ = len(gg) * P('FBC', 75) // 100
    bp_, bc_ = apoll('fb', [(sFA, 0), (sFA, B1_C), (sFA, 2 * B1_C), (sT3, 0)], sDFx)
    L += ['s_andn2_b32 %s, %s, %d' % (S(sT3), S(sN2f), (1 << P('FBG', 0)) - 1)] + sx(sFA, [(sT3, B1_N), (sW, 4 * B1_C)], B1_OFF + 2048) + ['s_cmp_eq_u32 %s, 3' % S(sW), 's_cselect_b32 %s, %d, %d' % (S(sT3), 0, 1), 's_mul_i32 %s, %s, %d' % (S(sT3), S(sT3), 3 * B1_C),
          's_add_u32 %s, %s, %s' % (S(sT3), S(sT3), S(sFA)), 's_add_u32 %s, %s, 16' % (S(sDFx), S(sTag))]
    st('b1d')
    if P('DIAGB', 0): L += ['s_waitcnt vmcnt(0)']; st('fba')
    L += gg[k0_:k1_] + bp_ + gg[k1_:k2_] + bc_ + flat(bfl); st('fb')
    L += gg[k2_:] + ['s_setprio %d' % P('PRS2', 1)]
    st('gen')
    yb = Alloc('v', yb0, NV)
    YR = [[yb(4) for tn in range(2)] for a in range(2)]; YI = [[yb(4) for tn in range(2)] for a in range(2)]
    L += ['s_lshl_b32 %s, %s, 13' % (S(sT2), S(sW)), 'v_add_u32 %s, %s, %s' % (V(t1), S(sT2), V(vFr))]
    L += ['v_mul_u32_u24 %s, 57344, %s' % (V(t2), V(vJ)), 'v_add_u32 %s, %s, %s' % (V(t2), V(t2), V(vQ8)),
          's_add_u32 %s, %s, %d' % (S(sT2), S(sM0x), BSL), 'v_add_u32 %s, %s, %s' % (V(vA1), S(sT2), V(vL16)), 'WAITVM g',
          's_lshl_b32 %s, %s, 9' % (S(sG), S(sW)), 'v_lshl_add_u32 %s, %s, 3, %s' % (V(t2), V(vL), S(sG)), 'ds_write_b64 %s, %s offset:%d' % (V(t2), V(vG, 2), GSL),
          'v_add_u32 %s, %s, %s' % (V(vA1), S(sM0x), V(vL16))] + lsig(12, t3)
    bfck = lambda a: ['WAITVM bf%d' % a]
    step6 = lambda a: ['%s %s, %s, %s, %s' % (MFMA, V(Y[a & 1][tn], 4), A(BF[a][u], 4), A(N[tn][u], 4), V(Y[a & 1][tn], 4) if u else '0')
                       for u in range(2) for tn in range(2) for (Y, N) in ((YR, NR), (YI, NI))]
    def packY(a):
        o = []
        for tn in range(2):
            for r in range(4):
                o += ['v_cvt_pk_bf16_f32 %s, %s, %s' % (V(YR[a & 1][tn] + r), V(YR[a & 1][tn] + r), V(YI[a & 1][tn] + r))]
            o += ['ds_write_b128 %s, %s offset:%d' % (V(t1), V(YR[a & 1][tn], 4), a * 2048 + tn * 1024)]
        return o
    L += bfck(0); st('bf0')
    L += step6(0)
    for a in range(1, 4):
        pk_ = packY(a - 1)
        L += bfck(a) + sched(step6(a), [], [], pk_) + pk_
    L += packY(3) + lsig(4, t3); st('s6a')
    L += lwait(4, t3)
    st('s6')
    NY = 16
    YF = [4 * n for n in range(NY)]
    AC = [[yb0 + 16 + 8 * ct + 4 * rt for rt in range(2)] for ct in range(2)]
    seq = [(T, rt) for T in range(15) for rt in range(2)]
    rdY = lambda n: 'LK y%d ds_read_b128 %s, %s offset:%d' % (n, A(YF[n % NY], 4), V(vFr), seq[n][0] * 2048 + seq[n][1] * 1024)
    LA = 14
    L += [rdY(n) for n in range(LA)]
    for n, (T, rt) in enumerate(seq):
        if n % 2 == 0: L += ['WAITLK y%d' % (n + 1)]
        L += ['%s %s, %s, %s, %s' % (MFMA, V(AC[0][rt], 4), V(GF[T][0], 4), A(YF[n % NY], 4), V(AC[0][rt], 4) if T else '0')]
        if n + LA < len(seq): L += [rdY(n + LA)]
        L += ['%s %s, %s, %s, %s' % (MFMA, V(AC[1][rt], 4), V(GF[T][1], 4), A(YF[n % NY], 4), V(AC[1][rt], 4) if T else '0')]
    st('mainD')
    L += ['ds_write_b128 %s, %s offset:%d' % (V(vA1), V(AC[a][rt], 4), ASL + (2 * a + rt) * 1024) for rt in range(2) for a in range(2)]
    L += lsig(11, t3) + ['s_cmp_eq_u32 %s, 3' % S(sW), 's_cbranch_scc1 L_w3']
    L += ['s_branch L_fin', 'L_w3:', 's_cmp_lg_u32 s2, 120', 's_cbranch_scc1 L_fin', 's_mov_b32 %s, 0x%x' % (S(sT2), A1_OFF + 8192 + 15 * A1_B + 3 * A1_I), 's_add_u32 %s, %s, 0x%x' % (S(sT3), S(sT2), 8 * A1_I)] + spoll('ep', [(sT2, 0), (sT2, 4 * A1_I), (sT3, 0), (sT3, 4 * A1_I)], sTag) + ['s_mov_b32 %s, 0x%x' % (S(sT), EP_OFF)] + setflag(sT) + ['L_fin:']
    finish(L, st, 'S')
    LS = L
    if STAMP: open('stamps.txt', 'w').write(' '.join(stamps['M']) + ' / ' + ' '.join(stamps['S']))
    print('role M vgpr', nvM, 'instr', len(LM), ' role S big', NB, 'instr', len(LS), file=sys.stderr)
    if P('HACKACT', 0): LM = [l.replace(' sc1', '') if l.startswith('VM act') else l for l in LM]
    sf = os.environ.get('STF', '').replace('_', ' ')
    if sf:
        rp = lambda l: l.replace(' sc1', ' ' + sf) if (l.startswith('VM ') and 'store_dwordx4' in l) else l
        LM = [rp(l) for l in LM]; LS = [rp(l) for l in LS]
    if P('PFNT', 0): LS = [l + ' nt' if (l.startswith('VM pf') and not l.endswith('sc1')) else l for l in LS]
    if P('W1NT', 0):
        f_ = lambda l: l.replace(' offen lds', ' offen nt lds') if (l.startswith('VM st') and S(rW1, 4) in l) else l
        LS = [f_(l) for l in LS]; LM = [f_(l) for l in LM]
    of = os.environ.get('OUTF', '').replace('_', ' ')
    LM = [l + ' ' + of if l.startswith('VM out') else l for l in LM]; LS = [l + ' ' + of if l.startswith('VM out') else l for l in LS]
    return H + resolve(LM) + resolve(LS) + slow + ['L_end:', 's_endpgm'], NV, NA


DOC = """; ---------------------------------------------------------------------------------------------------------------
; Workgroups hand data over through d_ws: write-through (sc1) stores, vmcnt drain, then a flag word / counter holding a
; scalar glc loads (bounded) and read with sc1 loads.  Nothing depends on XCD placement except speed.
; ---------------------------------------------------------------------------------------------------------------"""

def build(path):
    hdr = open('cdna_kernels/%s.s.ref' % NAME).read().split('\n')
    top = [l for l in hdr if l.startswith(';') and '@launch' not in l]
    L, nv, na = build_kernel()
    Pd, nn = pad_hazards(L)
    print('lines', len(Pd), 'nops', nn, file=sys.stderr)
    out = top + ['; @launch grid=(256,1,1) block=(512,1,1) lds=%d' % LDS_SZ] + DOC.split('\n') + ['.amdgcn_target "amdgcn-amd-amdhsa--gfx950"', '.text', '.globl %s' % LABEL]
    out += [('    ' + l if not (l.endswith(':') or l.startswith('.')) else l) for l in Pd]
    out += ['.section .rodata,"a"', '.p2align 6', '.amdhsa_kernel %s' % LABEL,
            '  .amdhsa_next_free_vgpr %d' % (nv + na), '  .amdhsa_next_free_sgpr 102', '  .amdhsa_accum_offset %d' % nv,
            '  .amdhsa_group_segment_fixed_size 0', '  .amdhsa_kernarg_size 88', '  .amdhsa_user_sgpr_count 2',
            '  .amdhsa_user_sgpr_kernarg_segment_ptr 1', '  .amdhsa_system_sgpr_workgroup_id_x 1', '.end_amdhsa_kernel']
    open(path, 'w').write('\n'.join(out) + '\n')

if __name__ == '__main__':
    build(sys.argv[1] if len(sys.argv) > 1 else 'cdna_kernels/%s.s' % NAME)
```

```python
import sys, math, os
from dsl import *

NAME = 'gated_mix__spectral_gfnet__dense_activation_mish__prompt'
LABEL = NAME + '_kernel'
ACT_OFF = 0x0; ACT_C = 7168 + 128; ACT_N2 = 16 * ACT_C
PART_OFF = 0x800000; PTAG = int(os.environ.get('PTAG', 0)); PART_B = 7168 + 128
ATAG = int(os.environ.get('ATAG', 0)); A1_OFF = 0x1400000; PAD = int(os.environ.get('PAD', 1))
A1_D = 12288 if ATAG else 8192; A1_B = A1_D + 768; A1_I = 16 * A1_B + 4352 * PAD
B1_N = 2048 + 384 * PAD; B1_C = 64 * B1_N + 4352 * PAD
GATE_OFF = 0x1800000
FS = int(os.environ.get('FS', 128))
FSB = int(os.environ.get('FSB', 16)); FBL = max(128, 16 * FSB)
FG_OFF = 0x1810000; FP_OFF = 0x1850000; FB_OFF = 0x1890000; FA_OFF = 0x18d0000
EP_OFF = 0x1910000
B1_OFF = 0x1920000
WS_END = B1_OFF + 15 * B1_C
FBN = 16 * FS + 384 * PAD
OOB = 0x40000000
X_SZ = 2048 * 896; W_SZ = 2048 * 450; W1_SZ = 448 * 3584; W2_SZ = 1792 * 896
LOG2E = math.log2(math.e)
MFMA = 'v_mfma_f32_16x16x32_bf16'
SC = 'sc1'
NT = ' nt' if int(os.environ.get('LNT', 0)) else ''
XR = 0; W1R = 65536; FL = 122880; XCH = 0; PXC = 40960; BXC = 32768; YL = FL; OPL = 155648; LF = OPL + 7168; BSL = 65536; ASL = 32768; GSL = 30720; LDS_SZ = 163840
NV = 184; NA = 72
W2B = [W1R + 3 * 14336, 49152, W1R, 0, W1R + 14336, W1R + 2 * 14336, 16384]
sX, sWR, sWI, sW1, sB1, sW2, sGW, sOUT, sWS = 16, 18, 20, 24, 26, 28, 30, 32, 34
STAMP = os.environ.get('STAMP', '0') == '1'
TS_OFF = 0x2000000
SPIN_MAX = 500000
P = lambda k, d: int(os.environ.get(k, d))

def srd(L, d, base, size):
    L += ['s_mov_b32 %s, %s' % (S(d), S(base)), 's_mov_b32 %s, %s' % (S(d + 1), S(base + 1)),
          's_mov_b32 %s, 0x%x' % (S(d + 2), size), 's_mov_b32 %s, 0x20000' % S(d + 3)]

def resolve(L):
    out = []; ops = []; cur = None; nopt = 0; lks = []; waited = set()
    for l in L:
        if l == 'OPT_BEGIN': nopt += 1; cur = nopt; continue
        if l == 'OPT_END': cur = None; continue
        if l.startswith('LK '):
            _, tag, ins = l.split(' ', 2); lks.append(tag); out.append(ins); continue
        if l.startswith('ds_'): lks.append('_')
        if l.startswith('WAITLK '):
            tag = l.split(' ')[1]
            idx = max(k for k, o in enumerate(lks) if o == tag)
            out.append('s_waitcnt lgkmcnt(%d)' % min(len(lks) - 1 - idx, 15)); continue
        if l.startswith('VM '):
            _, tag, ins = l.split(' ', 2); assert tag not in waited, tag
            ops.append((tag, cur)); out.append(ins); continue
        if l.startswith('WAITVM '):
            parts = l.split(' ', 2); tag = parts[1]; extra = (' ' + parts[2]) if len(parts) > 2 else ''
            waited.add(tag)
            idx = max(k for k, o in enumerate(ops) if o[0] == tag)
            n = sum(1 for o in ops[idx + 1:] if (o[1] is None or o[1] == cur))
            out.append('s_waitcnt vmcnt(%d)%s' % (min(n, 63), extra)); continue
        assert not (l.startswith('buffer_') or l.startswith('global_')), l
        out.append(l[4:] if l.startswith('RAW ') else l)
    return out

def weave(mm, *streams):
    out = []; idx = [0] * len(streams)
    def put(u): out.extend(u if isinstance(u, list) else [u])
    for m in mm:
        put(m)
        for k, s in enumerate(streams):
            if idx[k] < len(s): put(s[idx[k]]); idx[k] += 1
    for k, s in enumerate(streams):
        for u in s[idx[k]:]: put(u)
    return out

TRANS_OPS = ('v_exp_f32', 'v_rcp_f32', 'v_sin_f32', 'v_cos_f32')
def cost(u):
    c = 0; n = 0
    for i in (u if isinstance(u, list) else [u]):
        if i.endswith(':') or i.startswith('OPT_'): continue
        n += 1
        if i.startswith('VM '): c += 15
        elif i.split()[0] in TRANS_OPS: c += 8
        elif i.startswith('s_') or i.startswith('WAIT'): pass
        else:
            assert not i.startswith('v_pk_'), i
            c += 4
    return c, n
VB = int(os.environ.get('VB', 8)); PACE2 = int(os.environ.get('PACE2', 0))
def sched(mm, rd, hi, lo, pace=1, state=None):
    out = []; rd = list(rd)
    state = state if state is not None else [99]
    def put(u): out.extend(u if isinstance(u, list) else [u])
    for k, m in enumerate(mm):
        put(m)
        state[0] += 1
        vb = VB; sl = 3
        if k + 1 < len(mm) and isinstance(mm[k + 1], list): sl -= len(mm[k + 1]) - 1
        left = len(mm) - k
        q = hi if (hi and (cost(hi[0])[0] < 15 or state[0] >= pace)) else lo
        if q and (cost(q[0])[0] > 4 or cost(q[0])[1] > 2) and len(rd) <= 2 * (left - 1) and not (PACE2 and cost(q[0])[0] >= 15 and state[0] < pace):
            c, n = cost(q[0]); put(q.pop(0)); vb -= c; sl -= n
            if c >= 15: state[0] = 0
        else:
            n = 0 if not rd else (1 if len(rd) <= left else 2)
            for _ in range(n): put(rd.pop(0)); vb -= 4; sl -= 1
        while True:
            done = True
            for q in (hi, lo):
                if q and cost(q[0])[0] <= max(vb, 0) and cost(q[0])[1] <= sl:
                    c, n = cost(q[0]); vb -= c; sl -= n; put(q.pop(0)); done = False; break
            if done: break
    out += rd
    return out

def spread(main, units, start=0, end=None):
    end = len(main) if end is None else end
    out = list(main[:start]); n = len(units); seg = main[start:end]
    for k in range(n):
        out += seg[len(seg) * k // n: len(seg) * (k + 1) // n] if False else []
    pos = [len(seg) * k // n for k in range(n)] if n else []
    ui = 0
    for k, ins in enumerate(seg):
        while ui < n and pos[ui] == k:
            out += units[ui] if isinstance(units[ui], list) else [units[ui]]; ui += 1
        out.append(ins)
    for u in units[ui:]: out += u if isinstance(u, list) else [u]
    return out + list(main[end:])


def build_kernel():
    flat = lambda U: [i for u in U for i in (u if isinstance(u, list) else [u])]
    sa = Alloc('s', 16, 102)
    rX = sa(4); rW1 = sa(4); rW2 = sa(4); rWS = sa(4); rBI = rWR = sa(4); rGW = rWI = sa(4); rOUT = sa(4)
    sT, sT2, sT3, sSpin, sTag, sW, sM = 3, 4, 5, 6, 7, 8, 9
    sPC = 12; sEp = 14; sW8 = 15
    sI = sa(); sC = sa(); sN2 = sa(); sPar = sa(); sKS = sa(); sNB = sa(); sXc = sa(); sSig = sa(); sN2f = sa(); sM0x = sa()
    sInv448 = sa(); sM448 = sa(); sG = sa(); sG2 = sa(); sR0 = sa(4)
    va = Alloc('v', 1, NV)
    vST = va(); vL = va(); vQ = va(); vJ = va(); t0 = va(); t1 = va(); t2 = va(); t3 = va(); vL16 = va(); vZero = va(); vTag = va()
    vXr = va(2, 1); vPa = va(); vPv = va(); vLF = va(); vOne = va(); vQ8 = va()
    npoll = [0]; slow = []
    stamps = {'M': ['r0', 'start'], 'S': ['r0', 'start']}
    def mk_st(L, role):
        def st(name, real=False):
            if not STAMP: return
            if os.environ.get('STSEL') and name not in os.environ['STSEL'].split(','): return
            stamps[role].append(name)
            L.extend(['%s s[10:11]' % ('s_memrealtime' if (real or P('REAL', 0)) else 's_memtime'), 's_waitcnt lgkmcnt(0)',
                      'v_writelane_b32 %s, s10, %d' % (V(vST), len(stamps[role]) - 1)])
        return st
    def poll_issue(tag):
        return ['VM %s buffer_load_dword %s, %s, %s, 0 offen %s' % (tag, V(vPv), V(vPa), S(rWS, 4), SC)]
    def poll_check(tag):
        n = npoll[0]; npoll[0] += 1
        slow.extend(['slow%d:' % n, 's_mov_b32 %s, 0' % S(sSpin), 'slowl%d:' % n, 's_sleep %d' % P('SLP_' + tag, P('SLP', 6)),
                     'buffer_load_dword %s, %s, %s, 0 offen %s' % (V(vPv), V(vPa), S(rWS, 4), SC),
                     's_waitcnt vmcnt(0)', 'v_cmp_ne_u32 vcc, %s, %s' % (S(sTag), V(vPv)), 's_add_u32 %s, %s, 1' % (S(sSpin), S(sSpin)),
                     's_nop 0', 's_cbranch_vccz back%d' % n, 's_cmp_lt_u32 %s, %d' % (S(sSpin), SPIN_MAX),
                     's_cbranch_scc1 slowl%d' % n, 's_branch back%d' % n])
        return ['WAITVM %s' % tag, 'v_cmp_ne_u32 vcc, %s, %s' % (S(sTag), V(vPv)), 's_nop 1', 's_cbranch_vccnz slow%d' % n, 'back%d:' % n]
    sCk = sa(2); sCk2 = sa(2)
    def dcheck(tag, cmps, reload, pre=[]):
        n = npoll[0]; npoll[0] += 1
        test = list(pre)
        for k, (op, s0_, r) in enumerate(cmps):
            d = 'vcc' if k == 0 else S(sCk if k & 1 else sCk2, 2)
            test += ['%s %s, %s, %s' % (op, d, s0_, r)]
            if k >= 2: test += ['s_or_b64 vcc, vcc, %s' % S(sCk2 if k & 1 else sCk, 2)]
        last = len(cmps) - 1
        test += ['s_or_b64 vcc, vcc, %s' % (S(sCk if last & 1 else sCk2, 2) if last else 'vcc')]
        slow.extend(['slow%d:' % n, 's_mov_b32 %s, 0' % S(sSpin), 'slowl%d:' % n, 's_sleep %d' % P('SLP', 4)] + reload + ['s_waitcnt vmcnt(0)'] + test +
                    ['s_cbranch_scc0 back%d' % n, 's_add_u32 %s, %s, 1' % (S(sSpin), S(sSpin)), 's_cmp_lt_u32 %s, %d' % (S(sSpin), SPIN_MAX),
                     's_cbranch_scc1 slowl%d' % n, 's_branch back%d' % n])
        return [['WAITVM %s' % tag]] + [[i] for i in test[:-1]] + [[test[-1], 's_cbranch_scc1 slow%d' % n, 'back%d:' % n]]
    def spoll(name, locs, exp, first=0):
        n = npoll[0]; npoll[0] += 1
        rs = [sCk, sCk + 1, sCk2, sCk2 + 1]
        o = ['s_mov_b32 %s, 0' % S(sSpin), 'sp%d:' % n]
        o += ['s_load_dword %s, %s, %s offset:%d glc' % (S(rs[k]), S(rWS, 2), S(so), im) for k, (so, im) in enumerate(locs)]
        o += ['s_add_u32 %s, %s, 1' % (S(sSpin), S(sSpin)), 's_cmp_ge_u32 %s, %d' % (S(sSpin), SPIN_MAX), 's_cbranch_scc1 spd%d' % n, 's_waitcnt lgkmcnt(0)']
        for k in range(len(locs)):
            o += ['s_xor_b32 %s, %s, %s' % (S(rs[k]), S(rs[k]), S(exp))]
            if k: o += ['s_or_b32 %s, %s, %s' % (S(rs[0]), S(rs[0]), S(rs[k]))]
        o += ['s_cbranch_scc1 sp%d' % n, 'spd%d:' % n, 's_waitcnt lgkmcnt(0)']
        return o
    def apoll(name, locs, exp):
        n = npoll[0]; npoll[0] += 1
        rs = [sCk, sCk + 1, sCk2, sCk2 + 1]
        ld = ['s_load_dword %s, %s, %s offset:%d glc' % (S(rs[k]), S(rWS, 2), S(so), im) for k, (so, im) in enumerate(locs)]
        t = ['s_waitcnt lgkmcnt(0)']
        for k in range(len(locs)):
            t += ['s_xor_b32 %s, %s, %s' % (S(rs[k]), S(rs[k]), S(exp))]
            if k: t += ['s_or_b32 %s, %s, %s' % (S(rs[0]), S(rs[0]), S(rs[k]))]
        slow.extend(['slow%d:' % n, 's_mov_b32 %s, 0' % S(sSpin), 'slowl%d:' % n] + ['s_sleep %d' % P('SSL_' + name, P('SSL', 2))] + ld + t +
                    ['s_cbranch_scc0 back%d' % n, 's_add_u32 %s, %s, 1' % (S(sSpin), S(sSpin)), 's_cmp_lt_u32 %s, %d' % (S(sSpin), SPIN_MAX),
                     's_cbranch_scc1 slowl%d' % n, 's_branch back%d' % n])
        return ld, t + ['s_cbranch_scc1 slow%d' % n, 'back%d:' % n]
    sflag = lambda so: ['s_atomic_swap %s, %s, %s' % (S(sTag), S(rWS, 2), S(so))]
    raw = lambda U: [i.split(' ', 2)[2] if i.startswith('VM ') else i for i in flat(U)]
    def setflag(sOff):
        return ['VM flag buffer_store_dword %s, %s, %s, %s offen %s' % (V(vTag), V(vZero), S(rWS, 4), S(sOff), SC)]
    def lsig(k, vtmp):
        return ['v_lshl_add_u32 %s, %s, 2, %s' % (V(vtmp), S(sW), V(vZero)), 'ds_write_b32 %s, %s offset:%d' % (V(vtmp), V(vOne), LF - 131072 + k * 16)] if False else \
               ['ds_write_b32 %s, %s offset:%d' % (V(vLW), V(vOne), k * 16)]
    def lwait(k, vtmp, reg=None):
        n = npoll[0]; npoll[0] += 1
        return ['lw%d:' % n, 'ds_read_b32 %s, %s offset:%d' % (V(vtmp), V(vLF if reg is None else reg), k * 16), 's_waitcnt lgkmcnt(0)',
                'v_cmp_ne_u32 vcc, 1, %s' % V(vtmp), 's_nop 1', 's_cbranch_vccnz lw%d' % n]
    vLW = va()
    def sx(dst, terms, const=0, tmp=None):
        tmp = sT if tmp is None else tmp
        o = []
        for k, (r, c) in enumerate(terms):
            d = dst if k == 0 else tmp
            if c == 1:
                o += ['s_mov_b32 %s, %s' % (S(d), S(r))] if k == 0 else ['s_add_u32 %s, %s, %s' % (S(dst), S(dst), S(r))]
                continue
            o += ['s_mul_i32 %s, %s, %d' % (S(d), S(r), c)]
            if k: o += ['s_add_u32 %s, %s, %s' % (S(dst), S(dst), S(tmp))]
        if const: o += ['s_add_u32 %s, %s, 0x%x' % (S(dst), S(dst), const)]
        return o
    def group_vm(U):
        out = []; cur = []
        for u in U:
            cur += u
            if any(i.startswith('VM ') for i in u): out.append(cur); cur = []
        if cur: out[-1] += cur
        return out
    def with_waits(tag, order, mk, step=3):
        o = []
        for n, T in enumerate(order):
            ms = mk(T)
            if n % step == 0: ms[0] = ['WAITLK %s_%d' % (tag, order[min(n + step - 1, len(order) - 1)]), ms[0]]
            o += ms
        return o
    tagc = ['s_mul_i32 %s, %s, 0x9e3779b1' % (S(sTag), S(sEp)), 's_add_u32 %s, %s, 0x7f4a7c15' % (S(sTag), S(sTag)), 'v_mov_b32 %s, %s' % (V(vTag), S(sTag))]
    if P('FULLF', 0): tagc += ['v_and_b32 %s, 31, %s' % (V(vZero), V(vL)), 'v_lshlrev_b32 %s, 2, %s' % (V(vZero), V(vZero))]
    epld = ['s_add_u32 %s, %s, 0x%x' % (S(sPC), S(rWS), EP_OFF), 's_addc_u32 %s, %s, 0' % (S(sPC + 1), S(rWS + 1)), 's_load_dword %s, %s, 0' % (S(sEp), S(sPC, 2))]
    def finish(L, st, role):
        if STAMP:
            st('end'); st('r1', True)
            L += ['s_add_u32 s4, %s, 0x%x' % (S(rWS), TS_OFF), 's_addc_u32 s5, %s, 0' % S(rWS + 1), 's_mov_b32 s6, 0x100000', 's_mov_b32 s7, 0x20000',
                  's_lshl_b32 s13, s2, 3', 's_add_u32 s13, s13, %s' % S(sW8), 's_lshl_b32 s13, s13, 8', 'v_lshlrev_b32 %s, 2, %s' % (V(t0), V(vL)),
                  'VM x buffer_store_dword %s, %s, s[4:7], s13 offen' % (V(vST), V(t0))]
            pb_ = os.environ.get('PROBE', '')
            if pb_.startswith(role + ':'):
                k = stamps[role].index(pb_[2:])
                L += ['s_cmp_lg_u32 s13, %d' % ((P('PWG', 45) * 8 + (0 if role == 'M' else 4)) * 256), 's_cbranch_scc1 L_noprobe', 'v_readlane_b32 s16, %s, %d' % (V(vST), k), 'v_readlane_b32 s17, %s, 1' % V(vST), 's_nop 3',
                      's_sub_u32 s16, s16, s17', 's_lshl_b32 s16, s16, 2', 's_add_u32 s16, s16, 10000', 'L_prl:', 's_memtime s[20:21]', 's_waitcnt lgkmcnt(0)',
                      's_sub_u32 s22, s20, s17', 's_cmp_lt_u32 s22, s16', 's_cbranch_scc1 L_prl', 'L_noprobe:']
        L += ['s_endpgm']

    H = ['.p2align 8', '.type %s,@function' % LABEL, '%s:' % LABEL, 's_cmp_ge_u32 s2, 256', 's_cbranch_scc1 L_end']
    for r_, off in ((rX, 0), (rW1, 32), (rWS, 80), (rW2, 48)):
        H += ['s_load_dwordx2 %s, s[0:1], %d' % (S(r_, 2), off)]
    if STAMP: H += ['v_mov_b32 %s, 0' % V(vST), 's_memrealtime %s' % S(sR0, 2), ('s_memrealtime %s' if P('REAL', 0) else 's_memtime %s') % S(sR0 + 2, 2)]
    H += ['v_and_b32 %s, 63, v0' % V(vL), 'v_lshrrev_b32 %s, 6, v0' % V(t0), 's_lshr_b32 %s, s2, 3' % S(sM), 's_and_b32 %s, s2, 7' % S(sXc),
          'v_readfirstlane_b32 %s, %s' % (S(sW8), V(t0)), 'v_lshrrev_b32 %s, 4, %s' % (V(vQ), V(vL)), 'v_and_b32 %s, 15, v0' % V(vJ),
          's_lshr_b32 %s, %s, 2' % (S(sI), S(sXc)), 's_lshl_b32 %s, %s, 3' % (S(sI), S(sI)),
          's_lshr_b32 %s, %s, 2' % (S(sT3), S(sM)), 's_add_u32 %s, %s, %s' % (S(sI), S(sI), S(sT3)),
          's_and_b32 %s, %s, 3' % (S(sW), S(sW8)),
          's_and_b32 %s, %s, 3' % (S(sKS), S(sXc)), 's_and_b32 %s, %s, 3' % (S(sNB), S(sM)),
          's_lshl_b32 %s, %s, 2' % (S(sC), S(sKS)), 's_add_u32 %s, %s, %s' % (S(sC), S(sC), S(sNB)),
          's_lshl_b32 %s, %s, 2' % (S(sN2f), S(sI)), 's_add_u32 %s, %s, %s' % (S(sN2), S(sN2f), S(sW)),
          's_and_b32 %s, %s, 1' % (S(sPar), S(sC))]
    H += {0: ['s_lshl_b32 %s, %s, 1' % (S(sSig), S(sNB)), 's_add_u32 %s, %s, %s' % (S(sSig), S(sSig), S(sT3)),
              's_sub_u32 %s, %s, 7' % (S(sT), S(sSig)), 's_min_u32 %s, %s, %s' % (S(sSig), S(sSig), S(sT))],
          1: ['s_mov_b32 %s, 0' % S(sSig)],
          2: ['s_add_u32 %s, %s, %s' % (S(sSig), S(sNB), S(sT3)), 's_and_b32 %s, %s, 1' % (S(sSig), S(sSig)), 's_lshl_b32 %s, %s, 2' % (S(sSig), S(sSig))],
          4: ['s_add_u32 %s, %s, %s' % (S(sSig), S(sNB), S(sT3)), 's_and_b32 %s, %s, 3' % (S(sSig), S(sSig)), 's_lshl_b32 %s, %s, 1' % (S(sSig), S(sSig))]}[P('ROT', 0)]
    H += ['s_xor_b32 %s, %s, %d' % (S(sNB), S(sNB), P('NBX', 0)), 's_lshl_b32 %s, %s, 12' % (S(sM0x), S(sW)),
          's_mov_b32 %s, 0x%x' % (S(rWS + 2), WS_END), 's_mov_b32 %s, 0x20000' % S(rWS + 3),
          's_cmp_ge_u32 %s, 4' % S(sW8), 's_cbranch_scc1 L_S']
    common2 = ['v_lshlrev_b32 %s, 4, %s' % (V(vL16), V(vL)), 'v_mov_b32 %s, 0' % V(vZero), 'v_mov_b32 %s, 1' % V(vOne), 'v_lshlrev_b32 %s, 3, %s' % (V(vQ8), V(vQ)),
               's_add_u32 %s, %s, %s' % (S(sN2f), S(sN2f), S(sKS)),
               's_mov_b32 %s, %s' % (S(sInv448), f2u(1.0 / 448)), 's_mov_b32 %s, %s' % (S(sM448), f2u(-448.0)),
               'v_lshrrev_b32 %s, 1, %s' % (V(t3), V(vJ)), 'v_xor_b32 %s, %s, %s' % (V(t3), V(t3), V(vQ)),
               'v_lshlrev_b32 %s, 4, %s' % (V(t3), V(t3)), 'v_lshl_add_u32 %s, %s, 7, %s' % (V(t3), V(vJ), V(t3)),
               'v_add_u32 %s, %s, %s' % (V(vXr), S(sM0x), V(t3)), 'v_xor_b32 %s, 64, %s' % (V(vXr + 1), V(vXr)),
               'v_and_b32 %s, 3, %s' % (V(vLF), V(vL)), 'v_lshlrev_b32 %s, 2, %s' % (V(vLF), V(vLF)), 'v_add_u32 %s, %d, %s' % (V(vLF), LF, V(vLF)),
               's_lshl_b32 %s, %s, 2' % (S(sG), S(sW)), 's_add_u32 %s, %s, %d' % (S(sG), S(sG), LF), 'v_mov_b32 %s, %s' % (V(vLW), S(sG))]
    wst = ['v_writelane_b32 %s, %s, 0' % (V(vST), S(sR0)), 'v_writelane_b32 %s, %s, 1' % (V(vST), S(sR0 + 2))] if STAMP else []
    if P('WSB', 0): wst += ['s_add_u32 %s, %s, 0x%x' % (S(rWS), S(rWS), P('WSB', 0) << 20), 's_addc_u32 %s, %s, 0' % (S(rWS + 1), S(rWS + 1))]
    sXb = sa(); sWb = sa(); sXs = sa(); sWs = sa(); sM0w = sa(); sW2b = sa()
    vXs = va(2, 1); vW1s = va(); vW2s = va()
    dmaddr = ['s_mul_i32 %s, %s, 896' % (S(sXb), S(sN2))] + sx(sWb, [(sC, 224), (sW, 8 * 3584)])
    dmaddr += ['s_mul_i32 %s, %s, 896' % (S(sM0w), S(sW)), 's_lshl_b32 %s, %s, 1' % (S(sT2), S(sPar)),
          'v_lshrrev_b32 %s, 3, %s' % (V(t0), V(vL)), 'v_mul_u32_u24 %s, 57344, %s' % (V(t0), V(t0)),
          'v_and_b32 %s, 7, %s' % (V(t1), V(vL)), 'v_xor_b32 %s, %s, %s' % (V(t1), V(t1), V(vQ)),
          'v_lshl_add_u32 %s, %s, 4, %s' % (V(vXs), V(t1), V(t0)),
          'v_xor_b32 %s, 64, %s' % (V(vXs + 1), V(vXs)), 'v_add_u32 %s, %d, %s' % (V(vXs + 1), 8 * 57344, V(vXs + 1)),
          'v_mul_u32_u24 %s, 4682, %s' % (V(t0), V(vL)), 'v_lshrrev_b32 %s, 16, %s' % (V(t0), V(t0)),
          'v_mul_u32_u24 %s, 14, %s' % (V(t1), V(t0)), 'v_sub_u32 %s, %s, %s' % (V(t1), V(vL), V(t1)),
          'v_mul_u32_u24 %s, 896, %s' % (V(t2), V(t0)), 'v_lshl_add_u32 %s, %s, 4, %s' % (V(vW2s), V(t1), V(t2)),
          'v_add_u32 %s, %s, %s' % (V(t1), S(sT2), V(t1)), 'v_subrev_u32 %s, 14, %s' % (V(t2), V(t1)), 'v_min_u32 %s, %s, %s' % (V(t1), V(t1), V(t2)),
          'v_mul_u32_u24 %s, 3584, %s' % (V(t2), V(t0)), 'v_lshl_add_u32 %s, %s, 4, %s' % (V(vW1s), V(t1), V(t2))]
    for r_, sz in ((rX, X_SZ), (rW1, W1_SZ), (rW2, W2_SZ)):
        dmaddr += ['s_mov_b32 %s, 0x%x' % (S(r_ + 2), sz), 's_mov_b32 %s, 0x20000' % S(r_ + 3)]
    def stage_loads(s):
        slot = s % 4
        U = [['s_lshl_b32 %s, %s, 7' % (S(sXs), S(sSig))], ['s_add_u32 %s, %s, %s' % (S(sXs), S(sXs), S(sXb))],
             ['s_mul_i32 %s, %s, %d' % (S(sWs), S(sSig), 64 * 3584)], ['s_add_u32 %s, %s, %s' % (S(sWs), S(sWs), S(sWb))]]
        for kk in range(2):
            for e in (2 * kk, 2 * kk + 1):
                if e == 2: U += [['s_add_u32 %s, %s, 917504' % (S(sXs), S(sXs))]]
                U += [['s_add_u32 m0, %s, %d' % (S(sM0x), XR + slot * 16384 + e * 1024)],
                      [('VM st%d buffer_load_dwordx4 %s, %s, %s offen' + NT + ' lds') % (s, V(vXs + (e & 1)), S(rX, 4), S(sXs))]]
            for b2 in range(2):
                if kk or b2: U += [['s_add_u32 %s, %s, %d' % (S(sWs), S(sWs), (4 if b2 else 28) * 3584)]]
                U += [['s_add_u32 m0, %s, %d' % (S(sM0w), W1R + slot * 14336 + (32 * kk + 16 * b2) * 224)],
                      ['s_mov_b32 exec_hi, 0xffffff', ('VM st%d buffer_load_dwordx4 %s, %s, %s offen' + NT + ' lds') % (s, V(vW1s), S(rW1, 4), S(sWs)), 's_mov_b32 exec_hi, -1']]
        U += [['s_add_u32 %s, %s, 1' % (S(sSig), S(sSig))], ['s_cmp_eq_u32 %s, 7' % S(sSig), 's_cselect_b32 %s, 0, %s' % (S(sSig), S(sSig))]]
        return U
    sWp = sa(4, 1); sWm = sa(4, 1); sC4 = sa()
    SLOT = [(0, 0), (0, 1), (0, 2), (1, 0), (1, 1), (1, 2), ('m', 0), (2, 0), (2, 1), (2, 2), (3, 0), ('m', 1), (3, 1), (3, 2)]
    w2tab = ['s_and_b32 %s, %s, 3' % (S(sC4), S(sC))] + sx(sW2b, [(sKS, 448 * 896), (sW, 4 * 896), (sNB, 224)])
    for d in range(4):
        w2tab += ['s_xor_b32 %s, %s, %d' % (S(sT), S(sC4), d), 's_mul_i32 %s, %s, 7' % (S(sT), S(sT)), 's_add_u32 %s, %s, 1' % (S(sT), S(sT)), 's_lshr_b32 %s, %s, 1' % (S(sT), S(sT)),
                  's_mul_i32 %s, %s, 28672' % (S(sT), S(sT)), 's_add_u32 %s, %s, %s' % (S(sWp + d), S(sT), S(sW2b))]
    for mm_ in range(2):
        w2tab += ['s_lshr_b32 %s, %s, 1' % (S(sT), S(sC4)), 's_xor_b32 %s, %s, %d' % (S(sT), S(sT), mm_), 's_mul_i32 %s, %s, %d' % (S(sT), S(sT), 7 * 28672),
                  's_add_u32 %s, %s, %s' % (S(sT), S(sT), S(sW2b)), 's_add_u32 %s, %s, %d' % (S(sT), S(sT), 3 * 28672),
                  's_mul_i32 %s, %s, %d' % (S(sT2), S(sPar), 16 * 896), 's_add_u32 %s, %s, %s' % (S(sWm + 2 * mm_), S(sT), S(sT2)),
                  's_sub_u32 %s, %s, %s' % (S(sT), S(sT), S(sT2)), 's_add_u32 %s, %s, %d' % (S(sWm + 2 * mm_ + 1), S(sT), 16 * 896)]
    def w2_loads(t):
        U = []
        for kk in range(2):
            d, Pp = SLOT[2 * t + kk]
            for b2 in range(2):
                if d == 'm': so = sWm + 2 * Pp + b2
                elif Pp == 0 and b2 == 0: so = sWp + d
                else: so = sWs; U += [['s_add_u32 %s, %s, %d' % (S(sWs), S(sWp + d), (32 * Pp + 16 * b2) * 896)]]
                U += [['s_add_u32 m0, %s, %d' % (S(sM0w), W2B[t] + (32 * kk + 16 * b2) * 224)],
                      ['s_mov_b32 exec_hi, 0xffffff', 'VM w2_%d buffer_load_dwordx4 %s, %s, %s offen lds' % (t, V(vW2s), S(rW2, 4), S(so)), 's_mov_b32 exec_hi, -1']]
        return U
    vbase = va.next; sbase = sa.next
    xread = lambda ks, XF: ['LK a%d_x ds_read_b128 %s, %s offset:%d' % (ks, A(XF[ks & 1][rt], 4), V(vXr + (ks & 1)), XR + ((ks // 2) % 4) * 16384 + rt * 2048) for rt in range(2)]

    L = []; st = mk_st(L, 'M')
    va = Alloc('v', vbase, NV); sa = Alloc('s', sbase, 102); aa = Alloc('a', 0, NA)
    sL2E = sa(2); sAct = sa(4, 1); sPTs = sa(); sJunk = sa(); sFG = sa(); sFP = sa(); sFGp = sa()
    vTr = va(2, 1)
    accb = va(56, 4)
    ACC = [[accb + 28 * rt + 4 * T for T in range(7)] for rt in range(2)]
    fr = va(56, 4)
    OWN = [[va(4) for rt in range(2)] for Pp in range(3)]
    assert OWN[0][0] == fr + 56
    RG = [fr + 8 * k for k in range(9)]
    U0 = [va(4) for d in range(4)]
    vB = [fr + 4 * T for T in range(7)]
    tmpA = fr + 32; c2 = fr + 48
    WF = [[aa(4) for T in range(7)] for b in range(2)]
    XF = [[aa(4) for rt in range(2)] for b in range(2)]
    vBraw = [accb + 2 * T for T in range(7)]; vCP = accb + 16
    L += ['s_load_dwordx2 %s, s[0:1], 40' % S(rBI, 2), 's_load_dwordx2 %s, s[0:1], 56' % S(rGW, 2), 's_load_dwordx2 %s, s[0:1], 64' % S(rOUT, 2), 's_mov_b32 %s, 0x%x' % (S(rOUT + 2), X_SZ), 's_mov_b32 %s, 0x20000' % S(rOUT + 3)]
    L += ['s_getpc_b64 %s' % S(sPC, 2), 'L_pc:', 's_and_b32 %s, %s, 15' % (S(sT), S(sM)), 's_lshl_b32 %s, %s, 11' % (S(sT), S(sT)),
          'v_lshrrev_b32 %s, 4, v0' % V(t1), 'v_lshl_add_u32 %s, %s, 7, %s' % (V(t1), V(t1), S(sT)), 'v_min_u32 %s, L_end-L_pc, %s' % (V(t1), V(t1)),
          'v_mov_b32 %s, %s' % (V(vCP + 1), S(sPC + 1)), 'v_add_co_u32 %s, vcc, %s, %s' % (V(vCP), S(sPC), V(t1)),
          'v_addc_co_u32 %s, vcc, 0, %s, vcc' % (V(vCP + 1), V(vCP + 1)), 'VM pf global_load_dword %s, %s, off' % (V(vPv), V(vCP, 2))]
    if P('CPF', 0): cpf = L.pop()
    L += [i for i in dmaddr if i != 'W2S'] + common2
    L += ['s_mov_b32 %s, 3584' % S(rBI + 2), 's_mov_b32 %s, 0x20000' % S(rBI + 3)]
    L += sx(sG, [(sC, 224), (sPar, 32)]) + sx(sG2, [(sC, 224), (sPar, -192)], 192)
    s0 = flat(stage_loads(0))
    L += s0[:4] + ['s_waitcnt lgkmcnt(0)'] + wst
    st('ka')
    if P('STLB', 4):
        for k, r_ in enumerate((rW1, rX, rBI, rW2, rOUT)[:P('STLB', 4)]): L += ['s_load_dword %s, %s, 0' % (S(sJunk), S(r_, 2))]
        if P('DIAGT', 0): L += ['s_waitcnt lgkmcnt(0)']; st('tl')
    bl = ['VM bias buffer_load_dwordx2 %s, %s, %s, %s offen offset:%d' % (V(vBraw[T], 2), V(vQ8), S(rBI, 4), S(sG2 if T == 6 else sG), 32 * T if T < 6 else 0) for T in range(7)]
    gwl = ['s_cmp_lg_u32 %s, 15' % S(sC), 's_cbranch_scc1 L_nogw', 'OPT_BEGIN', 'v_lshlrev_b32 %s, 4, %s' % (V(t0), V(vQ)),
           's_mov_b32 %s, 896' % S(rGW + 2), 's_mov_b32 %s, 0x20000' % S(rGW + 3), 's_lshl_b32 %s, %s, 1' % (S(sT3), S(sSig)), 's_add_u32 %s, %s, %s' % (S(sT3), S(sT3), S(sW)),
           's_lshl_b32 %s, %s, 11' % (S(sSpin), S(sW))]
    for a2 in range(4):
        gwl += ['s_add_u32 %s, %s, %d' % (S(sT2), S(sT3), 4 * a2), 's_sub_u32 %s, %s, 14' % (S(sT), S(sT2)), 's_min_u32 %s, %s, %s' % (S(sT2), S(sT2), S(sT)),
                's_lshl_b32 %s, %s, 6' % (S(sT2), S(sT2)), 's_add_u32 m0, %s, %d' % (S(sSpin), FL + a2 * 8192),
                'VM gw buffer_load_dwordx4 %s, %s, %s offen lds' % (V(t0), S(rGW, 4), S(sT2))]
    gwl += ['OPT_END', 'L_nogw:']
    wst_ = []
    for k in range(4):
        wst_ += ['s_lshl_b32 %s, %s, 21' % (S(sT2), S(sW)), 's_add_u32 %s, %s, 0x%x' % (S(sT2), S(sT2), k << 23), 's_load_dword %s, %s, %s' % (S(sJunk), S(rWS, 2), S(sT2))]
    if P('EPL', 0): L += gwl + s0[4:]; st('s0x'); L += bl + epld
    else: L += epld + gwl + s0[4:]; st('s0x'); L += bl
    if P('CPF', 0) == 1: L += [cpf]
    st('s0i')
    if P('WTLB', 0) == 2:
        wst_ = sx(sT2, [(sM, 16 << 16), (sW, 4 << 16)]) + ['s_load_dword %s, %s, %s offset:%d' % (S(sJunk), S(rWS, 2), S(sT2), k << 16) for k in range(4)]
    if P('WTLB', 0): L += wst_
    L += w2tab
    L += ['v_lshrrev_b32 %s, 2, %s' % (V(t3), V(vL)), 'v_mul_u32_u24 %s, 224, %s' % (V(vTr), V(t3)),
          'v_and_b32 %s, 3, %s' % (V(t3), V(vL)), 'v_lshl_add_u32 %s, %s, 3, %s' % (V(vTr), V(t3), V(vTr)), 'v_add_u32 %s, 65536, %s' % (V(vTr + 1), V(vTr)),
          's_mov_b32 %s, %s' % (S(sL2E), f2u(LOG2E)), 's_mov_b32 %s, %s' % (S(sL2E + 1), f2u(LOG2E))]
    for d in range(4):
        L += ['s_xor_b32 %s, %s, %d' % (S(sT2), S(sC), d)] + sx(sAct + d, [(sN2, ACT_N2), (sT2, ACT_C)], ACT_OFF)
    L += sx(sPTs, [(sN2, 16 * PART_B), (sNB, 4 * PART_B), (sKS, PART_B)], PART_OFF)
    L += ['s_add_u32 %s, %s, 7168' % (S(sFG), S(sAct)), 's_add_u32 %s, %s, 7168' % (S(sFP), S(sPTs))]
    if P('FTOUCH', 0): L += ['s_load_dword %s, %s, %s glc' % (S(sJunk), S(rWS, 2), S(r_)) for r_ in (sFG, sFP)]
    L += ['v_add_u32 %s, 4096, %s' % (V(t0), V(vL16)), 'v_add_u32 %s, 8192, %s' % (V(t1), V(vL16)), 'v_add_u32 %s, %d, %s' % (V(t2), OPL, V(vL16))]
    vU = [vL16, t0, t1]
    uaddr = lambda u: (V(vU[u // 4]), (u % 4) * 1024)
    cm2 = c2 + 2; c1 = c2 + 4
    L += ['v_mov_b32 %s, 2.0' % V(c2), 'v_mov_b32 %s, 2.0' % V(c2 + 1), 'v_mov_b32 %s, -2.0' % V(cm2), 'v_mov_b32 %s, -2.0' % V(cm2 + 1),
          'v_mov_b32 %s, 1.0' % V(c1), 'v_mov_b32 %s, 1.0' % V(c1 + 1)]
    L += flat(stage_loads(1)) + ['WAITVM bias']
    bcv = []
    for T in range(7):
        for hh in range(2):
            bcv += ['v_lshlrev_b32 %s, 16, %s' % (V(vB[T] + 2 * hh), V(vBraw[T] + hh)), 'v_and_b32 %s, 0xffff0000, %s' % (V(vB[T] + 2 * hh + 1), V(vBraw[T] + hh))]
    L += ['WAITVM st0 lgkmcnt(0)']
    st('pro')
    def tr_reads(tag, dst, base, order):
        reg = vTr + (base >= 65536); off = base - (65536 if base >= 65536 else 0)
        return ['LK %s_%d ds_read_b64_tr_b16 %s, %s offset:%d' % (tag, T, A(dst[T] + 2 * b, 2), V(reg), off + b * 3584 + T * 32) for T in order for b in range(2)]
    ORD = [6, 0, 1, 2, 3, 4, 5]
    readsA = lambda ks: xread(ks, XF) + tr_reads('a%d' % ks, WF[ks & 1], W1R + ((ks // 2) % 4) * 14336 + (ks & 1) * 7168, ORD)
    mfA = lambda ks: with_waits('a%d' % ks, ORD, lambda T: ['%s %s, %s, %s, %s' % (MFMA, V(ACC[rt][T], 4), A(WF[ks & 1][T], 4), A(XF[ks & 1][rt], 4),
                                                            V(ACC[rt][T], 4) if ks else V(vB[T], 4)) for rt in range(2)], 3)
    L += ['s_barrier']
    st('b0')
    L += readsA(0) + bcv + tagc
    ATM = P('ATM', 0); mq = []; mst = [99]
    for ks in range(12 if ATM else 14):
        if ks == 13: L += lsig(9, t3)
        elif ks & 1: L += (['WAITVM st1'] if ks == 1 else []) + ['s_barrier']
        if ks & 1: st('b%d' % ((ks + 1) // 2))
        if ks == 11 and P('MW01', 0): mq = w2_loads(0) + w2_loads(1)
        L += sched(mfA(ks), readsA(ks + 1) if ks < 13 else [], mq, [], P('PACEW', 4), mst)
    mft = lambda Ts: ['%s %s, %s, %s, %s' % (MFMA, V(ACC[rt][T], 4), A(WF[ks & 1][T], 4), A(XF[ks & 1][rt], 4), V(ACC[rt][T], 4)) for ks in (12, 13) for T in Ts for rt in range(2)]
    if ATM:
        r13 = readsA(13); m6 = mft([6]); m01 = mft([0, 1])
        L += r13[:8] + ['WAITLK a12_1'] + weave(m6[:2] + m01[:4], r13[8:]) + lsig(9, t3) + ['WAITLK a13_1'] + m6[2:] + m01[4:] + ['s_waitcnt lgkmcnt(0)']
    L += flat(mq) + ['s_setprio %d' % P('PRM', 0)]
    st('mainA')
    def mish(src, dst, E, Aa):
        nv = 4 * len(src)
        h = lambda k: src[k // 4] + (k % 4)
        o = []
        for k in range(0, nv, 2): o += ['v_pk_mul_f32 %s, %s, %s' % (V(E + k, 2), V(h(k), 2), S(sL2E, 2))]
        for k in range(nv): o += ['v_exp_f32 %s, %s' % (V(E + k), V(E + k))]
        for k in range(0, nv, 2): o += ['v_pk_add_f32 %s, %s, %s' % (V(Aa + k, 2), V(E + k, 2), V(c2, 2))]
        for k in range(0, nv, 2): o += ['v_pk_fma_f32 %s, %s, %s, %s' % (V(E + k, 2), V(E + k, 2), V(Aa + k, 2), V(c2, 2))]
        for k in range(nv): o += ['v_rcp_f32 %s, %s' % (V(E + k), V(E + k))]
        for k in range(0, nv, 2): o += ['v_pk_fma_f32 %s, %s, %s, %s' % (V(E + k, 2), V(E + k, 2), V(cm2, 2), V(c1, 2))]
        for k in range(0, nv, 2): o += ['v_pk_mul_f32 %s, %s, %s' % (V(E + k, 2), V(E + k, 2), V(h(k), 2))]
        for k in range(0, nv, 2): o += ['v_cvt_pk_bf16_f32 %s, %s, %s' % (V(dst[k // 2]), V(E + k), V(E + k + 1))]
        return o
    ust = lambda r, u: 'VM act%d buffer_store_dwordx4 %s, %s, %s, %s offen offset:%d %s' % (max(u - 1, 0) // 2, V(r, 4), uaddr(u)[0], S(rWS, 4), S(sAct), uaddr(u)[1], SC)
    L += mish([ACC[0][6], ACC[1][6]], [U0[0] + k for k in range(4)], tmpA, tmpA + 8) + [ust(U0[0], 0)]
    readsC = lambda sl: tr_reads('c%d' % sl, WF[sl & 1], W2B[sl // 2] + (sl & 1) * 7168, range(7))
    for Pp in range(3):
        if ATM and Pp < 2: L += mft([2 * Pp + 2, 2 * Pp + 3])
        if Pp == 2 and P('MW01', 0): L += ['WAITVM w2_1'] + lsig(13, t3)
        for rt in range(2):
            o = OWN[Pp][rt]
            L += mish([ACC[rt][2 * Pp], ACC[rt][2 * Pp + 1]], [o + k for k in range(4)], tmpA, tmpA + 8) + [ust(o, 1 + 2 * Pp + rt)]
    st('mish')
    GR = [sl for sl in range(3, 14) if SLOT[sl][0] != 'm']
    greg = {sl: RG[k] for k, sl in enumerate(GR)}
    uld = lambda tag, r, d, u: ['VM %s buffer_load_dwordx4 %s, %s, %s, %s offen offset:%d %s' % (tag, V(r, 4), uaddr(u)[0], S(rWS, 4), S(sAct + d), uaddr(u)[1], SC)]
    def gload(sl):
        d, Pp = SLOT[sl]
        if d == 'm': return [uld('g%d' % sl, U0[dd], dd, 0) for dd in ((1,) if Pp == 0 else (2, 3))]
        return [uld('g%d' % sl, greg[sl] + 4 * k, d, 1 + 2 * Pp + k) for k in range(2)]
    def gfix(sl):
        d, Pp = SLOT[sl]
        if d != 'm': return []
        fa, fb_ = (0, 1) if Pp == 0 else (2, 3)
        return [['WAITVM g%d' % sl]] + [['v_accvgpr_write_b32 %s, %s' % (A(XF[Pp][rt] + k), V(U0[fb_ if k >= 2 else fa] + 2 * rt + (k & 1)))] for rt in range(2) for k in range(4)]
    def opC(sl, rt):
        if sl < 3: return V(OWN[sl][rt], 4)
        return A(XF[SLOT[sl][1]][rt], 4) if SLOT[sl][0] == 'm' else V(greg[sl] + 4 * rt, 4)
    mfC = lambda sl: with_waits('c%d' % sl, list(range(7)), lambda T: ['%s %s, %s, %s, %s' % (MFMA, V(ACC[rt][T], 4), A(WF[sl & 1][T], 4),
                                opC(sl, rt), V(ACC[rt][T], 4) if sl else '0') for rt in range(2)], 2)
    NS = P('W2SN', 0)
    L += lwait(6, t3) + lwait(13 if P('MW01', 0) else 9, t3) + readsC(0)
    W2L = P('W2L', 2)
    hi = [u for t in range(W2L + NS, 7) for u in w2_loads(t)]; pst = [99]
    hq = hi if P('OWNDMA', 1) else []
    FGS = P('FGSL', 3)
    L += ['s_setprio %d' % P('PRM2', 0)]
    OL = P('OWNLATE', 0)
    for sl in range(3 - OL):
        if sl == FGS: L += ['WAITVM act2'] + setflag(sFG); st('ack')
        L += sched(mfC(sl), readsC(sl + 1), hq if sl >= P('OWNDMA', 1) - 1 else [], [], P('PACEO', 3), pst)
    st('own0')
    hg = group_vm(hi) if hi else []
    late = 4 * P('W2LATE', 0); hl = hg[len(hg) - late:]; hg = hg[:len(hg) - late]
    n0 = min(len(hg), P('FGPRE', 0)); n1 = max(n0, len(hg) - P('FGTAIL', 6))
    pl_, pc_ = apoll('fg', [(sAct + k, 7168) for k in range(1, 4)], sTag)
    L += flat(hg[:n0])
    if FGS == 3: L += ['WAITVM act2'] + (sflag(sFG) if P('SFG', 1) else setflag(sFG)); st('ack')
    if P('VFG', 0):
        pl_ = ['v_mul_u32_u24 %s, %d, %s' % (V(vPa), FS, V(vQ)), 'v_add_u32 %s, %s, %s' % (V(vPa), S(sFGp), V(vPa))] + poll_issue('pfg'); pc_ = pc_[-1:] + poll_check('pfg')
    L += flat(hg[n0:n1]) + pl_ + flat(hg[n1:])
    st('w2i')
    tl = 6 - P('W2LATE', 0)
    L += pc_
    st('fg')
    hi = [u for sl in range(3, 14) for u in gload(sl)]
    k = P('AFPRE', 9); L += flat(hi[:k])
    for sl in range(3 - OL, 3): L += sched(mfC(sl), readsC(sl + 1), [], [])
    L += ((['WAITVM w2_%d' % tl] + lsig(0, t3) + lwait(0, t3)) if hg else []); k2 = P('AFMID', 13)
    hi = hi[k:k2] + [u for t in range(tl + 1, 7) for u in w2_loads(t)] + hi[k2:]
    if NS: L += lwait(7, t3)
    TM = P('TMAJ', 4)
    WR_ = WF[0] + WF[1]
    tuse = [(sl, T) for T in range(7) for sl in range(14 - TM, 14)]
    n0_ = ((14 - TM) & 1) * 7
    def tread(n):
        sl, T = tuse[n]; base = W2B[sl // 2] + (sl & 1) * 7168
        reg = vTr + (base >= 65536); off = base - (65536 if base >= 65536 else 0)
        return ['LK tm%d ds_read_b64_tr_b16 %s, %s offset:%d' % (n, A(WR_[(n0_ + n) % 14] + 2 * b_, 2), V(reg), off + b_ * 3584 + T * 32) for b_ in range(2)]
    for sl in range(3, 14 - TM):
        lo = gfix(sl + 1) if sl + 1 < 14 else []
        if sl == 13 - TM: lo = [u for q in range(sl + 1, 14) for u in gfix(q)]
        PU = [fr + 4 * k for k in range(11)]
        if PTAG and sl == 12: lo += [['v_mov_b32 %s, %s' % (V(r + 3), S(sTag))] for r in PU]
        tg = 'g%d' % sl
        need = ['g%d' % sl] + [i.split()[1] for i in flat(lo) if i.startswith('WAITVM')]
        while any(i.startswith('VM %s ' % t_) for i in flat(hi) for t_ in need): L += flat([hi.pop(0)])
        if SLOT[sl][0] != 'm': L += ['WAITVM %s' % tg]
        mm = mfC(sl)
        rd = readsC(sl + 1) if sl < 13 - TM else [x for n in range(min(7, len(tuse))) for x in tread(n)]
        L += sched(mm[:4], rd[:4], hi, [], P('PACEC', 2), pst) + sched(mm[4:], rd[4:], lo, hi, P('PACEC', 2), pst) + flat(lo)
        if sl == 3: st('c3')
    assert not hi
    cvp = lambda T: ['v_cvt_pk_bf16_f32 %s, %s, %s' % (V(ACC[0][T] + 2 * rt + hh), V(ACC[rt][T] + 2 * hh), V(ACC[rt][T] + 2 * hh + 1)) for rt in range(2) for hh in range(2)]
    pst_ = lambda T: cvp(T) + ['VM part buffer_store_dwordx4 %s, %s, %s, %s offen offset:%d %s' % (V(ACC[0][T], 4), uaddr(T)[0], S(rWS, 4), S(sPTs), uaddr(T)[1], SC)]
    L += ['s_cmp_eq_u32 %s, %s' % (S(sW), S(sKS)), 's_cselect_b32 %s, 0x%x, %s' % (S(sPTs), OOB, S(sPTs))]
    if TM:
        L += ['WAITVM g13']
        st('tm')
        for T in range(7):
            mm = []; rd = []
            for k in range(TM):
                n = T * TM + k; sl = tuse[n][0]
                pr = ['%s %s, %s, %s, %s' % (MFMA, V(ACC[rt][T], 4), A(WR_[(n0_ + n) % 14], 4), opC(sl, rt), V(ACC[rt][T], 4)) for rt in range(2)]
                if k % 2 == 0: pr[0] = ['WAITLK tm%d' % min(n + 1, T * TM + TM - 1), pr[0]]
                mm += pr
                if n + 7 < len(tuse): rd += tread(n + 7)
            q = pst_(T - 1) if T else []
            L += sched(mm[:3], rd[:3], [], []) + sched(mm[3:], rd[3:], [], q) + q
        L += pst_(6)
    elif not PTAG:
        for T in range(7): L += pst_(T)
    if PTAG:
        assert not TM
        L += ['s_cmp_eq_u32 %s, %s' % (S(sW), S(sKS)), 's_cbranch_scc1 L_ownp', 'OPT_BEGIN']
        for u in range(11):
            g, k = u // 3, u % 3
            for e in range(3):
                D = 3 * k + e; T = 2 * g + D // 4
                if D < 8 and T < 7: L += ['v_cvt_pk_bf16_f32 %s, %s, %s' % (V(PU[u] + e), V(ACC[(D % 4) // 2][T] + 2 * (D % 2)), V(ACC[(D % 4) // 2][T] + 2 * (D % 2) + 1))]
            L += ['VM part buffer_store_dwordx4 %s, %s, %s, %s offen offset:%d %s' % (V(PU[u], 4), uaddr(u)[0], S(rWS, 4), S(sPTs), uaddr(u)[1], SC)]
        L += ['OPT_END', 's_branch L_partd', 'L_ownp:', 's_nop 7']
        for T in range(7): L += cvp(T) + ['ds_write_b128 %s, %s offset:%d' % (V(t2), V(ACC[0][T], 4), T * 1024)]
        L += ['L_partd:']
        st('mainC')
    else:
        st('mainC')
        L += ['s_cmp_lg_u32 %s, %s' % (S(sW), S(sKS)), 's_cbranch_scc1 L_partd']
        L += ['ds_write_b128 %s, %s offset:%d' % (V(t2), V(ACC[0][T], 4), T * 1024) for T in range(7)]
        L += ['L_partd:'] + lsig(5, t3)
    fpo = [sAct, sAct + 1, sAct + 2]; pto = [sWp, sWp + 1, sWp + 2]
    nu = 3 if PTAG else 2
    L += sx(sG, [(sN2f, 16 * PART_B), (sNB, 4 * PART_B)], PART_OFF + 7168) + sx(sG2, [(sN2f, 16 * PART_B), (sNB, 4 * PART_B), (sW, nu * 1024)], PART_OFF)
    L += ['s_cmp_eq_u32 %s, 3' % S(sW), 's_cselect_b32 %s, 0, 2048' % S(sT3)]
    for k in range(3):
        L += ['s_add_u32 %s, %s, %d' % (S(sT2), S(sKS), k + 1), 's_and_b32 %s, %s, 3' % (S(sT2), S(sT2)),
              's_mul_i32 %s, %s, %d' % (S(pto[k]), S(sT2), PART_B), 's_add_u32 %s, %s, %s' % (S(pto[k]), S(pto[k]), S(sG2))]
        L += ['s_add_u32 %s, %s, %s' % (S(fpo[k]), S(pto[k]), S(sT3))] if PTAG else ['s_mul_i32 %s, %s, %d' % (S(fpo[k]), S(sT2), PART_B), 's_add_u32 %s, %s, %s' % (S(fpo[k]), S(fpo[k]), S(sG))]
    L += ['s_lshl_b32 %s, %s, 11' % (S(sT2), S(sW)), 'v_add_u32 %s, %s, %s' % (V(t2), S(sT2), V(t2)),
          's_add_u32 %s, %s, %d' % (S(sT2), S(sM0x), BSL), 'v_add_u32 %s, %s, %s' % (V(t1), S(sT2), V(vL16))]
    PT = [accb + 12 * k for k in range(3)] + [accb + 36]; SU = fr + 44; UT = fr + 60
    ptl = [['VM pt%d buffer_load_dwordx4 %s, %s, %s, %s offen offset:%d %s' % (k, V(PT[k] + 4 * a, 4), V(vL16), S(rWS, 4), S(pto[k]), a * 1024, SC) for a in range(2)] +
           (['VM pt%d buffer_load_dwordx4 %s, %s, %s, %s offen %s' % (k, V(PT[k] + 8, 4), V(vL16), S(rWS, 4), S(fpo[k]), SC)] if PTAG else []) for k in range(3)]
    if PTAG:
        L += ['s_waitcnt vmcnt(%d)' % P('PGATE', 0)] + lsig(5, t3); st('pack')
        L += lwait(5, t3) + flat(ptl) + ['ds_read_b128 %s, %s offset:%d' % (V(PT[3] + 4 * a, 4), V(t2), a * 1024) for a in range(2)] + ['s_waitcnt lgkmcnt(0)']; st('fp')
    else:
        L += ['WAITVM part'] + (sflag(sFP) if P('SFP', 0) else setflag(sFP)); st('pack')
        L += lwait(5, t3) + ['ds_read_b128 %s, %s offset:%d' % (V(PT[3] + 4 * a, 4), V(t2), a * 1024) for a in range(2)]
        if P('VFP', 0):
            L += ['v_mul_u32_u24 %s, %d, %s' % (V(vPa), FS, V(vQ)), 'v_add_u32 %s, %s, %s' % (V(vPa), S(sG), V(vPa))] + poll_issue('pfp') + poll_check('pfp') + ['s_waitcnt lgkmcnt(0)']
        else: L += (['s_sleep %d' % P('FPD', 0)] if P('FPD', 0) else []) + flat(list(apoll('fp', [(r_, 0) for r_ in fpo], sTag)))
        st('fp')
        L += flat(ptl)
    for D in range(8): L += ['v_lshlrev_b32 %s, 16, %s' % (V(SU + 2 * D), V(PT[3] + D)), 'v_and_b32 %s, 0xffff0000, %s' % (V(SU + 2 * D + 1), V(PT[3] + D))]
    pD = lambda k, D: PT[k] + (4 * (D // 3) + D % 3 if PTAG else D)
    L += ['v_mov_b32 %s, 0x3f80' % V(UT), 'v_mov_b32 %s, 0x3f800000' % V(UT + 1)]
    MF = P('MFIN', 1); AG = fr
    if MF:
        L += sx(sT2, [(sN2f, 896), (sNB, 224), (sW, 64)]) + ['s_add_u32 %s, %s, 917504' % (S(sT3), S(sT2)),
              'v_mul_u32_u24 %s, 57344, %s' % (V(t0), V(vJ)), 'v_add_u32 %s, %s, %s' % (V(t0), V(t0), V(vQ8)),
              'v_add_u32 %s, %s, %s' % (V(t1), S(sM0x), V(vL16)), 's_lshl_b32 %s, %s, 9' % (S(sG), S(sW)), 'v_lshl_add_u32 %s, %s, 3, %s' % (V(t2), V(vL), S(sG))]
        L += lwait(12, t3, vLW) + ['ds_read_b64 %s, %s offset:%d' % (V(AG + 16, 2), V(t2), GSL), 's_waitcnt lgkmcnt(0)']
        for rt in range(2):
            L += ['v_sub_f32 %s, 1.0, %s' % (V(AG + 18 + rt), V(AG + 16 + rt)), 'v_mul_f32 %s, %s, %s' % (V(AG + 16 + rt), f2u(2.0 / (2048 * 448)), V(AG + 16 + rt))]
    for k in range(3):
        L += flat(dcheck('pt%d' % k, [('v_cmp_ne_u32', S(sTag), V(PT[k] + 4 * u + 3)) for u in range(3)], raw(ptl[k]))) if PTAG else ['WAITVM pt%d' % k]
        for D in range(8):
            if P('DOT', 1):
                L += ['v_dot2_f32_bf16 %s, %s, %s, %s' % (V(SU + 2 * D + e), V(pD(k, D)), V(UT + e), V(SU + 2 * D + e)) for e in range(2)]
            else:
                L += ['v_lshlrev_b32 %s, 16, %s' % (V(UT + 2), V(pD(k, D))), 'v_and_b32 %s, 0xffff0000, %s' % (V(UT + 3), V(pD(k, D))),
                      'v_add_f32 %s, %s, %s' % (V(SU + 2 * D), V(SU + 2 * D), V(UT + 2)), 'v_add_f32 %s, %s, %s' % (V(SU + 2 * D + 1), V(SU + 2 * D + 1), V(UT + 3))]
            if not MF and k == 2 and D in (3, 5, 7): L += ['ds_write_b128 %s, %s offset:%d' % (V(t1), V(SU + 2 * D - 6, 4), (D // 2 - 1) * 1024)]
    if MF:
        lw = lwait(11, t3, vLW)
        L += ['s_nop 2', lw[1]] + ['v_mul_f32 %s, %s, %s' % (V(SU + q), V(AG + 18 + (q // 4) % 2), V(SU + q)) for q in range(16)]
        L += lw[2:5] + ['s_cbranch_vccz L_sok'] + lw + ['L_sok:']
        L += ['LK ag%d ds_read_b128 %s, %s offset:%d' % (k, V(AG + 4 * k, 4), V(t1), ASL + k * 1024) for k in range(4)]
        for a in range(2):
            if a: L += ['s_cmp_eq_u32 %s, 3' % S(sW), 's_cbranch_scc1 L_mfin']
            for rt in range(2):
                q = 8 * a + 4 * rt
                L += ['WAITLK ag%d' % (2 * a + rt)] + ['v_fma_f32 %s, %s, %s, %s' % (V(SU + q + r), V(AG + q + r), V(AG + 16 + rt), V(SU + q + r)) for r in range(4)]
                L += ['v_cvt_pk_bf16_f32 %s, %s, %s' % (V(SU + q + hh), V(SU + q + 2 * hh), V(SU + q + 2 * hh + 1)) for hh in range(2)]
                L += ['VM out buffer_store_dwordx2 %s, %s, %s, %s offen offset:%d' % (V(SU + q, 2), V(t0), S(rOUT, 4), S(sT3 if rt else sT2), a * 32)]
        L += ['L_mfin:']
    else:
        L += ['s_nop 2', 'ds_write_b128 %s, %s offset:%d' % (V(t1), V(SU + 12, 4), 3072)]
        L += lsig(11, t3)
    finish(L, st, 'M')
    LM = L; nvM = va.hi

    L = ['L_S:']; st = mk_st(L, 'S')
    va = Alloc('v', vbase, NV); sa = Alloc('s', sbase, 102); aa = Alloc('a', 0, NA)
    sCF = sa(); sK1 = sa(); sHF = sa(); sKP = sa(); sRot2 = sa()
    sA1o = sa(); sA1o2 = sa(); sFB = sa(); sA1x = sa(); sDFx = sa(); sPTl2 = sa(); sFA = sa(); sWo = sa(); sDFo = sa(); sB1s = sa(); sB1l = sa(); sGl = sa(); sPTl = sa(); sOut = sa()
    vAmp = va(); vFr = va(); vG = va(2); vG1 = va(2); vA1 = va()
    big = va(NV - ((va.next + 3) // 4 * 4), 4); NB = NV - big
    pa = Alloc('v', big, NV)
    MM = [[[pa(4) for u in range(4)] for t in range(2)] for e in range(2)]
    WRr = [pa(4) for t in range(2)]; WIr = [pa(4) for t in range(2)]
    fb = pa.next
    ACD = [[pa(4) for T in range(2)] for rt in range(2)]
    MR = [[pa(4) for t in range(2)] for kt in range(2)]; MI = [[pa(4) for t in range(2)] for kt in range(2)]
    tmpS = pa(24, 4)
    XF = [[aa(4) for rt in range(2)] for b in range(2)]; FF = [[aa(4) for T in range(2)] for b in range(2)]
    NR = [[aa(4) for u in range(2)] for tn in range(2)]; NI = [[aa(4) for u in range(2)] for tn in range(2)]
    BF = [[XF[0][0] + 8 * a + 4 * u for u in range(2)] for a in range(4)]
    L += ['s_load_dwordx2 %s, s[0:1], %d' % (S(r_, 2), off) for r_, off in ((rWR, 8), (rWI, 16))]
    L += common2 + ['v_add_u32 %s, %d, %s' % (V(vFr), FL, V(vL16)),
          's_lshl_b32 %s, %s, 1' % (S(sRot2), S(sSig)), 's_add_u32 %s, %s, %s' % (S(sRot2), S(sRot2), S(sW)),
          'v_lshlrev_b32 %s, 2, %s' % (V(t0), V(vL)), 'v_add_u32 %s, %d, %s' % (V(t0), LF, V(t0)), 'ds_write_b32 %s, %s' % (V(t0), V(vZero))]
    ta = Alloc('v', big, big + 64)
    cs = ta(8); sn = ta(8); th = ta(8); pk0 = ta(4); pk1 = ta(4); vKdf = ta(); vU = ta(); vD0 = ta(); vFw = vG
    vGW = [ACD[0][0] + 4 * a for a in range(4)]
    def kact(dst, a, tmp):
        return ['s_add_u32 %s, %s, %d' % (S(dst), S(sRot2), 4 * a), 's_sub_u32 %s, %s, 14' % (S(tmp), S(dst)), 's_min_u32 %s, %s, %s' % (S(dst), S(dst), S(tmp))]
    L += ['s_cmp_eq_u32 %s, 15' % S(sC), 's_cbranch_scc1 L_nofg', 'v_lshl_add_u32 %s, %s, 4, %s' % (V(vKdf), S(sC), V(vJ)), 'v_mov_b32 %s, 1.0' % V(vG1),
          'v_cmp_eq_u32 vcc, 0, %s' % V(vKdf), 'v_cndmask_b32 %s, %s, 0.5, vcc' % (V(vG1), V(vG1)),
          'v_cmp_eq_u32 vcc, 224, %s' % V(vKdf), 'v_cndmask_b32 %s, %s, 0.5, vcc' % (V(vG1), V(vG1)),
          'v_cmp_lt_u32 vcc, 224, %s' % V(vKdf), 'v_cndmask_b32 %s, %s, 0, vcc' % (V(vG1), V(vG1)), 'v_cvt_f32_u32 %s, %s' % (V(vKdf), V(vKdf)), 'v_mul_f32 %s, %s, %s' % (V(vU), S(sInv448), V(vKdf)),
          's_lshl_b32 %s, %s, 11' % (S(sT2), S(sW)), 'v_add_u32 %s, %s, %s' % (V(vFw), S(sT2), V(vFr))]
    for a in range(4):
        L += kact(sT2, a, sT3) + [
              'v_lshl_add_u32 %s, %s, 5, %s' % (V(vD0), S(sT2), V(vQ8)), 'v_cvt_f32_u32 %s, %s' % (V(vD0), V(vD0)),
              'v_mul_f32 %s, %s, %s' % (V(t3), V(vKdf), V(vD0)), 'v_mul_f32 %s, %s, %s' % (V(th), S(sInv448), V(t3)),
              'v_floor_f32 %s, %s' % (V(th), V(th)), 'v_fma_f32 %s, %s, %s, %s' % (V(t3), V(th), S(sM448), V(t3)),
              'v_mul_f32 %s, %s, %s' % (V(th), S(sInv448), V(t3))]
        for e in range(1, 8): L += ['v_add_f32 %s, %s, %s' % (V(th + e), V(th + e - 1), V(vU))]
        for e in range(8): L += ['v_cos_f32 %s, %s' % (V(cs + e), V(th + e)), 'v_sin_f32 %s, %s' % (V(sn + e), V(th + e))]
        for e in range(0, 8, 2):
            L += ['v_pk_mul_f32 %s, %s, %s op_sel_hi:[1,0]' % (V(cs + e, 2), V(cs + e, 2), V(vG1, 2)), 'v_pk_mul_f32 %s, %s, %s op_sel_hi:[1,0]' % (V(sn + e, 2), V(sn + e, 2), V(vG1, 2))]
        for e in range(4):
            L += ['v_cvt_pk_bf16_f32 %s, %s, %s' % (V(pk0 + e), V(cs + 2 * e), V(cs + 2 * e + 1)),
                  'v_cvt_pk_bf16_f32 %s, -%s, -%s' % (V(pk1 + e), V(sn + 2 * e), V(sn + 2 * e + 1))]
        L += ['ds_write_b128 %s, %s offset:%d' % (V(vFw), V(pk0, 4), a * 8192), 'ds_write_b128 %s, %s offset:%d' % (V(vFw), V(pk1, 4), a * 8192 + 1024)]
    L += ['L_nofg:']
    L += dmaddr
    for r_, sz in ((rWR, W_SZ), (rWI, W_SZ)):
        L += ['s_mov_b32 %s, 0x%x' % (S(r_ + 2), sz), 's_mov_b32 %s, 0x20000' % S(r_ + 3)]
    L += ['s_add_u32 %s, %s, 2' % (S(sSig), S(sSig)), 's_sub_u32 %s, %s, 7' % (S(sT), S(sSig)), 's_min_u32 %s, %s, %s' % (S(sSig), S(sSig), S(sT))]
    gx = lambda dst, terms, const=0: sx(dst, terms, const, sG2)
    lo1 = ['s_lshr_b32 %s, %s, 1' % (S(sHF), S(sW)), 's_and_b32 %s, %s, 15' % (S(sCF), S(sM)),
           's_lshr_b32 %s, %s, 4' % (S(sKP), S(sM)), 's_lshl_b32 %s, %s, 1' % (S(sG), S(sXc)), 's_add_u32 %s, %s, %s' % (S(sKP), S(sKP), S(sG)),
           's_and_b32 %s, %s, 1' % (S(sK1), S(sW)), 's_lshl_b32 %s, %s, 1' % (S(sG), S(sKP)), 's_add_u32 %s, %s, %s' % (S(sK1), S(sK1), S(sG))]
    lo1 += w2tab + gx(sWo, [(sK1, 450), (sCF, 32), (sHF, 32 * 14400)])
    lo1 += gx(sA1o, [(sI, A1_I), (sC, A1_B), (sW, 1024)], A1_OFF) + gx(sG, [(sN2, 128)], GATE_OFF) + ['s_add_u32 %s, %s, 8192' % (S(sA1x), S(sA1o))]
    lo1 += ['s_cmp_eq_u32 %s, 15' % S(sC), 's_cselect_b32 %s, %s, %s' % (S(sA1o), S(sG), S(sA1o)), 's_cselect_b32 %s, 64, 4096' % S(sG), 's_cselect_b64 vcc, -1, 0',
            's_add_u32 %s, %s, %s' % (S(sA1o2), S(sA1o), S(sG)), 'v_lshlrev_b32 %s, 4, %s' % (V(vA1), V(vQ)), 'v_cndmask_b32 %s, %s, %s, vcc' % (V(vA1), V(vL16), V(vA1))]
    lo1 += gx(sFB, [(sW, 16 * B1_N), (sCF, B1_C)], B1_OFF + 2048) + gx(sPTl2, [(sN2, B1_N), (sC, B1_C)], B1_OFF + 2048)
    lo1 += gx(sFA, [(sI, A1_I), (sC, A1_B), (sW, 128)], A1_OFF + A1_D)
    lo1 += ['s_min_u32 %s, %s, 14' % (S(sG), S(sCF))] + gx(sDFo, [(sG, A1_B), (sK1, 256)], A1_OFF)
    lo1 += ['s_lshr_b32 %s, %s, 4' % (S(sG), S(sK1))] + gx(sDFx, [(sG, -4096 + 8), (sDFo, 1)], 8192)
    lo1 += gx(sB1s, [(sCF, B1_C), (sW, 16 * B1_N), (sKP, 128)], B1_OFF) + gx(sB1l, [(sW, 4 * B1_C), (sN2f, B1_N)], B1_OFF)
    lo1 += gx(sGl, [(sN2f, 128)], GATE_OFF) + gx(sPTl, [(sN2f, 16 * PART_B), (sNB, 4 * PART_B), (sW, 3072 if PTAG else 2048)], PART_OFF) + gx(sOut, [(sN2f, 896), (sNB, 224), (sW, 64)])
    sJunk = sSpin
    L += ['s_waitcnt lgkmcnt(0)'] + wst + epld + ['s_load_dword %s, %s, 0' % (S(sJunk), S(r_, 2)) for r_ in (rWR, rWI)] + lo1
    if P('FTOUCH', 0): L += ['s_load_dword %s, %s, %s glc' % (S(sJunk), S(rWS, 2), S(r_)) for r_ in (sFA, sPTl2)]
    q_ = tmpS
    lo = [
          'v_mul_u32_u24 %s, %d, %s' % (V(t3), 4 * 14400, V(vQ)), 'v_lshl_add_u32 %s, %s, 1, %s' % (V(t3), V(vJ), V(t3))]
    for t in range(2):
        for r in range(4): lo += ['v_mov_b32 %s, 0' % V(WRr[t] + r), 'v_mov_b32 %s, 0' % V(WIr[t] + r)]
    nlo1 = len(lo)
    vK = [q_, q_ + 1]; vS0 = q_ + 2; vS = q_ + 3; vA = [q_ + 4, q_ + 5]; c_ = [q_ + 6, q_ + 7]; s_ = [q_ + 8, q_ + 9]
    lo += ['v_cvt_f32_u32 %s, %s' % (V(vK[0]), V(vJ)), 'v_mul_f32 %s, %s, %s' % (V(vK[0]), f2u(1.0 / 2048), V(vK[0])),
           'v_add_f32 %s, %s, %s' % (V(vK[1]), f2u(16.0 / 2048), V(vK[0])),
           'v_lshl_add_u32 %s, %s, 8, %s' % (V(vS0), V(vQ), S(sN2)), 'v_cvt_f32_u32 %s, %s' % (V(vS0), V(vS0))]
    for t in range(2):
        for r in range(4):
            lo += ['v_add_f32 %s, %s, %s' % (V(vS), f2u(64.0 * (16 * t + r)), V(vS0))]
            for kt in range(2): lo += ['v_mul_f32 %s, %s, %s' % (V(vA[kt]), V(vK[kt]), V(vS))]
            for kt in range(2): lo += ['v_cos_f32 %s, %s' % (V(c_[kt]), V(vA[kt])), 'v_sin_f32 %s, %s' % (V(s_[kt]), V(vA[kt]))]
            for kt in range(2):
                lo += ['v_cvt_pk_bf16_f32 %s, %s, %s' % (V(MR[kt][t] + r), V(c_[kt]), V(s_[kt])),
                       'v_cvt_pk_bf16_f32 %s, -%s, %s' % (V(MI[kt][t] + r), V(s_[kt]), V(c_[kt]))]
    nmp = len(lo)
    vI = q_; vN0 = q_ + 1; vAn = q_ + 2; vc = q_ + 4; vs = q_ + 5
    lo += ['v_lshl_add_u32 %s, %s, 5, %s' % (V(vI), S(sHF), V(vJ)), 'v_cvt_f32_u32 %s, %s' % (V(vI), V(vI)), 'v_mul_f32 %s, %s, %s' % (V(vI), f2u(1.0 / 64), V(vI)),
           'v_lshlrev_b32 %s, 2, %s' % (V(vN0), V(vQ)), 'v_cvt_f32_u32 %s, %s' % (V(vN0), V(vN0))]
    prev = []
    for u in range(4):
        for r in range(4):
            k = (4 * u + r) & 1
            lo += ['v_add_f32 %s, %s, %s' % (V(vAn + k), f2u(16.0 * u + r), V(vN0)), 'v_mul_f32 %s, %s, %s' % (V(vAn + k), V(vAn + k), V(vI)),
                   'v_cos_f32 %s, %s' % (V(vc + 2 * k), V(vAn + k)), 'v_sin_f32 %s, %s' % (V(vs + 2 * k), V(vAn + k))] + prev
            cc, ss = V(vc + 2 * k), V(vs + 2 * k)
            rot = [(cc, ss), ('-' + ss, cc), ('-' + cc, '-' + ss), (ss, '-' + cc)]
            prev = ['v_cvt_pk_bf16_f32 %s, %s, %s' % ((V(MM[e][t][u] + r),) + rot[(t * r + e) % 4]) for e in range(2) for t in range(2)]
    lo += prev
    mml = []
    if P('MML', 0) >= 1: mml = lo[nmp:]; lo = lo[:nmp]
    if P('MML', 0) == 2: mml = lo[nlo1:] + mml; lo = lo[:nlo1]
    ngen = []
    vSs, vKk, nc, ns, pn = q_, q_ + 2, q_ + 3, q_ + 4, q_ + 5
    ngen += ['v_lshl_add_u32 %s, %s, 6, %s' % (V(vSs), V(vJ), S(sN2f)), 'v_cvt_f32_u32 %s, %s' % (V(vSs), V(vSs)), 'v_mul_f32 %s, %s, %s' % (V(vSs), f2u(1.0 / 2048), V(vSs))]
    for u in range(2):
        for r in range(4):
            ngen += ['v_add_f32 %s, %s, %s' % (V(vKk), f2u(16.0 * u + r), V(vN0)), 'v_mul_f32 %s, %s, %s' % (V(vKk), V(vKk), V(vSs)),
                   'v_cos_f32 %s, %s' % (V(nc), V(vKk)), 'v_sin_f32 %s, %s' % (V(ns), V(vKk))]
            for tn in range(2):
                ng = '-' if (tn and r & 1) else ''; ps = '' if (tn and r & 1) else '-'
                if tn == 0 or r & 1:
                    ngen += ['v_cvt_pk_bf16_f32 %s, %s%s, %s%s' % (V(pn), ng, V(nc), ps, V(ns)), 'v_cvt_pk_bf16_f32 %s, %s%s, %s%s' % (V(pn + 1), ng, V(ns), ng, V(nc))]
                ngen += ['v_accvgpr_write_b32 %s, %s' % (A(NR[tn][u] + r), V(pn)), 'v_accvgpr_write_b32 %s, %s' % (A(NI[tn][u] + r), V(pn + 1))]
    lo += ['s_lshl_b32 %s, %s, 2' % (S(sG), S(sW)), 's_add_u32 %s, %s, %d' % (S(sG), S(sG), XCH),
           'v_lshl_add_u32 %s, %s, 10, %s' % (V(t0), V(vQ), S(sG)), 'v_lshl_add_u32 %s, %s, 4, %s' % (V(t0), V(vJ), V(t0)),
           's_lshl_b32 %s, %s, 10' % (S(sG), S(sW)), 's_add_u32 %s, %s, %d' % (S(sG), S(sG), XCH), 'v_add_u32 %s, %s, %s' % (V(t1), S(sG), V(vL16))]
    pf = sx(sT2, [(sM, 12544), (sKS, 448 * 896), (sW, 25 * 128)]) + [
         'v_lshrrev_b32 %s, 1, %s' % (V(t2), V(vL)), 'v_min_u32 %s, 24, %s' % (V(t2), V(t2)), 'v_lshlrev_b32 %s, 7, %s' % (V(t2), V(t2)),
         'VM pf buffer_load_dword %s, %s, %s, %s offen%s' % (V(vPv), V(t2), S(rW2, 4), S(sT2), NT)]
    pfw2 = list(pf)
    pf += sx(sT2, [(sM, 2 * 14400), (sHF, 14400), (sXc, 1800)]) + [
         'v_lshrrev_b32 %s, 3, %s' % (V(t2), V(vL)), 's_and_b32 %s, %s, 1' % (S(sT), S(sW)), 's_lshl_b32 %s, %s, 10' % (S(sT), S(sT)),
         'v_lshl_add_u32 %s, %s, 7, %s' % (V(t2), V(t2), S(sT)), 'v_min_u32 %s, 1796, %s' % (V(t2), V(t2)),
         'VM pf buffer_load_dword %s, %s, %s, %s offen%s' % (V(vPv), V(t2), S(rWR, 4), S(sT2), NT),
         'VM pf buffer_load_dword %s, %s, %s, %s offen%s' % (V(vPv), V(t2), S(rWI, 4), S(sT2), NT)]
    if P('PF2', 1):
        pf = ['s_lshr_b32 %s, %s, 2' % (S(sT3), S(sM)), 's_lshl_b32 %s, %s, 1' % (S(sT3), S(sT3)), 's_and_b32 %s, %s, 1' % (S(sT), S(sM)), 's_add_u32 %s, %s, %s' % (S(sT3), S(sT3), S(sT)),
              's_add_u32 %s, %s, 1' % (S(sG), S(sM)), 's_and_b32 %s, %s, 2' % (S(sG), S(sG)), 's_lshl_b32 %s, %s, 29' % (S(sG), S(sG))]
        if P('PF2', 1) == 2:
            pf = ['s_lshr_b32 %s, %s, 3' % (S(sT3), S(sM)), 's_lshl_b32 %s, %s, 2' % (S(sT3), S(sT3)), 's_and_b32 %s, %s, 3' % (S(sT), S(sM)), 's_add_u32 %s, %s, %s' % (S(sT3), S(sT3), S(sT)),
                  's_and_b32 %s, %s, 4' % (S(sG), S(sM)), 's_lshl_b32 %s, %s, 28' % (S(sG), S(sG))]
        if not P('PFK', 0):
            pf += sx(sT2, [(sT3, 25088), (sKS, 448 * 896), (sW, 49 * 128), (sG, 1)]) + [
                  'v_min_u32 %s, 48, %s' % (V(t2), V(vL)), 'v_lshlrev_b32 %s, 7, %s' % (V(t2), V(t2)),
                  'VM pf buffer_load_dword %s, %s, %s, %s offen' % (V(vPv), V(t2), S(rW2, 4), S(sT2))]
        pf += sx(sT2, [(sT3, 4 * 14400), (sW, 14400), (sXc, 1800), (sG, 1)]) + [
              'v_lshrrev_b32 %s, 2, %s' % (V(t2), V(vL)), 'v_lshlrev_b32 %s, 7, %s' % (V(t2), V(t2)), 'v_min_u32 %s, 1796, %s' % (V(t2), V(t2)),
              'VM pf buffer_load_dword %s, %s, %s, %s offen' % (V(vPv), V(t2), S(rWR, 4), S(sT2)),
              'VM pf buffer_load_dword %s, %s, %s, %s offen' % (V(vPv), V(t2), S(rWI, 4), S(sT2))]
    if P('VT', 0):
        pf += ['v_min_u32 %s, 13, %s' % (V(t2), V(vJ)), 'v_lshlrev_b32 %s, 21, %s' % (V(t2), V(t2)), 'VM pf buffer_load_dword %s, %s, %s, 0 offen' % (V(vPv), V(t2), S(rWS, 4))]
    if P('FT2', 1):
        pf += ['s_andn2_b32 %s, %s, 1' % (S(sT3), S(sC)), 'v_bfe_u32 %s, %s, 3, 1' % (V(vG), V(vL))]
        pf += sx(sT2, [(sN2, ACT_N2), (sT3, ACT_C), (sG, 1)], ACT_OFF + 7168) + ['v_mul_u32_u24 %s, %d, %s' % (V(t2), ACT_C, V(vG)),
               'VM pf buffer_load_dword %s, %s, %s, %s offen sc1' % (V(vPv), V(t2), S(rWS, 4), S(sT2))]
        pf += sx(sT2, [(sI, A1_I), (sT3, A1_B), (sW, 128), (sG, 1)], A1_OFF + A1_D) + ['v_mul_u32_u24 %s, %d, %s' % (V(t2), A1_B, V(vG)),
               'VM pf buffer_load_dword %s, %s, %s, %s offen sc1' % (V(vPv), V(t2), S(rWS, 4), S(sT2))]
        pf += ['s_andn2_b32 %s, %s, 1' % (S(sT3), S(sNB))] + sx(sT2, [(sN2, 16 * PART_B), (sT3, 4 * PART_B), (sKS, PART_B), (sG, 1)], PART_OFF + 7168) + [
               'v_mul_u32_u24 %s, %d, %s' % (V(t2), 4 * PART_B, V(vG)), 'VM pf buffer_load_dword %s, %s, %s, %s offen sc1' % (V(vPv), V(t2), S(rWS, 4), S(sT2))]
    wl = []
    for t in range(2):
        for r in range(4):
            wl += ['s_add_u32 %s, %s, %d' % (S(sT2), S(sWo), (16 * t + r) * 14400),
                   'VM W buffer_load_short_d16_hi %s, %s, %s, %s offen' % (V(WRr[t] + r), V(t3), S(rWR, 4), S(sT2)),
                   'VM W buffer_load_short_d16_hi %s, %s, %s, %s offen' % (V(WIr[t] + r), V(t3), S(rWI, 4), S(sT2))]
    readsS = lambda ks: xread(ks, XF) + ['LK a%d_f ds_read_b128 %s, %s offset:%d' % (ks, A(FF[ks & 1][T], 4), V(vFr), ks * 2048 + T * 1024) for T in range(2)]
    mfS = lambda ks: ['%s %s, %s, %s, %s' % (MFMA, V(ACD[rt][T], 4), A(XF[ks & 1][rt], 4), A(FF[ks & 1][T], 4), V(ACD[rt][T], 4) if ks else '0') for T in range(2) for rt in range(2)]
    L += lo
    if P('NGPRO', 0): L += ngen; ngen = []
    if P('PFS', 3) == -1: L += pf
    L += ['s_waitcnt lgkmcnt(0)', 's_setprio %d' % P('PRS', 1)] + tagc
    st('pro')
    L += ['s_barrier']
    L += readsS(0)
    ngl = []
    if not P('NGL', 0): ngl = ngen; ngen = []
    lo = mml + ngen; per = (len(lo) + 4) // 5
    ld = []
    for ks in range(14):
        if ks == 0: ld = [setflag(sPTl2)] + group_vm(stage_loads(2)) + ([pf] if P('PFS', 3) == 0 else [])
        if ks & 1:
            s = (ks + 1) // 2
            if s < 7: L += flat(ld) + (['WAITVM st%d' % s] if 2 <= s else []) + ['s_barrier']; ld = []
            if s + 2 <= 6: ld = group_vm(stage_loads(s + 2))
            if s == P('PFS', 3): ld += [pf]
            if s == 6: w01 = [] if P('MW01', 0) else group_vm(w2_loads(0) + w2_loads(1)); ld += w01[:P('W2E', 8)]; w01 = w01[P('W2E', 8):]
        if ks == P('WLK', 10): ld += [wl]
        if ks == P('PFK', 0) and ks: ld += [pfw2]
        L += ['WAITLK a%d_f' % ks] + weave(mfS(ks), readsS(ks + 1) if ks < 13 else [])
        h = (len(ld) + 1) // 2 if (ks & 1 and P('SPLITLD', 1)) else len(ld)
        L += flat(ld[:h]); ld = ld[h:]
        if ks % 2 == 0 and ks: L += lo[:per]; lo = lo[per:]
    assert not lo
    L += ['s_setprio %d' % P('PRS2', 1)]
    st('mainA')
    PX = [tmpS, tmpS + 4]; DR = [tmpS + 8, tmpS + 12]; DI = [tmpS + 16, tmpS + 20]; XO = [ACD[0][0], ACD[1][0]]
    L += ['s_nop 4', 's_cmp_eq_u32 %s, 15' % S(sC), 's_cbranch_scc1 L_gate']
    for t in range(2):
        for r in range(4): L += ['v_cvt_pk_bf16_f32 %s, %s, %s' % (V(PX[t] + r), V(ACD[t][0] + r), V(ACD[t][1] + r))]
    for t in range(2):
        for kt in range(2):
            L += ['%s %s, %s, %s, %s' % (MFMA, V(DR[kt], 4), V(MR[kt][t], 4), V(PX[t], 4), V(DR[kt], 4) if t else '0'),
                  '%s %s, %s, %s, %s' % (MFMA, V(DI[kt], 4), V(MI[kt][t], 4), V(PX[t], 4), V(DI[kt], 4) if t else '0')]
    for kt in range(2):
        for r in range(4):
            L += ['v_cvt_pk_bf16_f32 %s, %s, %s' % (V(DR[kt] + r), V(DR[kt] + r), V(DI[kt] + r)),
                  'ds_write_b32 %s, %s offset:%d' % (V(t0), V(DR[kt] + r), kt * 4096 + r * 256)]
    L += lsig(1, t0) + lwait(1, t0)
    L += ['ds_read_b128 %s, %s offset:%d' % (V(XO[k], 4), V(t1), k * 4096) for k in range(2)]
    if ATAG:
        XX = ACD[0][1]
        L += ['v_mov_b32 %s, %s' % (V(XX + 1), S(sTag)), 'v_mov_b32 %s, %s' % (V(XX + 3), S(sTag)), 's_waitcnt lgkmcnt(0)']
        for k in range(2): L += ['v_mov_b32 %s, %s' % (V(XX + 2 * k), V(XO[k] + 3)), 'v_mov_b32 %s, %s' % (V(XO[k] + 3), S(sTag))]
        L += ['OPT_BEGIN', 'VM a1x buffer_store_dwordx4 %s, %s, %s, %s offen %s' % (V(XX, 4), V(vL16), S(rWS, 4), S(sA1x), SC), 'OPT_END']
    else: L += ['s_waitcnt lgkmcnt(0)']
    L += ['s_branch L_a1st', 'L_gate:', 's_nop 3']
    for rt in range(2):
        o = XO[rt]
        for r in range(4): L += ['v_mul_f32 %s, %s, %s' % (V(o + r), f2u(LOG2E), V(o + r))]
        for r in range(4): L += ['v_exp_f32 %s, -%s' % (V(o + r), V(o + r))]
        for r in range(4): L += ['v_add_f32 %s, 1.0, %s' % (V(o + r), V(o + r))]
        for r in range(4): L += ['v_rcp_f32 %s, %s' % (V(o + r), V(o + r))]
    L += ['s_nop 0', 'L_a1st:']
    L += ['VM a1 buffer_store_dwordx4 %s, %s, %s, %s offen %s' % (V(XO[k], 4), V(vA1), S(rWS, 4), S(sA1o2 if k else sA1o), SC) for k in range(2)]
    L += ['s_cmp_lg_u32 %s, 15' % S(sC), 's_cbranch_scc1 L_fa', 's_waitcnt vmcnt(0)', 'L_fa:'] + ((sflag(sFA) if P('SFA', 1) else setflag(sFA)) if ATAG else [])
    st('a1st')
    if P('PFK', 0):
        n_ = P('W01A', 0)
        L += flat(w01[:n_]) + ['WAITVM a1'] + sflag(sFA) + ['s_setprio %d' % P('PRW', 1)] + flat(w01[n_:]) + ['s_setprio %d' % P('PRS2', 1), 'WAITVM w2_1'] + lsig(6, t3) + lwait(9, t3)
    else:
        L += ['s_setprio %d' % P('PRW', 1)] + flat(w01) + (wl if P('WLK', 10) == 99 else []) + ['s_setprio %d' % P('PRS2', 1)] + ((([] if P('MW01', 0) else ['WAITVM w2_1']) + lsig(6, t3)) if not w01 else []) + ([] if ATAG else ['WAITVM a1'] + (sflag(sFA) if P('SFA', 1) else setflag(sFA))) + ((['WAITVM w2_1'] + lsig(6, t3)) if w01 else []) + lwait(9, t3) + (lwait(6, t3) if P('W2SN', 0) >= 2 else [])
    NS = P('W2SN', 0)
    ws_ = group_vm([u for t in range(P('W2L', 2), P('W2L', 2) + NS) for u in w2_loads(t)]) if NS else []
    pb = Alloc('v', fb, NV)
    DF = [pb(4) for u in range(4)]; XRr = [pb(4) for t in range(2)]; XIr = [pb(4) for t in range(2)]; PF = [pb(4) for t in range(4)]
    if ngl: ngl = ['v_lshlrev_b32 %s, 2, %s' % (V(vN0), V(vQ)), 'v_cvt_f32_u32 %s, %s' % (V(vN0), V(vN0))] + ngl
    dfl = []
    for u in range(4):
        dfl += ['s_add_u32 %s, %s, 0x%x' % (S(sT2), S(sDFo), u * 4 * A1_I),
                'VM df buffer_load_dwordx4 %s, %s, %s, %s offen %s' % (V(DF[u], 4), V(vPa), S(rWS, 4), S(sT2), SC)]
        if ATAG: dfl += ['s_add_u32 %s, %s, 0x%x' % (S(sT2), S(sDFx), u * 4 * A1_I),
                'VM df buffer_load_dwordx2 %s, %s, %s, %s offen %s' % (V(PF[0] + 2 * u, 2), V(vPa), S(rWS, 4), S(sT2), SC)]
    L += ['v_mul_u32_u24 %s, %d, %s' % (V(vPa), A1_I, V(vQ)), 'v_lshl_add_u32 %s, %s, 4, %s' % (V(vPa), V(vJ), V(vPa))]
    k1 = P('NGA', 0)
    L += ['s_min_u32 %s, %s, 14' % (S(sT3), S(sCF))] + sx(sT2, [(sT3, A1_B), (sKS, 128), (sW, 4 * A1_I)], A1_OFF + A1_D)
    L += ['s_setprio %d' % P('PRW', 1)] + flat(ws_) + ['s_setprio %d' % P('PRS2', 1)] + ngl[:k1] + (['s_sleep %d' % P('FAD', 0)] if P('FAD', 0) else []) + flat(list(apoll('fa', [(sT2, k * A1_I) for k in range(4)], sTag))) + lsig(8, t3) + lwait(8, t3) + dfl
    st('fa')
    gp_, gc_ = apoll('gt', [(sG, 0)], sTag)
    gl = ['VM g buffer_load_dword %s, %s, %s, %s offen offset:%d %s' % (V(vG + rt), V(vAmp), S(rWS, 4), S(sGl), rt * 64, SC) for rt in range(2)]
    L += sx(sG, [(sKS, 128), (sI, A1_I)], A1_OFF + A1_D + 15 * A1_B) + gp_ + ngl[k1:] + gc_ + ['v_lshlrev_b32 %s, 2, %s' % (V(vAmp), V(vJ))] + gl
    if NS: L += ['WAITVM w2_%d' % (P('W2L', 2) - 1 + NS)] + lsig(7, t3)
    L += ['s_and_b32 %s, %s, 1' % (S(sT2), S(sW)), 's_lshl_b32 %s, %s, 12' % (S(sT3), S(sT2)), 's_add_u32 %s, %s, %d' % (S(sT3), S(sT3), PXC),
          'v_add_u32 %s, %s, %s' % (V(t1), S(sT3), V(vL16)), 's_lshl_b32 %s, %s, 11' % (S(sT3), S(sHF)), 'v_add_u32 %s, %s, %s' % (V(t0), S(sT3), V(t1)),
          's_lshl_b32 %s, %s, 2' % (S(sT2), S(sT2)), 's_lshl_b32 %s, %s, 12' % (S(sT3), S(sHF)), 's_add_u32 %s, %s, %s' % (S(sT2), S(sT2), S(sT3)),
          's_add_u32 %s, %s, %d' % (S(sT2), S(sT2), BXC),
          'v_lshl_add_u32 %s, %s, 9, %s' % (V(t2), V(vQ), S(sT2)), 'v_lshl_add_u32 %s, %s, 3, %s' % (V(t2), V(vJ), V(t2))]
    if ATAG:
        L += flat(dcheck('df', [('v_cmp_ne_u32', S(sTag), V(r)) for u in range(4) for r in (DF[u] + 3, PF[0] + 2 * u + 1)], raw(dfl)))
        L += ['v_mov_b32 %s, %s' % (V(DF[u] + 3), V(PF[0] + 2 * u)) for u in range(4)]
    else: L += ['WAITVM df']
    st('df')
    TR = PF[2]; TI = PF[3]
    def cmulpk(t):
        o = []
        for r in range(4):
            xr, xi, wr, wi = V(XRr[t] + r), V(XIr[t] + r), V(WRr[t] + r), V(WIr[t] + r)
            o += ['v_mul_f32 %s, %s, %s' % (V(TR + r), xr, wr), 'v_mul_f32 %s, %s, %s' % (V(TI + r), xr, wi),
                  'v_fma_f32 %s, -%s, %s, %s' % (V(TR + r), xi, wi, V(TR + r)), 'v_fma_f32 %s, %s, %s, %s' % (V(TI + r), xi, wr, V(TI + r)),
                  'v_cvt_pk_bf16_f32 %s, %s, %s' % (V(PF[t] + r), V(TI + r), V(TR + r))]
        return o + ['ds_write_b128 %s, %s offset:%d' % (V(t0), V(PF[t], 4), t * 1024)]
    stg = lambda t, e0: [x for u in range(4) for x in
                         ('%s %s, %s, %s, %s' % (MFMA, V(XRr[t], 4), V(MM[e0][t][u], 4), V(DF[u], 4), V(XRr[t], 4) if u else '0'),
                          '%s %s, %s, %s, %s' % (MFMA, V(XIr[t], 4), V(MM[1 - e0][t][u], 4), V(DF[u], 4), V(XIr[t], 4) if u else '0'))]
    cm0 = cmulpk(0); sg1 = stg(1, 0)
    L += stg(0, 0) + sg1[:3] + sched(sg1[3:], [], [], cm0) + cm0 + cmulpk(1) + lsig(2, t3); st('sta')
    L += (['v_xor_b32 %s, 8, %s' % (V(vPv), V(vLW))] + lwait(2, t3, vPv)) if P('PAIR', 1) else lwait(2, t3); st('px')
    L += ['ds_read_b128 %s, %s offset:%d' % (V(DF[u], 4), V(t1), u * 1024) for u in range(4)]
    L += ['s_lshl_b32 %s, %s, 11' % (S(sT2), S(sW)), 's_add_u32 %s, %s, %d' % (S(sT2), S(sT2), BXC), 'v_add_u32 %s, %s, %s' % (V(t1), S(sT2), V(vL16)),
          'v_lshrrev_b32 %s, 3, %s' % (V(t0), V(vL)), 'v_and_b32 %s, 7, %s' % (V(t3), V(vL)), 'v_mul_u32_u24 %s, %d, %s' % (V(t0), B1_N, V(t0)),
          'v_lshl_add_u32 %s, %s, 4, %s' % (V(t0), V(t3), V(t0)), 's_add_u32 %s, %s, %d' % (S(sT2), S(sB1s), 8 * B1_N), 's_waitcnt lgkmcnt(0)']
    outb = lambda t: [x for r in range(4) for x in ('v_cvt_pk_bf16_f32 %s, %s, %s' % (V(PF[t] + r), V(XRr[t] + r), V(XIr[t] + r)),
                                                     'ds_write_b32 %s, %s offset:%d' % (V(t2), V(PF[t] + r), t * 2048 + r * 128))]
    ob0 = outb(0); sg1 = stg(1, 1)
    L += stg(0, 1) + sg1[:4] + sched(sg1[4:], [], [], ob0) + ob0 + outb(1) + lsig(3, t3); st('stb')
    L += lwait(3, t3); st('bx')
    L += ['LK bx%d ds_read_b128 %s, %s offset:%d' % (k, V(PF[2 + k], 4), V(t1), k * 1024) for k in range(2)]
    for k in range(2):
        L += ['WAITLK bx%d' % k, 'VM b1 buffer_store_dwordx4 %s, %s, %s, %s offen %s' % (V(PF[2 + k], 4), V(t0), S(rWS, 4), S(sT2 if k else sB1s), SC)]
    st('fft')

    pd = Alloc('v', big, NV)
    GF = [[pd(4) for ct in range(2)] for T in range(15)]
    yb0 = pd.next
    CS = [[pd(2) for r in range(4)] for a in range(2)]
    kR = pd(2); kA = pd(2); vDf = pd(); vUu = pd(); vK0 = pd(); an = pd(4, 1)
    if P('GPK', 0): cheb = lambda d, k, x1, x0: ['v_pk_fma_f32 %s, %s, %s, %s op_sel_hi:[0,1,1] neg_lo:[0,0,1] neg_hi:[0,0,1]' % (V(d, 2), V(k, 2), V(x1, 2), V(x0, 2))]
    else: cheb = lambda d, k, x1, x0: ['v_fma_f32 %s, %s, %s, -%s' % (V(d + hh), V(k), V(x1 + hh), V(x0 + hh)) for hh in range(2)]
    def gen_G(ct):
        o = []
        if ct == 0:
            o += sx(sG, [(sNB, 112), (sW, 32)], 0, sG2) + ['v_add_u32 %s, %s, %s' % (V(vDf), S(sG), V(vJ)), 'v_cvt_f32_u32 %s, %s' % (V(vDf), V(vDf)),
                  'v_lshlrev_b32 %s, 2, %s' % (V(vK0), V(vQ)), 'v_cvt_f32_u32 %s, %s' % (V(vK0), V(vK0))]
        else: o += ['v_add_f32 %s, %s, %s' % (V(vDf), f2u(16.0), V(vDf))]
        o += ['v_mul_f32 %s, %s, %s' % (V(vUu), S(sInv448), V(vDf)), 'v_mul_f32 %s, %s, %s' % (V(an), V(vK0), V(vUu)),
              'v_mul_f32 %s, %s, %s' % (V(t3), f2u(16.0), V(vUu)),
              'v_cos_f32 %s, %s' % (V(kR), V(vUu)), 'v_cos_f32 %s, %s' % (V(kA), V(t3)),
              'v_add_f32 %s, %s, %s' % (V(an + 1), V(an), V(vUu)), 'v_add_f32 %s, %s, %s' % (V(an + 2), V(an), V(t3)), 'v_add_f32 %s, %s, %s' % (V(an + 3), V(an + 1), V(t3)),
              'v_add_f32 %s, %s, %s' % (V(kR), V(kR), V(kR)), 'v_add_f32 %s, %s, %s' % (V(kA), V(kA), V(kA))]
        for a in range(2):
            for r in range(2):
                o += ['v_cos_f32 %s, %s' % (V(CS[a][r]), V(an + 2 * a + r)), 'v_sin_f32 %s, -%s' % (V(CS[a][r] + 1), V(an + 2 * a + r))]
        for r in (2, 3):
            for a in range(2): o += cheb(CS[a][r], kR, CS[a][r - 1], CS[a][r - 2])
        for T in range(15):
            a = T & 1
            if T >= 2: o += [x for r in range(4) for x in cheb(CS[a][r], kA, CS[1 - a][r], CS[a][r])]
            o += ['v_cvt_pk_bf16_f32 %s, %s, %s' % (V(GF[T][ct] + r), V(CS[a][r]), V(CS[a][r] + 1)) for r in range(4)]
        return o
    bfl = [['s_add_u32 %s, %s, 0x%x' % (S(sT2), S(sB1l), a * B1_C)] +
           ['VM bf%d buffer_load_dwordx2 %s, %s, %s, %s offen offset:%d %s' % (a, A(BF[a][u] + 2 * hh, 2), V(t0), S(rWS, 4), S(sT2), u * 1024 + hh * 128, SC)
            for u in range(2) for hh in range(2)] for a in range(4)]
    gg = gen_G(0) + gen_G(1); k0_ = len(gg) * P('FBPOS', 12) // 100
    L += ['v_lshlrev_b32 %s, 8, %s' % (V(t0), V(vQ)), 'v_lshl_add_u32 %s, %s, 3, %s' % (V(t0), V(vJ), V(t0)),
          'v_mul_u32_u24 %s, %d, %s' % (V(vPa), B1_N << P('FBG', 0), V(vJ)), 's_setprio %d' % P('PRG', 0)]
    if P('SFB', 0):
        L += gg[:k0_] + ['s_mov_b32 %s, 1' % S(sT2), 's_cmp_eq_u32 %s, 15' % S(sCF), 'WAITVM b1', 's_cbranch_scc1 L_nofb']
        L += ['s_atomic_add %s, %s, %s offset:%d' % (S(sT2), S(rWS, 2), S(sFB), (B1_N << P('FBG', 0)) * k) for k in range(16 >> P('FBG', 0))] + ['L_nofb:']
    else:
        L += gg[:k0_] + ['WAITVM b1', 's_mov_b64 exec, 0x%x' % ((1 << (16 >> P('FBG', 0))) - 1), 'VM fb buffer_atomic_add %s, %s, %s, %s offen sc1' % (V(vOne), V(vPa), S(rWS, 4), S(sFB)), 's_mov_b64 exec, -1']
    k1_ = len(gg) * P('FBI', 50) // 100; k2_ = len(gg) * P('FBC', 75) // 100
    bp_, bc_ = apoll('fb', [(sFA, 0), (sFA, B1_C), (sFA, 2 * B1_C), (sT3, 0)], sDFx)
    L += ['s_andn2_b32 %s, %s, %d' % (S(sT3), S(sN2f), (1 << P('FBG', 0)) - 1)] + sx(sFA, [(sT3, B1_N), (sW, 4 * B1_C)], B1_OFF + 2048) + ['s_cmp_eq_u32 %s, 3' % S(sW), 's_cselect_b32 %s, %d, %d' % (S(sT3), 0, 1), 's_mul_i32 %s, %s, %d' % (S(sT3), S(sT3), 3 * B1_C),
          's_add_u32 %s, %s, %s' % (S(sT3), S(sT3), S(sFA)), 's_add_u32 %s, %s, 16' % (S(sDFx), S(sTag))]
    st('b1d')
    if P('DIAGB', 0): L += ['s_waitcnt vmcnt(0)']; st('fba')
    L += gg[k0_:k1_] + bp_ + gg[k1_:k2_] + bc_ + flat(bfl); st('fb')
    L += gg[k2_:] + ['s_setprio %d' % P('PRS2', 1)]
    st('gen')
    yb = Alloc('v', yb0, NV)
    YR = [[yb(4) for tn in range(2)] for a in range(2)]; YI = [[yb(4) for tn in range(2)] for a in range(2)]
    L += ['s_lshl_b32 %s, %s, 13' % (S(sT2), S(sW)), 'v_add_u32 %s, %s, %s' % (V(t1), S(sT2), V(vFr))]
    L += ['v_mul_u32_u24 %s, 57344, %s' % (V(t2), V(vJ)), 'v_add_u32 %s, %s, %s' % (V(t2), V(t2), V(vQ8)),
          's_add_u32 %s, %s, %d' % (S(sT2), S(sM0x), BSL), 'v_add_u32 %s, %s, %s' % (V(vA1), S(sT2), V(vL16)), 'WAITVM g',
          's_lshl_b32 %s, %s, 9' % (S(sG), S(sW)), 'v_lshl_add_u32 %s, %s, 3, %s' % (V(t2), V(vL), S(sG)), 'ds_write_b64 %s, %s offset:%d' % (V(t2), V(vG, 2), GSL),
          'v_add_u32 %s, %s, %s' % (V(vA1), S(sM0x), V(vL16))] + lsig(12, t3)
    bfck = lambda a: ['WAITVM bf%d' % a]
    step6 = lambda a: ['%s %s, %s, %s, %s' % (MFMA, V(Y[a & 1][tn], 4), A(BF[a][u], 4), A(N[tn][u], 4), V(Y[a & 1][tn], 4) if u else '0')
                       for u in range(2) for tn in range(2) for (Y, N) in ((YR, NR), (YI, NI))]
    def packY(a):
        o = []
        for tn in range(2):
            for r in range(4):
                o += ['v_cvt_pk_bf16_f32 %s, %s, %s' % (V(YR[a & 1][tn] + r), V(YR[a & 1][tn] + r), V(YI[a & 1][tn] + r))]
            o += ['ds_write_b128 %s, %s offset:%d' % (V(t1), V(YR[a & 1][tn], 4), a * 2048 + tn * 1024)]
        return o
    L += bfck(0); st('bf0')
    L += step6(0)
    for a in range(1, 4):
        pk_ = packY(a - 1)
        L += bfck(a) + sched(step6(a), [], [], pk_) + pk_
    L += packY(3) + lsig(4, t3); st('s6a')
    L += lwait(4, t3)
    st('s6')
    NY = 16
    YF = [4 * n for n in range(NY)]
    AC = [[yb0 + 16 + 8 * ct + 4 * rt for rt in range(2)] for ct in range(2)]
    seq = [(T, rt) for T in range(15) for rt in range(2)]
    rdY = lambda n: 'LK y%d ds_read_b128 %s, %s offset:%d' % (n, A(YF[n % NY], 4), V(vFr), seq[n][0] * 2048 + seq[n][1] * 1024)
    LA = 14
    L += [rdY(n) for n in range(LA)]
    for n, (T, rt) in enumerate(seq):
        if n % 2 == 0: L += ['WAITLK y%d' % (n + 1)]
        L += ['%s %s, %s, %s, %s' % (MFMA, V(AC[0][rt], 4), V(GF[T][0], 4), A(YF[n % NY], 4), V(AC[0][rt], 4) if T else '0')]
        if n + LA < len(seq): L += [rdY(n + LA)]
        L += ['%s %s, %s, %s, %s' % (MFMA, V(AC[1][rt], 4), V(GF[T][1], 4), A(YF[n % NY], 4), V(AC[1][rt], 4) if T else '0')]
    st('mainD')
    L += ['ds_write_b128 %s, %s offset:%d' % (V(vA1), V(AC[a][rt], 4), ASL + (2 * a + rt) * 1024) for rt in range(2) for a in range(2)]
    L += lsig(11, t3) + ['s_cmp_eq_u32 %s, 3' % S(sW), 's_cbranch_scc1 L_w3']
    L += ['s_branch L_fin', 'L_w3:', 's_cmp_lg_u32 s2, 120', 's_cbranch_scc1 L_fin', 's_mov_b32 %s, 0x%x' % (S(sT2), A1_OFF + A1_D + 15 * A1_B + 3 * A1_I), 's_add_u32 %s, %s, 0x%x' % (S(sT3), S(sT2), 8 * A1_I)] + spoll('ep', [(sT2, 0), (sT2, 4 * A1_I), (sT3, 0), (sT3, 4 * A1_I)], sTag) + ['s_mov_b32 %s, 0x%x' % (S(sT), EP_OFF)] + setflag(sT) + ['L_fin:']
    finish(L, st, 'S')
    LS = L
    if STAMP: open('stamps.txt', 'w').write(' '.join(stamps['M']) + ' / ' + ' '.join(stamps['S']))
    print('role M vgpr', nvM, 'instr', len(LM), ' role S big', NB, 'instr', len(LS), file=sys.stderr)
    if P('HACKACT', 0): LM = [l.replace(' sc1', '') if l.startswith('VM act') else l for l in LM]
    sf = os.environ.get('STF', '').replace('_', ' ')
    if sf:
        rp = lambda l: l.replace(' sc1', ' ' + sf) if (l.startswith('VM ') and 'store_dwordx4' in l) else l
        LM = [rp(l) for l in LM]; LS = [rp(l) for l in LS]
    if P('PFNT', 0): LS = [l + ' nt' if (l.startswith('VM pf') and not l.endswith('sc1')) else l for l in LS]
    if P('W1NT', 0):
        f_ = lambda l: l.replace(' offen lds', ' offen nt lds') if (l.startswith('VM st') and S(rW1, 4) in l) else l
        LS = [f_(l) for l in LS]; LM = [f_(l) for l in LM]
    of = os.environ.get('OUTF', '').replace('_', ' ')
    LM = [l + ' ' + of if l.startswith('VM out') else l for l in LM]; LS = [l + ' ' + of if l.startswith('VM out') else l for l in LS]
    return H + resolve(LM) + resolve(LS) + slow + ['L_end:', 's_endpgm'], NV, NA


DOC = """; ---------------------------------------------------------------------------------------------------------------
; Workgroups hand data over through d_ws: write-through (sc1) stores, vmcnt drain, then a flag word / counter holding a
; scalar glc loads (bounded) and read with sc1 loads.  Nothing depends on XCD placement except speed.
; ---------------------------------------------------------------------------------------------------------------"""

def build(path):
    hdr = open('cdna_kernels/%s.s.ref' % NAME).read().split('\n')
    top = [l for l in hdr if l.startswith(';') and '@launch' not in l]
    L, nv, na = build_kernel()
    Pd, nn = pad_hazards(L)
    print('lines', len(Pd), 'nops', nn, file=sys.stderr)
    out = top + ['; @launch grid=(256,1,1) block=(512,1,1) lds=%d' % LDS_SZ] + DOC.split('\n') + ['.amdgcn_target "amdgcn-amd-amdhsa--gfx950"', '.text', '.globl %s' % LABEL]
    out += [('    ' + l if not (l.endswith(':') or l.startswith('.')) else l) for l in Pd]
    out += ['.section .rodata,"a"', '.p2align 6', '.amdhsa_kernel %s' % LABEL,
            '  .amdhsa_next_free_vgpr %d' % (nv + na), '  .amdhsa_next_free_sgpr 102', '  .amdhsa_accum_offset %d' % nv,
            '  .amdhsa_group_segment_fixed_size 0', '  .amdhsa_kernarg_size 88', '  .amdhsa_user_sgpr_count 2',
            '  .amdhsa_user_sgpr_kernarg_segment_ptr 1', '  .amdhsa_system_sgpr_workgroup_id_x 1', '.end_amdhsa_kernel']
    open(path, 'w').write('\n'.join(out) + '\n')

if __name__ == '__main__':
    build(sys.argv[1] if len(sys.argv) > 1 else 'cdna_kernels/%s.s' % NAME)
```

```python
import sys, math, os
from dsl import *

NAME = 'gated_mix__spectral_gfnet__dense_activation_mish__prompt'
LABEL = NAME + '_kernel'
ACT_OFF = 0x0; ACT_C = 7168 + 128; ACT_N2 = 16 * ACT_C
PART_OFF = 0x800000; PTAG = int(os.environ.get('PTAG', 0)); PART_B = 7168 + 128
ATAG = int(os.environ.get('ATAG', 0)); A1_OFF = 0x1400000; PAD = int(os.environ.get('PAD', 1))
A1_D = 12288 if ATAG else 8192; A1_B = A1_D + 768; A1_I = 16 * A1_B + 4352 * PAD
B1_N = 2048 + 384 * PAD; B1_C = 64 * B1_N + 4352 * PAD
GATE_OFF = 0x1800000
FS = int(os.environ.get('FS', 128))
FSB = int(os.environ.get('FSB', 16)); FBL = max(128, 16 * FSB)
FG_OFF = 0x1810000; FP_OFF = 0x1850000; FB_OFF = 0x1890000; FA_OFF = 0x18d0000
EP_OFF = 0x1910000
B1_OFF = 0x1920000
WS_END = B1_OFF + 15 * B1_C
FBN = 16 * FS + 384 * PAD
OOB = 0x40000000
X_SZ = 2048 * 896; W_SZ = 2048 * 450; W1_SZ = 448 * 3584; W2_SZ = 1792 * 896
LOG2E = math.log2(math.e)
MFMA = 'v_mfma_f32_16x16x32_bf16'
SC = 'sc1'
NT = ' nt' if int(os.environ.get('LNT', 0)) else ''
XR = 0; W1R = 65536; FL = 122880; XCH = 0; PXC = 40960; BXC = 32768; YL = FL; OPL = 155648; LF = OPL + 7168; BSL = 65536; ASL = 32768; GSL = 30720; LDS_SZ = 163840
NV = 184; NA = 72
W2B = [W1R + 3 * 14336, 49152, W1R, 0, W1R + 14336, W1R + 2 * 14336, 16384]
sX, sWR, sWI, sW1, sB1, sW2, sGW, sOUT, sWS = 16, 18, 20, 24, 26, 28, 30, 32, 34
STAMP = os.environ.get('STAMP', '0') == '1'
TS_OFF = 0x2000000
SPIN_MAX = 500000
P = lambda k, d: int(os.environ.get(k, d))

def srd(L, d, base, size):
    L += ['s_mov_b32 %s, %s' % (S(d), S(base)), 's_mov_b32 %s, %s' % (S(d + 1), S(base + 1)),
          's_mov_b32 %s, 0x%x' % (S(d + 2), size), 's_mov_b32 %s, 0x20000' % S(d + 3)]

def resolve(L):
    out = []; ops = []; cur = None; nopt = 0; lks = []; waited = set()
    for l in L:
        if l == 'OPT_BEGIN': nopt += 1; cur = nopt; continue
        if l == 'OPT_END': cur = None; continue
        if l.startswith('LK '):
            _, tag, ins = l.split(' ', 2); lks.append(tag); out.append(ins); continue
        if l.startswith('ds_'): lks.append('_')
        if l.startswith('WAITLK '):
            tag = l.split(' ')[1]
            idx = max(k for k, o in enumerate(lks) if o == tag)
            out.append('s_waitcnt lgkmcnt(%d)' % min(len(lks) - 1 - idx, 15)); continue
        if l.startswith('VM '):
            _, tag, ins = l.split(' ', 2); assert tag not in waited, tag
            ops.append((tag, cur)); out.append(ins); continue
        if l.startswith('WAITVM '):
            parts = l.split(' ', 2); tag = parts[1]; extra = (' ' + parts[2]) if len(parts) > 2 else ''
            waited.add(tag)
            idx = max(k for k, o in enumerate(ops) if o[0] == tag)
            n = sum(1 for o in ops[idx + 1:] if (o[1] is None or o[1] == cur))
            out.append('s_waitcnt vmcnt(%d)%s' % (min(n, 63), extra)); continue
        assert not (l.startswith('buffer_') or l.startswith('global_')), l
        out.append(l[4:] if l.startswith('RAW ') else l)
    return out

def outline(L):
    main = []; tail = []; cur = main
    for l in L:
        if l == 'OOL_BEGIN:': cur = tail
        elif l == 'OOL_END:': cur = main
        else: cur.append(l)
    return main + tail

def weave(mm, *streams):
    out = []; idx = [0] * len(streams)
    def put(u): out.extend(u if isinstance(u, list) else [u])
    for m in mm:
        put(m)
        for k, s in enumerate(streams):
            if idx[k] < len(s): put(s[idx[k]]); idx[k] += 1
    for k, s in enumerate(streams):
        for u in s[idx[k]:]: put(u)
    return out

TRANS_OPS = ('v_exp_f32', 'v_rcp_f32', 'v_sin_f32', 'v_cos_f32')
def cost(u):
    c = 0; n = 0
    for i in (u if isinstance(u, list) else [u]):
        if i.endswith(':') or i.startswith('OPT_'): continue
        n += 1
        if i.startswith('VM '): c += 15
        elif i.split()[0] in TRANS_OPS: c += 8
        elif i.startswith('s_') or i.startswith('WAIT'): pass
        else:
            assert not i.startswith('v_pk_'), i
            c += 4
    return c, n
VB = int(os.environ.get('VB', 8)); PACE2 = int(os.environ.get('PACE2', 0))
def sched(mm, rd, hi, lo, pace=1, state=None):
    out = []; rd = list(rd)
    state = state if state is not None else [99]
    def put(u): out.extend(u if isinstance(u, list) else [u])
    for k, m in enumerate(mm):
        put(m)
        state[0] += 1
        vb = VB; sl = 3
        if k + 1 < len(mm) and isinstance(mm[k + 1], list): sl -= len(mm[k + 1]) - 1
        left = len(mm) - k
        q = hi if (hi and (cost(hi[0])[0] < 15 or state[0] >= pace)) else lo
        if q and (cost(q[0])[0] > 4 or cost(q[0])[1] > 2) and len(rd) <= 2 * (left - 1) and not (PACE2 and cost(q[0])[0] >= 15 and state[0] < pace):
            c, n = cost(q[0]); put(q.pop(0)); vb -= c; sl -= n
            if c >= 15: state[0] = 0
        else:
            n = 0 if not rd else (1 if len(rd) <= left else 2)
            for _ in range(n): put(rd.pop(0)); vb -= 4; sl -= 1
        while True:
            done = True
            for q in (hi, lo):
                if q and cost(q[0])[0] <= max(vb, 0) and cost(q[0])[1] <= sl:
                    c, n = cost(q[0]); vb -= c; sl -= n; put(q.pop(0)); done = False; break
            if done: break
    out += rd
    return out

def spread(main, units, start=0, end=None):
    end = len(main) if end is None else end
    out = list(main[:start]); n = len(units); seg = main[start:end]
    for k in range(n):
        out += seg[len(seg) * k // n: len(seg) * (k + 1) // n] if False else []
    pos = [len(seg) * k // n for k in range(n)] if n else []
    ui = 0
    for k, ins in enumerate(seg):
        while ui < n and pos[ui] == k:
            out += units[ui] if isinstance(units[ui], list) else [units[ui]]; ui += 1
        out.append(ins)
    for u in units[ui:]: out += u if isinstance(u, list) else [u]
    return out + list(main[end:])


def build_kernel():
    flat = lambda U: [i for u in U for i in (u if isinstance(u, list) else [u])]
    sa = Alloc('s', 16, 102)
    rX = sa(4); rW1 = sa(4); rW2 = sa(4); rWS = sa(4); rBI = rWR = sa(4); rGW = rWI = sa(4); rOUT = sa(4)
    sT, sT2, sT3, sSpin, sTag, sW, sM = 3, 4, 5, 6, 7, 8, 9
    sPC = 12; sEp = 14; sW8 = 15
    sI = sa(); sC = sa(); sN2 = sa(); sPar = sa(); sKS = sa(); sNB = sa(); sXc = sa(); sSig = sa(); sN2f = sa(); sM0x = sa()
    sInv448 = sa(); sM448 = sa(); sG = sa(); sG2 = sa(); sR0 = sa(4)
    va = Alloc('v', 1, NV)
    vST = va(); vL = va(); vQ = va(); vJ = va(); t0 = va(); t1 = va(); t2 = va(); t3 = va(); vL16 = va(); vZero = va(); vTag = va()
    vXr = va(2, 1); vPa = va(); vPv = va(); vLF = va(); vOne = va(); vQ8 = va()
    npoll = [0]; slow = []
    stamps = {'M': ['r0', 'start'], 'S': ['r0', 'start']}
    def mk_st(L, role):
        def st(name, real=False):
            if not STAMP: return
            if os.environ.get('STSEL') and name not in os.environ['STSEL'].split(','): return
            stamps[role].append(name)
            L.extend(['%s s[10:11]' % ('s_memrealtime' if (real or P('REAL', 0)) else 's_memtime'), 's_waitcnt lgkmcnt(0)',
                      'v_writelane_b32 %s, s10, %d' % (V(vST), len(stamps[role]) - 1)])
        return st
    def poll_issue(tag):
        return ['VM %s buffer_load_dword %s, %s, %s, 0 offen %s' % (tag, V(vPv), V(vPa), S(rWS, 4), SC)]
    def poll_check(tag):
        n = npoll[0]; npoll[0] += 1
        slow.extend(['slow%d:' % n, 's_mov_b32 %s, 0' % S(sSpin), 'slowl%d:' % n, 's_sleep %d' % P('SLP_' + tag, P('SLP', 6)),
                     'buffer_load_dword %s, %s, %s, 0 offen %s' % (V(vPv), V(vPa), S(rWS, 4), SC),
                     's_waitcnt vmcnt(0)', 'v_cmp_ne_u32 vcc, %s, %s' % (S(sTag), V(vPv)), 's_add_u32 %s, %s, 1' % (S(sSpin), S(sSpin)),
                     's_nop 0', 's_cbranch_vccz back%d' % n, 's_cmp_lt_u32 %s, %d' % (S(sSpin), SPIN_MAX),
                     's_cbranch_scc1 slowl%d' % n, 's_branch back%d' % n])
        return ['WAITVM %s' % tag, 'v_cmp_ne_u32 vcc, %s, %s' % (S(sTag), V(vPv)), 's_nop 1', 's_cbranch_vccnz slow%d' % n, 'back%d:' % n]
    sCk = sa(2); sCk2 = sa(2)
    def dcheck(tag, cmps, reload, pre=[]):
        n = npoll[0]; npoll[0] += 1
        test = list(pre)
        for k, (op, s0_, r) in enumerate(cmps):
            d = 'vcc' if k == 0 else S(sCk if k & 1 else sCk2, 2)
            test += ['%s %s, %s, %s' % (op, d, s0_, r)]
            if k >= 2: test += ['s_or_b64 vcc, vcc, %s' % S(sCk2 if k & 1 else sCk, 2)]
        last = len(cmps) - 1
        test += ['s_or_b64 vcc, vcc, %s' % (S(sCk if last & 1 else sCk2, 2) if last else 'vcc')]
        slow.extend(['slow%d:' % n, 's_mov_b32 %s, 0' % S(sSpin), 'slowl%d:' % n, 's_sleep %d' % P('SLP', 4)] + reload + ['s_waitcnt vmcnt(0)'] + test +
                    ['s_cbranch_scc0 back%d' % n, 's_add_u32 %s, %s, 1' % (S(sSpin), S(sSpin)), 's_cmp_lt_u32 %s, %d' % (S(sSpin), SPIN_MAX),
                     's_cbranch_scc1 slowl%d' % n, 's_branch back%d' % n])
        return [['WAITVM %s' % tag]] + [[i] for i in test[:-1]] + [[test[-1], 's_cbranch_scc1 slow%d' % n, 'back%d:' % n]]
    def spoll(name, locs, exp, first=0):
        n = npoll[0]; npoll[0] += 1
        rs = [sCk, sCk + 1, sCk2, sCk2 + 1]
        o = ['s_mov_b32 %s, 0' % S(sSpin), 'sp%d:' % n]
        o += ['s_load_dword %s, %s, %s offset:%d glc' % (S(rs[k]), S(rWS, 2), S(so), im) for k, (so, im) in enumerate(locs)]
        o += ['s_add_u32 %s, %s, 1' % (S(sSpin), S(sSpin)), 's_cmp_ge_u32 %s, %d' % (S(sSpin), SPIN_MAX), 's_cbranch_scc1 spd%d' % n, 's_waitcnt lgkmcnt(0)']
        for k in range(len(locs)):
            o += ['s_xor_b32 %s, %s, %s' % (S(rs[k]), S(rs[k]), S(exp))]
            if k: o += ['s_or_b32 %s, %s, %s' % (S(rs[0]), S(rs[0]), S(rs[k]))]
        o += ['s_cbranch_scc1 sp%d' % n, 'spd%d:' % n, 's_waitcnt lgkmcnt(0)']
        return o
    def apoll(name, locs, exp):
        n = npoll[0]; npoll[0] += 1
        rs = [sCk, sCk + 1, sCk2, sCk2 + 1]
        ld = ['s_load_dword %s, %s, %s offset:%d glc' % (S(rs[k]), S(rWS, 2), S(so), im) for k, (so, im) in enumerate(locs)]
        t = ['s_waitcnt lgkmcnt(0)']
        for k in range(len(locs)):
            t += ['s_xor_b32 %s, %s, %s' % (S(rs[k]), S(rs[k]), S(exp))]
            if k: t += ['s_or_b32 %s, %s, %s' % (S(rs[0]), S(rs[0]), S(rs[k]))]
        if P('INL', 1):
            return ['s_mov_b32 %s, 0' % S(sSpin)] + ld, ['s_branch chk%d' % n, 'rty%d:' % n, 's_add_u32 %s, %s, 1' % (S(sSpin), S(sSpin)), 's_cmp_ge_u32 %s, %d' % (S(sSpin), SPIN_MAX),
                    's_cbranch_scc1 back%d' % n, 's_sleep %d' % P('SSL_' + name, P('SSL', 2))] + ld + ['chk%d:' % n] + t + ['s_cbranch_scc1 rty%d' % n, 'back%d:' % n]
        slow.extend(['slow%d:' % n, 's_mov_b32 %s, 0' % S(sSpin), 'slowl%d:' % n] + ['s_sleep %d' % P('SSL_' + name, P('SSL', 2))] + ld + t +
                    ['s_cbranch_scc0 back%d' % n, 's_add_u32 %s, %s, 1' % (S(sSpin), S(sSpin)), 's_cmp_lt_u32 %s, %d' % (S(sSpin), SPIN_MAX),
                     's_cbranch_scc1 slowl%d' % n, 's_branch back%d' % n])
        return ld, t + ['s_cbranch_scc1 slow%d' % n, 'back%d:' % n]
    sflag = lambda so: ['s_atomic_swap %s, %s, %s' % (S(sTag), S(rWS, 2), S(so))]
    raw = lambda U: [i.split(' ', 2)[2] if i.startswith('VM ') else i for i in flat(U)]
    def setflag(sOff):
        return ['VM flag buffer_store_dword %s, %s, %s, %s offen %s' % (V(vTag), V(vZero), S(rWS, 4), S(sOff), SC)]
    def lsig(k, vtmp):
        return ['v_lshl_add_u32 %s, %s, 2, %s' % (V(vtmp), S(sW), V(vZero)), 'ds_write_b32 %s, %s offset:%d' % (V(vtmp), V(vOne), LF - 131072 + k * 16)] if False else \
               ['ds_write_b32 %s, %s offset:%d' % (V(vLW), V(vOne), k * 16)]
    def lwait(k, vtmp, reg=None):
        n = npoll[0]; npoll[0] += 1
        return ['lw%d:' % n, 'ds_read_b32 %s, %s offset:%d' % (V(vtmp), V(vLF if reg is None else reg), k * 16), 's_waitcnt lgkmcnt(0)',
                'v_cmp_ne_u32 vcc, 1, %s' % V(vtmp), 's_nop 1', 's_cbranch_vccnz lw%d' % n]
    vLW = va()
    def sx(dst, terms, const=0, tmp=None):
        tmp = sT if tmp is None else tmp
        o = []
        for k, (r, c) in enumerate(terms):
            d = dst if k == 0 else tmp
            if c == 1:
                o += ['s_mov_b32 %s, %s' % (S(d), S(r))] if k == 0 else ['s_add_u32 %s, %s, %s' % (S(dst), S(dst), S(r))]
                continue
            o += ['s_mul_i32 %s, %s, %d' % (S(d), S(r), c)]
            if k: o += ['s_add_u32 %s, %s, %s' % (S(dst), S(dst), S(tmp))]
        if const: o += ['s_add_u32 %s, %s, 0x%x' % (S(dst), S(dst), const)]
        return o
    def group_vm(U):
        out = []; cur = []
        for u in U:
            cur += u
            if any(i.startswith('VM ') for i in u): out.append(cur); cur = []
        if cur: out[-1] += cur
        return out
    def with_waits(tag, order, mk, step=3):
        o = []
        for n, T in enumerate(order):
            ms = mk(T)
            if n % step == 0: ms[0] = ['WAITLK %s_%d' % (tag, order[min(n + step - 1, len(order) - 1)]), ms[0]]
            o += ms
        return o
    tagc = ['s_mul_i32 %s, %s, 0x9e3779b1' % (S(sTag), S(sEp)), 's_add_u32 %s, %s, 0x7f4a7c15' % (S(sTag), S(sTag)), 'v_mov_b32 %s, %s' % (V(vTag), S(sTag))]
    if P('FULLF', 0): tagc += ['v_and_b32 %s, 31, %s' % (V(vZero), V(vL)), 'v_lshlrev_b32 %s, 2, %s' % (V(vZero), V(vZero))]
    epld = ['s_add_u32 %s, %s, 0x%x' % (S(sPC), S(rWS), EP_OFF), 's_addc_u32 %s, %s, 0' % (S(sPC + 1), S(rWS + 1)), 's_load_dword %s, %s, 0' % (S(sEp), S(sPC, 2))]
    def finish(L, st, role):
        if STAMP:
            st('end'); st('r1', True)
            L += ['s_add_u32 s4, %s, 0x%x' % (S(rWS), TS_OFF), 's_addc_u32 s5, %s, 0' % S(rWS + 1), 's_mov_b32 s6, 0x100000', 's_mov_b32 s7, 0x20000',
                  's_lshl_b32 s13, s2, 3', 's_add_u32 s13, s13, %s' % S(sW8), 's_lshl_b32 s13, s13, 8', 'v_lshlrev_b32 %s, 2, %s' % (V(t0), V(vL)),
                  'VM x buffer_store_dword %s, %s, s[4:7], s13 offen' % (V(vST), V(t0))]
            pb_ = os.environ.get('PROBE', '')
            if pb_.startswith(role + ':'):
                k = stamps[role].index(pb_[2:])
                L += ['s_cmp_lg_u32 s13, %d' % ((P('PWG', 45) * 8 + (0 if role == 'M' else 4)) * 256), 's_cbranch_scc1 L_noprobe', 'v_readlane_b32 s16, %s, %d' % (V(vST), k), 'v_readlane_b32 s17, %s, 1' % V(vST), 's_nop 3',
                      's_sub_u32 s16, s16, s17', 's_lshl_b32 s16, s16, 2', 's_add_u32 s16, s16, 10000', 'L_prl:', 's_memtime s[20:21]', 's_waitcnt lgkmcnt(0)',
                      's_sub_u32 s22, s20, s17', 's_cmp_lt_u32 s22, s16', 's_cbranch_scc1 L_prl', 'L_noprobe:']
        L += ['s_endpgm']

    H = ['.p2align 8', '.type %s,@function' % LABEL, '%s:' % LABEL, 's_cmp_ge_u32 s2, 256', 's_cbranch_scc1 L_end']
    for r_, off in ((rX, 0), (rW1, 32), (rWS, 80), (rW2, 48)):
        H += ['s_load_dwordx2 %s, s[0:1], %d' % (S(r_, 2), off)]
    ecp = ['s_getpc_b64 %s' % S(sPC, 2), 'L_pc:', 's_lshl_b32 %s, s2, 8' % S(sT), 's_and_b32 %s, %s, 0x7800' % (S(sT), S(sT)),
           'v_lshl_add_u32 %s, v0, 2, %s' % (V(t1), S(sT)), 'v_min_u32 %s, L_end-L_pc, %s' % (V(t1), V(t1)),
           'v_mov_b32 %s, %s' % (V(vXr + 1), S(sPC + 1)), 'v_add_co_u32 %s, vcc, %s, %s' % (V(vXr), S(sPC), V(t1)),
           'v_addc_co_u32 %s, vcc, 0, %s, vcc' % (V(vXr + 1), V(vXr + 1)), 'global_load_dword %s, %s, off' % (V(vPv), V(vXr, 2))]
    if STAMP: H += ['v_mov_b32 %s, 0' % V(vST), 's_memrealtime %s' % S(sR0, 2), ('s_memrealtime %s' if P('REAL', 0) else 's_memtime %s') % S(sR0 + 2, 2)]
    if P('ECP', 1): H += ecp
    H += ['v_and_b32 %s, 63, v0' % V(vL), 'v_lshrrev_b32 %s, 6, v0' % V(t0), 's_lshr_b32 %s, s2, 3' % S(sM), 's_and_b32 %s, s2, 7' % S(sXc),
          'v_readfirstlane_b32 %s, %s' % (S(sW8), V(t0)), 'v_lshrrev_b32 %s, 4, %s' % (V(vQ), V(vL)), 'v_and_b32 %s, 15, v0' % V(vJ),
          's_lshr_b32 %s, %s, 2' % (S(sI), S(sXc)), 's_lshl_b32 %s, %s, 3' % (S(sI), S(sI)),
          's_lshr_b32 %s, %s, 2' % (S(sT3), S(sM)), 's_add_u32 %s, %s, %s' % (S(sI), S(sI), S(sT3)),
          's_and_b32 %s, %s, 3' % (S(sW), S(sW8)),
          's_and_b32 %s, %s, 3' % (S(sKS), S(sXc)), 's_and_b32 %s, %s, 3' % (S(sNB), S(sM)),
          's_lshl_b32 %s, %s, 2' % (S(sC), S(sKS)), 's_add_u32 %s, %s, %s' % (S(sC), S(sC), S(sNB)),
          's_lshl_b32 %s, %s, 2' % (S(sN2f), S(sI)), 's_add_u32 %s, %s, %s' % (S(sN2), S(sN2f), S(sW)),
          's_and_b32 %s, %s, 1' % (S(sPar), S(sC))]
    H += {0: ['s_lshl_b32 %s, %s, 1' % (S(sSig), S(sNB)), 's_add_u32 %s, %s, %s' % (S(sSig), S(sSig), S(sT3)),
              's_sub_u32 %s, %s, 7' % (S(sT), S(sSig)), 's_min_u32 %s, %s, %s' % (S(sSig), S(sSig), S(sT))],
          1: ['s_mov_b32 %s, 0' % S(sSig)],
          2: ['s_add_u32 %s, %s, %s' % (S(sSig), S(sNB), S(sT3)), 's_and_b32 %s, %s, 1' % (S(sSig), S(sSig)), 's_lshl_b32 %s, %s, 2' % (S(sSig), S(sSig))],
          4: ['s_add_u32 %s, %s, %s' % (S(sSig), S(sNB), S(sT3)), 's_and_b32 %s, %s, 3' % (S(sSig), S(sSig)), 's_lshl_b32 %s, %s, 1' % (S(sSig), S(sSig))]}[P('ROT', 0)]
    H += ['s_xor_b32 %s, %s, %d' % (S(sNB), S(sNB), P('NBX', 0)), 's_lshl_b32 %s, %s, 12' % (S(sM0x), S(sW)),
          's_mov_b32 %s, 0x%x' % (S(rWS + 2), WS_END), 's_mov_b32 %s, 0x20000' % S(rWS + 3),
          's_cmp_ge_u32 %s, 4' % S(sW8), 's_cbranch_scc1 L_S']
    common2 = ['v_lshlrev_b32 %s, 4, %s' % (V(vL16), V(vL)), 'v_mov_b32 %s, 0' % V(vZero), 'v_mov_b32 %s, 1' % V(vOne), 'v_lshlrev_b32 %s, 3, %s' % (V(vQ8), V(vQ)),
               's_add_u32 %s, %s, %s' % (S(sN2f), S(sN2f), S(sKS)),
               's_mov_b32 %s, %s' % (S(sInv448), f2u(1.0 / 448)), 's_mov_b32 %s, %s' % (S(sM448), f2u(-448.0)),
               'v_lshrrev_b32 %s, 1, %s' % (V(t3), V(vJ)), 'v_xor_b32 %s, %s, %s' % (V(t3), V(t3), V(vQ)),
               'v_lshlrev_b32 %s, 4, %s' % (V(t3), V(t3)), 'v_lshl_add_u32 %s, %s, 7, %s' % (V(t3), V(vJ), V(t3)),
               'v_add_u32 %s, %s, %s' % (V(vXr), S(sM0x), V(t3)), 'v_xor_b32 %s, 64, %s' % (V(vXr + 1), V(vXr)),
               'v_and_b32 %s, 3, %s' % (V(vLF), V(vL)), 'v_lshlrev_b32 %s, 2, %s' % (V(vLF), V(vLF)), 'v_add_u32 %s, %d, %s' % (V(vLF), LF, V(vLF)),
               's_lshl_b32 %s, %s, 2' % (S(sG), S(sW)), 's_add_u32 %s, %s, %d' % (S(sG), S(sG), LF), 'v_mov_b32 %s, %s' % (V(vLW), S(sG))]
    wst = ['v_writelane_b32 %s, %s, 0' % (V(vST), S(sR0)), 'v_writelane_b32 %s, %s, 1' % (V(vST), S(sR0 + 2))] if STAMP else []
    if P('WSB', 0): wst += ['s_add_u32 %s, %s, 0x%x' % (S(rWS), S(rWS), P('WSB', 0) << 20), 's_addc_u32 %s, %s, 0' % (S(rWS + 1), S(rWS + 1))]
    sXb = sa(); sWb = sa(); sXs = sa(); sWs = sa(); sM0w = sa(); sW2b = sa()
    vXs = va(2, 1); vW1s = va(); vW2s = va()
    dmaddr = ['s_mul_i32 %s, %s, 896' % (S(sXb), S(sN2))] + sx(sWb, [(sC, 224), (sW, 8 * 3584)])
    dmaddr += ['s_mul_i32 %s, %s, 896' % (S(sM0w), S(sW)), 's_lshl_b32 %s, %s, 1' % (S(sT2), S(sPar)),
          'v_lshrrev_b32 %s, 3, %s' % (V(t0), V(vL)), 'v_mul_u32_u24 %s, 57344, %s' % (V(t0), V(t0)),
          'v_and_b32 %s, 7, %s' % (V(t1), V(vL)), 'v_xor_b32 %s, %s, %s' % (V(t1), V(t1), V(vQ)),
          'v_lshl_add_u32 %s, %s, 4, %s' % (V(vXs), V(t1), V(t0)),
          'v_xor_b32 %s, 64, %s' % (V(vXs + 1), V(vXs)), 'v_add_u32 %s, %d, %s' % (V(vXs + 1), 8 * 57344, V(vXs + 1)),
          'v_mul_u32_u24 %s, 4682, %s' % (V(t0), V(vL)), 'v_lshrrev_b32 %s, 16, %s' % (V(t0), V(t0)),
          'v_mul_u32_u24 %s, 14, %s' % (V(t1), V(t0)), 'v_sub_u32 %s, %s, %s' % (V(t1), V(vL), V(t1)),
          'v_mul_u32_u24 %s, 896, %s' % (V(t2), V(t0)), 'v_lshl_add_u32 %s, %s, 4, %s' % (V(vW2s), V(t1), V(t2)),
          'v_add_u32 %s, %s, %s' % (V(t1), S(sT2), V(t1)), 'v_subrev_u32 %s, 14, %s' % (V(t2), V(t1)), 'v_min_u32 %s, %s, %s' % (V(t1), V(t1), V(t2)),
          'v_mul_u32_u24 %s, 3584, %s' % (V(t2), V(t0)), 'v_lshl_add_u32 %s, %s, 4, %s' % (V(vW1s), V(t1), V(t2))]
    for r_, sz in ((rX, X_SZ), (rW1, W1_SZ), (rW2, W2_SZ)):
        dmaddr += ['s_mov_b32 %s, 0x%x' % (S(r_ + 2), sz), 's_mov_b32 %s, 0x20000' % S(r_ + 3)]
    def stage_loads(s):
        slot = s % 4
        U = [['s_lshl_b32 %s, %s, 7' % (S(sXs), S(sSig))], ['s_add_u32 %s, %s, %s' % (S(sXs), S(sXs), S(sXb))],
             ['s_mul_i32 %s, %s, %d' % (S(sWs), S(sSig), 64 * 3584)], ['s_add_u32 %s, %s, %s' % (S(sWs), S(sWs), S(sWb))]]
        for kk in range(2):
            for e in (2 * kk, 2 * kk + 1):
                if e == 2: U += [['s_add_u32 %s, %s, 917504' % (S(sXs), S(sXs))]]
                U += [['s_add_u32 m0, %s, %d' % (S(sM0x), XR + slot * 16384 + e * 1024)],
                      [('VM st%d buffer_load_dwordx4 %s, %s, %s offen' + NT + ' lds') % (s, V(vXs + (e & 1)), S(rX, 4), S(sXs))]]
            for b2 in range(2):
                if kk or b2: U += [['s_add_u32 %s, %s, %d' % (S(sWs), S(sWs), (4 if b2 else 28) * 3584)]]
                U += [['s_add_u32 m0, %s, %d' % (S(sM0w), W1R + slot * 14336 + (32 * kk + 16 * b2) * 224)],
                      ['s_mov_b32 exec_hi, 0xffffff', ('VM st%d buffer_load_dwordx4 %s, %s, %s offen' + NT + ' lds') % (s, V(vW1s), S(rW1, 4), S(sWs)), 's_mov_b32 exec_hi, -1']]
        U += [['s_add_u32 %s, %s, 1' % (S(sSig), S(sSig))], ['s_cmp_eq_u32 %s, 7' % S(sSig), 's_cselect_b32 %s, 0, %s' % (S(sSig), S(sSig))]]
        return U
    sWp = sa(4, 1); sWm = sa(4, 1); sC4 = sa()
    SLOT = [(0, 0), (0, 1), (0, 2), (1, 0), (1, 1), (1, 2), ('m', 0), (2, 0), (2, 1), (2, 2), (3, 0), ('m', 1), (3, 1), (3, 2)]
    w2tab = ['s_and_b32 %s, %s, 3' % (S(sC4), S(sC))] + sx(sW2b, [(sKS, 448 * 896), (sW, 4 * 896), (sNB, 224)])
    for d in range(4):
        w2tab += ['s_xor_b32 %s, %s, %d' % (S(sT), S(sC4), d), 's_mul_i32 %s, %s, 7' % (S(sT), S(sT)), 's_add_u32 %s, %s, 1' % (S(sT), S(sT)), 's_lshr_b32 %s, %s, 1' % (S(sT), S(sT)),
                  's_mul_i32 %s, %s, 28672' % (S(sT), S(sT)), 's_add_u32 %s, %s, %s' % (S(sWp + d), S(sT), S(sW2b))]
    for mm_ in range(2):
        w2tab += ['s_lshr_b32 %s, %s, 1' % (S(sT), S(sC4)), 's_xor_b32 %s, %s, %d' % (S(sT), S(sT), mm_), 's_mul_i32 %s, %s, %d' % (S(sT), S(sT), 7 * 28672),
                  's_add_u32 %s, %s, %s' % (S(sT), S(sT), S(sW2b)), 's_add_u32 %s, %s, %d' % (S(sT), S(sT), 3 * 28672),
                  's_mul_i32 %s, %s, %d' % (S(sT2), S(sPar), 16 * 896), 's_add_u32 %s, %s, %s' % (S(sWm + 2 * mm_), S(sT), S(sT2)),
                  's_sub_u32 %s, %s, %s' % (S(sT), S(sT), S(sT2)), 's_add_u32 %s, %s, %d' % (S(sWm + 2 * mm_ + 1), S(sT), 16 * 896)]
    def w2_loads(t):
        U = []
        for kk in range(2):
            d, Pp = SLOT[2 * t + kk]
            for b2 in range(2):
                if d == 'm': so = sWm + 2 * Pp + b2
                elif Pp == 0 and b2 == 0: so = sWp + d
                else: so = sWs; U += [['s_add_u32 %s, %s, %d' % (S(sWs), S(sWp + d), (32 * Pp + 16 * b2) * 896)]]
                U += [['s_add_u32 m0, %s, %d' % (S(sM0w), W2B[t] + (32 * kk + 16 * b2) * 224)],
                      ['s_mov_b32 exec_hi, 0xffffff', 'VM w2_%d buffer_load_dwordx4 %s, %s, %s offen lds' % (t, V(vW2s), S(rW2, 4), S(so)), 's_mov_b32 exec_hi, -1']]
        return U
    sRot2 = sa()
    def fgen(As, base, lab):
        if not len(As): return []
        ta = Alloc('v', base, base + 40)
        cs = ta(8); sn = ta(8); th = ta(8); pk0 = ta(4); pk1 = ta(4); am = ta(2); vKdf = ta(); vU = ta(); vD0 = ta(); vFw = ta()
        o = ['s_cmp_eq_u32 %s, 15' % S(sC), 's_cbranch_scc1 L_nofg' + lab, 'v_lshl_add_u32 %s, %s, 4, %s' % (V(vKdf), S(sC), V(vJ)), 'v_mov_b32 %s, 1.0' % V(am),
             'v_cmp_eq_u32 vcc, 0, %s' % V(vKdf), 'v_cndmask_b32 %s, %s, 0.5, vcc' % (V(am), V(am)),
             'v_cmp_eq_u32 vcc, 224, %s' % V(vKdf), 'v_cndmask_b32 %s, %s, 0.5, vcc' % (V(am), V(am)),
             'v_cmp_lt_u32 vcc, 224, %s' % V(vKdf), 'v_cndmask_b32 %s, %s, 0, vcc' % (V(am), V(am)),
             'v_cvt_f32_u32 %s, %s' % (V(vKdf), V(vKdf)), 'v_mul_f32 %s, %s, %s' % (V(vU), S(sInv448), V(vKdf)),
             's_lshl_b32 %s, %s, 11' % (S(sT2), S(sW)), 's_add_u32 %s, %s, %d' % (S(sT2), S(sT2), FL), 'v_add_u32 %s, %s, %s' % (V(vFw), S(sT2), V(vL16))]
        lp = P('FLOOP', 0) and len(As) > 1
        if lp: o += ['s_add_u32 %s, %s, %d' % (S(sSpin), S(sRot2), 4 * As[0]), 's_add_u32 %s, %s, %d' % (S(sT), S(sRot2), 4 * As[-1]), 'L_fl%s:' % lab]
        for a in (As[:1] if lp else As):
            o += [('s_mov_b32 %s, %s' % (S(sT2), S(sSpin))) if lp else 's_add_u32 %s, %s, %d' % (S(sT2), S(sRot2), 4 * a), 's_sub_u32 %s, %s, 14' % (S(sT3), S(sT2)), 's_min_u32 %s, %s, %s' % (S(sT2), S(sT2), S(sT3)),
                  'v_lshl_add_u32 %s, %s, 5, %s' % (V(vD0), S(sT2), V(vQ8)), 'v_cvt_f32_u32 %s, %s' % (V(vD0), V(vD0)),
                  'v_mul_f32 %s, %s, %s' % (V(t3), V(vKdf), V(vD0)), 'v_mul_f32 %s, %s, %s' % (V(th), S(sInv448), V(t3)),
                  'v_floor_f32 %s, %s' % (V(th), V(th)), 'v_fma_f32 %s, %s, %s, %s' % (V(t3), V(th), S(sM448), V(t3)),
                  'v_mul_f32 %s, %s, %s' % (V(th), S(sInv448), V(t3))]
            for e in range(1, 8): o += ['v_add_f32 %s, %s, %s' % (V(th + e), V(th + e - 1), V(vU))]
            for e in range(8): o += ['v_cos_f32 %s, %s' % (V(cs + e), V(th + e)), 'v_sin_f32 %s, %s' % (V(sn + e), V(th + e))]
            for e in range(0, 8, 2):
                o += ['v_pk_mul_f32 %s, %s, %s op_sel_hi:[1,0]' % (V(cs + e, 2), V(cs + e, 2), V(am, 2)), 'v_pk_mul_f32 %s, %s, %s op_sel_hi:[1,0]' % (V(sn + e, 2), V(sn + e, 2), V(am, 2))]
            for e in range(4):
                o += ['v_cvt_pk_bf16_f32 %s, %s, %s' % (V(pk0 + e), V(cs + 2 * e), V(cs + 2 * e + 1)),
                      'v_cvt_pk_bf16_f32 %s, -%s, -%s' % (V(pk1 + e), V(sn + 2 * e), V(sn + 2 * e + 1))]
            o += ['ds_write_b128 %s, %s offset:%d' % (V(vFw), V(pk0, 4), a * 8192), 'ds_write_b128 %s, %s offset:%d' % (V(vFw), V(pk1, 4), a * 8192 + 1024)]
        if lp: o += ['v_add_u32 %s, 8192, %s' % (V(vFw), V(vFw)), 's_add_u32 %s, %s, 4' % (S(sSpin), S(sSpin)), 's_cmp_le_u32 %s, %s' % (S(sSpin), S(sT)), 's_cbranch_scc1 L_fl%s' % lab]
        return o + ['L_nofg%s:' % lab]
    H[-2:-2] = ['s_lshl_b32 %s, %s, 1' % (S(sRot2), S(sSig)), 's_add_u32 %s, %s, %s' % (S(sRot2), S(sRot2), S(sW))]
    vbase = va.next; sbase = sa.next
    xread = lambda ks, XF: ['LK a%d_x ds_read_b128 %s, %s offset:%d' % (ks, A(XF[ks & 1][rt], 4), V(vXr + (ks & 1)), XR + ((ks // 2) % 4) * 16384 + rt * 2048) for rt in range(2)]

    L = []; st = mk_st(L, 'M')
    va = Alloc('v', vbase, NV); sa = Alloc('s', sbase, 102); aa = Alloc('a', 0, NA)
    sL2E = sa(2); sAct = sa(4, 1); sPTs = sa(); sJunk = sa(); sFG = sa(); sFP = sa(); sFGp = sa()
    vTr = va(2, 1)
    accb = va(56, 4)
    ACC = [[accb + 28 * rt + 4 * T for T in range(7)] for rt in range(2)]
    fr = va(56, 4)
    OWN = [[va(4) for rt in range(2)] for Pp in range(3)]
    assert OWN[0][0] == fr + 56
    RG = [fr + 8 * k for k in range(9)]
    U0 = [va(4) for d in range(4)]
    vB = [fr + 4 * T for T in range(7)]
    tmpA = fr + 32; c2 = fr + 48
    WF = [[aa(4) for T in range(7)] for b in range(2)]
    XF = [[aa(4) for rt in range(2)] for b in range(2)]
    vBraw = [accb + 2 * T for T in range(7)]; vCP = accb + 16
    L += ['s_load_dwordx2 %s, s[0:1], 40' % S(rBI, 2), 's_load_dwordx2 %s, s[0:1], 56' % S(rGW, 2), 's_load_dwordx2 %s, s[0:1], 64' % S(rOUT, 2), 's_mov_b32 %s, 0x%x' % (S(rOUT + 2), X_SZ), 's_mov_b32 %s, 0x20000' % S(rOUT + 3)]
    if not P('ECP', 1):
        L += ['s_getpc_b64 %s' % S(sPC, 2), 'L_pc:', 's_and_b32 %s, %s, 15' % (S(sT), S(sM)), 's_lshl_b32 %s, %s, 11' % (S(sT), S(sT)),
              'v_lshrrev_b32 %s, 4, v0' % V(t1), 'v_lshl_add_u32 %s, %s, 7, %s' % (V(t1), V(t1), S(sT)), 'v_min_u32 %s, L_end-L_pc, %s' % (V(t1), V(t1)),
              'v_mov_b32 %s, %s' % (V(vCP + 1), S(sPC + 1)), 'v_add_co_u32 %s, vcc, %s, %s' % (V(vCP), S(sPC), V(t1)),
              'v_addc_co_u32 %s, vcc, 0, %s, vcc' % (V(vCP + 1), V(vCP + 1)), 'VM pf global_load_dword %s, %s, off' % (V(vPv), V(vCP, 2))]
    if P('CPF', 0): cpf = L.pop()
    late_ = common2 + ['s_mov_b32 %s, 3584' % S(rBI + 2), 's_mov_b32 %s, 0x20000' % S(rBI + 3)] + sx(sG, [(sC, 224), (sPar, 32)]) + sx(sG2, [(sC, 224), (sPar, -192)], 192)
    L += dmaddr + ([] if P('LEAN', 1) else late_)
    s0 = flat(stage_loads(0))
    L += s0[:4] + ['s_waitcnt lgkmcnt(0)'] + wst
    st('ka')
    if P('STLB', 4):
        for k, r_ in enumerate((rW1, rX, rBI, rW2, rOUT)[:P('STLB', 4)]): L += ['s_load_dword %s, %s, 0' % (S(sJunk), S(r_, 2))]
        if P('DIAGT', 0): L += ['s_waitcnt lgkmcnt(0)']; st('tl')
    bl = ['VM bias buffer_load_dwordx2 %s, %s, %s, %s offen offset:%d' % (V(vBraw[T], 2), V(vQ8), S(rBI, 4), S(sG2 if T == 6 else sG), 32 * T if T < 6 else 0) for T in range(7)]
    gwl = ['s_cmp_eq_u32 %s, 15' % S(sC), 's_cbranch_scc1 L_gw', 'OOL_BEGIN:', 'L_gw:', 'OPT_BEGIN', 'v_lshlrev_b32 %s, 4, %s' % (V(t0), V(vQ)),
           's_mov_b32 %s, 896' % S(rGW + 2), 's_mov_b32 %s, 0x20000' % S(rGW + 3), 's_lshl_b32 %s, %s, 1' % (S(sT3), S(sSig)), 's_add_u32 %s, %s, %s' % (S(sT3), S(sT3), S(sW)),
           's_lshl_b32 %s, %s, 11' % (S(sSpin), S(sW))]
    for a2 in range(4):
        gwl += ['s_add_u32 %s, %s, %d' % (S(sT2), S(sT3), 4 * a2), 's_sub_u32 %s, %s, 14' % (S(sT), S(sT2)), 's_min_u32 %s, %s, %s' % (S(sT2), S(sT2), S(sT)),
                's_lshl_b32 %s, %s, 6' % (S(sT2), S(sT2)), 's_add_u32 m0, %s, %d' % (S(sSpin), FL + a2 * 8192),
                'VM gw buffer_load_dwordx4 %s, %s, %s offen lds' % (V(t0), S(rGW, 4), S(sT2))]
    gwl += ['OPT_END', 's_branch L_nogw', 'OOL_END:', 'L_nogw:']
    wst_ = []
    for k in range(4):
        wst_ += ['s_lshl_b32 %s, %s, 21' % (S(sT2), S(sW)), 's_add_u32 %s, %s, 0x%x' % (S(sT2), S(sT2), k << 23), 's_load_dword %s, %s, %s' % (S(sJunk), S(rWS, 2), S(sT2))]
    if P('EPL', 0): L += gwl + s0[4:]; st('s0x'); L += bl + epld
    elif P('LEAN', 1): L += s0[4:-3]; st('s0x'); L += gwl + s0[-3:] + epld + late_ + (bl if P('BLF', 0) else []) + fgen(range(P('FM', 2)), accb + 16, 'M') + ([] if P('BLF', 0) else bl)
    else: L += epld + gwl + s0[4:]; st('s0x'); L += bl
    if P('CPF', 0) == 1: L += [cpf]
    st('s0i')
    if P('WTLB', 0) == 2:
        wst_ = sx(sT2, [(sM, 16 << 16), (sW, 4 << 16)]) + ['s_load_dword %s, %s, %s offset:%d' % (S(sJunk), S(rWS, 2), S(sT2), k << 16) for k in range(4)]
    if P('WTLB', 0): L += wst_
    L += w2tab
    L += ['v_lshrrev_b32 %s, 2, %s' % (V(t3), V(vL)), 'v_mul_u32_u24 %s, 224, %s' % (V(vTr), V(t3)),
          'v_and_b32 %s, 3, %s' % (V(t3), V(vL)), 'v_lshl_add_u32 %s, %s, 3, %s' % (V(vTr), V(t3), V(vTr)), 'v_add_u32 %s, 65536, %s' % (V(vTr + 1), V(vTr)),
          's_mov_b32 %s, %s' % (S(sL2E), f2u(LOG2E)), 's_mov_b32 %s, %s' % (S(sL2E + 1), f2u(LOG2E))]
    for d in range(4):
        L += ['s_xor_b32 %s, %s, %d' % (S(sT2), S(sC), d)] + sx(sAct + d, [(sN2, ACT_N2), (sT2, ACT_C)], ACT_OFF)
    L += sx(sPTs, [(sN2, 16 * PART_B), (sNB, 4 * PART_B), (sKS, PART_B)], PART_OFF)
    L += ['s_add_u32 %s, %s, 7168' % (S(sFG), S(sAct)), 's_add_u32 %s, %s, 7168' % (S(sFP), S(sPTs))]
    if P('FTOUCH', 0): L += ['s_load_dword %s, %s, %s glc' % (S(sJunk), S(rWS, 2), S(r_)) for r_ in (sFG, sFP)]
    L += ['v_add_u32 %s, 4096, %s' % (V(t0), V(vL16)), 'v_add_u32 %s, 8192, %s' % (V(t1), V(vL16)), 'v_add_u32 %s, %d, %s' % (V(t2), OPL, V(vL16))]
    vU = [vL16, t0, t1]
    uaddr = lambda u: (V(vU[u // 4]), (u % 4) * 1024)
    cm2 = c2 + 2; c1 = c2 + 4
    L += ['v_mov_b32 %s, 2.0' % V(c2), 'v_mov_b32 %s, 2.0' % V(c2 + 1), 'v_mov_b32 %s, -2.0' % V(cm2), 'v_mov_b32 %s, -2.0' % V(cm2 + 1),
          'v_mov_b32 %s, 1.0' % V(c1), 'v_mov_b32 %s, 1.0' % V(c1 + 1)]
    L += flat(stage_loads(1)) + ['WAITVM bias']
    bcv = []
    for T in range(7):
        for hh in range(2):
            bcv += ['v_lshlrev_b32 %s, 16, %s' % (V(vB[T] + 2 * hh), V(vBraw[T] + hh)), 'v_and_b32 %s, 0xffff0000, %s' % (V(vB[T] + 2 * hh + 1), V(vBraw[T] + hh))]
    L += ['WAITVM st0 lgkmcnt(0)']
    st('pro')
    def tr_reads(tag, dst, base, order):
        reg = vTr + (base >= 65536); off = base - (65536 if base >= 65536 else 0)
        return ['LK %s_%d ds_read_b64_tr_b16 %s, %s offset:%d' % (tag, T, A(dst[T] + 2 * b, 2), V(reg), off + b * 3584 + T * 32) for T in order for b in range(2)]
    ORD = [6, 0, 1, 2, 3, 4, 5]
    readsA = lambda ks: xread(ks, XF) + tr_reads('a%d' % ks, WF[ks & 1], W1R + ((ks // 2) % 4) * 14336 + (ks & 1) * 7168, ORD)
    mfA = lambda ks: with_waits('a%d' % ks, ORD, lambda T: ['%s %s, %s, %s, %s' % (MFMA, V(ACC[rt][T], 4), A(WF[ks & 1][T], 4), A(XF[ks & 1][rt], 4),
                                                            V(ACC[rt][T], 4) if ks else V(vB[T], 4)) for rt in range(2)], 3)
    L += ['s_barrier']
    st('b0')
    L += readsA(0) + bcv + tagc
    ATM = P('ATM', 0); mq = []; mst = [99]
    for ks in range(12 if ATM else 14):
        if ks == 13: L += lsig(9, t3)
        elif ks & 1: L += (['WAITVM st1'] if ks == 1 else []) + ['s_barrier']
        if ks & 1: st('b%d' % ((ks + 1) // 2))
        if ks == 11 and P('MW01', 0): mq = w2_loads(0) + w2_loads(1)
        L += sched(mfA(ks), readsA(ks + 1) if ks < 13 else [], mq, [], P('PACEW', 4), mst)
    mft = lambda Ts: ['%s %s, %s, %s, %s' % (MFMA, V(ACC[rt][T], 4), A(WF[ks & 1][T], 4), A(XF[ks & 1][rt], 4), V(ACC[rt][T], 4)) for ks in (12, 13) for T in Ts for rt in range(2)]
    if ATM:
        r13 = readsA(13); m6 = mft([6]); m01 = mft([0, 1])
        L += r13[:8] + ['WAITLK a12_1'] + weave(m6[:2] + m01[:4], r13[8:]) + lsig(9, t3) + ['WAITLK a13_1'] + m6[2:] + m01[4:] + ['s_waitcnt lgkmcnt(0)']
    L += flat(mq) + ['s_setprio %d' % P('PRM', 0)]
    st('mainA')
    def mish(src, dst, E, Aa):
        nv = 4 * len(src)
        h = lambda k: src[k // 4] + (k % 4)
        o = []
        for k in range(0, nv, 2): o += ['v_pk_mul_f32 %s, %s, %s' % (V(E + k, 2), V(h(k), 2), S(sL2E, 2))]
        for k in range(nv): o += ['v_exp_f32 %s, %s' % (V(E + k), V(E + k))]
        for k in range(0, nv, 2): o += ['v_pk_add_f32 %s, %s, %s' % (V(Aa + k, 2), V(E + k, 2), V(c2, 2))]
        for k in range(0, nv, 2): o += ['v_pk_fma_f32 %s, %s, %s, %s' % (V(E + k, 2), V(E + k, 2), V(Aa + k, 2), V(c2, 2))]
        for k in range(nv): o += ['v_rcp_f32 %s, %s' % (V(E + k), V(E + k))]
        for k in range(0, nv, 2): o += ['v_pk_fma_f32 %s, %s, %s, %s' % (V(E + k, 2), V(E + k, 2), V(cm2, 2), V(c1, 2))]
        for k in range(0, nv, 2): o += ['v_pk_mul_f32 %s, %s, %s' % (V(E + k, 2), V(E + k, 2), V(h(k), 2))]
        for k in range(0, nv, 2): o += ['v_cvt_pk_bf16_f32 %s, %s, %s' % (V(dst[k // 2]), V(E + k), V(E + k + 1))]
        return o
    ust = lambda r, u: 'VM act%d buffer_store_dwordx4 %s, %s, %s, %s offen offset:%d %s' % (max(u - 1, 0) // 2, V(r, 4), uaddr(u)[0], S(rWS, 4), S(sAct), uaddr(u)[1], SC)
    L += mish([ACC[0][6], ACC[1][6]], [U0[0] + k for k in range(4)], tmpA, tmpA + 8) + [ust(U0[0], 0)]
    readsC = lambda sl: tr_reads('c%d' % sl, WF[sl & 1], W2B[sl // 2] + (sl & 1) * 7168, range(7))
    for Pp in range(3):
        if ATM and Pp < 2: L += mft([2 * Pp + 2, 2 * Pp + 3])
        if Pp == 2 and P('MW01', 0): L += ['WAITVM w2_1'] + lsig(13, t3)
        for rt in range(2):
            o = OWN[Pp][rt]
            L += mish([ACC[rt][2 * Pp], ACC[rt][2 * Pp + 1]], [o + k for k in range(4)], tmpA, tmpA + 8) + [ust(o, 1 + 2 * Pp + rt)]
    st('mish')
    GR = [sl for sl in range(3, 14) if SLOT[sl][0] != 'm']
    greg = {sl: RG[k] for k, sl in enumerate(GR)}
    uld = lambda tag, r, d, u: ['VM %s buffer_load_dwordx4 %s, %s, %s, %s offen offset:%d %s' % (tag, V(r, 4), uaddr(u)[0], S(rWS, 4), S(sAct + d), uaddr(u)[1], SC)]
    def gload(sl):
        d, Pp = SLOT[sl]
        if d == 'm': return [uld('g%d' % sl, U0[dd], dd, 0) for dd in ((1,) if Pp == 0 else (2, 3))]
        return [uld('g%d' % sl, greg[sl] + 4 * k, d, 1 + 2 * Pp + k) for k in range(2)]
    def gfix(sl):
        d, Pp = SLOT[sl]
        if d != 'm': return []
        fa, fb_ = (0, 1) if Pp == 0 else (2, 3)
        return [['WAITVM g%d' % sl]] + [['v_accvgpr_write_b32 %s, %s' % (A(XF[Pp][rt] + k), V(U0[fb_ if k >= 2 else fa] + 2 * rt + (k & 1)))] for rt in range(2) for k in range(4)]
    def opC(sl, rt):
        if sl < 3: return V(OWN[sl][rt], 4)
        return A(XF[SLOT[sl][1]][rt], 4) if SLOT[sl][0] == 'm' else V(greg[sl] + 4 * rt, 4)
    mfC = lambda sl: with_waits('c%d' % sl, list(range(7)), lambda T: ['%s %s, %s, %s, %s' % (MFMA, V(ACC[rt][T], 4), A(WF[sl & 1][T], 4),
                                opC(sl, rt), V(ACC[rt][T], 4) if sl else '0') for rt in range(2)], 2)
    NS = P('W2SN', 0)
    L += lwait(6, t3) + lwait(13 if P('MW01', 0) else 9, t3) + readsC(0)
    W2L = P('W2L', 2)
    hi = [u for t in range(W2L + NS, 7) for u in w2_loads(t)]; pst = [99]
    hq = hi if P('OWNDMA', 1) else []
    FGS = P('FGSL', 3)
    L += ['s_setprio %d' % P('PRM2', 0)]
    OL = P('OWNLATE', 0)
    for sl in range(3 - OL):
        if sl == FGS: L += ['WAITVM act2'] + setflag(sFG); st('ack')
        L += sched(mfC(sl), readsC(sl + 1), hq if sl >= P('OWNDMA', 1) - 1 else [], [], P('PACEO', 3), pst)
    st('own0')
    hg = group_vm(hi) if hi else []
    late = 4 * P('W2LATE', 0); hl = hg[len(hg) - late:]; hg = hg[:len(hg) - late]
    n0 = min(len(hg), P('FGPRE', 0)); n1 = max(n0, len(hg) - P('FGTAIL', 6))
    pl_, pc_ = apoll('fg', [(sAct + k, 7168) for k in range(1, 4)], sTag)
    L += flat(hg[:n0])
    if FGS == 3: L += ['WAITVM act2'] + (sflag(sFG) if P('SFG', 1) else setflag(sFG)); st('ack')
    if P('VFG', 0):
        pl_ = ['v_mul_u32_u24 %s, %d, %s' % (V(vPa), FS, V(vQ)), 'v_add_u32 %s, %s, %s' % (V(vPa), S(sFGp), V(vPa))] + poll_issue('pfg'); pc_ = pc_[-1:] + poll_check('pfg')
    L += flat(hg[n0:n1]) + pl_ + flat(hg[n1:])
    st('w2i')
    tl = 6 - P('W2LATE', 0)
    L += pc_
    st('fg')
    hi = [u for sl in range(3, 14) for u in gload(sl)]
    k = P('AFPRE', 9); L += flat(hi[:k])
    for sl in range(3 - OL, 3): L += sched(mfC(sl), readsC(sl + 1), [], [])
    L += ((['WAITVM w2_%d' % tl] + lsig(0, t3) + lwait(0, t3)) if hg else []); k2 = P('AFMID', 13)
    hi = hi[k:k2] + [u for t in range(tl + 1, 7) for u in w2_loads(t)] + hi[k2:]
    if NS: L += lwait(7, t3)
    TM = P('TMAJ', 4)
    WR_ = WF[0] + WF[1]
    tuse = [(sl, T) for T in range(7) for sl in range(14 - TM, 14)]
    n0_ = ((14 - TM) & 1) * 7
    def tread(n):
        sl, T = tuse[n]; base = W2B[sl // 2] + (sl & 1) * 7168
        reg = vTr + (base >= 65536); off = base - (65536 if base >= 65536 else 0)
        return ['LK tm%d ds_read_b64_tr_b16 %s, %s offset:%d' % (n, A(WR_[(n0_ + n) % 14] + 2 * b_, 2), V(reg), off + b_ * 3584 + T * 32) for b_ in range(2)]
    for sl in range(3, 14 - TM):
        lo = gfix(sl + 1) if sl + 1 < 14 else []
        if sl == 13 - TM: lo = [u for q in range(sl + 1, 14) for u in gfix(q)]
        PU = [fr + 4 * k for k in range(11)]
        if PTAG and sl == 12: lo += [['v_mov_b32 %s, %s' % (V(r + 3), S(sTag))] for r in PU]
        tg = 'g%d' % sl
        need = ['g%d' % sl] + [i.split()[1] for i in flat(lo) if i.startswith('WAITVM')]
        while any(i.startswith('VM %s ' % t_) for i in flat(hi) for t_ in need): L += flat([hi.pop(0)])
        if SLOT[sl][0] != 'm': L += ['WAITVM %s' % tg]
        mm = mfC(sl)
        rd = readsC(sl + 1) if sl < 13 - TM else [x for n in range(min(7, len(tuse))) for x in tread(n)]
        L += sched(mm[:4], rd[:4], hi, [], P('PACEC', 2), pst) + sched(mm[4:], rd[4:], lo, hi, P('PACEC', 2), pst) + flat(lo)
        if sl == 3: st('c3')
    assert not hi
    cvp = lambda T: ['v_cvt_pk_bf16_f32 %s, %s, %s' % (V(ACC[0][T] + 2 * rt + hh), V(ACC[rt][T] + 2 * hh), V(ACC[rt][T] + 2 * hh + 1)) for rt in range(2) for hh in range(2)]
    pst_ = lambda T: cvp(T) + ['VM part buffer_store_dwordx4 %s, %s, %s, %s offen offset:%d %s' % (V(ACC[0][T], 4), uaddr(T)[0], S(rWS, 4), S(sPTs), uaddr(T)[1], SC)]
    L += ['s_cmp_eq_u32 %s, %s' % (S(sW), S(sKS)), 's_cselect_b32 %s, 0x%x, %s' % (S(sPTs), OOB, S(sPTs))]
    if TM:
        L += ['WAITVM g13']
        st('tm')
        for T in range(7):
            mm = []; rd = []
            for k in range(TM):
                n = T * TM + k; sl = tuse[n][0]
                pr = ['%s %s, %s, %s, %s' % (MFMA, V(ACC[rt][T], 4), A(WR_[(n0_ + n) % 14], 4), opC(sl, rt), V(ACC[rt][T], 4)) for rt in range(2)]
                if k % 2 == 0: pr[0] = ['WAITLK tm%d' % min(n + 1, T * TM + TM - 1), pr[0]]
                mm += pr
                if n + 7 < len(tuse): rd += tread(n + 7)
            q = pst_(T - 1) if T else []
            L += sched(mm[:3], rd[:3], [], []) + sched(mm[3:], rd[3:], [], q) + q
        L += pst_(6)
    elif not PTAG:
        for T in range(7): L += pst_(T)
    if PTAG:
        assert not TM
        L += ['s_cmp_eq_u32 %s, %s' % (S(sW), S(sKS)), 's_cbranch_scc1 L_ownp', 'OPT_BEGIN']
        for u in range(11):
            g, k = u // 3, u % 3
            for e in range(3):
                D = 3 * k + e; T = 2 * g + D // 4
                if D < 8 and T < 7: L += ['v_cvt_pk_bf16_f32 %s, %s, %s' % (V(PU[u] + e), V(ACC[(D % 4) // 2][T] + 2 * (D % 2)), V(ACC[(D % 4) // 2][T] + 2 * (D % 2) + 1))]
            L += ['VM part buffer_store_dwordx4 %s, %s, %s, %s offen offset:%d %s' % (V(PU[u], 4), uaddr(u)[0], S(rWS, 4), S(sPTs), uaddr(u)[1], SC)]
        L += ['OPT_END', 's_branch L_partd', 'L_ownp:', 's_nop 7']
        for T in range(7): L += cvp(T) + ['ds_write_b128 %s, %s offset:%d' % (V(t2), V(ACC[0][T], 4), T * 1024)]
        L += ['L_partd:']
        st('mainC')
    else:
        st('mainC')
        L += ['s_cmp_lg_u32 %s, %s' % (S(sW), S(sKS)), 's_cbranch_scc1 L_partd']
        L += ['ds_write_b128 %s, %s offset:%d' % (V(t2), V(ACC[0][T], 4), T * 1024) for T in range(7)]
        L += ['L_partd:'] + lsig(5, t3)
    fpo = [sAct, sAct + 1, sAct + 2]; pto = [sWp, sWp + 1, sWp + 2]
    nu = 3 if PTAG else 2
    L += sx(sG, [(sN2f, 16 * PART_B), (sNB, 4 * PART_B)], PART_OFF + 7168) + sx(sG2, [(sN2f, 16 * PART_B), (sNB, 4 * PART_B), (sW, nu * 1024)], PART_OFF)
    L += ['s_cmp_eq_u32 %s, 3' % S(sW), 's_cselect_b32 %s, 0, 2048' % S(sT3)]
    for k in range(3):
        L += ['s_add_u32 %s, %s, %d' % (S(sT2), S(sKS), k + 1), 's_and_b32 %s, %s, 3' % (S(sT2), S(sT2)),
              's_mul_i32 %s, %s, %d' % (S(pto[k]), S(sT2), PART_B), 's_add_u32 %s, %s, %s' % (S(pto[k]), S(pto[k]), S(sG2))]
        L += ['s_add_u32 %s, %s, %s' % (S(fpo[k]), S(pto[k]), S(sT3))] if PTAG else ['s_mul_i32 %s, %s, %d' % (S(fpo[k]), S(sT2), PART_B), 's_add_u32 %s, %s, %s' % (S(fpo[k]), S(fpo[k]), S(sG))]
    L += ['s_lshl_b32 %s, %s, 11' % (S(sT2), S(sW)), 'v_add_u32 %s, %s, %s' % (V(t2), S(sT2), V(t2)),
          's_add_u32 %s, %s, %d' % (S(sT2), S(sM0x), BSL), 'v_add_u32 %s, %s, %s' % (V(t1), S(sT2), V(vL16))]
    PT = [accb + 12 * k for k in range(3)] + [accb + 36]; SU = fr + 44; UT = fr + 60
    ptl = [['VM pt%d buffer_load_dwordx4 %s, %s, %s, %s offen offset:%d %s' % (k, V(PT[k] + 4 * a, 4), V(vL16), S(rWS, 4), S(pto[k]), a * 1024, SC) for a in range(2)] +
           (['VM pt%d buffer_load_dwordx4 %s, %s, %s, %s offen %s' % (k, V(PT[k] + 8, 4), V(vL16), S(rWS, 4), S(fpo[k]), SC)] if PTAG else []) for k in range(3)]
    if PTAG:
        L += ['s_waitcnt vmcnt(%d)' % P('PGATE', 0)] + lsig(5, t3); st('pack')
        L += lwait(5, t3) + flat(ptl) + ['ds_read_b128 %s, %s offset:%d' % (V(PT[3] + 4 * a, 4), V(t2), a * 1024) for a in range(2)] + ['s_waitcnt lgkmcnt(0)']; st('fp')
    else:
        L += ['WAITVM part'] + (sflag(sFP) if P('SFP', 0) else setflag(sFP)); st('pack')
        L += lwait(5, t3) + ['ds_read_b128 %s, %s offset:%d' % (V(PT[3] + 4 * a, 4), V(t2), a * 1024) for a in range(2)]
        if P('VFP', 0):
            L += ['v_mul_u32_u24 %s, %d, %s' % (V(vPa), FS, V(vQ)), 'v_add_u32 %s, %s, %s' % (V(vPa), S(sG), V(vPa))] + poll_issue('pfp') + poll_check('pfp') + ['s_waitcnt lgkmcnt(0)']
        else: L += (['s_sleep %d' % P('FPD', 0)] if P('FPD', 0) else []) + flat(list(apoll('fp', [(r_, 0) for r_ in fpo], sTag)))
        st('fp')
        L += flat(ptl)
    for D in range(8): L += ['v_lshlrev_b32 %s, 16, %s' % (V(SU + 2 * D), V(PT[3] + D)), 'v_and_b32 %s, 0xffff0000, %s' % (V(SU + 2 * D + 1), V(PT[3] + D))]
    pD = lambda k, D: PT[k] + (4 * (D // 3) + D % 3 if PTAG else D)
    L += ['v_mov_b32 %s, 0x3f80' % V(UT), 'v_mov_b32 %s, 0x3f800000' % V(UT + 1)]
    MF = P('MFIN', 1); AG = fr
    if MF:
        L += sx(sT2, [(sN2f, 896), (sNB, 224), (sW, 64)]) + ['s_add_u32 %s, %s, 917504' % (S(sT3), S(sT2)),
              'v_mul_u32_u24 %s, 57344, %s' % (V(t0), V(vJ)), 'v_add_u32 %s, %s, %s' % (V(t0), V(t0), V(vQ8)),
              'v_add_u32 %s, %s, %s' % (V(t1), S(sM0x), V(vL16)), 's_lshl_b32 %s, %s, 9' % (S(sG), S(sW)), 'v_lshl_add_u32 %s, %s, 3, %s' % (V(t2), V(vL), S(sG))]
        L += lwait(12, t3, vLW) + ['ds_read_b64 %s, %s offset:%d' % (V(AG + 16, 2), V(t2), GSL), 's_waitcnt lgkmcnt(0)']
        for rt in range(2):
            L += ['v_sub_f32 %s, 1.0, %s' % (V(AG + 18 + rt), V(AG + 16 + rt)), 'v_mul_f32 %s, %s, %s' % (V(AG + 16 + rt), f2u(2.0 / (2048 * 448)), V(AG + 16 + rt))]
    for k in range(3):
        L += flat(dcheck('pt%d' % k, [('v_cmp_ne_u32', S(sTag), V(PT[k] + 4 * u + 3)) for u in range(3)], raw(ptl[k]))) if PTAG else ['WAITVM pt%d' % k]
        for D in range(8):
            if P('DOT', 1):
                L += ['v_dot2_f32_bf16 %s, %s, %s, %s' % (V(SU + 2 * D + e), V(pD(k, D)), V(UT + e), V(SU + 2 * D + e)) for e in range(2)]
            else:
                L += ['v_lshlrev_b32 %s, 16, %s' % (V(UT + 2), V(pD(k, D))), 'v_and_b32 %s, 0xffff0000, %s' % (V(UT + 3), V(pD(k, D))),
                      'v_add_f32 %s, %s, %s' % (V(SU + 2 * D), V(SU + 2 * D), V(UT + 2)), 'v_add_f32 %s, %s, %s' % (V(SU + 2 * D + 1), V(SU + 2 * D + 1), V(UT + 3))]
            if not MF and k == 2 and D in (3, 5, 7): L += ['ds_write_b128 %s, %s offset:%d' % (V(t1), V(SU + 2 * D - 6, 4), (D // 2 - 1) * 1024)]
    if MF:
        lw = lwait(11, t3, vLW)
        L += ['s_nop 2', lw[1]] + ['v_mul_f32 %s, %s, %s' % (V(SU + q), V(AG + 18 + (q // 4) % 2), V(SU + q)) for q in range(16)]
        L += lw[2:5] + ['s_cbranch_vccz L_sok'] + lw + ['L_sok:']
        L += ['LK ag%d ds_read_b128 %s, %s offset:%d' % (k, V(AG + 4 * k, 4), V(t1), ASL + k * 1024) for k in range(4)]
        for a in range(2):
            if a: L += ['s_cmp_eq_u32 %s, 3' % S(sW), 's_cbranch_scc1 L_mfin']
            for rt in range(2):
                q = 8 * a + 4 * rt
                L += ['WAITLK ag%d' % (2 * a + rt)] + ['v_fma_f32 %s, %s, %s, %s' % (V(SU + q + r), V(AG + q + r), V(AG + 16 + rt), V(SU + q + r)) for r in range(4)]
                L += ['v_cvt_pk_bf16_f32 %s, %s, %s' % (V(SU + q + hh), V(SU + q + 2 * hh), V(SU + q + 2 * hh + 1)) for hh in range(2)]
                L += ['VM out buffer_store_dwordx2 %s, %s, %s, %s offen offset:%d' % (V(SU + q, 2), V(t0), S(rOUT, 4), S(sT3 if rt else sT2), a * 32)]
        L += ['L_mfin:']
    else:
        L += ['s_nop 2', 'ds_write_b128 %s, %s offset:%d' % (V(t1), V(SU + 12, 4), 3072)]
        L += lsig(11, t3)
    finish(L, st, 'M')
    LM = L; nvM = va.hi

    L = ['L_S:']; st = mk_st(L, 'S')
    va = Alloc('v', vbase, NV); sa = Alloc('s', sbase, 102); aa = Alloc('a', 0, NA)
    sCF = sa(); sK1 = sa(); sHF = sa(); sKP = sa()
    sA1o = sa(); sA1o2 = sa(); sFB = sa(); sA1x = sa(); sDFx = sa(); sPTl2 = sa(); sFA = sa(); sWo = sa(); sDFo = sa(); sB1s = sa(); sB1l = sa(); sGl = sa(); sPTl = sa(); sOut = sa()
    vAmp = va(); vFr = va(); vG = va(2); vG1 = va(2); vA1 = va()
    big = va(NV - ((va.next + 3) // 4 * 4), 4); NB = NV - big
    pa = Alloc('v', big, NV)
    MM = [[[pa(4) for u in range(4)] for t in range(2)] for e in range(2)]
    WRr = [pa(4) for t in range(2)]; WIr = [pa(4) for t in range(2)]
    fb = pa.next
    ACD = [[pa(4) for T in range(2)] for rt in range(2)]
    MR = [[pa(4) for t in range(2)] for kt in range(2)]; MI = [[pa(4) for t in range(2)] for kt in range(2)]
    tmpS = pa(24, 4)
    XF = [[aa(4) for rt in range(2)] for b in range(2)]; FF = [[aa(4) for T in range(2)] for b in range(2)]
    NR = [[aa(4) for u in range(2)] for tn in range(2)]; NI = [[aa(4) for u in range(2)] for tn in range(2)]
    BF = [[XF[0][0] + 8 * a + 4 * u for u in range(2)] for a in range(4)]
    L += ['s_load_dwordx2 %s, s[0:1], %d' % (S(r_, 2), off) for r_, off in ((rWR, 8), (rWI, 16))]
    L += common2 + ['v_add_u32 %s, %d, %s' % (V(vFr), FL, V(vL16)),
          'v_lshlrev_b32 %s, 2, %s' % (V(t0), V(vL)), 'v_add_u32 %s, %d, %s' % (V(t0), LF, V(t0)), 'ds_write_b32 %s, %s' % (V(t0), V(vZero))]
    L += fgen(range(P('FM', 2), 4), big, 'S')
    L += dmaddr
    for r_, sz in ((rWR, W_SZ), (rWI, W_SZ)):
        L += ['s_mov_b32 %s, 0x%x' % (S(r_ + 2), sz), 's_mov_b32 %s, 0x20000' % S(r_ + 3)]
    L += ['s_add_u32 %s, %s, 2' % (S(sSig), S(sSig)), 's_sub_u32 %s, %s, 7' % (S(sT), S(sSig)), 's_min_u32 %s, %s, %s' % (S(sSig), S(sSig), S(sT))]
    gx = lambda dst, terms, const=0: sx(dst, terms, const, sG2)
    lo1 = ['s_lshr_b32 %s, %s, 1' % (S(sHF), S(sW)), 's_and_b32 %s, %s, 15' % (S(sCF), S(sM)),
           's_lshr_b32 %s, %s, 4' % (S(sKP), S(sM)), 's_lshl_b32 %s, %s, 1' % (S(sG), S(sXc)), 's_add_u32 %s, %s, %s' % (S(sKP), S(sKP), S(sG)),
           's_and_b32 %s, %s, 1' % (S(sK1), S(sW)), 's_lshl_b32 %s, %s, 1' % (S(sG), S(sKP)), 's_add_u32 %s, %s, %s' % (S(sK1), S(sK1), S(sG))]
    lo1 += w2tab + gx(sWo, [(sK1, 450), (sCF, 32), (sHF, 32 * 14400)])
    lo1 += gx(sA1o, [(sI, A1_I), (sC, A1_B), (sW, 1024)], A1_OFF) + gx(sG, [(sN2, 128)], GATE_OFF) + ['s_add_u32 %s, %s, 8192' % (S(sA1x), S(sA1o))]
    lo1 += ['s_cmp_eq_u32 %s, 15' % S(sC), 's_cselect_b32 %s, %s, %s' % (S(sA1o), S(sG), S(sA1o)), 's_cselect_b32 %s, 64, 4096' % S(sG), 's_cselect_b64 vcc, -1, 0',
            's_add_u32 %s, %s, %s' % (S(sA1o2), S(sA1o), S(sG)), 'v_lshlrev_b32 %s, 4, %s' % (V(vA1), V(vQ)), 'v_cndmask_b32 %s, %s, %s, vcc' % (V(vA1), V(vL16), V(vA1))]
    lo1 += gx(sFB, [(sW, 16 * B1_N), (sCF, B1_C)], B1_OFF + 2048) + gx(sPTl2, [(sN2, B1_N), (sC, B1_C)], B1_OFF + 2048)
    lo1 += gx(sFA, [(sI, A1_I), (sC, A1_B), (sW, 128)], A1_OFF + A1_D)
    lo1 += ['s_min_u32 %s, %s, 14' % (S(sG), S(sCF))] + gx(sDFo, [(sG, A1_B), (sK1, 256)], A1_OFF)
    lo1 += ['s_lshr_b32 %s, %s, 4' % (S(sG), S(sK1))] + gx(sDFx, [(sG, -4096 + 8), (sDFo, 1)], 8192)
    lo1 += gx(sB1s, [(sCF, B1_C), (sW, 16 * B1_N), (sKP, 128)], B1_OFF) + gx(sB1l, [(sW, 4 * B1_C), (sN2f, B1_N)], B1_OFF)
    lo1 += gx(sGl, [(sN2f, 128)], GATE_OFF) + gx(sPTl, [(sN2f, 16 * PART_B), (sNB, 4 * PART_B), (sW, 3072 if PTAG else 2048)], PART_OFF) + gx(sOut, [(sN2f, 896), (sNB, 224), (sW, 64)])
    sJunk = sSpin
    L += ['s_waitcnt lgkmcnt(0)'] + wst + epld + ['s_load_dword %s, %s, 0' % (S(sJunk), S(r_, 2)) for r_ in (rWR, rWI)] + lo1
    if P('FTOUCH', 0): L += ['s_load_dword %s, %s, %s glc' % (S(sJunk), S(rWS, 2), S(r_)) for r_ in (sFA, sPTl2)]
    q_ = tmpS
    lo = [
          'v_mul_u32_u24 %s, %d, %s' % (V(t3), 4 * 14400, V(vQ)), 'v_lshl_add_u32 %s, %s, 1, %s' % (V(t3), V(vJ), V(t3))]
    for t in range(2):
        for r in range(4): lo += ['v_mov_b32 %s, 0' % V(WRr[t] + r), 'v_mov_b32 %s, 0' % V(WIr[t] + r)]
    nlo1 = len(lo)
    vK = [q_, q_ + 1]; vS0 = q_ + 2; vS = q_ + 3; vA = [q_ + 4, q_ + 5]; c_ = [q_ + 6, q_ + 7]; s_ = [q_ + 8, q_ + 9]
    lo += ['v_cvt_f32_u32 %s, %s' % (V(vK[0]), V(vJ)), 'v_mul_f32 %s, %s, %s' % (V(vK[0]), f2u(1.0 / 2048), V(vK[0])),
           'v_add_f32 %s, %s, %s' % (V(vK[1]), f2u(16.0 / 2048), V(vK[0])),
           'v_lshl_add_u32 %s, %s, 8, %s' % (V(vS0), V(vQ), S(sN2)), 'v_cvt_f32_u32 %s, %s' % (V(vS0), V(vS0))]
    for t in range(2):
        for r in range(4):
            lo += ['v_add_f32 %s, %s, %s' % (V(vS), f2u(64.0 * (16 * t + r)), V(vS0))]
            for kt in range(2): lo += ['v_mul_f32 %s, %s, %s' % (V(vA[kt]), V(vK[kt]), V(vS))]
            for kt in range(2): lo += ['v_cos_f32 %s, %s' % (V(c_[kt]), V(vA[kt])), 'v_sin_f32 %s, %s' % (V(s_[kt]), V(vA[kt]))]
            for kt in range(2):
                lo += ['v_cvt_pk_bf16_f32 %s, %s, %s' % (V(MR[kt][t] + r), V(c_[kt]), V(s_[kt])),
                       'v_cvt_pk_bf16_f32 %s, -%s, %s' % (V(MI[kt][t] + r), V(s_[kt]), V(c_[kt]))]
    nmp = len(lo)
    vI = q_; vN0 = q_ + 1; vAn = q_ + 2; vc = q_ + 4; vs = q_ + 5
    lo += ['v_lshl_add_u32 %s, %s, 5, %s' % (V(vI), S(sHF), V(vJ)), 'v_cvt_f32_u32 %s, %s' % (V(vI), V(vI)), 'v_mul_f32 %s, %s, %s' % (V(vI), f2u(1.0 / 64), V(vI)),
           'v_lshlrev_b32 %s, 2, %s' % (V(vN0), V(vQ)), 'v_cvt_f32_u32 %s, %s' % (V(vN0), V(vN0))]
    prev = []
    for u in range(4):
        for r in range(4):
            k = (4 * u + r) & 1
            lo += ['v_add_f32 %s, %s, %s' % (V(vAn + k), f2u(16.0 * u + r), V(vN0)), 'v_mul_f32 %s, %s, %s' % (V(vAn + k), V(vAn + k), V(vI)),
                   'v_cos_f32 %s, %s' % (V(vc + 2 * k), V(vAn + k)), 'v_sin_f32 %s, %s' % (V(vs + 2 * k), V(vAn + k))] + prev
            cc, ss = V(vc + 2 * k), V(vs + 2 * k)
            rot = [(cc, ss), ('-' + ss, cc), ('-' + cc, '-' + ss), (ss, '-' + cc)]
            prev = ['v_cvt_pk_bf16_f32 %s, %s, %s' % ((V(MM[e][t][u] + r),) + rot[(t * r + e) % 4]) for e in range(2) for t in range(2)]
    lo += prev
    mml = []
    if P('MML', 0) >= 1: mml = lo[nmp:]; lo = lo[:nmp]
    if P('MML', 0) == 2: mml = lo[nlo1:] + mml; lo = lo[:nlo1]
    ngen = []
    vSs, vKk, nc, ns, pn = q_, q_ + 2, q_ + 3, q_ + 4, q_ + 5
    ngen += ['v_lshl_add_u32 %s, %s, 6, %s' % (V(vSs), V(vJ), S(sN2f)), 'v_cvt_f32_u32 %s, %s' % (V(vSs), V(vSs)), 'v_mul_f32 %s, %s, %s' % (V(vSs), f2u(1.0 / 2048), V(vSs))]
    for u in range(2):
        for r in range(4):
            ngen += ['v_add_f32 %s, %s, %s' % (V(vKk), f2u(16.0 * u + r), V(vN0)), 'v_mul_f32 %s, %s, %s' % (V(vKk), V(vKk), V(vSs)),
                   'v_cos_f32 %s, %s' % (V(nc), V(vKk)), 'v_sin_f32 %s, %s' % (V(ns), V(vKk))]
            for tn in range(2):
                ng = '-' if (tn and r & 1) else ''; ps = '' if (tn and r & 1) else '-'
                if tn == 0 or r & 1:
                    ngen += ['v_cvt_pk_bf16_f32 %s, %s%s, %s%s' % (V(pn), ng, V(nc), ps, V(ns)), 'v_cvt_pk_bf16_f32 %s, %s%s, %s%s' % (V(pn + 1), ng, V(ns), ng, V(nc))]
                ngen += ['v_accvgpr_write_b32 %s, %s' % (A(NR[tn][u] + r), V(pn)), 'v_accvgpr_write_b32 %s, %s' % (A(NI[tn][u] + r), V(pn + 1))]
    lo += ['s_lshl_b32 %s, %s, 2' % (S(sG), S(sW)), 's_add_u32 %s, %s, %d' % (S(sG), S(sG), XCH),
           'v_lshl_add_u32 %s, %s, 10, %s' % (V(t0), V(vQ), S(sG)), 'v_lshl_add_u32 %s, %s, 4, %s' % (V(t0), V(vJ), V(t0)),
           's_lshl_b32 %s, %s, 10' % (S(sG), S(sW)), 's_add_u32 %s, %s, %d' % (S(sG), S(sG), XCH), 'v_add_u32 %s, %s, %s' % (V(t1), S(sG), V(vL16))]
    pf = sx(sT2, [(sM, 12544), (sKS, 448 * 896), (sW, 25 * 128)]) + [
         'v_lshrrev_b32 %s, 1, %s' % (V(t2), V(vL)), 'v_min_u32 %s, 24, %s' % (V(t2), V(t2)), 'v_lshlrev_b32 %s, 7, %s' % (V(t2), V(t2)),
         'VM pf buffer_load_dword %s, %s, %s, %s offen%s' % (V(vPv), V(t2), S(rW2, 4), S(sT2), NT)]
    pfw2 = list(pf)
    pf += sx(sT2, [(sM, 2 * 14400), (sHF, 14400), (sXc, 1800)]) + [
         'v_lshrrev_b32 %s, 3, %s' % (V(t2), V(vL)), 's_and_b32 %s, %s, 1' % (S(sT), S(sW)), 's_lshl_b32 %s, %s, 10' % (S(sT), S(sT)),
         'v_lshl_add_u32 %s, %s, 7, %s' % (V(t2), V(t2), S(sT)), 'v_min_u32 %s, 1796, %s' % (V(t2), V(t2)),
         'VM pf buffer_load_dword %s, %s, %s, %s offen%s' % (V(vPv), V(t2), S(rWR, 4), S(sT2), NT),
         'VM pf buffer_load_dword %s, %s, %s, %s offen%s' % (V(vPv), V(t2), S(rWI, 4), S(sT2), NT)]
    if P('PF2', 1):
        pf = ['s_lshr_b32 %s, %s, 2' % (S(sT3), S(sM)), 's_lshl_b32 %s, %s, 1' % (S(sT3), S(sT3)), 's_and_b32 %s, %s, 1' % (S(sT), S(sM)), 's_add_u32 %s, %s, %s' % (S(sT3), S(sT3), S(sT)),
              's_add_u32 %s, %s, 1' % (S(sG), S(sM)), 's_and_b32 %s, %s, 2' % (S(sG), S(sG)), 's_lshl_b32 %s, %s, 29' % (S(sG), S(sG))]
        if P('PF2', 1) == 2:
            pf = ['s_lshr_b32 %s, %s, 3' % (S(sT3), S(sM)), 's_lshl_b32 %s, %s, 2' % (S(sT3), S(sT3)), 's_and_b32 %s, %s, 3' % (S(sT), S(sM)), 's_add_u32 %s, %s, %s' % (S(sT3), S(sT3), S(sT)),
                  's_and_b32 %s, %s, 4' % (S(sG), S(sM)), 's_lshl_b32 %s, %s, 28' % (S(sG), S(sG))]
        if not P('PFK', 0):
            pf += sx(sT2, [(sT3, 25088), (sKS, 448 * 896), (sW, 49 * 128), (sG, 1)]) + [
                  'v_min_u32 %s, 48, %s' % (V(t2), V(vL)), 'v_lshlrev_b32 %s, 7, %s' % (V(t2), V(t2)),
                  'VM pf buffer_load_dword %s, %s, %s, %s offen' % (V(vPv), V(t2), S(rW2, 4), S(sT2))]
        pf += sx(sT2, [(sT3, 4 * 14400), (sW, 14400), (sXc, 1800), (sG, 1)]) + [
              'v_lshrrev_b32 %s, 2, %s' % (V(t2), V(vL)), 'v_lshlrev_b32 %s, 7, %s' % (V(t2), V(t2)), 'v_min_u32 %s, 1796, %s' % (V(t2), V(t2)),
              'VM pf buffer_load_dword %s, %s, %s, %s offen' % (V(vPv), V(t2), S(rWR, 4), S(sT2)),
              'VM pf buffer_load_dword %s, %s, %s, %s offen' % (V(vPv), V(t2), S(rWI, 4), S(sT2))]
    if P('VT', 0):
        pf += ['v_min_u32 %s, 13, %s' % (V(t2), V(vJ)), 'v_lshlrev_b32 %s, 21, %s' % (V(t2), V(t2)), 'VM pf buffer_load_dword %s, %s, %s, 0 offen' % (V(vPv), V(t2), S(rWS, 4))]
    if P('FT2', 1):
        pf += ['s_andn2_b32 %s, %s, 1' % (S(sT3), S(sC)), 'v_bfe_u32 %s, %s, 3, 1' % (V(vG), V(vL))]
        pf += sx(sT2, [(sN2, ACT_N2), (sT3, ACT_C), (sG, 1)], ACT_OFF + 7168) + ['v_mul_u32_u24 %s, %d, %s' % (V(t2), ACT_C, V(vG)),
               'VM pf buffer_load_dword %s, %s, %s, %s offen sc1' % (V(vPv), V(t2), S(rWS, 4), S(sT2))]
        pf += sx(sT2, [(sI, A1_I), (sT3, A1_B), (sW, 128), (sG, 1)], A1_OFF + A1_D) + ['v_mul_u32_u24 %s, %d, %s' % (V(t2), A1_B, V(vG)),
               'VM pf buffer_load_dword %s, %s, %s, %s offen sc1' % (V(vPv), V(t2), S(rWS, 4), S(sT2))]
        pf += ['s_andn2_b32 %s, %s, 1' % (S(sT3), S(sNB))] + sx(sT2, [(sN2, 16 * PART_B), (sT3, 4 * PART_B), (sKS, PART_B), (sG, 1)], PART_OFF + 7168) + [
               'v_mul_u32_u24 %s, %d, %s' % (V(t2), 4 * PART_B, V(vG)), 'VM pf buffer_load_dword %s, %s, %s, %s offen sc1' % (V(vPv), V(t2), S(rWS, 4), S(sT2))]
    wl = []
    for t in range(2):
        for r in range(4):
            wl += ['s_add_u32 %s, %s, %d' % (S(sT2), S(sWo), (16 * t + r) * 14400),
                   'VM W buffer_load_short_d16_hi %s, %s, %s, %s offen' % (V(WRr[t] + r), V(t3), S(rWR, 4), S(sT2)),
                   'VM W buffer_load_short_d16_hi %s, %s, %s, %s offen' % (V(WIr[t] + r), V(t3), S(rWI, 4), S(sT2))]
    readsS = lambda ks: xread(ks, XF) + ['LK a%d_f ds_read_b128 %s, %s offset:%d' % (ks, A(FF[ks & 1][T], 4), V(vFr), ks * 2048 + T * 1024) for T in range(2)]
    mfS = lambda ks: ['%s %s, %s, %s, %s' % (MFMA, V(ACD[rt][T], 4), A(XF[ks & 1][rt], 4), A(FF[ks & 1][T], 4), V(ACD[rt][T], 4) if ks else '0') for T in range(2) for rt in range(2)]
    L += lo
    if P('NGPRO', 0): L += ngen; ngen = []
    if P('PFS', 3) == -1: L += pf
    L += ['s_waitcnt lgkmcnt(0)', 's_setprio %d' % P('PRS', 1)] + tagc
    st('pro')
    L += ['s_barrier']
    L += readsS(0)
    ngl = []
    if not P('NGL', 0): ngl = ngen; ngen = []
    lo = mml + ngen; per = (len(lo) + 4) // 5
    ld = []
    for ks in range(14):
        if ks == 0: ld = [setflag(sPTl2)] + group_vm(stage_loads(2)) + ([pf] if P('PFS', 3) == 0 else [])
        if ks & 1:
            s = (ks + 1) // 2
            if s < 7: L += flat(ld) + (['WAITVM st%d' % s] if 2 <= s else []) + ['s_barrier']; ld = []
            if s + 2 <= 6: ld = group_vm(stage_loads(s + 2))
            if s == P('PFS', 3): ld += [pf]
            if s == 6: w01 = [] if P('MW01', 0) else group_vm(w2_loads(0) + w2_loads(1)); ld += w01[:P('W2E', 8)]; w01 = w01[P('W2E', 8):]
        if ks == P('WLK', 10): ld += [wl]
        if ks == P('PFK', 0) and ks: ld += [pfw2]
        L += ['WAITLK a%d_f' % ks] + weave(mfS(ks), readsS(ks + 1) if ks < 13 else [])
        h = (len(ld) + 1) // 2 if (ks & 1 and P('SPLITLD', 1)) else len(ld)
        L += flat(ld[:h]); ld = ld[h:]
        if ks % 2 == 0 and ks: L += lo[:per]; lo = lo[per:]
    assert not lo
    L += ['s_setprio %d' % P('PRS2', 1)]
    st('mainA')
    PX = [tmpS, tmpS + 4]; DR = [tmpS + 8, tmpS + 12]; DI = [tmpS + 16, tmpS + 20]; XO = [ACD[0][0], ACD[1][0]]
    L += ['s_nop 4', 's_cmp_eq_u32 %s, 15' % S(sC), 's_cbranch_scc1 L_gate']
    for t in range(2):
        for r in range(4): L += ['v_cvt_pk_bf16_f32 %s, %s, %s' % (V(PX[t] + r), V(ACD[t][0] + r), V(ACD[t][1] + r))]
    for t in range(2):
        for kt in range(2):
            L += ['%s %s, %s, %s, %s' % (MFMA, V(DR[kt], 4), V(MR[kt][t], 4), V(PX[t], 4), V(DR[kt], 4) if t else '0'),
                  '%s %s, %s, %s, %s' % (MFMA, V(DI[kt], 4), V(MI[kt][t], 4), V(PX[t], 4), V(DI[kt], 4) if t else '0')]
    for kt in range(2):
        for r in range(4):
            L += ['v_cvt_pk_bf16_f32 %s, %s, %s' % (V(DR[kt] + r), V(DR[kt] + r), V(DI[kt] + r)),
                  'ds_write_b32 %s, %s offset:%d' % (V(t0), V(DR[kt] + r), kt * 4096 + r * 256)]
    L += lsig(1, t0) + lwait(1, t0)
    L += ['ds_read_b128 %s, %s offset:%d' % (V(XO[k], 4), V(t1), k * 4096) for k in range(2)]
    if ATAG:
        XX = ACD[0][1]
        L += ['v_mov_b32 %s, %s' % (V(XX + 1), S(sTag)), 'v_mov_b32 %s, %s' % (V(XX + 3), S(sTag)), 's_waitcnt lgkmcnt(0)']
        for k in range(2): L += ['v_mov_b32 %s, %s' % (V(XX + 2 * k), V(XO[k] + 3)), 'v_mov_b32 %s, %s' % (V(XO[k] + 3), S(sTag))]
        L += ['OPT_BEGIN', 'VM a1x buffer_store_dwordx4 %s, %s, %s, %s offen %s' % (V(XX, 4), V(vL16), S(rWS, 4), S(sA1x), SC), 'OPT_END']
    else: L += ['s_waitcnt lgkmcnt(0)']
    L += ['OOL_BEGIN:', 'L_gate:', 's_nop 3']
    for rt in range(2):
        o = XO[rt]
        for r in range(4): L += ['v_mul_f32 %s, %s, %s' % (V(o + r), f2u(LOG2E), V(o + r))]
        for r in range(4): L += ['v_exp_f32 %s, -%s' % (V(o + r), V(o + r))]
        for r in range(4): L += ['v_add_f32 %s, 1.0, %s' % (V(o + r), V(o + r))]
        for r in range(4): L += ['v_rcp_f32 %s, %s' % (V(o + r), V(o + r))]
    L += ['s_nop 0', 's_branch L_a1st', 'OOL_END:', 'L_a1st:']
    L += ['VM a1 buffer_store_dwordx4 %s, %s, %s, %s offen %s' % (V(XO[k], 4), V(vA1), S(rWS, 4), S(sA1o2 if k else sA1o), SC) for k in range(2)]
    assert not ATAG
    st('a1st')
    if P('PFK', 0):
        n_ = P('W01A', 0)
        L += flat(w01[:n_]) + ['WAITVM a1'] + sflag(sFA) + ['s_setprio %d' % P('PRW', 1)] + flat(w01[n_:]) + ['s_setprio %d' % P('PRS2', 1), 'WAITVM w2_1'] + lsig(6, t3) + lwait(9, t3)
    else:
        L += ['s_setprio %d' % P('PRW', 1)] + flat(w01) + (wl if P('WLK', 10) == 99 else []) + ['s_setprio %d' % P('PRS2', 1)] + ((([] if P('MW01', 0) else ['WAITVM w2_1']) + lsig(6, t3)) if not w01 else []) + ([] if ATAG else ['WAITVM a1'] + (sflag(sFA) if P('SFA', 1) else setflag(sFA))) + ((['WAITVM w2_1'] + lsig(6, t3)) if w01 else []) + lwait(9, t3) + (lwait(6, t3) if P('W2SN', 0) >= 2 else [])
    NS = P('W2SN', 0)
    ws_ = group_vm([u for t in range(P('W2L', 2), P('W2L', 2) + NS) for u in w2_loads(t)]) if NS else []
    pb = Alloc('v', fb, NV)
    DF = [pb(4) for u in range(4)]; XRr = [pb(4) for t in range(2)]; XIr = [pb(4) for t in range(2)]; PF = [pb(4) for t in range(4)]
    if ngl: ngl = ['v_lshlrev_b32 %s, 2, %s' % (V(vN0), V(vQ)), 'v_cvt_f32_u32 %s, %s' % (V(vN0), V(vN0))] + ngl
    dfl = []
    for u in range(4):
        dfl += ['s_add_u32 %s, %s, 0x%x' % (S(sT2), S(sDFo), u * 4 * A1_I),
                'VM df buffer_load_dwordx4 %s, %s, %s, %s offen %s' % (V(DF[u], 4), V(vPa), S(rWS, 4), S(sT2), SC)]
        if ATAG: dfl += ['s_add_u32 %s, %s, 0x%x' % (S(sT2), S(sDFx), u * 4 * A1_I),
                'VM df buffer_load_dwordx2 %s, %s, %s, %s offen %s' % (V(PF[0] + 2 * u, 2), V(vPa), S(rWS, 4), S(sT2), SC)]
    L += ['v_mul_u32_u24 %s, %d, %s' % (V(vPa), A1_I, V(vQ)), 'v_lshl_add_u32 %s, %s, 4, %s' % (V(vPa), V(vJ), V(vPa))]
    k1 = P('NGA', 0)
    L += ['s_min_u32 %s, %s, 14' % (S(sT3), S(sCF))] + sx(sT2, [(sT3, A1_B), (sKS, 128), (sW, 4 * A1_I)], A1_OFF + A1_D)
    L += ['s_setprio %d' % P('PRW', 1)] + flat(ws_) + ['s_setprio %d' % P('PRS2', 1)] + ngl[:k1] + (['s_sleep %d' % P('FAD', 0)] if P('FAD', 0) else []) + flat(list(apoll('fa', [(sT2, k * A1_I) for k in range(4)], sTag))) + lsig(8, t3) + lwait(8, t3) + dfl
    st('fa')
    gp_, gc_ = apoll('gt', [(sG, 0)], sTag)
    gl = ['VM g buffer_load_dword %s, %s, %s, %s offen offset:%d %s' % (V(vG + rt), V(vAmp), S(rWS, 4), S(sGl), rt * 64, SC) for rt in range(2)]
    L += sx(sG, [(sKS, 128), (sI, A1_I)], A1_OFF + A1_D + 15 * A1_B) + gp_ + ngl[k1:] + gc_ + ['v_lshlrev_b32 %s, 2, %s' % (V(vAmp), V(vJ))] + gl
    if NS: L += ['WAITVM w2_%d' % (P('W2L', 2) - 1 + NS)] + lsig(7, t3)
    L += ['s_and_b32 %s, %s, 1' % (S(sT2), S(sW)), 's_lshl_b32 %s, %s, 12' % (S(sT3), S(sT2)), 's_add_u32 %s, %s, %d' % (S(sT3), S(sT3), PXC),
          'v_add_u32 %s, %s, %s' % (V(t1), S(sT3), V(vL16)), 's_lshl_b32 %s, %s, 11' % (S(sT3), S(sHF)), 'v_add_u32 %s, %s, %s' % (V(t0), S(sT3), V(t1)),
          's_lshl_b32 %s, %s, 2' % (S(sT2), S(sT2)), 's_lshl_b32 %s, %s, 12' % (S(sT3), S(sHF)), 's_add_u32 %s, %s, %s' % (S(sT2), S(sT2), S(sT3)),
          's_add_u32 %s, %s, %d' % (S(sT2), S(sT2), BXC),
          'v_lshl_add_u32 %s, %s, 9, %s' % (V(t2), V(vQ), S(sT2)), 'v_lshl_add_u32 %s, %s, 3, %s' % (V(t2), V(vJ), V(t2))]
    if ATAG:
        L += flat(dcheck('df', [('v_cmp_ne_u32', S(sTag), V(r)) for u in range(4) for r in (DF[u] + 3, PF[0] + 2 * u + 1)], raw(dfl)))
        L += ['v_mov_b32 %s, %s' % (V(DF[u] + 3), V(PF[0] + 2 * u)) for u in range(4)]
    else: L += ['WAITVM df']
    st('df')
    TR = PF[2]; TI = PF[3]
    def cmulpk(t):
        o = []
        for r in range(4):
            xr, xi, wr, wi = V(XRr[t] + r), V(XIr[t] + r), V(WRr[t] + r), V(WIr[t] + r)
            o += ['v_mul_f32 %s, %s, %s' % (V(TR + r), xr, wr), 'v_mul_f32 %s, %s, %s' % (V(TI + r), xr, wi),
                  'v_fma_f32 %s, -%s, %s, %s' % (V(TR + r), xi, wi, V(TR + r)), 'v_fma_f32 %s, %s, %s, %s' % (V(TI + r), xi, wr, V(TI + r)),
                  'v_cvt_pk_bf16_f32 %s, %s, %s' % (V(PF[t] + r), V(TI + r), V(TR + r))]
        return o + ['ds_write_b128 %s, %s offset:%d' % (V(t0), V(PF[t], 4), t * 1024)]
    stg = lambda t, e0: [x for u in range(4) for x in
                         ('%s %s, %s, %s, %s' % (MFMA, V(XRr[t], 4), V(MM[e0][t][u], 4), V(DF[u], 4), V(XRr[t], 4) if u else '0'),
                          '%s %s, %s, %s, %s' % (MFMA, V(XIr[t], 4), V(MM[1 - e0][t][u], 4), V(DF[u], 4), V(XIr[t], 4) if u else '0'))]
    cm0 = cmulpk(0); sg1 = stg(1, 0)
    L += stg(0, 0) + sg1[:3] + sched(sg1[3:], [], [], cm0) + cm0 + cmulpk(1) + lsig(2, t3); st('sta')
    L += (['v_xor_b32 %s, 8, %s' % (V(vPv), V(vLW))] + lwait(2, t3, vPv)) if P('PAIR', 1) else lwait(2, t3); st('px')
    L += ['ds_read_b128 %s, %s offset:%d' % (V(DF[u], 4), V(t1), u * 1024) for u in range(4)]
    L += ['s_lshl_b32 %s, %s, 11' % (S(sT2), S(sW)), 's_add_u32 %s, %s, %d' % (S(sT2), S(sT2), BXC), 'v_add_u32 %s, %s, %s' % (V(t1), S(sT2), V(vL16)),
          'v_lshrrev_b32 %s, 3, %s' % (V(t0), V(vL)), 'v_and_b32 %s, 7, %s' % (V(t3), V(vL)), 'v_mul_u32_u24 %s, %d, %s' % (V(t0), B1_N, V(t0)),
          'v_lshl_add_u32 %s, %s, 4, %s' % (V(t0), V(t3), V(t0)), 's_add_u32 %s, %s, %d' % (S(sT2), S(sB1s), 8 * B1_N), 's_waitcnt lgkmcnt(0)']
    outb = lambda t: [x for r in range(4) for x in ('v_cvt_pk_bf16_f32 %s, %s, %s' % (V(PF[t] + r), V(XRr[t] + r), V(XIr[t] + r)),
                                                     'ds_write_b32 %s, %s offset:%d' % (V(t2), V(PF[t] + r), t * 2048 + r * 128))]
    ob0 = outb(0); sg1 = stg(1, 1)
    L += stg(0, 1) + sg1[:4] + sched(sg1[4:], [], [], ob0) + ob0 + outb(1) + lsig(3, t3); st('stb')
    L += lwait(3, t3); st('bx')
    L += ['LK bx%d ds_read_b128 %s, %s offset:%d' % (k, V(PF[2 + k], 4), V(t1), k * 1024) for k in range(2)]
    for k in range(2):
        L += ['WAITLK bx%d' % k, 'VM b1 buffer_store_dwordx4 %s, %s, %s, %s offen %s' % (V(PF[2 + k], 4), V(t0), S(rWS, 4), S(sT2 if k else sB1s), SC)]
    st('fft')

    pd = Alloc('v', big, NV)
    GF = [[pd(4) for ct in range(2)] for T in range(15)]
    yb0 = pd.next
    CS = [[pd(2) for r in range(4)] for a in range(2)]
    kR = pd(2); kA = pd(2); vDf = pd(); vUu = pd(); vK0 = pd(); an = pd(4, 1)
    if P('GPK', 0): cheb = lambda d, k, x1, x0: ['v_pk_fma_f32 %s, %s, %s, %s op_sel_hi:[0,1,1] neg_lo:[0,0,1] neg_hi:[0,0,1]' % (V(d, 2), V(k, 2), V(x1, 2), V(x0, 2))]
    else: cheb = lambda d, k, x1, x0: ['v_fma_f32 %s, %s, %s, -%s' % (V(d + hh), V(k), V(x1 + hh), V(x0 + hh)) for hh in range(2)]
    def gen_G(ct):
        o = []
        if ct == 0:
            o += sx(sG, [(sNB, 112), (sW, 32)], 0, sG2) + ['v_add_u32 %s, %s, %s' % (V(vDf), S(sG), V(vJ)), 'v_cvt_f32_u32 %s, %s' % (V(vDf), V(vDf)),
                  'v_lshlrev_b32 %s, 2, %s' % (V(vK0), V(vQ)), 'v_cvt_f32_u32 %s, %s' % (V(vK0), V(vK0))]
        else: o += ['v_add_f32 %s, %s, %s' % (V(vDf), f2u(16.0), V(vDf))]
        o += ['v_mul_f32 %s, %s, %s' % (V(vUu), S(sInv448), V(vDf)), 'v_mul_f32 %s, %s, %s' % (V(an), V(vK0), V(vUu)),
              'v_mul_f32 %s, %s, %s' % (V(t3), f2u(16.0), V(vUu)),
              'v_cos_f32 %s, %s' % (V(kR), V(vUu)), 'v_cos_f32 %s, %s' % (V(kA), V(t3)),
              'v_add_f32 %s, %s, %s' % (V(an + 1), V(an), V(vUu)), 'v_add_f32 %s, %s, %s' % (V(an + 2), V(an), V(t3)), 'v_add_f32 %s, %s, %s' % (V(an + 3), V(an + 1), V(t3)),
              'v_add_f32 %s, %s, %s' % (V(kR), V(kR), V(kR)), 'v_add_f32 %s, %s, %s' % (V(kA), V(kA), V(kA))]
        for a in range(2):
            for r in range(2):
                o += ['v_cos_f32 %s, %s' % (V(CS[a][r]), V(an + 2 * a + r)), 'v_sin_f32 %s, -%s' % (V(CS[a][r] + 1), V(an + 2 * a + r))]
        for r in (2, 3):
            for a in range(2): o += cheb(CS[a][r], kR, CS[a][r - 1], CS[a][r - 2])
        for T in range(15):
            a = T & 1
            if T >= 2: o += [x for r in range(4) for x in cheb(CS[a][r], kA, CS[1 - a][r], CS[a][r])]
            o += ['v_cvt_pk_bf16_f32 %s, %s, %s' % (V(GF[T][ct] + r), V(CS[a][r]), V(CS[a][r] + 1)) for r in range(4)]
        return o
    bfl = [['s_add_u32 %s, %s, 0x%x' % (S(sT2), S(sB1l), a * B1_C)] +
           ['VM bf%d buffer_load_dwordx2 %s, %s, %s, %s offen offset:%d %s' % (a, A(BF[a][u] + 2 * hh, 2), V(t0), S(rWS, 4), S(sT2), u * 1024 + hh * 128, SC)
            for u in range(2) for hh in range(2)] for a in range(4)]
    gg = gen_G(0) + gen_G(1); k0_ = len(gg) * P('FBPOS', 12) // 100
    L += ['v_lshlrev_b32 %s, 8, %s' % (V(t0), V(vQ)), 'v_lshl_add_u32 %s, %s, 3, %s' % (V(t0), V(vJ), V(t0)),
          'v_mul_u32_u24 %s, %d, %s' % (V(vPa), B1_N << P('FBG', 0), V(vJ)), 's_setprio %d' % P('PRG', 0)]
    if P('SFB', 0):
        L += gg[:k0_] + ['s_mov_b32 %s, 1' % S(sT2), 's_cmp_eq_u32 %s, 15' % S(sCF), 'WAITVM b1', 's_cbranch_scc1 L_nofb']
        L += ['s_atomic_add %s, %s, %s offset:%d' % (S(sT2), S(rWS, 2), S(sFB), (B1_N << P('FBG', 0)) * k) for k in range(16 >> P('FBG', 0))] + ['L_nofb:']
    else:
        L += gg[:k0_] + ['WAITVM b1', 's_mov_b64 exec, 0x%x' % ((1 << (16 >> P('FBG', 0))) - 1), 'VM fb buffer_atomic_add %s, %s, %s, %s offen sc1' % (V(vOne), V(vPa), S(rWS, 4), S(sFB)), 's_mov_b64 exec, -1']
    k1_ = len(gg) * P('FBI', 50) // 100; k2_ = len(gg) * P('FBC', 75) // 100
    bp_, bc_ = apoll('fb', [(sFA, 0), (sFA, B1_C), (sFA, 2 * B1_C), (sT3, 0)], sDFx)
    L += ['s_andn2_b32 %s, %s, %d' % (S(sT3), S(sN2f), (1 << P('FBG', 0)) - 1)] + sx(sFA, [(sT3, B1_N), (sW, 4 * B1_C)], B1_OFF + 2048) + ['s_cmp_eq_u32 %s, 3' % S(sW), 's_cselect_b32 %s, %d, %d' % (S(sT3), 0, 1), 's_mul_i32 %s, %s, %d' % (S(sT3), S(sT3), 3 * B1_C),
          's_add_u32 %s, %s, %s' % (S(sT3), S(sT3), S(sFA)), 's_add_u32 %s, %s, 16' % (S(sDFx), S(sTag))]
    st('b1d')
    if P('DIAGB', 0): L += ['s_waitcnt vmcnt(0)']; st('fba')
    L += gg[k0_:k1_] + bp_ + gg[k1_:k2_] + bc_ + flat(bfl); st('fb')
    L += gg[k2_:] + ['s_setprio %d' % P('PRS2', 1)]
    st('gen')
    yb = Alloc('v', yb0, NV)
    YR = [[yb(4) for tn in range(2)] for a in range(2)]; YI = [[yb(4) for tn in range(2)] for a in range(2)]
    L += ['s_lshl_b32 %s, %s, 13' % (S(sT2), S(sW)), 'v_add_u32 %s, %s, %s' % (V(t1), S(sT2), V(vFr))]
    L += ['v_mul_u32_u24 %s, 57344, %s' % (V(t2), V(vJ)), 'v_add_u32 %s, %s, %s' % (V(t2), V(t2), V(vQ8)),
          's_add_u32 %s, %s, %d' % (S(sT2), S(sM0x), BSL), 'v_add_u32 %s, %s, %s' % (V(vA1), S(sT2), V(vL16)), 'WAITVM g',
          's_lshl_b32 %s, %s, 9' % (S(sG), S(sW)), 'v_lshl_add_u32 %s, %s, 3, %s' % (V(t2), V(vL), S(sG)), 'ds_write_b64 %s, %s offset:%d' % (V(t2), V(vG, 2), GSL),
          'v_add_u32 %s, %s, %s' % (V(vA1), S(sM0x), V(vL16))] + lsig(12, t3)
    bfck = lambda a: ['WAITVM bf%d' % a]
    step6 = lambda a: ['%s %s, %s, %s, %s' % (MFMA, V(Y[a & 1][tn], 4), A(BF[a][u], 4), A(N[tn][u], 4), V(Y[a & 1][tn], 4) if u else '0')
                       for u in range(2) for tn in range(2) for (Y, N) in ((YR, NR), (YI, NI))]
    def packY(a):
        o = []
        for tn in range(2):
            for r in range(4):
                o += ['v_cvt_pk_bf16_f32 %s, %s, %s' % (V(YR[a & 1][tn] + r), V(YR[a & 1][tn] + r), V(YI[a & 1][tn] + r))]
            o += ['ds_write_b128 %s, %s offset:%d' % (V(t1), V(YR[a & 1][tn], 4), a * 2048 + tn * 1024)]
        return o
    L += bfck(0); st('bf0')
    L += step6(0)
    for a in range(1, 4):
        pk_ = packY(a - 1)
        L += bfck(a) + sched(step6(a), [], [], pk_) + pk_
    L += packY(3) + lsig(4, t3); st('s6a')
    L += lwait(4, t3)
    st('s6')
    NY = 16
    YF = [4 * n for n in range(NY)]
    AC = [[yb0 + 16 + 8 * ct + 4 * rt for rt in range(2)] for ct in range(2)]
    seq = [(T, rt) for T in range(15) for rt in range(2)]
    rdY = lambda n: 'LK y%d ds_read_b128 %s, %s offset:%d' % (n, A(YF[n % NY], 4), V(vFr), seq[n][0] * 2048 + seq[n][1] * 1024)
    LA = 14
    L += [rdY(n) for n in range(LA)]
    for n, (T, rt) in enumerate(seq):
        if n % 2 == 0: L += ['WAITLK y%d' % (n + 1)]
        L += ['%s %s, %s, %s, %s' % (MFMA, V(AC[0][rt], 4), V(GF[T][0], 4), A(YF[n % NY], 4), V(AC[0][rt], 4) if T else '0')]
        if n + LA < len(seq): L += [rdY(n + LA)]
        L += ['%s %s, %s, %s, %s' % (MFMA, V(AC[1][rt], 4), V(GF[T][1], 4), A(YF[n % NY], 4), V(AC[1][rt], 4) if T else '0')]
    st('mainD')
    L += ['ds_write_b128 %s, %s offset:%d' % (V(vA1), V(AC[a][rt], 4), ASL + (2 * a + rt) * 1024) for rt in range(2) for a in range(2)]
    L += lsig(11, t3) + ['s_cmp_eq_u32 %s, 3' % S(sW), 's_cbranch_scc1 L_w3']
    L += ['s_branch L_fin', 'L_w3:', 's_cmp_lg_u32 s2, 120', 's_cbranch_scc1 L_fin', 's_mov_b32 %s, 0x%x' % (S(sT2), A1_OFF + A1_D + 15 * A1_B + 3 * A1_I), 's_add_u32 %s, %s, 0x%x' % (S(sT3), S(sT2), 8 * A1_I)] + spoll('ep', [(sT2, 0), (sT2, 4 * A1_I), (sT3, 0), (sT3, 4 * A1_I)], sTag) + ['s_mov_b32 %s, 0x%x' % (S(sT), EP_OFF)] + setflag(sT) + ['L_fin:']
    finish(L, st, 'S')
    LS = L
    if STAMP: open('stamps.txt', 'w').write(' '.join(stamps['M']) + ' / ' + ' '.join(stamps['S']))
    print('role M vgpr', nvM, 'instr', len(LM), ' role S big', NB, 'instr', len(LS), file=sys.stderr)
    if P('HACKACT', 0): LM = [l.replace(' sc1', '') if l.startswith('VM act') else l for l in LM]
    sf = os.environ.get('STF', '').replace('_', ' ')
    if sf:
        rp = lambda l: l.replace(' sc1', ' ' + sf) if (l.startswith('VM ') and 'store_dwordx4' in l) else l
        LM = [rp(l) for l in LM]; LS = [rp(l) for l in LS]
    if P('PFNT', 0): LS = [l + ' nt' if (l.startswith('VM pf') and not l.endswith('sc1')) else l for l in LS]
    if P('W1NT', 0):
        f_ = lambda l: l.replace(' offen lds', ' offen nt lds') if (l.startswith('VM st') and S(rW1, 4) in l) else l
        LS = [f_(l) for l in LS]; LM = [f_(l) for l in LM]
    of = os.environ.get('OUTF', '').replace('_', ' ')
    LM = [l + ' ' + of if l.startswith('VM out') else l for l in LM]; LS = [l + ' ' + of if l.startswith('VM out') else l for l in LS]
    return H + outline(resolve(LM)) + outline(resolve(LS)) + slow + ['L_end:', 's_endpgm'], NV, NA


DOC = """; ---------------------------------------------------------------------------------------------------------------
; Workgroups hand data over through d_ws: write-through (sc1) stores, vmcnt drain, then a flag word / counter holding a
; scalar glc loads (bounded) and read with sc1 loads.  Nothing depends on XCD placement except speed.
; ---------------------------------------------------------------------------------------------------------------"""

def build(path):
    hdr = open('cdna_kernels/%s.s.ref' % NAME).read().split('\n')
    top = [l for l in hdr if l.startswith(';') and '@launch' not in l]
    L, nv, na = build_kernel()
    Pd, nn = pad_hazards(L)
    print('lines', len(Pd), 'nops', nn, file=sys.stderr)
    out = top + ['; @launch grid=(256,1,1) block=(512,1,1) lds=%d' % LDS_SZ] + DOC.split('\n') + ['.amdgcn_target "amdgcn-amd-amdhsa--gfx950"', '.text', '.globl %s' % LABEL]
    out += [('    ' + l if not (l.endswith(':') or l.startswith('.')) else l) for l in Pd]
    out += ['.section .rodata,"a"', '.p2align 6', '.amdhsa_kernel %s' % LABEL,
            '  .amdhsa_next_free_vgpr %d' % (nv + na), '  .amdhsa_next_free_sgpr 102', '  .amdhsa_accum_offset %d' % nv,
            '  .amdhsa_group_segment_fixed_size 0', '  .amdhsa_kernarg_size 88', '  .amdhsa_user_sgpr_count 2',
            '  .amdhsa_user_sgpr_kernarg_segment_ptr 1', '  .amdhsa_system_sgpr_workgroup_id_x 1', '.end_amdhsa_kernel']
    open(path, 'w').write('\n'.join(out) + '\n')

if __name__ == '__main__':
    build(sys.argv[1] if len(sys.argv) > 1 else 'cdna_kernels/%s.s' % NAME)
```
